```python
import torch

def _softmax(x, axis=-1):
    return torch.softmax(x, dim=axis)
def _gelu(x):
    return torch.nn.functional.gelu(x, approximate="tanh")
def _silu(x):
    return torch.nn.functional.silu(x)
def _sigmoid(x):
    return torch.sigmoid(x)
def _layernorm(x, axis=-1, eps=1e-5):
    m = x.mean(dim=axis, keepdim=True)
    v = x.var(dim=axis, keepdim=True, unbiased=False)
    return (x - m) / torch.sqrt(v + eps)
def _scatter_add(tgt, idx, src, axis=0):
    return tgt.clone().index_add_(axis, idx, src)
def _segment_sum(src, seg, n):
    out = torch.zeros((n,) + src.shape[1:], dtype=src.dtype)
    return out.index_add_(0, seg, src)
def _pad(x, pw):
    flat = tuple(v for pair in reversed(pw) for v in pair)
    return torch.nn.functional.pad(x, flat)

kernel_name = 'gated_mix__ssm_conv_s5__mixer_token_mlp__prompt'

def setup_inputs():

    _w = (lambda a: (lambda t: t.to(torch.bfloat16) if t.is_floating_point() else t)(torch.as_tensor(a)))
    def _A_setup():
        B, S, D = 1, 2048, 512
        P = D
        Lambda_re = -0.5 * (lambda _x: torch.exp(torch.as_tensor(_x)))((lambda *s: torch.randn(*s, dtype=torch.bfloat16) * 0.2)(P))
        Lambda_im = (lambda *s: torch.randn(*s, dtype=torch.bfloat16) * 0.4)(P) * 1.0
        B_re = (lambda *s: torch.randn(*s, dtype=torch.bfloat16) * 0.2)(P, D) * (D ** -0.5)
        B_im = (lambda *s: torch.randn(*s, dtype=torch.bfloat16) * 0.2)(P, D) * (D ** -0.5)
        C_re = (lambda *s: torch.randn(*s, dtype=torch.bfloat16) * 0.2)(D, P) * (P ** -0.5)
        C_im = (lambda *s: torch.randn(*s, dtype=torch.bfloat16) * 0.2)(D, P) * (P ** -0.5)
        log_dt = (lambda *s: torch.randn(*s, dtype=torch.bfloat16) * 0.2)(P) * 0.3 - 2.0
        Dskip = (lambda *s: torch.randn(*s, dtype=torch.bfloat16) * 0.05)(D)
        return {
            "x": _w((lambda *s: torch.randn(*s, dtype=torch.bfloat16) * 0.05)(B, S, D)),
            "Lambda_re": _w(Lambda_re),
            "Lambda_im": _w(Lambda_im),
            "B_re": _w(B_re),
            "B_im": _w(B_im),
            "C_re": _w(C_re),
            "C_im": _w(C_im),
            "log_dt": _w(log_dt),
            "Dskip": _w(Dskip),
        }
    _A_in = _A_setup()

    def _B_setup():
        B, S, D, F = 1, 2048, 512, 1376
        return {
            "x": _w((lambda *s: torch.randn(*s, dtype=torch.bfloat16) * 0.05)(B, S, D)),
            "w1": _w((lambda *s: torch.randn(*s, dtype=torch.bfloat16) * 0.2)(S, F) * (S ** -0.5)),
            "b1": _w((lambda *s: torch.randn(*s, dtype=torch.bfloat16) * 3.2)(F) * 0.02),
            "w2": _w((lambda *s: torch.randn(*s, dtype=torch.bfloat16) * 0.05)(F, S) * (F ** -0.5)),
            "b2": _w((lambda *s: torch.randn(*s, dtype=torch.bfloat16) * 0.1)(S) * 0.02),
        }
    _B_in = _B_setup()

    return {
        "A_x": _A_in["x"],
        "A_Lambda_re": _A_in["Lambda_re"],
        "A_Lambda_im": _A_in["Lambda_im"],
        "A_B_re": _A_in["B_re"],
        "A_B_im": _A_in["B_im"],
        "A_C_re": _A_in["C_re"],
        "A_C_im": _A_in["C_im"],
        "A_log_dt": _A_in["log_dt"],
        "A_Dskip": _A_in["Dskip"],
        "B_x": _B_in["x"],
        "B_w1": _B_in["w1"],
        "B_b1": _B_in["b1"],
        "B_w2": _B_in["w2"],
        "B_b2": _B_in["b2"],
        "gate_w": _w((lambda *s: torch.randn(*s, dtype=torch.bfloat16) * 0.05)(512) * 16.0),
    }

def reference(A_x, A_Lambda_re, A_Lambda_im, A_B_re, A_B_im, A_C_re, A_C_im, A_log_dt, A_Dskip, B_x, B_w1, B_b1, B_w2, B_b2, gate_w):
    def _A_ref(x, Lambda_re, Lambda_im, B_re, B_im, C_re, C_im, log_dt, Dskip):
        Bsz, L, H = x.shape
        Lam = Lambda_re + 1j * Lambda_im
        Bmat = B_re + 1j * B_im
        Cmat = C_re + 1j * C_im
        dt = torch.exp(log_dt)
        Lam_bar = torch.exp(dt * Lam)
        B_bar = ((Lam_bar - 1.0) / Lam)[:, None] * Bmat
        Bu = torch.einsum("bld,pd->blp", x + 0j, B_bar)
        h = torch.zeros_like(Bu[:, 0, :])
        hs = []
        for t in range(L):
            h = Lam_bar[None, :] * h + Bu[:, t, :]
            hs.append(h)
        hseq = torch.stack(hs, 1)
        y = 2.0 * torch.einsum("blp,dp->bld", hseq, Cmat).real + x * Dskip[None, None, :]
        return y

    def _B_ref(x, w1, b1, w2, b2):
        B, S, D = x.shape
        h = _layernorm(x, axis=-1)
        u = torch.einsum("bsd,sf->bdf", h, w1) + b1
        u = _gelu(u)
        y = torch.einsum("bdf,fs->bds", u, w2) + b2
        return (lambda x, *d: x.permute(*d))(y, 0, 2, 1)

    x = A_x
    g = _sigmoid((x * gate_w).sum(-1, keepdims=True))
    a = _A_ref(x, A_Lambda_re, A_Lambda_im, A_B_re, A_B_im, A_C_re, A_C_im, A_log_dt, A_Dskip)
    b = _B_ref(x, B_w1, B_b1, B_w2, B_b2)
    return g * a + (1 - g) * b
```

```python
import sys

WS_H  = 0
WS_G  = 2 << 20
WS_S  = 4 << 20
WS_E  = 12 << 20
WS_HB = 16 << 20
WS_U  = 20 << 20
WS_SZ = 24 << 20
UP = 2816
LOG2E = 0x3fb8aa3b
INV2PI = 0x3e22f983

class Kern:
    def __init__(self, name):
        self.name = name
        self.L = []
        self.vmq = []
        self.nlab = 0
    def e(self, s):
        self.L.append('    ' + s)
    def c(self, s):
        self.L.append('    ; ' + s)
    def label(self, l):
        self.L.append(l + ':')
    def vm(self, s, tag):
        self.e(s); self.vmq.append(tag)
    def wait_vm(self, tag):
        idxs = [i for i, t in enumerate(self.vmq) if t == tag]
        if not idxs:
            return
        idx = idxs[-1]
        n = len(self.vmq) - 1 - idx
        self.e('s_waitcnt vmcnt(%d)' % min(n, 63))
        self.vmq = self.vmq[idx + 1:]
    def wait_vm_all(self):
        self.e('s_waitcnt vmcnt(0)'); self.vmq = []
    def nop(self, n):
        while n > 0:
            k = min(n, 16)
            self.e('s_nop %d' % (k - 1)); n -= k

def v(i, n=1):
    return 'v%d' % i if n == 1 else 'v[%d:%d]' % (i, i + n - 1)
def s(i, n=1):
    return 's%d' % i if n == 1 else 's[%d:%d]' % (i, i + n - 1)

def P(k): return 36 + 2 * k
A_X, A_LRE, A_LIM, A_BRE, A_BIM, A_CRE, A_CIM, A_LDT, A_DSK, B_X, B_W1, B_B1, B_W2, B_B2, GATE, OUT, DBG, WS = range(18)

def load_kernargs(k):
    k.e('s_load_dwordx16 s[36:51], s[0:1], 0')
    k.e('s_load_dwordx16 s[52:67], s[0:1], 64')
    k.e('s_load_dwordx4 s[68:71], s[0:1], 128')

def srd(k, dst, ptr, nbytes):
    k.e('s_mov_b32 s%d, s%d' % (dst, P(ptr)))
    k.e('s_and_b32 s%d, s%d, 0xffff' % (dst + 1, P(ptr) + 1))
    k.e('s_mov_b32 s%d, 0x%x' % (dst + 2, nbytes))
    k.e('s_mov_b32 s%d, 0x00020000' % (dst + 3))

def cfma(k, dr, di, ar, ai, br, bi, cr, ci):
    k.e('v_fma_f32 %s, %s, %s, %s' % (v(dr), v(ar), v(br), v(cr)))
    k.e('v_fma_f32 %s, %s, %s, %s' % (v(di), v(ar), v(bi), v(ci)))
    k.e('v_fma_f32 %s, -%s, %s, %s' % (v(dr), v(ai), v(bi), v(dr)))
    k.e('v_fma_f32 %s, %s, %s, %s' % (v(di), v(ai), v(br), v(di)))

def cmul(k, dr, di, ar, ai, br, bi):
    k.e('v_mul_f32 %s, %s, %s' % (v(dr), v(ar), v(br)))
    k.e('v_mul_f32 %s, %s, %s' % (v(di), v(ar), v(bi)))
    k.e('v_fma_f32 %s, -%s, %s, %s' % (v(dr), v(ai), v(bi), v(dr)))
    k.e('v_fma_f32 %s, %s, %s, %s' % (v(di), v(ai), v(br), v(di)))

def rbf(k, a, t):
    k.e('v_cvt_pk_bf16_f32 %s, %s, %s' % (v(t), v(a), v(a)))
    k.e('v_lshlrev_b32 %s, 16, %s' % (v(a), v(t)))

def rbf2(k, a, b, t):
    k.e('v_cvt_pk_bf16_f32 %s, %s, %s' % (v(t), v(a), v(b)))
    k.e('v_lshlrev_b32 %s, 16, %s' % (v(a), v(t)))
    k.e('v_and_b32 %s, 0xffff0000, %s' % (v(b), v(t)))

def lam_params(k, lre, lim, ldt, Lr, Li, t0, t1):
    k.e('v_lshlrev_b32 %s, 16, %s' % (v(lre), v(lre)))
    k.e('v_lshlrev_b32 %s, 16, %s' % (v(lim), v(lim)))
    k.e('v_lshlrev_b32 %s, 16, %s' % (v(ldt), v(ldt)))
    k.e('v_mul_f32 %s, 0x%x, %s' % (v(t0), LOG2E, v(ldt)))
    k.e('v_exp_f32 %s, %s' % (v(t0), v(t0)))
    k.nop(1)
    rbf(k, t0, t1)
    k.e('v_mul_f32 %s, %s, %s' % (v(t1), v(t0), v(lre)))
    k.e('v_mul_f32 %s, %s, %s' % (v(t0), v(t0), v(lim)))
    k.e('v_mul_f32 %s, 0x%x, %s' % (v(t1), LOG2E, v(t1)))
    k.e('v_mul_f32 %s, 0x%x, %s' % (v(t0), INV2PI, v(t0)))
    k.e('v_exp_f32 %s, %s' % (v(t1), v(t1)))
    k.e('v_fract_f32 %s, %s' % (v(t0), v(t0)))
    k.e('v_cos_f32 %s, %s' % (v(Lr), v(t0)))
    k.e('v_sin_f32 %s, %s' % (v(Li), v(t0)))
    k.nop(1)
    k.e('v_mul_f32 %s, %s, %s' % (v(Lr), v(Lr), v(t1)))
    k.e('v_mul_f32 %s, %s, %s' % (v(Li), v(Li), v(t1)))

def finish(k, nvgpr, nsgpr=96):
    out = []
    out.append('.globl %s' % k.name)
    out.append('.p2align 8')
    out.append('.type %s,@function' % k.name)
    out.append('%s:' % k.name)
    out += k.L
    desc = []
    desc.append('.p2align 6')
    desc.append('.amdhsa_kernel %s' % k.name)
    desc.append('  .amdhsa_next_free_vgpr %d' % nvgpr)
    desc.append('  .amdhsa_next_free_sgpr %d' % nsgpr)
    desc.append('  .amdhsa_accum_offset %d' % ((nvgpr + 3) // 4 * 4))
    desc.append('  .amdhsa_group_segment_fixed_size 0')
    desc.append('  .amdhsa_kernarg_size 144')
    desc.append('  .amdhsa_user_sgpr_count 2')
    desc.append('  .amdhsa_user_sgpr_kernarg_segment_ptr 1')
    desc.append('  .amdhsa_system_sgpr_workgroup_id_x 1')
    desc.append('.end_amdhsa_kernel')
    return out, desc

def gen_k1():
    k = Kern('k1_kernel')
    NS = 6; STG = 24576; NST = 8
    k.e('s_cmp_ge_u32 s2, 256')
    k.e('s_cbranch_scc1 K1_END')
    load_kernargs(k)
    LANE, T0, T1, T2, T3 = 1, 2, 3, 4, 5
    k.e('v_and_b32 v1, 63, v0')
    k.e('v_lshrrev_b32 v2, 6, v0')
    k.nop(1)
    k.e('v_readfirstlane_b32 s3, v2')
    k.e('s_and_b32 s72, s2, 7')
    k.e('s_lshr_b32 s73, s2, 3')
    k.e('s_lshr_b32 s74, s73, 4')
    k.e('s_lshl_b32 s72, s72, 1')
    k.e('s_add_u32 s72, s72, s74')
    k.e('s_and_b32 s73, s73, 15')
    k.e('s_lshl_b32 s74, s72, 7')
    k.e('s_lshl_b32 s75, s73, 5')
    k.e('s_waitcnt lgkmcnt(0)')
    srd(k, 4, A_X, 2 << 20)
    srd(k, 16, WS, WS_SZ)
    srd(k, 20, A_LRE, 1024); srd(k, 24, A_LIM, 1024); srd(k, 28, A_LDT, 1024); srd(k, 32, GATE, 1024)
    k.e('s_cmp_ge_u32 s3, 2')
    k.e('s_cselect_b32 s8, s%d, s%d' % (P(A_BIM), P(A_BRE)))
    k.e('s_cselect_b32 s9, s%d, s%d' % (P(A_BIM) + 1, P(A_BRE) + 1))
    k.e('s_and_b32 s9, s9, 0xffff')
    k.e('s_mov_b32 s10, 0x80000')
    k.e('s_mov_b32 s11, 0x00020000')
    XR0, XR1, GW = 200, 204, 208
    k.e('s_lshl_b32 s76, s73, 3')
    k.e('s_add_u32 s76, s76, s74')
    k.e('s_lshl_b32 s77, s3, 1')
    k.e('s_add_u32 s76, s76, s77')
    k.e('s_lshl_b32 s77, s76, 10')
    k.e('v_lshlrev_b32 v2, 4, v1')
    k.vm('buffer_load_dwordx4 %s, v2, s[4:7], s77 offen' % v(XR0, 4), 'ln')
    k.vm('buffer_load_dwordx4 %s, v2, s[4:7], s77 offen offset:1024' % v(XR1, 4), 'ln')
    k.vm('buffer_load_dwordx4 %s, v2, s[32:35], 0 offen' % v(GW, 4), 'ln')
    PLRE, PLIM, PLDT = 212, 213, 214
    k.e('v_and_b32 v3, 31, v1')
    k.e('v_add_u32 v4, s75, v3')
    k.e('v_lshlrev_b32 v4, 1, v4')
    k.vm('buffer_load_ushort %s, v4, s[20:23], 0 offen' % v(PLRE), 'ln')
    k.vm('buffer_load_ushort %s, v4, s[24:27], 0 offen' % v(PLIM), 'ln')
    k.vm('buffer_load_ushort %s, v4, s[28:31], 0 offen' % v(PLDT), 'ln')
    VA = 8
    VB = 12
    k.e('v_lshrrev_b32 v4, 3, v1')
    k.e('v_lshrrev_b32 v5, 4, v1')
    k.e('v_and_b32 v6, 7, v1')
    k.e('s_lshl_b32 s78, s3, 5')
    k.e('s_add_u32 s78, s78, s74')
    for j in range(4):
        k.e('v_add_u32 v7, %d, v5' % (4 * j))
        k.e('v_and_b32 v7, 7, v7')
        k.e('v_xor_b32 v7, v7, v6')
        k.e('v_lshlrev_b32 v7, 4, v7')
        k.e('v_add_u32 %s, s78, v4' % v(VA + j))
        k.e('v_add_u32 %s, %d, %s' % (v(VA + j), 7 * j, v(VA + j)))
        k.e('v_lshlrev_b32 %s, 10, %s' % (v(VA + j), v(VA + j)))
        k.e('v_add_u32 %s, %s, v7' % (v(VA + j), v(VA + j)))
    k.e('s_and_b32 s79, s3, 1')
    k.e('s_lshl_b32 s79, s79, 4')
    k.e('s_add_u32 s79, s79, s75')
    for j in range(2):
        k.e('v_add_u32 v7, %d, v5' % (4 * j))
        k.e('v_and_b32 v7, 7, v7')
        k.e('v_xor_b32 v7, v7, v6')
        k.e('v_lshlrev_b32 v7, 4, v7')
        k.e('v_add_u32 %s, s79, v4' % v(VB + j))
        k.e('v_add_u32 %s, %d, %s' % (v(VB + j), 7 * j, v(VB + j)))
        k.e('v_lshlrev_b32 %s, 10, %s' % (v(VB + j), v(VB + j)))
        k.e('v_add_u32 %s, %s, v7' % (v(VB + j), v(VB + j)))
    k.e('s_lshl_b32 s80, s3, 12')
    k.e('s_lshl_b32 s81, s3, 11')
    k.e('s_add_u32 s81, s81, 16384')
    def issue_stage(st):
        slot = (st % NS) * STG
        k.e('s_mov_b32 s82, %d' % (st * 128))
        k.e('s_add_u32 m0, s80, %d' % slot)
        k.nop(1)
        for j in range(4):
            k.vm('buffer_load_dwordx4 %s, s[4:7], s82 offen offset:%d lds' % (v(VA + j), 1024 * j), 'st%d' % st)
        k.e('s_add_u32 m0, s81, %d' % slot)
        k.nop(1)
        for j in range(2):
            k.vm('buffer_load_dwordx4 %s, s[8:11], s82 offen offset:%d lds' % (v(VB + j), 1024 * j), 'st%d' % st)
    for st in range(NS):
        issue_stage(st)
    PA = 16
    PB = 28
    k.e('v_lshrrev_b32 v4, 5, v1')
    k.e('v_lshrrev_b32 v5, 1, v3')
    k.e('v_and_b32 v5, 7, v5')
    k.e('v_xor_b32 v5, v5, v4')
    k.e('v_lshlrev_b32 v5, 4, v5')
    k.e('v_lshl_add_u32 v5, v3, 7, v5')
    for kk in range(4):
        k.e('v_xor_b32 %s, %d, v5' % (v(PB + kk), kk << 5))
        k.e('v_add_u32 %s, s80, %s' % (v(PA + kk), v(PB + kk)))
        for st in (1, 2):
            k.e('v_add_u32 %s, %d, %s' % (v(PB + 4 * st + kk), 49152 * st, v(PB + kk)))
            k.e('v_add_u32 %s, %d, %s' % (v(PA + 4 * st + kk), 49152 * st, v(PA + kk)))
    k.wait_vm('ln')
    X = [100, 110]
    G = 120
    def unpack8(dst, src):
        for i in range(4):
            k.e('v_lshlrev_b32 %s, 16, %s' % (v(dst + 2 * i), v(src + i)))
            k.e('v_and_b32 %s, 0xffff0000, %s' % (v(dst + 2 * i + 1), v(src + i)))
    unpack8(X[0], XR0); unpack8(X[1], XR1); unpack8(G, GW)
    SUM = [130, 131]; GS = [132, 133]; TT = 134
    for r in range(2):
        k.e('v_add_f32 %s, %s, %s' % (v(SUM[r]), v(X[r]), v(X[r] + 1)))
        for i in range(2, 8):
            k.e('v_add_f32 %s, %s, %s' % (v(SUM[r]), v(SUM[r]), v(X[r] + i)))
        for i in range(8):
            k.e('v_mul_f32 %s, %s, %s' % (v(TT + i), v(X[r] + i), v(G + i)))
        for i in range(0, 8, 2):
            rbf2(k, TT + i, TT + i + 1, TT + 8)
        k.e('v_add_f32 %s, %s, %s' % (v(GS[r]), v(TT), v(TT + 1)))
        for i in range(2, 8):
            k.e('v_add_f32 %s, %s, %s' % (v(GS[r]), v(GS[r]), v(TT + i)))
    def wave_reduce(regs, sdst):
        for ctl in ('quad_perm:[1,0,3,2] row_mask:0xf bank_mask:0xf', 'quad_perm:[2,3,0,1] row_mask:0xf bank_mask:0xf',
                    'row_half_mirror row_mask:0xf bank_mask:0xf', 'row_mirror row_mask:0xf bank_mask:0xf',
                    'row_bcast:15 row_mask:0xa bank_mask:0xf', 'row_bcast:31 row_mask:0xc bank_mask:0xf'):
            k.nop(2)
            for r in regs:
                k.e('v_add_f32_dpp %s, %s, %s %s' % (v(r), v(r), v(r), ctl))
        k.nop(1)
        for r, sd in zip(regs, sdst):
            k.e('v_readlane_b32 s%d, %s, 63' % (sd, v(r)))
        k.nop(2)
    wave_reduce([SUM[0], SUM[1], GS[0], GS[1]], [84, 85, 86, 87])
    MEAN = [140, 141]; SQ = [142, 143]
    for r in range(2):
        k.e('v_mov_b32 %s, 0x3b000000' % v(MEAN[r]))
        k.e('v_mul_f32 %s, s%d, %s' % (v(MEAN[r]), 84 + r, v(MEAN[r])))
        k.e('v_sub_f32 %s, %s, %s' % (v(TT), v(X[r]), v(MEAN[r])))
        k.e('v_mul_f32 %s, %s, %s' % (v(SQ[r]), v(TT), v(TT)))
        for i in range(1, 8):
            k.e('v_sub_f32 %s, %s, %s' % (v(TT), v(X[r] + i), v(MEAN[r])))
            k.e('v_fmac_f32 %s, %s, %s' % (v(SQ[r]), v(TT), v(TT)))
    wave_reduce(SQ, [88, 89])
    HO = [150, 154]
    for r in range(2):
        SD = 144; RC = 145; Q = 146; E_ = 147
        k.e('v_mov_b32 %s, 0x3b000000' % v(SD))
        k.e('v_mul_f32 %s, s%d, %s' % (v(SD), 88 + r, v(SD)))
        rbf(k, SD, TT)
        k.e('v_add_f32 %s, 0x3727c5ac, %s' % (v(SD), v(SD)))
        rbf(k, SD, TT)
        k.e('v_sqrt_f32 %s, %s' % (v(SD), v(SD)))
        k.nop(1)
        rbf(k, SD, TT)
        k.e('v_rcp_f32 %s, %s' % (v(RC), v(SD)))
        rbf(k, MEAN[r], TT)
        for i in range(8):
            k.e('v_sub_f32 %s, %s, %s' % (v(X[r] + i), v(X[r] + i), v(MEAN[r])))
        for i in range(0, 8, 2):
            rbf2(k, X[r] + i, X[r] + i + 1, TT)
        for i in range(8):
            k.e('v_mul_f32 %s, %s, %s' % (v(Q), v(X[r] + i), v(RC)))
            k.e('v_fma_f32 %s, -%s, %s, %s' % (v(E_), v(Q), v(SD), v(X[r] + i)))
            k.e('v_fma_f32 %s, %s, %s, %s' % (v(X[r] + i), v(E_), v(RC), v(Q)))
        for i in range(4):
            k.e('v_cvt_pk_bf16_f32 %s, %s, %s' % (v(HO[r] + i), v(X[r] + 2 * i), v(X[r] + 2 * i + 1)))
        k.e('v_mov_b32 %s, s%d' % (v(GS[r]), 86 + r))
        rbf(k, GS[r], TT)
        k.e('v_mul_f32 %s, 0x%x, %s' % (v(GS[r]), LOG2E | 0x80000000, v(GS[r])))
        k.e('v_exp_f32 %s, %s' % (v(GS[r]), v(GS[r])))
        k.nop(1)
        k.e('v_add_f32 %s, 1.0, %s' % (v(GS[r]), v(GS[r])))
        k.e('v_rcp_f32 %s, %s' % (v(GS[r]), v(GS[r])))
        k.nop(1)
        rbf(k, GS[r], TT)
    k.e('s_add_u32 s83, s77, %d' % WS_H)
    k.vm('buffer_store_dwordx4 %s, v2, s[16:19], s83 offen' % v(HO[0], 4), 'lnst')
    k.vm('buffer_store_dwordx4 %s, v2, s[16:19], s83 offen offset:1024' % v(HO[1], 4), 'lnst')
    k.e('s_lshl_b32 s83, s76, 2')
    k.e('s_add_u32 s83, s83, %d' % WS_G)
    k.e('v_mov_b32 v6, 0')
    k.e('s_mov_b64 exec, 1')
    k.vm('buffer_store_dwordx2 %s, v6, s[16:19], s83 offen' % v(GS[0], 2), 'lnst')
    k.e('s_mov_b64 exec, -1')
    LR, LI = 160, 161
    L2R, L2I, L3R, L3I, L4R, L4I = 162, 163, 164, 165, 166, 167
    lam_params(k, PLRE, PLIM, PLDT, LR, LI, 168, 169)
    cmul(k, L2R, L2I, LR, LI, LR, LI)
    cmul(k, L3R, L3I, L2R, L2I, LR, LI)
    cmul(k, L4R, L4I, L2R, L2I, L2R, L2I)
    ACR, ACI = 40, 56
    FA, FBR, FBI = 72, 88, 104
    for st in range(NST):
        k.wait_vm('st%d' % st)
        k.e('s_barrier')
        if st >= 1 and st + NS - 1 < NST:
            issue_stage(st + NS - 1)
        slot = st % NS
        sset = slot // 2
        off = (slot % 2) * STG
        for kk in range(4):
            k.e('ds_read_b128 %s, %s offset:%d' % (v(FA + 4 * kk, 4), v(PA + 4 * sset + kk), off))
            k.e('ds_read_b128 %s, %s offset:%d' % (v(FBR + 4 * kk, 4), v(PB + 4 * sset + kk), off + 16384))
            k.e('ds_read_b128 %s, %s offset:%d' % (v(FBI + 4 * kk, 4), v(PB + 4 * sset + kk), off + 16384 + 4096))
        for kk in range(4):
            k.e('s_waitcnt lgkmcnt(%d)' % (9 - 3 * kk))
            c = '0' if (st == 0 and kk == 0) else v(ACR, 16)
            k.e('v_mfma_f32_32x32x16_bf16 %s, %s, %s, %s' % (v(ACR, 16), v(FA + 4 * kk, 4), v(FBR + 4 * kk, 4), c))
            c = '0' if (st == 0 and kk == 0) else v(ACI, 16)
            k.e('v_mfma_f32_32x32x16_bf16 %s, %s, %s, %s' % (v(ACI, 16), v(FA + 4 * kk, 4), v(FBI + 4 * kk, 4), c))
    k.nop(13)
    for j in range(1, 4):
        for q in range(4):
            r = 4 * q + j
            cfma(k, ACR + r, ACI + r, LR, LI, ACR + r - 1, ACI + r - 1, ACR + r, ACI + r)
    EV, OD = 170, 178
    for q in range(4):
        k.e('v_mov_b32 %s, %s' % (v(EV + q), v(ACR + 4 * q + 3)))
        k.e('v_mov_b32 %s, %s' % (v(OD + q), v(ACR + 4 * q + 3)))
        k.e('v_mov_b32 %s, %s' % (v(EV + 4 + q), v(ACI + 4 * q + 3)))
        k.e('v_mov_b32 %s, %s' % (v(OD + 4 + q), v(ACI + 4 * q + 3)))
    k.nop(2)
    for q in range(8):
        k.e('v_permlane32_swap_b32 %s, %s' % (v(EV + q), v(OD + q)))
    k.nop(2)
    CR, CI = 186, 72
    k.e('v_mov_b32 %s, 0' % v(CR)); k.e('v_mov_b32 %s, 0' % v(CI))
    k.e('v_mov_b32 %s, %s' % (v(CR + 1), v(EV))); k.e('v_mov_b32 %s, %s' % (v(CI + 1), v(EV + 4)))
    for i in range(1, 8):
        er = (EV if i % 2 == 0 else OD) + i // 2
        cfma(k, CR + i + 1, CI + i + 1, L4R, L4I, CR + i, CI + i, er, er + 4)
    k.e('v_cmp_lt_u32 vcc, 31, v1')
    OWR, OWI = 84, 88
    k.nop(1)
    for q in range(4):
        k.e('v_cndmask_b32 %s, %s, %s, vcc' % (v(OWR + q), v(CR + 2 * q), v(CR + 2 * q + 1)))
        k.e('v_cndmask_b32 %s, %s, %s, vcc' % (v(OWI + q), v(CI + 2 * q), v(CI + 2 * q + 1)))
    PO = 96
    LP = [(LR, LI), (L2R, L2I), (L3R, L3I), (L4R, L4I)]
    for q in range(4):
        for j in range(4):
            r = 4 * q + j
            cfma(k, PO + 2 * r, PO + 2 * r + 1, LP[j][0], LP[j][1], OWR + q, OWI + q, ACR + r, ACI + r)
    k.e('v_mov_b32 v92, %s' % v(CR + 8)); k.e('v_mov_b32 v93, %s' % v(CI + 8))
    k.e('v_lshrrev_b32 v4, 5, v1')
    k.e('v_lshlrev_b32 v4, 2, v4')
    k.e('v_add_u32 v4, s78, v4')
    k.e('v_lshlrev_b32 v4, 12, v4')
    k.e('v_add_u32 v5, s75, v3')
    k.e('v_lshlrev_b32 v5, 3, v5')
    k.e('v_add_u32 v4, v4, v5')
    for q in range(4):
        for j in range(4):
            r = 4 * q + j
            k.e('s_mov_b32 s82, %d' % (WS_S + (8 * q + j) * 4096))
            k.vm('buffer_store_dwordx2 %s, v4, s[16:19], s82 offen' % v(PO + 2 * r, 2), 'out')
    k.e('s_lshr_b32 s82, s78, 5')
    k.e('s_lshl_b32 s82, s82, 12')
    k.e('s_add_u32 s82, s82, %d' % WS_E)
    k.vm('buffer_store_dwordx2 v[92:93], v5, s[16:19], s82 offen', 'out')
    k.label('K1_END')
    k.e('s_endpgm')
    return finish(k, 216)

def dma_voff(k, dst, rowbase_s, pitch_s, colbase_s, tr, I3, I4, I7, tmp):
    for j in range(2):
        if tr:
            k.e('v_and_b32 %s, 1, %s' % (v(tmp), v(I4)))
            k.e('v_lshlrev_b32 %s, 2, %s' % (v(tmp), v(tmp)))
        else:
            k.e('v_add_u32 %s, %d, %s' % (v(tmp), 4 * j, v(I4)))
            k.e('v_and_b32 %s, 7, %s' % (v(tmp), v(tmp)))
        k.e('v_xor_b32 %s, %s, %s' % (v(tmp), v(tmp), v(I7)))
        k.e('v_lshlrev_b32 %s, 4, %s' % (v(tmp), v(tmp)))
        k.e('v_add_u32 %s, s%d, %s' % (v(dst + j), rowbase_s, v(I3)))
        if j:
            k.e('v_add_u32 %s, 8, %s' % (v(dst + j), v(dst + j)))
        k.e('v_mul_lo_u32 %s, %s, s%d' % (v(dst + j), v(dst + j), pitch_s))
        k.e('v_add_u32 %s, %s, %s' % (v(dst + j), v(dst + j), v(tmp)))
        k.e('v_add_u32 %s, s%d, %s' % (v(dst + j), colbase_s, v(dst + j)))
        if j:
            k.e('v_subrev_u32 %s, 1024, %s' % (v(dst + j), v(dst + j)))

def pat_direct(k, dst, sub_s, base, LANE, t0, t1):
    k.e('v_and_b32 %s, 31, %s' % (v(t0), v(LANE)))
    k.e('v_lshrrev_b32 %s, 1, %s' % (v(t1), v(t0)))
    k.e('v_and_b32 %s, 7, %s' % (v(t1), v(t1)))
    k.e('v_lshrrev_b32 %s, 5, %s' % (v(dst), v(LANE)))
    k.e('v_xor_b32 %s, %s, %s' % (v(t1), v(t1), v(dst)))
    k.e('v_lshlrev_b32 %s, 4, %s' % (v(t1), v(t1)))
    k.e('v_lshl_add_u32 %s, %s, 7, %s' % (v(t1), v(t0), v(t1)))
    k.e('v_add_u32 %s, s%d, %s' % (v(t1), sub_s, v(t1)))
    if base:
        k.e('v_add_u32 %s, %d, %s' % (v(t1), base, v(t1)))
    for kk in range(4):
        k.e('v_xor_b32 %s, %d, %s' % (v(dst + kk), kk << 5, v(t1)))
        k.e('v_add_u32 %s, 65536, %s' % (v(dst + 4 + kk), v(dst + kk)))

def pat_tr(k, dst, subchunk_s, base, LANE, t0, t1, t2):
    k.e('v_and_b32 %s, 15, %s' % (v(t0), v(LANE)))
    k.e('v_lshrrev_b32 %s, 4, %s' % (v(t1), v(LANE)))
    k.e('v_and_b32 %s, 1, %s' % (v(t1), v(t1)))
    k.e('v_lshlrev_b32 %s, 1, %s' % (v(t1), v(t1)))
    k.e('v_bfe_u32 %s, %s, 1, 1' % (v(t2), v(t0)))
    k.e('v_add_u32 %s, %s, %s' % (v(t1), v(t1), v(t2)))
    k.e('v_add_u32 %s, s%d, %s' % (v(t1), subchunk_s, v(t1)))
    k.e('v_bfe_u32 %s, %s, 3, 1' % (v(t2), v(t0)))
    k.e('v_lshlrev_b32 %s, 2, %s' % (v(t2), v(t2)))
    k.e('v_xor_b32 %s, %s, %s' % (v(t1), v(t1), v(t2)))
    k.e('v_lshlrev_b32 %s, 4, %s' % (v(t1), v(t1)))
    k.e('v_and_b32 %s, 1, %s' % (v(t2), v(t0)))
    k.e('v_lshl_add_u32 %s, %s, 3, %s' % (v(t1), v(t2), v(t1)))
    k.e('v_lshrrev_b32 %s, 2, %s' % (v(t2), v(t0)))
    k.e('v_lshrrev_b32 %s, 5, %s' % (v(t0), v(LANE)))
    k.e('v_lshl_add_u32 %s, %s, 3, %s' % (v(t2), v(t0), v(t2)))
    k.e('v_lshl_add_u32 %s, %s, 7, %s' % (v(dst), v(t2), v(t1)))
    if base:
        k.e('v_add_u32 %s, %d, %s' % (v(dst), base, v(dst)))
    k.e('v_add_u32 %s, 65536, %s' % (v(dst + 1), v(dst)))

def read_frag(k, dstreg, mode, pat, slot, kk):
    sset = slot // 4; off = (slot % 4) * 16384
    if mode == 'd':
        k.e('ds_read_b128 %s, %s offset:%d' % (v(dstreg, 4), v(pat + 4 * sset + kk), off))
        return 1
    else:
        k.e('ds_read_b64_tr_b16 %s, %s offset:%d' % (v(dstreg, 2), v(pat + sset), off + kk * 2048))
        k.e('ds_read_b64_tr_b16 %s, %s offset:%d' % (v(dstreg + 2, 2), v(pat + sset), off + kk * 2048 + 512))
        return 2

def gemm_loop(k, stages, NS, FA, FB):
    n = len(stages)
    for st in range(min(NS, n)):
        stages[st]['issue'](st)
    yield 'prologue'
    for st in range(n):
        S = stages[st]
        k.wait_vm('st%d' % st)
        k.e('s_barrier')
        if st >= 1 and st + NS - 1 < n:
            stages[st + NS - 1]['issue'](st + NS - 1)
        slot = st % NS
        cnt = []
        for kk in range(4):
            c = read_frag(k, FA + 4 * kk, S['modeA'], S['patA'], slot, kk)
            c += read_frag(k, FB + 4 * kk, S['modeB'], S['patB'], slot, kk)
            cnt.append(c)
        for kk in range(4):
            k.e('s_waitcnt lgkmcnt(%d)' % sum(cnt[kk + 1:]))
            c = '0' if (S['first'] and kk == 0) else v(S['acc'], 16)
            k.e('v_mfma_f32_32x32x16_bf16 %s, %s, %s, %s' % (v(S['acc'], 16), v(FA + 4 * kk, 4), v(FB + 4 * kk, 4), c))

def gen_k2():
    k = Kern('k2_kernel')
    NS = 8
    k.e('s_cmp_ge_u32 s2, 240')
    k.e('s_cbranch_scc1 K2_END')
    load_kernargs(k)
    k.e('v_and_b32 v1, 63, v0')
    k.e('v_lshrrev_b32 v2, 6, v0')
    k.nop(1)
    k.e('v_readfirstlane_b32 s3, v2')
    k.e('s_waitcnt lgkmcnt(0)')
    srd(k, 16, WS, WS_SZ)
    k.e('s_cmp_ge_u32 s2, 176')
    k.e('s_cbranch_scc1 K2_FIX')
    srd(k, 4, B_W1, 2048 * 2752)
    srd(k, 8, B_B1, 2752)
    k.e('s_and_b32 s72, s2, 7')
    k.e('s_lshr_b32 s73, s2, 3')
    k.e('s_mul_i32 s72, s72, 22')
    k.e('s_add_u32 s72, s72, s73')
    k.e('s_lshr_b32 s73, s72, 3')
    k.e('s_and_b32 s72, s72, 7')
    k.e('s_lshl_b32 s74, s73, 6')
    k.e('s_lshl_b32 s75, s72, 6')
    k.e('s_lshr_b32 s76, s3, 1')
    k.e('s_and_b32 s77, s3, 1')
    B1R = 120
    k.e('v_lshrrev_b32 v2, 5, v1')
    k.e('v_lshlrev_b32 v2, 3, v2')
    k.e('s_lshl_b32 s78, s76, 5')
    k.e('s_add_u32 s78, s78, s74')
    k.e('s_lshl_b32 s79, s78, 1')
    k.e('v_add_u32 v2, s79, v2')
    for q in range(4):
        k.vm('buffer_load_dwordx2 %s, v2, s[8:11], 0 offen offset:%d' % (v(B1R + 2 * q, 2), 16 * q), 'b1')
    I3, I4, I7 = 4, 5, 6
    k.e('v_lshrrev_b32 v4, 3, v1'); k.e('v_lshrrev_b32 v5, 4, v1'); k.e('v_and_b32 v6, 7, v1')
    VA, VB = 8, 10
    k.e('s_lshl_b32 s80, s3, 4')
    k.e('s_mov_b32 s81, 2752')
    k.e('s_lshl_b32 s82, s74, 1')
    dma_voff(k, VA, 80, 81, 82, True, I3, I4, I7, 7)
    k.e('s_mov_b32 s81, 1024')
    k.e('s_lshl_b32 s82, s75, 1')
    k.e('s_add_u32 s82, s82, %d' % WS_H)
    dma_voff(k, VB, 80, 81, 82, True, I3, I4, I7, 7)
    k.e('s_lshl_b32 s83, s3, 11')
    def issue(st):
        slot = (st % NS) * 16384
        k.e('s_mov_b32 s84, %d' % (st * 64 * 2752))
        k.e('s_add_u32 m0, s83, %d' % slot)
        k.e('s_mov_b32 s85, %d' % (st * 65536))
        for j in range(2):
            k.vm('buffer_load_dwordx4 %s, s[4:7], s84 offen offset:%d lds' % (v(VA + j), 1024 * j), 'st%d' % st)
        k.e('s_add_u32 m0, s83, %d' % (slot + 8192))
        k.nop(1)
        for j in range(2):
            k.vm('buffer_load_dwordx4 %s, s[16:19], s85 offen offset:%d lds' % (v(VB + j), 1024 * j), 'st%d' % st)
    PA, PB = 12, 14
    ACC = 16
    FA, FB = 32, 48
    stages = [dict(issue=issue, modeA='t', patA=PA, modeB='t', patB=PB, acc=ACC, first=(st == 0)) for st in range(32)]
    gl = gemm_loop(k, stages, NS, FA, FB)
    next(gl)
    k.e('s_lshl_b32 s86, s76, 2')
    k.e('s_lshl_b32 s87, s77, 2')
    pat_tr(k, PA, 86, 0, 1, 64, 65, 66)
    pat_tr(k, PB, 87, 8192, 1, 64, 65, 66)
    for _ in gl: pass
    k.nop(13)
    B1F = 64
    for i in range(8):
        k.e('v_lshlrev_b32 %s, 16, %s' % (v(B1F + 2 * i), v(B1R + i)))
        k.e('v_and_b32 %s, 0xffff0000, %s' % (v(B1F + 2 * i + 1), v(B1R + i)))
    T = 80
    for r in range(0, 16, 2):
        rbf2(k, ACC + r, ACC + r + 1, T)
    for r in range(16):
        k.e('v_add_f32 %s, %s, %s' % (v(ACC + r), v(ACC + r), v(B1F + r)))
    for r in range(0, 16, 2):
        rbf2(k, ACC + r, ACC + r + 1, T)
    import struct
    def f2u(x): return struct.unpack('<I', struct.pack('<f', x))[0]
    C1 = f2u(0.044715); C2 = f2u(-2.0 * 1.4426950408889634 * 0.7978845608028654)
    k.e('s_mov_b32 s88, 0x%x' % C1)
    for r in range(16):
        t = T + r
        k.e('v_mul_f32 %s, %s, %s' % (v(t), v(ACC + r), v(ACC + r)))
        k.e('v_mul_f32 %s, %s, %s' % (v(t), v(t), v(ACC + r)))
        k.e('v_fma_f32 %s, %s, s88, %s' % (v(t), v(t), v(ACC + r)))
        k.e('v_mul_f32 %s, 0x%x, %s' % (v(t), C2, v(t)))
        k.e('v_exp_f32 %s, %s' % (v(t), v(t)))
    for r in range(16):
        t = T + r
        k.e('v_add_f32 %s, 1.0, %s' % (v(t), v(t)))
        k.e('v_rcp_f32 %s, %s' % (v(t), v(t)))
    for r in range(16):
        t = T + r
        k.e('v_mul_f32 %s, %s, %s' % (v(ACC + r), v(ACC + r), v(t)))
    UO = 100
    for r in range(0, 16, 2):
        k.e('v_cvt_pk_bf16_f32 %s, %s, %s' % (v(UO + r // 2), v(ACC + r), v(ACC + r + 1)))
    k.e('s_cmp_lt_u32 s78, 1376')
    k.e('s_cbranch_scc1 K2_ST')
    for i in range(8):
        k.e('v_mov_b32 %s, 0' % v(UO + i))
    k.label('K2_ST')
    k.e('v_and_b32 v3, 31, v1')
    k.e('s_lshl_b32 s89, s77, 5')
    k.e('s_add_u32 s89, s89, s75')
    k.e('v_add_u32 v3, s89, v3')
    k.e('s_mov_b32 s90, %d' % UP)
    k.e('v_mul_lo_u32 v3, v3, s90')
    k.e('v_add_u32 v3, v3, v2')
    k.e('s_mov_b32 s90, %d' % WS_U)
    for q in range(4):
        k.e('buffer_store_dwordx2 %s, v3, s[16:19], s90 offen offset:%d' % (v(UO + 2 * q, 2), 16 * q))
    k.e('s_endpgm')
    k.label('K2_FIX')
    k.vmq = []
    srd(k, 20, A_LRE, 1024); srd(k, 24, A_LIM, 1024); srd(k, 28, A_LDT, 1024)
    k.e('s_sub_u32 s72, s2, 176')
    k.e('s_lshl_b32 s73, s72, 17')
    k.e('s_add_u32 s73, s73, %d' % WS_S)
    k.e('s_lshl_b32 s74, s72, 16')
    k.e('s_add_u32 s74, s74, %d' % WS_HB)
    EB = 2
    HB = 128
    for half in range(2):
        k.e('v_add_u32 v200, %d, v0' % (256 * half))
        k.e('v_lshlrev_b32 v201, 1, v200')
        k.e('v_lshlrev_b32 v202, 3, v200')
        k.vm('buffer_load_ushort v203, v201, s[20:23], 0 offen', 'p')
        k.vm('buffer_load_ushort v204, v201, s[24:27], 0 offen', 'p')
        k.vm('buffer_load_ushort v205, v201, s[28:31], 0 offen', 'p')
        lab = 'K2_EL%d' % half
        for c in range(63):
            k.e('s_cmp_le_u32 s72, %d' % c)
            k.e('s_cbranch_scc1 %s' % lab)
            k.e('s_mov_b32 s75, %d' % (WS_E + c * 4096))
            k.e('buffer_load_dwordx2 %s, v202, s[16:19], s75 offen' % v(EB + 2 * c, 2))
        k.label(lab)
        k.e('s_waitcnt vmcnt(0)'); k.vmq = []
        for j in range(32):
            k.e('s_add_u32 s75, s73, %d' % (j * 4096))
            k.vm('buffer_load_dwordx2 %s, v202, s[16:19], s75 offen' % v(HB + 2 * j, 2), 'h%d' % j)
        LR, LI = 206, 207
        lam_params(k, 203, 204, 205, LR, LI, 208, 209)
        CR_, CI_ = 210, 211
        k.e('v_add_f32 v208, -1.0, %s' % v(LR))
        k.e('v_mul_f32 v209, v203, v203')
        k.e('v_fmac_f32 v209, v204, v204')
        k.e('v_rcp_f32 v209, v209')
        k.e('v_mul_f32 %s, v208, v203' % v(CR_))
        k.e('v_fmac_f32 %s, %s, v204' % (v(CR_), v(LI)))
        k.e('v_mul_f32 %s, %s, v203' % (v(CI_), v(LI)))
        k.e('v_fma_f32 %s, -v208, v204, %s' % (v(CI_), v(CI_)))
        k.e('v_add_f32 v209, v209, v209')
        k.e('v_mul_f32 %s, %s, v209' % (v(CR_), v(CR_)))
        k.e('v_mul_f32 %s, %s, v209' % (v(CI_), v(CI_)))
        a = (212, 213); b = (214, 215)
        cmul(k, a[0], a[1], LR, LI, LR, LI)
        cmul(k, b[0], b[1], a[0], a[1], a[0], a[1])
        cmul(k, a[0], a[1], b[0], b[1], b[0], b[1])
        cmul(k, b[0], b[1], a[0], a[1], a[0], a[1])
        cmul(k, a[0], a[1], b[0], b[1], b[0], b[1])
        k.e('v_mov_b32 v216, 0'); k.e('v_mov_b32 v217, 0')
        lab = 'K2_CL%d' % half
        for c in range(63):
            k.e('s_cmp_le_u32 s72, %d' % c)
            k.e('s_cbranch_scc1 %s' % lab)
            cfma(k, 218, 219, a[0], a[1], 216, 217, EB + 2 * c, EB + 2 * c + 1)
            k.e('v_mov_b32 v216, v218'); k.e('v_mov_b32 v217, v219')
        k.label(lab)
        for j in range(32):
            cmul(k, 218, 219, LR, LI, 216, 217)
            k.e('v_mov_b32 v216, v218'); k.e('v_mov_b32 v217, v219')
            k.wait_vm('h%d' % j)
            k.e('v_add_f32 v218, v218, %s' % v(HB + 2 * j))
            k.e('v_add_f32 v219, v219, %s' % v(HB + 2 * j + 1))
            cmul(k, 220, 221, CR_, CI_, 218, 219)
            k.e('v_cvt_pk_bf16_f32 v222, v220, -v221')
            k.e('s_add_u32 s75, s74, %d' % (j * 2048))
            k.vm('buffer_store_short v222, v201, s[16:19], s75 offen', 'o')
            k.vm('buffer_store_short_d16_hi v222, v201, s[16:19], s75 offen offset:1024', 'o')
            k.nop(1)
        k.wait_vm_all()
    k.label('K2_END')
    k.e('s_endpgm')
    return finish(k, 224)

def gen_k3():
    k = Kern('k3_kernel')
    NS = 8
    k.e('s_cmp_ge_u32 s2, 256')
    k.e('s_cbranch_scc1 K3_END')
    load_kernargs(k)
    k.e('v_and_b32 v1, 63, v0')
    k.e('v_lshrrev_b32 v2, 6, v0')
    k.nop(1)
    k.e('v_readfirstlane_b32 s3, v2')
    k.e('s_and_b32 s72, s2, 7')
    k.e('s_lshr_b32 s73, s2, 3')
    k.e('s_lshr_b32 s74, s73, 3')
    k.e('s_lshl_b32 s72, s72, 2')
    k.e('s_add_u32 s72, s72, s74')
    k.e('s_and_b32 s73, s73, 7')
    k.e('s_lshl_b32 s74, s72, 6')
    k.e('s_lshl_b32 s75, s73, 6')
    k.e('s_lshr_b32 s76, s3, 1')
    k.e('s_and_b32 s77, s3, 1')
    k.e('s_waitcnt lgkmcnt(0)')
    srd(k, 16, WS, WS_SZ)
    srd(k, 4, A_CRE, 1 << 19); srd(k, 8, A_CIM, 1 << 19); srd(k, 12, B_W2, 1376 * 4096)
    srd(k, 20, A_X, 2 << 20); srd(k, 24, A_DSK, 1024); srd(k, 28, B_B2, 4096); srd(k, 32, OUT, 4 << 20)
    GR, B2R, XR, DR = 120, 121, 122, 130
    k.e('v_and_b32 v3, 31, v1')
    k.e('s_lshl_b32 s78, s77, 5')
    k.e('s_add_u32 s78, s78, s74')
    k.e('v_add_u32 v3, s78, v3')
    k.e('v_lshlrev_b32 v4, 2, v3')
    k.e('s_mov_b32 s79, %d' % WS_G)
    k.vm('buffer_load_dword %s, v4, s[16:19], s79 offen' % v(GR), 'ep')
    k.e('v_lshlrev_b32 v4, 1, v3')
    k.vm('buffer_load_ushort %s, v4, s[28:31], 0 offen' % v(B2R), 'ep')
    k.e('s_lshl_b32 s79, s76, 5')
    k.e('s_add_u32 s79, s79, s75')
    k.e('v_lshrrev_b32 v4, 5, v1')
    k.e('v_lshlrev_b32 v4, 2, v4')
    k.e('v_add_u32 v4, s79, v4')
    k.e('v_lshlrev_b32 v5, 1, v4')
    for q in range(4):
        k.vm('buffer_load_dwordx2 %s, v5, s[24:27], 0 offen offset:%d' % (v(DR + 2 * q, 2), 16 * q), 'ep')
    k.e('v_lshl_add_u32 v5, v3, 10, v5')
    for q in range(4):
        k.vm('buffer_load_dwordx2 %s, v5, s[20:23], 0 offen offset:%d' % (v(XR + 2 * q, 2), 16 * q), 'ep')
    k.e('v_lshlrev_b32 v138, 1, v5')
    I3, I4, I7 = 4, 5, 6
    k.e('v_lshrrev_b32 v4, 3, v1'); k.e('v_lshrrev_b32 v5, 4, v1'); k.e('v_and_b32 v6, 7, v1')
    VC, VH, VU, VW = 8, 10, 12, 14
    k.e('s_lshl_b32 s80, s3, 4')
    k.e('s_add_u32 s81, s80, s75')
    k.e('s_add_u32 s82, s80, s74')
    k.e('s_mov_b32 s83, 1024'); k.e('s_mov_b32 s84, 0')
    dma_voff(k, VC, 81, 83, 84, False, I3, I4, I7, 7)
    k.e('s_mov_b32 s83, 2048'); k.e('s_mov_b32 s84, %d' % WS_HB)
    dma_voff(k, VH, 82, 83, 84, False, I3, I4, I7, 7)
    k.e('s_mov_b32 s83, %d' % UP); k.e('s_mov_b32 s84, %d' % WS_U)
    dma_voff(k, VU, 81, 83, 84, False, I3, I4, I7, 7)
    k.e('s_mov_b32 s83, 4096'); k.e('s_lshl_b32 s84, s74, 1')
    dma_voff(k, VW, 80, 83, 84, True, I3, I4, I7, 7)
    k.e('s_lshl_b32 s83, s3, 11')
    def issue(st):
        slot = (st % NS) * 16384
        if st < 16:
            srdA = 4 if st < 8 else 8
            k.e('s_mov_b32 s84, %d' % ((st % 8) * 128))
            k.e('s_add_u32 m0, s83, %d' % slot)
            k.e('s_mov_b32 s85, %d' % (st * 128))
            va, vb, srdB = VC, VH, 16
        else:
            srdA = 16
            k.e('s_mov_b32 s84, %d' % ((st - 16) * 128))
            k.e('s_add_u32 m0, s83, %d' % slot)
            k.e('s_mov_b32 s85, %d' % ((st - 16) * 262144))
            va, vb, srdB = VU, VW, 12
        for j in range(2):
            k.vm('buffer_load_dwordx4 %s, s[%d:%d], s84 offen offset:%d lds' % (v(va + j), srdA, srdA + 3, 1024 * j), 'st%d' % st)
        k.e('s_add_u32 m0, s83, %d' % (slot + 8192))
        k.nop(1)
        for j in range(2):
            k.vm('buffer_load_dwordx4 %s, s[%d:%d], s85 offen offset:%d lds' % (v(vb + j), srdB, srdB + 3, 1024 * j), 'st%d' % st)
    PA, PB, PT = 16, 24, 32
    ACA, ACB = 36, 52
    FA, FB = 68, 84
    stages = []
    for st in range(38):
        if st < 16:
            stages.append(dict(issue=issue, modeA='d', patA=PA, modeB='d', patB=PB, acc=ACA, first=(st == 0)))
        else:
            stages.append(dict(issue=issue, modeA='d', patA=PA, modeB='t', patB=PT, acc=ACB, first=(st == 16)))
    gl = gemm_loop(k, stages, NS, FA, FB)
    next(gl)
    k.e('s_lshl_b32 s86, s76, 12')
    k.e('s_lshl_b32 s87, s77, 12')
    k.e('s_lshl_b32 s88, s77, 2')
    pat_direct(k, PA, 86, 0, 1, 100, 101)
    pat_direct(k, PB, 87, 8192, 1, 100, 101)
    pat_tr(k, PT, 88, 8192, 1, 100, 101, 102)
    for _ in gl: pass
    k.nop(13)
    XF, DF, T = 68, 84, 100
    for i in range(8):
        k.e('v_lshlrev_b32 %s, 16, %s' % (v(XF + 2 * i), v(XR + i)))
        k.e('v_and_b32 %s, 0xffff0000, %s' % (v(XF + 2 * i + 1), v(XR + i)))
        k.e('v_lshlrev_b32 %s, 16, %s' % (v(DF + 2 * i), v(DR + i)))
        k.e('v_and_b32 %s, 0xffff0000, %s' % (v(DF + 2 * i + 1), v(DR + i)))
    k.e('v_lshlrev_b32 %s, 16, %s' % (v(B2R), v(B2R)))
    OMG = 101
    k.e('v_sub_f32 %s, 1.0, %s' % (v(OMG), v(GR)))
    rbf(k, OMG, T)
    for r in range(16):
        k.e('v_mul_f32 %s, %s, %s' % (v(XF + r), v(XF + r), v(DF + r)))
    for r in range(0, 16, 2):
        rbf2(k, XF + r, XF + r + 1, T)
        rbf2(k, ACB + r, ACB + r + 1, T)
    for r in range(16):
        k.e('v_add_f32 %s, %s, %s' % (v(ACA + r), v(ACA + r), v(XF + r)))
        k.e('v_add_f32 %s, %s, %s' % (v(ACB + r), v(ACB + r), v(B2R)))
    for r in range(0, 16, 2):
        rbf2(k, ACB + r, ACB + r + 1, T)
    for r in range(16):
        k.e('v_mul_f32 %s, %s, %s' % (v(ACB + r), v(ACB + r), v(OMG)))
        k.e('v_mul_f32 %s, %s, %s' % (v(ACA + r), v(ACA + r), v(GR)))
    for r in range(0, 16, 2):
        rbf2(k, ACB + r, ACB + r + 1, T)
    for r in range(16):
        k.e('v_add_f32 %s, %s, %s' % (v(ACA + r), v(ACA + r), v(ACB + r)))
    for q in range(4):
        k.e('buffer_store_dwordx4 %s, v138, s[32:35], 0 offen offset:%d' % (v(ACA + 4 * q, 4), 32 * q))
    k.label('K3_END')
    k.e('s_endpgm')
    return finish(k, 140)

def main():
    hdr = open('gated_mix__ssm_conv_s5__mixer_token_mlp__prompt.s.ref').read().split('\n')
    top = []
    for l in hdr:
        if l.startswith(';') and '@launch' not in l:
            top.append(l)
        elif not l.startswith(';'):
            break
    top.append('; @launch kernel=k1_kernel grid=(256,1,1) block=(256,1,1) lds=147456')
    top.append('; @launch kernel=k2_kernel grid=(240,1,1) block=(256,1,1) lds=131072')
    top.append('; @launch kernel=k3_kernel grid=(256,1,1) block=(256,1,1) lds=131072')
    top.append('.amdgcn_target "amdgcn-amd-amdhsa--gfx950"')
    top.append('.text')
    ks = [gen_k1(), gen_k2(), gen_k3()]
    body = []
    for b, d in ks:
        body += b
    body.append('.section .rodata,"a"')
    for b, d in ks:
        body += d
    out = '\n'.join(top + body) + '\n'
    path = sys.argv[1] if len(sys.argv) > 1 else 'gated_mix__ssm_conv_s5__mixer_token_mlp__prompt.s'
    open(path, 'w').write(out)
    print('wrote', path, len(out), 'bytes')

if __name__ == '__main__':
    main()
```

```python
import sys, os
DEBUG = int(os.environ.get('DEBUG', '0'))
DBGWG = int(os.environ.get('DBGWG', '0'))
TL = int(os.environ.get('TL', '0'))
PF = int(os.environ.get('PF', '1'))
PRO = eval(os.environ.get('PRO', '(1,7)'))
PF2 = eval(os.environ.get('PF2', '(1,9)'))
PF3 = eval(os.environ.get('PF3', '(0,8,16)'))

WS_H  = 0
WS_G  = 2 << 20
WS_S  = 4 << 20
WS_E  = 12 << 20
WS_HB = 16 << 20
WS_U  = 20 << 20
WS_SZ = 24 << 20
UP = 2816
LOG2E = 0x3fb8aa3b
INV2PI = 0x3e22f983

class Kern:
    def __init__(self, name):
        self.name = name
        self.L = []
        self.vmq = []
        self.nlab = 0
    def e(self, s):
        self.L.append('    ' + s)
    def c(self, s):
        self.L.append('    ; ' + s)
    def label(self, l):
        self.L.append(l + ':')
    def vm(self, s, tag):
        self.e(s); self.vmq.append(tag)
    def wait_vm(self, tag):
        idxs = [i for i, t in enumerate(self.vmq) if t == tag]
        if not idxs:
            return
        idx = idxs[-1]
        n = len(self.vmq) - 1 - idx
        self.e('s_waitcnt vmcnt(%d)' % min(n, 63))
        self.vmq = self.vmq[idx + 1:]
    def wait_vm_all(self):
        self.e('s_waitcnt vmcnt(0)'); self.vmq = []
    def stamp(self, i):
        if not DEBUG: return
        self.e('s_memtime s[94:95]')
        self.e('s_waitcnt lgkmcnt(0)')
        self.e('v_writelane_b32 v255, s94, %d' % i)
    def stamp_flush(self, wg):
        if not DEBUG: return
        self.nlab += 1
        lab = '%s_DBG%d' % (self.name, self.nlab)
        self.e('s_cmp_lg_u32 s2, %d' % wg)
        self.e('s_cbranch_scc1 %s' % lab)
        self.e('s_cmp_lg_u32 s3, 0')
        self.e('s_cbranch_scc1 %s' % lab)
        self.e('s_mov_b32 s96, s%d' % P(DBG))
        self.e('s_and_b32 s97, s%d, 0xffff' % (P(DBG) + 1))
        self.e('s_mov_b32 s98, 256')
        self.e('s_mov_b32 s99, 0x00020000')
        self.e('v_and_b32 v254, 63, v0')
        self.e('v_lshlrev_b32 v254, 2, v254')
        self.e('buffer_store_dword v255, v254, s[96:99], 0 offen')
        self.label(lab)
    def tl_start(self):
        if not TL: return
        self.e('s_memrealtime s[100:101]')
    def tl_end(self, kidx):
        if not TL: return
        self.nlab += 1
        lab = '%s_TL%d' % (self.name, self.nlab)
        self.e('s_waitcnt vmcnt(0)')
        self.e('s_memrealtime s[94:95]')
        self.e('s_cmp_lg_u32 s3, 0')
        self.e('s_cbranch_scc1 %s' % lab)
        self.e('s_mov_b32 s96, s%d' % P(WS))
        self.e('s_and_b32 s97, s%d, 0xffff' % (P(WS) + 1))
        self.e('s_mov_b32 s98, 0x4000000')
        self.e('s_mov_b32 s99, 0x00020000')
        self.e('s_waitcnt lgkmcnt(0)')
        self.e('v_mov_b32 v2, s100'); self.e('v_mov_b32 v3, s94')
        self.e('s_lshl_b32 s94, s2, 3')
        self.e('s_add_u32 s94, s94, %d' % ((32 << 20) + kidx * 4096))
        self.e('v_mov_b32 v4, 0')
        self.e('buffer_store_dwordx2 v[2:3], v4, s[96:99], s94 offen')
        self.label(lab)
    def nop(self, n):
        while n > 0:
            k = min(n, 16)
            self.e('s_nop %d' % (k - 1)); n -= k

def v(i, n=1):
    return 'v%d' % i if n == 1 else 'v[%d:%d]' % (i, i + n - 1)
def s(i, n=1):
    return 's%d' % i if n == 1 else 's[%d:%d]' % (i, i + n - 1)

def P(k): return 36 + 2 * k
A_X, A_LRE, A_LIM, A_BRE, A_BIM, A_CRE, A_CIM, A_LDT, A_DSK, B_X, B_W1, B_B1, B_W2, B_B2, GATE, OUT, DBG, WS = range(18)

def load_kernargs(k):
    k.e('s_load_dwordx16 s[36:51], s[0:1], 0')
    k.e('s_load_dwordx16 s[52:67], s[0:1], 64')
    k.e('s_load_dwordx4 s[68:71], s[0:1], 128')

def srd(k, dst, ptr, nbytes):
    k.e('s_mov_b32 s%d, s%d' % (dst, P(ptr)))
    k.e('s_and_b32 s%d, s%d, 0xffff' % (dst + 1, P(ptr) + 1))
    k.e('s_mov_b32 s%d, 0x%x' % (dst + 2, nbytes))
    k.e('s_mov_b32 s%d, 0x00020000' % (dst + 3))

def cfma(k, dr, di, ar, ai, br, bi, cr, ci):
    k.e('v_fma_f32 %s, %s, %s, %s' % (v(dr), v(ar), v(br), v(cr)))
    k.e('v_fma_f32 %s, %s, %s, %s' % (v(di), v(ar), v(bi), v(ci)))
    k.e('v_fma_f32 %s, -%s, %s, %s' % (v(dr), v(ai), v(bi), v(dr)))
    k.e('v_fma_f32 %s, %s, %s, %s' % (v(di), v(ai), v(br), v(di)))

def cmul(k, dr, di, ar, ai, br, bi):
    k.e('v_mul_f32 %s, %s, %s' % (v(dr), v(ar), v(br)))
    k.e('v_mul_f32 %s, %s, %s' % (v(di), v(ar), v(bi)))
    k.e('v_fma_f32 %s, -%s, %s, %s' % (v(dr), v(ai), v(bi), v(dr)))
    k.e('v_fma_f32 %s, %s, %s, %s' % (v(di), v(ai), v(br), v(di)))

def rbf(k, a, t):
    k.e('v_cvt_pk_bf16_f32 %s, %s, %s' % (v(t), v(a), v(a)))
    k.e('v_lshlrev_b32 %s, 16, %s' % (v(a), v(t)))

def rbf2(k, a, b, t):
    k.e('v_cvt_pk_bf16_f32 %s, %s, %s' % (v(t), v(a), v(b)))
    k.e('v_lshlrev_b32 %s, 16, %s' % (v(a), v(t)))
    k.e('v_and_b32 %s, 0xffff0000, %s' % (v(b), v(t)))

def lam_params(k, lre, lim, ldt, Lr, Li, t0, t1):
    k.e('v_lshlrev_b32 %s, 16, %s' % (v(lre), v(lre)))
    k.e('v_lshlrev_b32 %s, 16, %s' % (v(lim), v(lim)))
    k.e('v_lshlrev_b32 %s, 16, %s' % (v(ldt), v(ldt)))
    k.e('v_mul_f32 %s, 0x%x, %s' % (v(t0), LOG2E, v(ldt)))
    k.e('v_exp_f32 %s, %s' % (v(t0), v(t0)))
    k.nop(1)
    rbf(k, t0, t1)
    k.e('v_mul_f32 %s, %s, %s' % (v(t1), v(t0), v(lre)))
    k.e('v_mul_f32 %s, %s, %s' % (v(t0), v(t0), v(lim)))
    k.e('v_mul_f32 %s, 0x%x, %s' % (v(t1), LOG2E, v(t1)))
    k.e('v_mul_f32 %s, 0x%x, %s' % (v(t0), INV2PI, v(t0)))
    k.e('v_exp_f32 %s, %s' % (v(t1), v(t1)))
    k.e('v_fract_f32 %s, %s' % (v(t0), v(t0)))
    k.e('v_cos_f32 %s, %s' % (v(Lr), v(t0)))
    k.e('v_sin_f32 %s, %s' % (v(Li), v(t0)))
    k.nop(1)
    k.e('v_mul_f32 %s, %s, %s' % (v(Lr), v(Lr), v(t1)))
    k.e('v_mul_f32 %s, %s, %s' % (v(Li), v(Li), v(t1)))

def finish(k, nvgpr, nsgpr=96):
    if DEBUG: nvgpr = 256; nsgpr = 102
    if TL: nsgpr = 102
    out = []
    out.append('.globl %s' % k.name)
    out.append('.p2align 8')
    out.append('.type %s,@function' % k.name)
    out.append('%s:' % k.name)
    out += k.L
    desc = []
    desc.append('.p2align 6')
    desc.append('.amdhsa_kernel %s' % k.name)
    desc.append('  .amdhsa_next_free_vgpr %d' % nvgpr)
    desc.append('  .amdhsa_next_free_sgpr %d' % nsgpr)
    desc.append('  .amdhsa_accum_offset %d' % ((nvgpr + 3) // 4 * 4))
    desc.append('  .amdhsa_group_segment_fixed_size 0')
    desc.append('  .amdhsa_kernarg_size 144')
    desc.append('  .amdhsa_user_sgpr_count 2')
    desc.append('  .amdhsa_user_sgpr_kernarg_segment_ptr 1')
    desc.append('  .amdhsa_system_sgpr_workgroup_id_x 1')
    desc.append('.end_amdhsa_kernel')
    return out, desc

def gen_k1():
    k = Kern('k1_kernel')
    NS = 6; STG = 24576; NST = 8
    XOFF = NS * STG
    k.e('s_cmp_ge_u32 s2, 256')
    k.e('s_cbranch_scc1 K1_END')
    load_kernargs(k)
    k.tl_start()
    k.e('v_and_b32 v1, 63, v0')
    k.e('v_lshrrev_b32 v2, 6, v0')
    k.nop(1)
    k.e('v_readfirstlane_b32 s3, v2')
    k.e('s_and_b32 s72, s2, 7')
    k.e('s_lshr_b32 s73, s2, 3')
    k.e('s_lshr_b32 s74, s73, 4')
    k.e('s_lshl_b32 s72, s72, 1')
    k.e('s_add_u32 s72, s72, s74')
    k.e('s_and_b32 s73, s73, 15')
    k.e('s_lshl_b32 s74, s72, 7')
    k.e('s_lshl_b32 s75, s73, 5')
    XR0, XR1, GW = 168, 172, 176
    PLRE, PLIM, PLDT = 180, 181, 182
    k.e('s_lshl_b32 s76, s73, 3')
    k.e('s_add_u32 s76, s76, s74')
    k.e('s_lshl_b32 s77, s3, 1')
    k.e('s_add_u32 s76, s76, s77')
    k.e('s_lshl_b32 s77, s76, 10')
    k.e('v_lshlrev_b32 v2, 4, v1')
    k.e('v_and_b32 v3, 31, v1')
    k.e('v_add_u32 v14, s75, v3')
    k.e('v_lshlrev_b32 v14, 1, v14')
    VA = 8; VB = 12
    k.e('v_lshrrev_b32 v4, 3, v1')
    k.e('v_lshrrev_b32 v5, 4, v1')
    k.e('v_and_b32 v6, 7, v1')
    k.e('s_lshl_b32 s78, s3, 5')
    k.e('s_add_u32 s78, s78, s74')
    for j in range(4):
        k.e('v_add_u32 v7, %d, v5' % (4 * j))
        k.e('v_and_b32 v7, 7, v7')
        k.e('v_xor_b32 v7, v7, v6')
        k.e('v_lshlrev_b32 v7, 4, v7')
        k.e('v_add_u32 %s, s78, v4' % v(VA + j))
        k.e('v_add_u32 %s, %d, %s' % (v(VA + j), 7 * j, v(VA + j)))
        k.e('v_lshlrev_b32 %s, 10, %s' % (v(VA + j), v(VA + j)))
        k.e('v_add_u32 %s, %s, v7' % (v(VA + j), v(VA + j)))
    k.e('s_and_b32 s79, s3, 1')
    k.e('s_lshl_b32 s79, s79, 4')
    k.e('s_add_u32 s79, s79, s75')
    for j in range(2):
        k.e('v_add_u32 v7, %d, v5' % (4 * j))
        k.e('v_and_b32 v7, 7, v7')
        k.e('v_xor_b32 v7, v7, v6')
        k.e('v_lshlrev_b32 v7, 4, v7')
        k.e('v_add_u32 %s, s79, v4' % v(VB + j))
        k.e('v_add_u32 %s, %d, %s' % (v(VB + j), 7 * j, v(VB + j)))
        k.e('v_lshlrev_b32 %s, 10, %s' % (v(VB + j), v(VB + j)))
        k.e('v_add_u32 %s, %s, v7' % (v(VB + j), v(VB + j)))
    k.e('s_lshl_b32 s80, s3, 12')
    k.e('s_lshl_b32 s81, s3, 11')
    k.e('s_add_u32 s81, s81, 16384')
    PA = 16; PB = 28
    k.e('v_lshrrev_b32 v4, 5, v1')
    k.e('v_lshrrev_b32 v5, 1, v3')
    k.e('v_and_b32 v5, 7, v5')
    k.e('v_xor_b32 v5, v5, v4')
    k.e('v_lshlrev_b32 v5, 4, v5')
    k.e('v_lshl_add_u32 v5, v3, 7, v5')
    for kk in range(4):
        k.e('v_xor_b32 %s, %d, v5' % (v(PB + kk), kk << 5))
        k.e('v_add_u32 %s, s80, %s' % (v(PA + kk), v(PB + kk)))
        for st in (1, 2):
            k.e('v_add_u32 %s, %d, %s' % (v(PB + 4 * st + kk), 49152 * st, v(PB + kk)))
            k.e('v_add_u32 %s, %d, %s' % (v(PA + 4 * st + kk), 49152 * st, v(PA + kk)))
    k.e('s_waitcnt lgkmcnt(0)')
    k.stamp(60)
    srd(k, 4, A_X, 2 << 20)
    k.e('s_cmp_ge_u32 s3, 2')
    k.e('s_cselect_b32 s8, s%d, s%d' % (P(A_BIM), P(A_BRE)))
    k.e('s_cselect_b32 s9, s%d, s%d' % (P(A_BIM) + 1, P(A_BRE) + 1))
    k.e('s_and_b32 s9, s9, 0xffff')
    k.e('s_mov_b32 s10, 0x80000')
    k.e('s_mov_b32 s11, 0x00020000')
    srd(k, 32, GATE, 1024)
    k.vm('buffer_load_dwordx4 %s, v2, s[4:7], s77 offen' % v(XR0, 4), 'ln')
    k.vm('buffer_load_dwordx4 %s, v2, s[4:7], s77 offen offset:1024' % v(XR1, 4), 'ln')
    k.vm('buffer_load_dwordx4 %s, v2, s[32:35], 0 offen' % v(GW, 4), 'ln')
    def issue_groups(st):
        slot = (st % NS) * STG
        tg = 'st%d' % st
        g = [[('e', 's_mov_b32 s82, %d' % (st * 128)), ('e', 's_add_u32 m0, s80, %d' % slot), ('e', 's_nop 0')], [], [], []]
        for j in range(4):
            g[j // 2].append(('v', 'buffer_load_dwordx4 %s, s[4:7], s82 offen offset:%d lds' % (v(VA + j), 1024 * j), tg))
        g[2] += [('e', 's_add_u32 m0, s81, %d' % slot), ('e', 's_nop 0')]
        for j in range(2):
            g[2 + j].append(('v', 'buffer_load_dwordx4 %s, s[8:11], s82 offen offset:%d lds' % (v(VB + j), 1024 * j), tg))
        return g
    def issue_stage(st):
        for g in issue_groups(st): emit_items(k, g)
    issue_stage(0)
    srd(k, 16, WS, WS_SZ)
    srd(k, 20, A_LRE, 1024); srd(k, 24, A_LIM, 1024); srd(k, 28, A_LDT, 1024)
    k.vm('buffer_load_ushort %s, v14, s[20:23], 0 offen' % v(PLRE), 'par')
    k.vm('buffer_load_ushort %s, v14, s[24:27], 0 offen' % v(PLIM), 'par')
    k.vm('buffer_load_ushort %s, v14, s[28:31], 0 offen' % v(PLDT), 'par')
    issue_stage(1)
    issue_stage(2)
    k.stamp(1)
    k.wait_vm('ln')
    k.stamp(2)
    X = [100, 110]
    G = 120
    def unpack8(dst, src):
        for i in range(4):
            k.e('v_lshlrev_b32 %s, 16, %s' % (v(dst + 2 * i), v(src + i)))
            k.e('v_and_b32 %s, 0xffff0000, %s' % (v(dst + 2 * i + 1), v(src + i)))
    unpack8(X[0], XR0); unpack8(X[1], XR1); unpack8(G, GW)
    SUM = [130, 131]; GS = [132, 133]; TT = 134
    for r in range(2):
        k.e('v_add_f32 %s, %s, %s' % (v(SUM[r]), v(X[r]), v(X[r] + 1)))
        for i in range(2, 8):
            k.e('v_add_f32 %s, %s, %s' % (v(SUM[r]), v(SUM[r]), v(X[r] + i)))
        for i in range(8):
            k.e('v_mul_f32 %s, %s, %s' % (v(TT + i), v(X[r] + i), v(G + i)))
        for i in range(0, 8, 2):
            rbf2(k, TT + i, TT + i + 1, TT + 8)
        k.e('v_add_f32 %s, %s, %s' % (v(GS[r]), v(TT), v(TT + 1)))
        for i in range(2, 8):
            k.e('v_add_f32 %s, %s, %s' % (v(GS[r]), v(GS[r]), v(TT + i)))
    def wave_reduce(regs, sdst):
        for ctl in ('quad_perm:[1,0,3,2] row_mask:0xf bank_mask:0xf', 'quad_perm:[2,3,0,1] row_mask:0xf bank_mask:0xf',
                    'row_half_mirror row_mask:0xf bank_mask:0xf', 'row_mirror row_mask:0xf bank_mask:0xf',
                    'row_bcast:15 row_mask:0xa bank_mask:0xf', 'row_bcast:31 row_mask:0xc bank_mask:0xf'):
            k.nop(2)
            for r in regs:
                k.e('v_add_f32_dpp %s, %s, %s %s' % (v(r), v(r), v(r), ctl))
        k.nop(1)
        for r, sd in zip(regs, sdst):
            k.e('v_readlane_b32 s%d, %s, 63' % (sd, v(r)))
        k.nop(2)
    wave_reduce([SUM[0], SUM[1], GS[0], GS[1]], [84, 85, 86, 87])
    issue_stage(3)
    MEAN = [140, 141]; SQ = [142, 143]
    for r in range(2):
        k.e('v_mov_b32 %s, 0x3b000000' % v(MEAN[r]))
        k.e('v_mul_f32 %s, s%d, %s' % (v(MEAN[r]), 84 + r, v(MEAN[r])))
        k.e('v_sub_f32 %s, %s, %s' % (v(TT), v(X[r]), v(MEAN[r])))
        k.e('v_mul_f32 %s, %s, %s' % (v(SQ[r]), v(TT), v(TT)))
        for i in range(1, 8):
            k.e('v_sub_f32 %s, %s, %s' % (v(TT), v(X[r] + i), v(MEAN[r])))
            k.e('v_fmac_f32 %s, %s, %s' % (v(SQ[r]), v(TT), v(TT)))
    wave_reduce(SQ, [88, 89])
    issue_stage(4)
    HO = [150, 154]
    for r in range(2):
        SD = 144; RC = 145; Q = 146; E_ = 147
        k.e('v_mov_b32 %s, 0x3b000000' % v(SD))
        k.e('v_mul_f32 %s, s%d, %s' % (v(SD), 88 + r, v(SD)))
        rbf(k, SD, TT)
        k.e('v_add_f32 %s, 0x3727c5ac, %s' % (v(SD), v(SD)))
        rbf(k, SD, TT)
        k.e('v_sqrt_f32 %s, %s' % (v(SD), v(SD)))
        k.nop(1)
        rbf(k, SD, TT)
        k.e('v_rcp_f32 %s, %s' % (v(RC), v(SD)))
        rbf(k, MEAN[r], TT)
        for i in range(8):
            k.e('v_sub_f32 %s, %s, %s' % (v(X[r] + i), v(X[r] + i), v(MEAN[r])))
        for i in range(0, 8, 2):
            rbf2(k, X[r] + i, X[r] + i + 1, TT)
        for i in range(8):
            k.e('v_mul_f32 %s, %s, %s' % (v(Q), v(X[r] + i), v(RC)))
            k.e('v_fma_f32 %s, -%s, %s, %s' % (v(E_), v(Q), v(SD), v(X[r] + i)))
            k.e('v_fma_f32 %s, %s, %s, %s' % (v(X[r] + i), v(E_), v(RC), v(Q)))
        for i in range(4):
            k.e('v_cvt_pk_bf16_f32 %s, %s, %s' % (v(HO[r] + i), v(X[r] + 2 * i), v(X[r] + 2 * i + 1)))
        k.e('v_mov_b32 %s, s%d' % (v(GS[r]), 86 + r))
        rbf(k, GS[r], TT)
        k.e('v_mul_f32 %s, 0x%x, %s' % (v(GS[r]), LOG2E | 0x80000000, v(GS[r])))
        k.e('v_exp_f32 %s, %s' % (v(GS[r]), v(GS[r])))
        k.nop(1)
        k.e('v_add_f32 %s, 1.0, %s' % (v(GS[r]), v(GS[r])))
        k.e('v_rcp_f32 %s, %s' % (v(GS[r]), v(GS[r])))
        k.nop(1)
        rbf(k, GS[r], TT)
        if r == 0:
            issue_stage(5)
    k.e('s_add_u32 s83, s77, %d' % WS_H)
    k.vm('buffer_store_dwordx4 %s, v2, s[16:19], s83 offen' % v(HO[0], 4), 'lnst')
    k.vm('buffer_store_dwordx4 %s, v2, s[16:19], s83 offen offset:1024' % v(HO[1], 4), 'lnst')
    k.e('s_lshl_b32 s83, s76, 2')
    k.e('s_add_u32 s83, s83, %d' % WS_G)
    k.e('v_mov_b32 v6, 0')
    k.e('s_mov_b64 exec, 1')
    k.vm('buffer_store_dwordx2 %s, v6, s[16:19], s83 offen' % v(GS[0], 2), 'lnst')
    k.e('s_mov_b64 exec, -1')
    LR, LI = 184, 185
    L2R, L2I, L3R, L3I, L4R, L4I = 186, 187, 188, 189, 190, 191
    L32R, L32I = 194, 195
    k.wait_vm('par')
    lam_params(k, PLRE, PLIM, PLDT, LR, LI, 192, 193)
    cmul(k, L2R, L2I, LR, LI, LR, LI)
    cmul(k, L3R, L3I, L2R, L2I, LR, LI)
    cmul(k, L4R, L4I, L2R, L2I, L2R, L2I)
    cmul(k, L32R, L32I, L4R, L4I, L4R, L4I)
    cmul(k, 196, 197, L32R, L32I, L32R, L32I)
    cmul(k, L32R, L32I, 196, 197, 196, 197)
    k.stamp(3)
    ACR, ACI = 40, 56
    FB_ = [(72, 88, 104), (120, 136, 152)]
    def mfma(st, kk):
        FA, FBR, FBI = FB_[st & 1]
        c = '0' if (st == 0 and kk == 0) else v(ACR, 16)
        k.e('v_mfma_f32_32x32x16_bf16 %s, %s, %s, %s' % (v(ACR, 16), v(FA + 4 * kk, 4), v(FBR + 4 * kk, 4), c))
        c = '0' if (st == 0 and kk == 0) else v(ACI, 16)
        k.e('v_mfma_f32_32x32x16_bf16 %s, %s, %s, %s' % (v(ACI, 16), v(FA + 4 * kk, 4), v(FBI + 4 * kk, 4), c))
    for st in range(NST):
        k.wait_vm('st%d' % st)
        k.e('s_barrier')
        k.stamp(4 + st)
        groups = [[], [], [], []]
        if st >= 1 and st + NS - 1 < NST:
            groups = issue_groups(st + NS - 1)
        slot = st % NS
        sset = slot // 2
        off = (slot % 2) * STG
        FA, FBR, FBI = FB_[st & 1]
        for kk in range(4):
            emit_items(k, groups[kk])
            k.e('ds_read_b128 %s, %s offset:%d' % (v(FA + 4 * kk, 4), v(PA + 4 * sset + kk), off))
            k.e('ds_read_b128 %s, %s offset:%d' % (v(FBR + 4 * kk, 4), v(PB + 4 * sset + kk), off + 16384))
            k.e('ds_read_b128 %s, %s offset:%d' % (v(FBI + 4 * kk, 4), v(PB + 4 * sset + kk), off + 16384 + 4096))
            if st >= 1:
                mfma(st - 1, kk)
        if PF and st == 3:
            srd(k, 12, B_W1, 2048 * 2752)
            k.e('s_lshr_b32 s90, s2, 3')
            k.e('s_lshl_b32 s90, s90, 6')
            k.e('s_lshl_b32 s91, s3, 4')
            k.e('s_add_u32 s90, s90, s91')
            k.e('s_and_b32 s92, s2, 7')
            k.e('s_mul_i32 s92, s92, 22')
            k.e('s_lshr_b32 s92, s92, 3')
            k.e('s_lshl_b32 s92, s92, 7')
            k.e('s_mov_b32 s93, 2752')
            k.e('v_lshrrev_b32 v4, 2, v1')
            k.e('v_add_u32 v4, s90, v4')
            k.e('v_mul_lo_u32 v4, v4, s93')
            k.e('v_and_b32 v5, 3, v1')
            k.e('v_lshl_add_u32 v4, v5, 7, v4')
            k.vm('buffer_load_dword v198, v4, s[12:15], s92 offen', 'pf')
            k.e('v_and_b32 v4, 15, v1')
            k.e('v_add_u32 v4, s90, v4')
            k.e('v_mul_lo_u32 v4, v4, s93')
            k.vm('buffer_load_dword v198, v4, s[12:15], s92 offen offset:512', 'pf')
        k.e('s_waitcnt lgkmcnt(0)')
    for kk in range(4):
        mfma(NST - 1, kk)
    k.e('v_lshlrev_b32 v6, 3, v3')
    k.e('v_add_u32 v6, %d, v6' % XOFF)
    k.e('s_lshl_b32 s83, s3, 8')
    k.e('v_add_u32 v7, s83, v6')
    k.nop(10)
    k.stamp(12)
    for j in range(1, 4):
        for q in range(4):
            r = 4 * q + j
            cfma(k, ACR + r, ACI + r, LR, LI, ACR + r - 1, ACI + r - 1, ACR + r, ACI + r)
    EV, OD = 72, 80
    for q in range(4):
        k.e('v_mov_b32 %s, %s' % (v(EV + q), v(ACR + 4 * q + 3)))
        k.e('v_mov_b32 %s, %s' % (v(OD + q), v(ACR + 4 * q + 3)))
        k.e('v_mov_b32 %s, %s' % (v(EV + 4 + q), v(ACI + 4 * q + 3)))
        k.e('v_mov_b32 %s, %s' % (v(OD + 4 + q), v(ACI + 4 * q + 3)))
    k.nop(2)
    for q in range(8):
        k.e('v_permlane32_swap_b32 %s, %s' % (v(EV + q), v(OD + q)))
    k.nop(2)
    CR, CI = 88, 97
    pr, pi_ = EV, EV + 4
    for i in range(1, 8):
        er = (EV if i % 2 == 0 else OD) + i // 2
        dr, di = (126, 127) if i == 7 else (CR + i, CI + i)
        cfma(k, dr, di, L4R, L4I, pr, pi_, er, er + 4)
        pr, pi_ = dr, di
    k.e('ds_write_b64 v7, v[126:127]')
    k.e('s_waitcnt lgkmcnt(0)')
    k.e('s_barrier')
    EW = 110
    for w in range(4):
        k.e('ds_read_b64 %s, v6 offset:%d' % (v(EW + 2 * w, 2), 256 * w))
    k.e('s_waitcnt lgkmcnt(0)')
    cfma(k, 118, 119, L32R, L32I, EW, EW + 1, EW + 2, EW + 3)
    cfma(k, 120, 121, L32R, L32I, 118, 119, EW + 4, EW + 5)
    cfma(k, 122, 123, L32R, L32I, 120, 121, EW + 6, EW + 7)
    k.e('v_mov_b32 %s, 0' % v(CR)); k.e('v_mov_b32 %s, 0' % v(CI))
    for w, (a, b) in ((1, (EW, EW + 1)), (2, (118, 119)), (3, (120, 121))):
        k.e('s_cmp_eq_u32 s3, %d' % w)
        k.e('s_cselect_b64 vcc, -1, 0')
        k.e('v_cndmask_b32 %s, %s, %s, vcc' % (v(CR), v(CR), v(a)))
        k.e('v_cndmask_b32 %s, %s, %s, vcc' % (v(CI), v(CI), v(b)))
    for i in range(0, 7):
        er = (EV if i % 2 == 0 else OD) + i // 2
        cfma(k, CR + i + 1, CI + i + 1, L4R, L4I, CR + i, CI + i, er, er + 4)
    k.e('v_cmp_lt_u32 vcc, 31, v1')
    OWR, OWI = 106, 110
    k.nop(1)
    for q in range(4):
        k.e('v_cndmask_b32 %s, %s, %s, vcc' % (v(OWR + q), v(CR + 2 * q), v(CR + 2 * q + 1)))
        k.e('v_cndmask_b32 %s, %s, %s, vcc' % (v(OWI + q), v(CI + 2 * q), v(CI + 2 * q + 1)))
    PO = 128
    LP = [(LR, LI), (L2R, L2I), (L3R, L3I), (L4R, L4I)]
    k.e('v_lshrrev_b32 v4, 5, v1')
    k.e('v_lshlrev_b32 v4, 2, v4')
    k.e('v_add_u32 v4, s78, v4')
    k.e('v_lshlrev_b32 v4, 12, v4')
    k.e('v_add_u32 v5, s75, v3')
    k.e('v_lshlrev_b32 v5, 3, v5')
    k.e('v_add_u32 v4, v4, v5')
    k.e('s_lshl_b32 s82, s72, 12')
    k.e('s_add_u32 s82, s82, %d' % WS_E)
    k.vm('buffer_store_dwordx2 v[122:123], v5, s[16:19], s82 offen', 'out')
    for q in range(4):
        for j in range(4):
            r = 4 * q + j
            cfma(k, PO + 2 * r, PO + 2 * r + 1, LP[j][0], LP[j][1], OWR + q, OWI + q, ACR + r, ACI + r)
            k.e('s_mov_b32 s82, %d' % (WS_S + (8 * q + j) * 4096))
            k.vm('buffer_store_dwordx2 %s, v4, s[16:19], s82 offen' % v(PO + 2 * r, 2), 'out')
    k.stamp(13)
    k.e('s_waitcnt vmcnt(0)')
    k.stamp(14)
    k.stamp_flush(DBGWG)
    k.tl_end(0)
    k.label('K1_END')
    k.e('s_endpgm')
    return finish(k, 200)

def dma_voff(k, dst, rowbase_s, pitch_s, colbase_s, tr, I3, I4, I7, tmp):
    for j in range(2):
        if tr:
            k.e('v_and_b32 %s, 1, %s' % (v(tmp), v(I4)))
            k.e('v_lshlrev_b32 %s, 2, %s' % (v(tmp), v(tmp)))
        else:
            k.e('v_add_u32 %s, %d, %s' % (v(tmp), 4 * j, v(I4)))
            k.e('v_and_b32 %s, 7, %s' % (v(tmp), v(tmp)))
        k.e('v_xor_b32 %s, %s, %s' % (v(tmp), v(tmp), v(I7)))
        k.e('v_lshlrev_b32 %s, 4, %s' % (v(tmp), v(tmp)))
        k.e('v_add_u32 %s, s%d, %s' % (v(dst + j), rowbase_s, v(I3)))
        if j:
            k.e('v_add_u32 %s, 8, %s' % (v(dst + j), v(dst + j)))
        k.e('v_mul_lo_u32 %s, %s, s%d' % (v(dst + j), v(dst + j), pitch_s))
        k.e('v_add_u32 %s, %s, %s' % (v(dst + j), v(dst + j), v(tmp)))
        k.e('v_add_u32 %s, s%d, %s' % (v(dst + j), colbase_s, v(dst + j)))
        if j:
            k.e('v_subrev_u32 %s, 1024, %s' % (v(dst + j), v(dst + j)))

def pat_direct(k, dst, sub_s, base, LANE, t0, t1):
    k.e('v_and_b32 %s, 31, %s' % (v(t0), v(LANE)))
    k.e('v_lshrrev_b32 %s, 1, %s' % (v(t1), v(t0)))
    k.e('v_and_b32 %s, 7, %s' % (v(t1), v(t1)))
    k.e('v_lshrrev_b32 %s, 5, %s' % (v(dst), v(LANE)))
    k.e('v_xor_b32 %s, %s, %s' % (v(t1), v(t1), v(dst)))
    k.e('v_lshlrev_b32 %s, 4, %s' % (v(t1), v(t1)))
    k.e('v_lshl_add_u32 %s, %s, 7, %s' % (v(t1), v(t0), v(t1)))
    k.e('v_add_u32 %s, s%d, %s' % (v(t1), sub_s, v(t1)))
    if base:
        k.e('v_add_u32 %s, %d, %s' % (v(t1), base, v(t1)))
    for kk in range(4):
        k.e('v_xor_b32 %s, %d, %s' % (v(dst + kk), kk << 5, v(t1)))
        k.e('v_add_u32 %s, 65536, %s' % (v(dst + 4 + kk), v(dst + kk)))

def pat_tr(k, dst, subchunk_s, base, LANE, t0, t1, t2):
    k.e('v_and_b32 %s, 15, %s' % (v(t0), v(LANE)))
    k.e('v_lshrrev_b32 %s, 4, %s' % (v(t1), v(LANE)))
    k.e('v_and_b32 %s, 1, %s' % (v(t1), v(t1)))
    k.e('v_lshlrev_b32 %s, 1, %s' % (v(t1), v(t1)))
    k.e('v_bfe_u32 %s, %s, 1, 1' % (v(t2), v(t0)))
    k.e('v_add_u32 %s, %s, %s' % (v(t1), v(t1), v(t2)))
    k.e('v_add_u32 %s, s%d, %s' % (v(t1), subchunk_s, v(t1)))
    k.e('v_bfe_u32 %s, %s, 3, 1' % (v(t2), v(t0)))
    k.e('v_lshlrev_b32 %s, 2, %s' % (v(t2), v(t2)))
    k.e('v_xor_b32 %s, %s, %s' % (v(t1), v(t1), v(t2)))
    k.e('v_lshlrev_b32 %s, 4, %s' % (v(t1), v(t1)))
    k.e('v_and_b32 %s, 1, %s' % (v(t2), v(t0)))
    k.e('v_lshl_add_u32 %s, %s, 3, %s' % (v(t1), v(t2), v(t1)))
    k.e('v_lshrrev_b32 %s, 2, %s' % (v(t2), v(t0)))
    k.e('v_lshrrev_b32 %s, 5, %s' % (v(t0), v(LANE)))
    k.e('v_lshl_add_u32 %s, %s, 3, %s' % (v(t2), v(t0), v(t2)))
    k.e('v_lshl_add_u32 %s, %s, 7, %s' % (v(dst), v(t2), v(t1)))
    if base:
        k.e('v_add_u32 %s, %d, %s' % (v(dst), base, v(dst)))
    k.e('v_add_u32 %s, 65536, %s' % (v(dst + 1), v(dst)))

def read_frag(k, dstreg, mode, pat, slot, kk):
    sset = slot // 4; off = (slot % 4) * 16384
    if mode == 'd':
        k.e('ds_read_b128 %s, %s offset:%d' % (v(dstreg, 4), v(pat + 4 * sset + kk), off))
        return 1
    else:
        k.e('ds_read_b64_tr_b16 %s, %s offset:%d' % (v(dstreg, 2), v(pat + sset), off + kk * 2048))
        k.e('ds_read_b64_tr_b16 %s, %s offset:%d' % (v(dstreg + 2, 2), v(pat + sset), off + kk * 2048 + 512))
        return 2

def emit_items(k, items):
    for it in items:
        if it[0] == 'e': k.e(it[1])
        else: k.vm(it[1], it[2])

def gemm_loop(k, stages, NS, FBUF, pro={}):
    n = len(stages)
    k.stamp(0)
    if -1 in pro: emit_items(k, pro[-1]())
    for st in range(min(NS, n)):
        for g in stages[st]['issue'](st):
            emit_items(k, g)
        if st in pro: emit_items(k, pro[st]())
    k.stamp(1)
    yield 'prologue'
    def mfma(st, kk):
        S = stages[st]
        FA, FB = FBUF[st & 1]
        c = '0' if (S['first'] and kk == 0) else v(S['acc'], 16)
        k.e('v_mfma_f32_32x32x16_bf16 %s, %s, %s, %s' % (v(S['acc'], 16), v(FA + 4 * kk, 4), v(FB + 4 * kk, 4), c))
    for st in range(n):
        S = stages[st]
        k.wait_vm('st%d' % st)
        k.e('s_barrier')
        k.stamp(2 + st)
        groups = [[], [], [], []]
        if st >= 1 and st + NS - 1 < n:
            groups = stages[st + NS - 1]['issue'](st + NS - 1)
        slot = st % NS
        FA, FB = FBUF[st & 1]
        for kk in range(4):
            emit_items(k, groups[kk])
            read_frag(k, FA + 4 * kk, S['modeA'], S['patA'], slot, kk)
            read_frag(k, FB + 4 * kk, S['modeB'], S['patB'], slot, kk)
            if st >= 1:
                mfma(st - 1, kk)
        if S.get('extra'):
            emit_items(k, S['extra']())
        k.e('s_waitcnt lgkmcnt(0)')
    for kk in range(4):
        mfma(n - 1, kk)

def gen_k2():
    k = Kern('k2_kernel')
    NS = 8
    k.e('s_cmp_ge_u32 s2, 256')
    k.e('s_cbranch_scc1 K2_END')
    load_kernargs(k)
    k.tl_start()
    k.e('v_and_b32 v1, 63, v0')
    k.e('v_lshrrev_b32 v2, 6, v0')
    k.nop(1)
    k.e('v_readfirstlane_b32 s3, v2')
    k.e('s_and_b32 s72, s2, 7')
    k.e('s_lshr_b32 s73, s2, 3')
    k.e('s_mul_i32 s74, s72, 22')
    k.e('s_add_u32 s74, s74, s73')
    k.e('s_and_b32 s75, s74, 7')
    k.e('s_lshl_b32 s75, s75, 6')
    k.e('s_lshr_b32 s74, s74, 3')
    k.e('s_lshl_b32 s74, s74, 6')
    k.e('s_lshr_b32 s76, s3, 1')
    k.e('s_and_b32 s77, s3, 1')
    B1R = 120
    k.e('v_lshrrev_b32 v2, 5, v1')
    k.e('v_lshlrev_b32 v2, 3, v2')
    k.e('s_lshl_b32 s78, s76, 5')
    k.e('s_add_u32 s78, s78, s74')
    k.e('s_lshl_b32 s79, s78, 1')
    k.e('v_add_u32 v2, s79, v2')
    I3, I4, I7 = 4, 5, 6
    k.e('v_lshrrev_b32 v4, 3, v1'); k.e('v_lshrrev_b32 v5, 4, v1'); k.e('v_and_b32 v6, 7, v1')
    VA, VB = 8, 10
    k.e('s_lshl_b32 s80, s3, 4')
    k.e('s_mov_b32 s81, 2752')
    k.e('s_lshl_b32 s82, s74, 1')
    dma_voff(k, VA, 80, 81, 82, True, I3, I4, I7, 7)
    k.e('s_mov_b32 s81, 1024')
    k.e('s_lshl_b32 s82, s75, 1')
    k.e('s_add_u32 s82, s82, %d' % WS_H)
    dma_voff(k, VB, 80, 81, 82, True, I3, I4, I7, 7)
    k.e('s_lshl_b32 s83, s3, 11')
    PA, PB = 12, 14
    k.e('s_lshl_b32 s86, s76, 2')
    k.e('s_lshl_b32 s87, s77, 2')
    pat_tr(k, PA, 86, 0, 1, 64, 65, 66)
    pat_tr(k, PB, 87, 8192, 1, 64, 65, 66)
    k.e('s_mov_b32 s93, 2752')
    k.e('s_cmp_lt_u32 s3, 2')
    k.e('s_cselect_b32 s93, 1024, s93')
    k.e('s_lshl_b32 s92, s93, 9')
    k.e('s_mul_i32 s91, s72, 22')
    k.e('s_lshr_b32 s91, s91, 3')
    k.e('s_lshl_b32 s91, s91, 7')
    k.e('s_cmp_lt_u32 s3, 2')
    k.e('s_cselect_b32 s91, %d, s91' % WS_H)
    k.e('s_cmp_lt_u32 s3, 2')
    k.e('s_cselect_b32 s90, 8, 5')
    k.e('s_and_b32 s89, s3, 1')
    k.e('s_lshl_b32 s89, s89, 3')
    k.e('s_lshl_b32 s88, s73, 4')
    k.e('s_add_u32 s89, s89, s88')
    k.e('v_lshrrev_b32 v4, 3, v1')
    k.e('v_add_u32 v4, s89, v4')
    k.e('v_mul_lo_u32 v4, v4, s93')
    k.e('v_and_b32 v5, 7, v1')
    k.e('v_lshl_add_u32 v230, v5, 7, v4')
    k.e('v_mov_b32 v4, 0x7f000000')
    k.e('v_cmp_gt_u32 vcc, s90, v5')
    k.e('v_cndmask_b32 v230, v4, v230, vcc')
    k.e('s_waitcnt lgkmcnt(0)')
    k.stamp(60)
    srd(k, 16, WS, WS_SZ)
    srd(k, 4, B_W1, 2048 * 2752)
    k.e('s_cmp_lt_u32 s3, 2')
    k.e('s_cselect_b32 s12, s%d, s%d' % (P(WS), P(B_W1)))
    k.e('s_cselect_b32 s13, s%d, s%d' % (P(WS) + 1, P(B_W1) + 1))
    k.e('s_and_b32 s13, s13, 0xffff')
    k.e('s_mov_b32 s14, 0x%x' % (2048 * 2752))
    k.e('s_mov_b32 s15, 0x00020000')
    def pf_slot():
        if not PF: return []
        return [('v', 'buffer_load_dword v231, v230, s[12:15], s91 offen', 'pf'), ('e', 's_add_u32 s91, s91, s92')]
    k.e('s_cmp_lt_u32 s73, 22')
    k.e('s_cbranch_scc1 K2_GEMM')
    for i in range(4): emit_items(k, pf_slot())
    k.vmq = []
    k.e('s_cmp_ge_u32 s73, 30')
    k.e('s_cbranch_scc1 K2_HELP')
    k.e('s_branch K2_FIX')
    k.label('K2_GEMM')
    srd(k, 8, B_B1, 2752)
    def b1_loads():
        return [('v', 'buffer_load_dwordx2 %s, v2, s[8:11], 0 offen offset:%d' % (v(B1R + 2 * q, 2), 16 * q), 'b1') for q in range(4)]
    def issue(st):
        slot = (st % NS) * 16384
        tg = 'st%d' % st
        return [[('e', 's_mov_b32 s84, %d' % (st * 64 * 2752)), ('e', 's_add_u32 m0, s83, %d' % slot), ('e', 's_mov_b32 s85, %d' % (st * 65536)),
                 ('v', 'buffer_load_dwordx4 %s, s[4:7], s84 offen lds' % v(VA), tg)],
                [('v', 'buffer_load_dwordx4 %s, s[4:7], s84 offen offset:1024 lds' % v(VA + 1), tg)],
                [('e', 's_add_u32 m0, s83, %d' % (slot + 8192)), ('e', 's_nop 0'),
                 ('v', 'buffer_load_dwordx4 %s, s[16:19], s85 offen lds' % v(VB), tg)],
                [('v', 'buffer_load_dwordx4 %s, s[16:19], s85 offen offset:1024 lds' % v(VB + 1), tg)]]
    ACC = 16
    FBUF = [(32, 48), (128, 144)]
    stages = [dict(issue=issue, modeA='t', patA=PA, modeB='t', patB=PB, acc=ACC, first=(st == 0), extra=(pf_slot if st in PF2 else (b1_loads if st == 12 else None))) for st in range(32)]
    gl = gemm_loop(k, stages, NS, FBUF, {PRO[0]: pf_slot, PRO[1]: pf_slot})
    next(gl)
    for _ in gl: pass
    k.nop(13)
    B1F = 64
    for i in range(8):
        k.e('v_lshlrev_b32 %s, 16, %s' % (v(B1F + 2 * i), v(B1R + i)))
        k.e('v_and_b32 %s, 0xffff0000, %s' % (v(B1F + 2 * i + 1), v(B1R + i)))
    T = 80
    for r in range(0, 16, 2):
        rbf2(k, ACC + r, ACC + r + 1, T)
    for r in range(16):
        k.e('v_add_f32 %s, %s, %s' % (v(ACC + r), v(ACC + r), v(B1F + r)))
    for r in range(0, 16, 2):
        rbf2(k, ACC + r, ACC + r + 1, T)
    import struct
    def f2u(x): return struct.unpack('<I', struct.pack('<f', x))[0]
    C1 = f2u(0.044715); C2 = f2u(-2.0 * 1.4426950408889634 * 0.7978845608028654)
    k.e('s_mov_b32 s88, 0x%x' % C1)
    for r in range(16):
        t = T + r
        k.e('v_mul_f32 %s, %s, %s' % (v(t), v(ACC + r), v(ACC + r)))
        k.e('v_mul_f32 %s, %s, %s' % (v(t), v(t), v(ACC + r)))
        k.e('v_fma_f32 %s, %s, s88, %s' % (v(t), v(t), v(ACC + r)))
        k.e('v_mul_f32 %s, 0x%x, %s' % (v(t), C2, v(t)))
        k.e('v_exp_f32 %s, %s' % (v(t), v(t)))
    for r in range(16):
        t = T + r
        k.e('v_add_f32 %s, 1.0, %s' % (v(t), v(t)))
        k.e('v_rcp_f32 %s, %s' % (v(t), v(t)))
    for r in range(16):
        t = T + r
        k.e('v_mul_f32 %s, %s, %s' % (v(ACC + r), v(ACC + r), v(t)))
    UO = 100
    for r in range(0, 16, 2):
        k.e('v_cvt_pk_bf16_f32 %s, %s, %s' % (v(UO + r // 2), v(ACC + r), v(ACC + r + 1)))
    k.e('s_cmp_lt_u32 s78, 1376')
    k.e('s_cbranch_scc1 K2_ST')
    for i in range(8):
        k.e('v_mov_b32 %s, 0' % v(UO + i))
    k.label('K2_ST')
    k.e('v_and_b32 v3, 31, v1')
    k.e('s_lshl_b32 s89, s77, 5')
    k.e('s_add_u32 s89, s89, s75')
    k.e('v_add_u32 v3, s89, v3')
    k.e('s_mov_b32 s90, %d' % UP)
    k.e('v_mul_lo_u32 v3, v3, s90')
    k.e('v_add_u32 v3, v3, v2')
    k.e('s_mov_b32 s90, %d' % WS_U)
    for q in range(4):
        k.e('buffer_store_dwordx2 %s, v3, s[16:19], s90 offen offset:%d' % (v(UO + 2 * q, 2), 16 * q))
    k.stamp(50)
    k.e('s_waitcnt vmcnt(0)')
    k.stamp(51)
    k.stamp_flush(DBGWG)
    k.tl_end(1)
    k.e('s_endpgm')
    k.label('K2_FIX')
    k.vmq = []
    srd(k, 20, A_LRE, 1024); srd(k, 24, A_LIM, 1024); srd(k, 28, A_LDT, 1024)
    k.e('s_lshl_b32 s74, s72, 3')
    k.e('s_add_u32 s74, s74, s73')
    k.e('s_sub_u32 s74, s74, 22')
    k.e('s_lshr_b32 s75, s74, 2')
    k.e('s_and_b32 s76, s74, 3')
    k.e('s_lshl_b32 s77, s74, 17')
    k.e('s_add_u32 s77, s77, %d' % WS_S)
    k.e('s_lshl_b32 s78, s74, 16')
    k.e('s_add_u32 s78, s78, %d' % WS_HB)
    k.stamp(0)
    EB = 4; SB = 64
    k.e('v_lshlrev_b32 v2, 2, v0')
    k.e('v_lshlrev_b32 v3, 4, v0')
    k.vm('buffer_load_dword v192, v2, s[20:23], 0 offen', 'p')
    k.vm('buffer_load_dword v193, v2, s[24:27], 0 offen', 'p')
    k.vm('buffer_load_dword v194, v2, s[28:31], 0 offen', 'p')
    for c in range(15):
        k.e('s_mov_b32 s79, %d' % (WS_E + c * 4096))
        k.vm('buffer_load_dwordx4 %s, v3, s[16:19], s79 offen' % v(EB + 4 * c, 4), 'e')
    for j in range(32):
        k.e('s_add_u32 s79, s77, %d' % (j * 4096))
        k.vm('buffer_load_dwordx4 %s, v3, s[16:19], s79 offen' % v(SB + 4 * j, 4), 'h%d' % j)
    k.stamp(1)
    k.wait_vm('p')
    k.stamp(2)
    def pmul(d, a, b, t):
        k.e('v_pk_mul_f32 %s, %s, %s op_sel_hi:[0,1]' % (v(t, 2), v(a, 2), v(b, 2)))
        k.e('v_pk_fma_f32 %s, %s, %s, %s op_sel:[1,1,0] op_sel_hi:[1,0,1] neg_lo:[1,0,0]' % (v(d, 2), v(a, 2), v(b, 2), v(t, 2)))
    def pfma(d, a, b, c, t):
        k.e('v_pk_fma_f32 %s, %s, %s, %s op_sel_hi:[0,1,1]' % (v(t, 2), v(a, 2), v(b, 2), v(c, 2)))
        k.e('v_pk_fma_f32 %s, %s, %s, %s op_sel:[1,1,0] op_sel_hi:[1,0,1] neg_lo:[1,0,0]' % (v(d, 2), v(a, 2), v(b, 2), v(t, 2)))
    LP = [196, 198]; CP = [200, 202]; L32 = [204, 206]; L64 = [208, 210]; L128 = [212, 214]; U = [216, 218]; T = [220, 222]
    for h in range(2):
        lre, lim, ldt = 224, 225, 226
        for d_, s_ in ((lre, 192), (lim, 193), (ldt, 194)):
            if h == 0: k.e('v_and_b32 %s, 0xffff, %s' % (v(d_), v(s_)))
            else: k.e('v_lshrrev_b32 %s, 16, %s' % (v(d_), v(s_)))
        LR, LI = LP[h], LP[h] + 1
        lam_params(k, lre, lim, ldt, LR, LI, 227, 228)
        CR_, CI_ = CP[h], CP[h] + 1
        k.e('v_add_f32 v227, -1.0, %s' % v(LR))
        k.e('v_mul_f32 v228, v224, v224')
        k.e('v_fmac_f32 v228, v225, v225')
        k.e('v_rcp_f32 v228, v228')
        k.e('v_mul_f32 %s, v227, v224' % v(CR_))
        k.e('v_fmac_f32 %s, %s, v225' % (v(CR_), v(LI)))
        k.e('v_mul_f32 %s, %s, v224' % (v(CI_), v(LI)))
        k.e('v_fma_f32 %s, -v227, v225, %s' % (v(CI_), v(CI_)))
        k.e('v_add_f32 v228, v228, v228')
        k.e('v_mul_f32 %s, %s, v228' % (v(CR_), v(CR_)))
        k.e('v_mul_f32 %s, %s, v228' % (v(CI_), v(CI_)))
    for h in range(2): pmul(L64[h], LP[h], LP[h], T[h])
    for h in range(2): pmul(L32[h], L64[h], L64[h], T[h])
    for h in range(2): pmul(L64[h], L32[h], L32[h], T[h])
    for h in range(2): pmul(L128[h], L64[h], L64[h], T[h])
    for h in range(2): pmul(L32[h], L128[h], L128[h], T[h])
    for h in range(2): pmul(L64[h], L32[h], L32[h], T[h])
    for h in range(2): pmul(L128[h], L64[h], L64[h], T[h])
    for i in range(4): k.e('v_mov_b32 %s, 0' % v(U[0] + i))
    k.wait_vm('e')
    k.stamp(3)
    for c in range(15):
        k.e('s_cmp_le_u32 s75, %d' % c)
        k.e('s_cbranch_scc1 K2_CL')
        for h in range(2):
            k.e('v_pk_fma_f32 %s, %s, %s, %s op_sel_hi:[0,1,1]' % (v(EB + 4 * c + 2 * h, 2), v(L128[h], 2), v(U[h], 2), v(EB + 4 * c + 2 * h, 2)))
        for h in range(2):
            k.e('v_pk_fma_f32 %s, %s, %s, %s op_sel:[1,1,0] op_sel_hi:[1,0,1] neg_lo:[1,0,0]' % (v(U[h], 2), v(L128[h], 2), v(U[h], 2), v(EB + 4 * c + 2 * h, 2)))
    k.label('K2_CL')
    for h in range(2): pmul(U[h], CP[h], U[h], T[h])
    k.e('s_bitcmp0_b32 s76, 0')
    k.e('s_cbranch_scc1 K2_R1')
    for h in range(2): pmul(U[h], L32[h], U[h], T[h])
    k.label('K2_R1')
    k.e('s_bitcmp0_b32 s76, 1')
    k.e('s_cbranch_scc1 K2_R2')
    for h in range(2): pmul(U[h], L64[h], U[h], T[h])
    k.label('K2_R2')
    k.stamp(4)
    for j in range(32):
        S_ = SB + 4 * j
        for h in range(2):
            k.e('v_pk_mul_f32 %s, %s, %s op_sel_hi:[0,1]' % (v(T[h], 2), v(LP[h], 2), v(U[h], 2)))
        for h in range(2):
            k.e('v_pk_fma_f32 %s, %s, %s, %s op_sel:[1,1,0] op_sel_hi:[1,0,1] neg_lo:[1,0,0]' % (v(U[h], 2), v(LP[h], 2), v(U[h], 2), v(T[h], 2)))
        k.wait_vm('h%d' % j)
        for h in range(2):
            k.e('v_pk_fma_f32 %s, %s, %s, %s op_sel_hi:[0,1,1]' % (v(T[h], 2), v(CP[h], 2), v(S_ + 2 * h, 2), v(U[h], 2)))
        for h in range(2):
            k.e('v_pk_fma_f32 %s, %s, %s, %s op_sel:[1,1,0] op_sel_hi:[1,0,1] neg_lo:[1,0,0]' % (v(S_ + 2 * h, 2), v(CP[h], 2), v(S_ + 2 * h, 2), v(T[h], 2)))
        k.e('v_cvt_pk_bf16_f32 %s, %s, %s' % (v(S_), v(S_), v(S_ + 2)))
        k.e('v_cvt_pk_bf16_f32 %s, -%s, -%s' % (v(S_ + 1), v(S_ + 1), v(S_ + 3)))
        k.e('s_add_u32 s79, s78, %d' % (j * 2048))
        k.vm('buffer_store_dword %s, v2, s[16:19], s79 offen' % v(S_), 'o')
        k.vm('buffer_store_dword %s, v2, s[16:19], s79 offen offset:1024' % v(S_ + 1), 'o')
    k.stamp(5)
    k.e('s_branch K2_PF3')
    k.label('K2_HELP')
    k.e('s_sleep 100')
    k.label('K2_PF3')
    if PF:
        srd(k, 20, A_CRE, 1 << 19); srd(k, 24, A_CIM, 1 << 19); srd(k, 28, B_W2, 1376 * 4096)
        k.e('s_sub_u32 s74, s73, 22')
        k.e('s_lshl_b32 s74, s74, 8')
        k.e('v_add_u32 v4, s74, v0')
        k.e('v_lshlrev_b32 v5, 7, v4')
        k.e('buffer_load_dword v1, v5, s[20:23], 0 offen')
        k.e('buffer_load_dword v1, v5, s[24:27], 0 offen')
        k.e('v_add_u32 v6, %d, v5' % (2560 * 128))
        k.e('buffer_load_dword v1, v6, s[20:23], 0 offen')
        k.e('buffer_load_dword v1, v6, s[24:27], 0 offen')
        k.e('v_lshrrev_b32 v5, 2, v4')
        k.e('v_lshlrev_b32 v5, 12, v5')
        k.e('v_and_b32 v6, 3, v4')
        k.e('v_lshl_add_u32 v5, v6, 7, v5')
        k.e('s_lshl_b32 s75, s72, 9')
        k.e('v_add_u32 v5, s75, v5')
        k.e('v_add_u32 v6, %d, v5' % (640 * 4096))
        k.e('v_add_u32 v7, %d, v5' % (1280 * 4096))
        for r_ in (5, 6, 7):
            k.e('buffer_load_dword v1, v%d, s[28:31], 0 offen' % r_)
    k.wait_vm_all()
    k.stamp(6)
    k.stamp_flush(DBGWG)
    k.tl_end(1)
    k.label('K2_END')
    k.e('s_waitcnt vmcnt(0)')
    k.e('s_endpgm')
    return finish(k, 232)

def gen_k3():
    k = Kern('k3_kernel')
    NS = 8
    k.e('s_cmp_ge_u32 s2, 256')
    k.e('s_cbranch_scc1 K3_END')
    load_kernargs(k)
    k.tl_start()
    k.e('v_and_b32 v1, 63, v0')
    k.e('v_lshrrev_b32 v2, 6, v0')
    k.nop(1)
    k.e('v_readfirstlane_b32 s3, v2')
    k.e('s_and_b32 s72, s2, 7')
    k.e('s_lshr_b32 s73, s2, 3')
    k.e('s_lshr_b32 s74, s73, 3')
    k.e('s_lshl_b32 s72, s72, 2')
    k.e('s_add_u32 s72, s72, s74')
    k.e('s_and_b32 s73, s73, 7')
    k.e('s_lshl_b32 s74, s72, 6')
    k.e('s_lshl_b32 s75, s73, 6')
    k.e('s_lshr_b32 s76, s3, 1')
    k.e('s_and_b32 s77, s3, 1')
    GR, B2R, XR, DR = 120, 121, 122, 130
    k.e('v_and_b32 v3, 31, v1')
    k.e('s_lshl_b32 s78, s77, 5')
    k.e('s_add_u32 s78, s78, s74')
    k.e('v_add_u32 v3, s78, v3')
    k.e('v_lshlrev_b32 v176, 2, v3')
    k.e('v_lshlrev_b32 v177, 1, v3')
    k.e('s_lshl_b32 s79, s76, 5')
    k.e('s_add_u32 s79, s79, s75')
    k.e('v_lshrrev_b32 v4, 5, v1')
    k.e('v_lshlrev_b32 v4, 2, v4')
    k.e('v_add_u32 v4, s79, v4')
    k.e('v_lshlrev_b32 v178, 1, v4')
    k.e('v_lshl_add_u32 v179, v3, 10, v178')
    k.e('v_lshlrev_b32 v138, 1, v179')
    I3, I4, I7 = 4, 5, 6
    k.e('v_lshrrev_b32 v4, 3, v1'); k.e('v_lshrrev_b32 v5, 4, v1'); k.e('v_and_b32 v6, 7, v1')
    VC, VH, VU, VW = 8, 10, 12, 14
    k.e('s_lshl_b32 s80, s3, 4')
    k.e('s_add_u32 s81, s80, s75')
    k.e('s_add_u32 s82, s80, s74')
    k.e('s_mov_b32 s83, 1024'); k.e('s_mov_b32 s84, 0')
    dma_voff(k, VC, 81, 83, 84, False, I3, I4, I7, 7)
    k.e('s_mov_b32 s83, 2048'); k.e('s_mov_b32 s84, %d' % WS_HB)
    dma_voff(k, VH, 82, 83, 84, False, I3, I4, I7, 7)
    k.e('s_mov_b32 s83, %d' % UP); k.e('s_mov_b32 s84, %d' % WS_U)
    dma_voff(k, VU, 81, 83, 84, False, I3, I4, I7, 7)
    k.e('s_mov_b32 s83, 4096'); k.e('s_lshl_b32 s84, s74, 1')
    dma_voff(k, VW, 80, 83, 84, True, I3, I4, I7, 7)
    k.e('s_lshl_b32 s83, s3, 11')
    PA, PB, PT = 16, 24, 32
    k.e('s_lshl_b32 s86, s76, 12')
    k.e('s_lshl_b32 s87, s77, 12')
    k.e('s_lshl_b32 s88, s77, 2')
    pat_direct(k, PA, 86, 0, 1, 100, 101)
    pat_direct(k, PB, 87, 8192, 1, 100, 101)
    pat_tr(k, PT, 88, 8192, 1, 100, 101, 102)
    def sel(d, a_, b_):
        k.e('s_cmp_lt_u32 s3, 2')
        k.e('s_cselect_b32 %s, %s, %s' % (d, a_, b_))
    k.e('s_lshr_b32 s94, s2, 3')
    k.e('s_and_b32 s95, s2, 7')
    k.e('s_lshl_b32 s84, s94, 4')
    k.e('s_lshl_b32 s85, s3, 3')
    k.e('s_add_u32 s84, s84, s85')
    k.e('s_lshl_b32 s85, s95, 8')
    k.e('s_lshl_b32 s93, s94, 3')
    k.e('s_add_u32 s85, s85, s93')
    sel('s85', 's84', 's85')
    k.e('s_mov_b32 s93, 2048')
    sel('s93', '1024', 's93')
    sel('s89', '0', '%d' % WS_HB)
    sel('s90', '0', '%d' % (WS_HB + 1024))
    k.e('v_lshrrev_b32 v4, 3, v1')
    k.e('v_and_b32 v5, 7, v1')
    k.e('v_add_u32 v6, s85, v4')
    k.e('v_mul_lo_u32 v6, v6, s93')
    k.e('v_lshl_add_u32 v173, v5, 7, v6')
    k.e('s_mov_b32 s93, %d' % UP)
    k.e('v_add_u32 v6, s84, v4')
    k.e('v_mul_lo_u32 v6, v6, s93')
    k.e('v_lshl_add_u32 v172, v5, 7, v6')
    k.e('s_lshl_b32 s93, s94, 4')
    k.e('v_lshrrev_b32 v4, 2, v1')
    k.e('v_add_u32 v4, s93, v4')
    k.e('v_lshlrev_b32 v4, 12, v4')
    k.e('v_and_b32 v5, 3, v1')
    k.e('v_lshl_add_u32 v4, v5, 7, v4')
    k.e('s_cmp_lt_u32 s3, 2')
    k.e('s_cselect_b64 vcc, -1, 0')
    k.e('v_cndmask_b32 v172, v4, v172, vcc')
    k.e('s_lshl_b32 s91, s95, 9')
    sel('s91', '%d' % WS_U, 's91')
    k.e('s_mov_b32 s92, 0x200000')
    sel('s92', '1024', 's92')
    k.e('s_cmp_eq_u32 s3, 3')
    k.e('s_cselect_b64 vcc, -1, 0')
    k.e('v_mov_b32 v4, 0x7f000000')
    k.e('v_cndmask_b32 v172, v172, v4, vcc')
    k.e('v_cndmask_b32 v173, v173, v4, vcc')
    k.e('s_mov_b32 s93, 0x%x' % WS_SZ)
    k.e('s_waitcnt lgkmcnt(0)')
    k.stamp(60)
    srd(k, 16, WS, WS_SZ)
    srd(k, 4, A_CRE, 1 << 19)
    def rest_srds():
        srd(k, 8, A_CIM, 1 << 19); srd(k, 12, B_W2, 1376 * 4096)
        srd(k, 20, A_X, 2 << 20); srd(k, 24, A_DSK, 1024); srd(k, 28, B_B2, 4096); srd(k, 32, OUT, 4 << 20)
        for d, pa, pb in ((96, A_CRE, WS), (36, A_CIM, WS), (40, WS, B_W2)):
            k.e('s_cmp_lt_u32 s3, 2')
            k.e('s_cselect_b32 s%d, s%d, s%d' % (d, P(pa), P(pb)))
            k.e('s_cselect_b32 s%d, s%d, s%d' % (d + 1, P(pa) + 1, P(pb) + 1))
            if d == 40: k.e('s_cselect_b32 s%d, s93, 0x%x' % (d + 2, 1376 * 4096))
            else: k.e('s_cselect_b32 s%d, 0x80000, s93' % (d + 2))
            k.e('s_and_b32 s%d, s%d, 0xffff' % (d + 1, d + 1))
            k.e('s_mov_b32 s%d, 0x00020000' % (d + 3))
        return [('v', 'buffer_load_dword v174, v173, s[96:99], s89 offen', 'pf')] if PF else []
    def pf1():
        return [('v', 'buffer_load_dword v174, v173, s[36:39], s90 offen', 'pf')] if PF else []
    def pf_slot():
        if not PF: return []
        return [('v', 'buffer_load_dword v174, v172, s[40:43], s91 offen', 'pf'), ('e', 's_add_u32 s91, s91, s92')]
    def ep_loads():
        L = [('e', 's_mov_b32 s79, %d' % WS_G), ('v', 'buffer_load_dword %s, v176, s[16:19], s79 offen' % v(GR), 'ep'),
             ('v', 'buffer_load_ushort %s, v177, s[28:31], 0 offen' % v(B2R), 'ep')]
        for q in range(4):
            L.append(('v', 'buffer_load_dwordx2 %s, v178, s[24:27], 0 offen offset:%d' % (v(DR + 2 * q, 2), 16 * q), 'ep'))
        for q in range(4):
            L.append(('v', 'buffer_load_dwordx2 %s, v179, s[20:23], 0 offen offset:%d' % (v(XR + 2 * q, 2), 16 * q), 'ep'))
        return L
    def issue(st):
        slot = (st % NS) * 16384
        tg = 'st%d' % st
        if st < 16:
            srdA = 4 if st < 8 else 8
            oa, ob = (st % 8) * 128, st * 128
            va, vb, srdB = VC, VH, 16
        else:
            srdA = 16
            oa, ob = (st - 16) * 128, (st - 16) * 262144
            va, vb, srdB = VU, VW, 12
        return [[('e', 's_mov_b32 s84, %d' % oa), ('e', 's_add_u32 m0, s83, %d' % slot), ('e', 's_mov_b32 s85, %d' % ob),
                 ('v', 'buffer_load_dwordx4 %s, s[%d:%d], s84 offen lds' % (v(va), srdA, srdA + 3), tg)],
                [('v', 'buffer_load_dwordx4 %s, s[%d:%d], s84 offen offset:1024 lds' % (v(va + 1), srdA, srdA + 3), tg)],
                [('e', 's_add_u32 m0, s83, %d' % (slot + 8192)), ('e', 's_nop 0'),
                 ('v', 'buffer_load_dwordx4 %s, s[%d:%d], s85 offen lds' % (v(vb), srdB, srdB + 3), tg)],
                [('v', 'buffer_load_dwordx4 %s, s[%d:%d], s85 offen offset:1024 lds' % (v(vb + 1), srdB, srdB + 3), tg)]]
    ACA, ACB = 36, 52
    FBUF = [(68, 84), (140, 156)]
    stages = []
    for st in range(38):
        ex = pf_slot if st in PF3 else (ep_loads if st == 22 else None)
        if st < 16:
            stages.append(dict(issue=issue, modeA='d', patA=PA, modeB='d', patB=PB, acc=ACA, first=(st == 0), extra=ex))
        else:
            stages.append(dict(issue=issue, modeA='d', patA=PA, modeB='t', patB=PT, acc=ACB, first=(st == 16), extra=ex))
    gl = gemm_loop(k, stages, NS, FBUF, {PRO[0]: rest_srds, PRO[1]: pf1})
    next(gl)
    for _ in gl: pass
    k.nop(13)
    XF, DF, T = 68, 84, 100
    for i in range(8):
        k.e('v_lshlrev_b32 %s, 16, %s' % (v(XF + 2 * i), v(XR + i)))
        k.e('v_and_b32 %s, 0xffff0000, %s' % (v(XF + 2 * i + 1), v(XR + i)))
        k.e('v_lshlrev_b32 %s, 16, %s' % (v(DF + 2 * i), v(DR + i)))
        k.e('v_and_b32 %s, 0xffff0000, %s' % (v(DF + 2 * i + 1), v(DR + i)))
    k.e('v_lshlrev_b32 %s, 16, %s' % (v(B2R), v(B2R)))
    OMG = 101
    k.e('v_sub_f32 %s, 1.0, %s' % (v(OMG), v(GR)))
    rbf(k, OMG, T)
    for r in range(16):
        k.e('v_mul_f32 %s, %s, %s' % (v(XF + r), v(XF + r), v(DF + r)))
    for r in range(0, 16, 2):
        rbf2(k, XF + r, XF + r + 1, T)
        rbf2(k, ACB + r, ACB + r + 1, T)
    for r in range(16):
        k.e('v_add_f32 %s, %s, %s' % (v(ACA + r), v(ACA + r), v(XF + r)))
        k.e('v_add_f32 %s, %s, %s' % (v(ACB + r), v(ACB + r), v(B2R)))
    for r in range(0, 16, 2):
        rbf2(k, ACB + r, ACB + r + 1, T)
    for r in range(16):
        k.e('v_mul_f32 %s, %s, %s' % (v(ACB + r), v(ACB + r), v(OMG)))
        k.e('v_mul_f32 %s, %s, %s' % (v(ACA + r), v(ACA + r), v(GR)))
    for r in range(0, 16, 2):
        rbf2(k, ACB + r, ACB + r + 1, T)
    for r in range(16):
        k.e('v_add_f32 %s, %s, %s' % (v(ACA + r), v(ACA + r), v(ACB + r)))
    for q in range(4):
        k.e('buffer_store_dwordx4 %s, v138, s[32:35], 0 offen offset:%d' % (v(ACA + 4 * q, 4), 32 * q))
    k.stamp(50)
    k.e('s_waitcnt vmcnt(0)')
    k.stamp(51)
    k.stamp_flush(DBGWG)
    k.tl_end(2)
    k.label('K3_END')
    k.e('s_endpgm')
    return finish(k, 180, 102)

def main():
    hdr = open('gated_mix__ssm_conv_s5__mixer_token_mlp__prompt.s.ref').read().split('\n')
    top = []
    for l in hdr:
        if l.startswith(';') and '@launch' not in l:
            top.append(l)
        elif not l.startswith(';'):
            break
    top.append('; @launch kernel=k1_kernel grid=(256,1,1) block=(256,1,1) lds=148480')
    top.append('; @launch kernel=k2_kernel grid=(256,1,1) block=(256,1,1) lds=131072')
    top.append('; @launch kernel=k3_kernel grid=(256,1,1) block=(256,1,1) lds=131072')
    top.append('.amdgcn_target "amdgcn-amd-amdhsa--gfx950"')
    top.append('.text')
    ks = [gen_k1(), gen_k2(), gen_k3()]
    body = []
    for b, d in ks:
        body += b
    body.append('.section .rodata,"a"')
    for b, d in ks:
        body += d
    out = '\n'.join(top + body) + '\n'
    path = sys.argv[1] if len(sys.argv) > 1 else 'gated_mix__ssm_conv_s5__mixer_token_mlp__prompt.s'
    open(path, 'w').write(out)
    print('wrote', path, len(out), 'bytes')

if __name__ == '__main__':
    main()
```

```python
import sys, os
DEBUG = int(os.environ.get('DEBUG', '0'))
DBGWG = int(os.environ.get('DBGWG', '0'))
TL = int(os.environ.get('TL', '0'))
PF = int(os.environ.get('PF', '1'))
PFX = int(os.environ.get('PFX', '1'))
PRO = eval(os.environ.get('PRO', '(1,7)'))
PF2 = eval(os.environ.get('PF2', '(1,9)'))
PF3 = eval(os.environ.get('PF3', '(0,8,16)'))

WS_H  = 0
WS_G  = 2 << 20
WS_S  = 4 << 20
WS_E  = 12 << 20
WS_HB = 16 << 20
WS_U  = 20 << 20
WS_SZ = 24 << 20
UP = 2816
LOG2E = 0x3fb8aa3b
INV2PI = 0x3e22f983

class Kern:
    def __init__(self, name):
        self.name = name
        self.L = []
        self.vmq = []
        self.nlab = 0
    def e(self, s):
        self.L.append('    ' + s)
    def c(self, s):
        self.L.append('    ; ' + s)
    def label(self, l):
        self.L.append(l + ':')
    def vm(self, s, tag):
        self.e(s); self.vmq.append(tag)
    def wait_vm(self, tag):
        idxs = [i for i, t in enumerate(self.vmq) if t == tag]
        if not idxs:
            return
        idx = idxs[-1]
        n = len(self.vmq) - 1 - idx
        self.e('s_waitcnt vmcnt(%d)' % min(n, 63))
        self.vmq = self.vmq[idx + 1:]
    def wait_vm_all(self):
        self.e('s_waitcnt vmcnt(0)'); self.vmq = []
    def stamp(self, i):
        if not DEBUG: return
        self.e('s_memtime s[94:95]')
        self.e('s_waitcnt lgkmcnt(0)')
        self.e('v_writelane_b32 v255, s94, %d' % i)
    def stamp_flush(self, wg):
        if not DEBUG: return
        self.nlab += 1
        lab = '%s_DBG%d' % (self.name, self.nlab)
        self.e('s_cmp_lg_u32 s2, %d' % wg)
        self.e('s_cbranch_scc1 %s' % lab)
        self.e('s_cmp_lg_u32 s3, 0')
        self.e('s_cbranch_scc1 %s' % lab)
        self.e('s_mov_b32 s96, s%d' % P(DBG))
        self.e('s_and_b32 s97, s%d, 0xffff' % (P(DBG) + 1))
        self.e('s_mov_b32 s98, 256')
        self.e('s_mov_b32 s99, 0x00020000')
        self.e('v_and_b32 v254, 63, v0')
        self.e('v_lshlrev_b32 v254, 2, v254')
        self.e('buffer_store_dword v255, v254, s[96:99], 0 offen')
        self.label(lab)
    def tl_start(self):
        if not TL: return
        self.e('s_memrealtime s[100:101]')
    def tl_end(self, kidx):
        if not TL: return
        self.nlab += 1
        lab = '%s_TL%d' % (self.name, self.nlab)
        self.e('s_waitcnt vmcnt(0)')
        self.e('s_memrealtime s[94:95]')
        self.e('s_cmp_lg_u32 s3, 0')
        self.e('s_cbranch_scc1 %s' % lab)
        self.e('s_mov_b32 s96, s%d' % P(WS))
        self.e('s_and_b32 s97, s%d, 0xffff' % (P(WS) + 1))
        self.e('s_mov_b32 s98, 0x4000000')
        self.e('s_mov_b32 s99, 0x00020000')
        self.e('s_waitcnt lgkmcnt(0)')
        if TL == 2: self.e('s_getreg_b32 s100, hwreg(HW_REG_XCC_ID)')
        self.e('v_mov_b32 v2, s100'); self.e('v_mov_b32 v3, s94')
        self.e('s_lshl_b32 s94, s2, 3')
        self.e('s_add_u32 s94, s94, %d' % ((32 << 20) + kidx * 4096))
        self.e('v_mov_b32 v4, 0')
        self.e('buffer_store_dwordx2 v[2:3], v4, s[96:99], s94 offen')
        self.label(lab)
    def nop(self, n):
        while n > 0:
            k = min(n, 16)
            self.e('s_nop %d' % (k - 1)); n -= k

def v(i, n=1):
    return 'v%d' % i if n == 1 else 'v[%d:%d]' % (i, i + n - 1)
def s(i, n=1):
    return 's%d' % i if n == 1 else 's[%d:%d]' % (i, i + n - 1)

def P(k): return 36 + 2 * k
A_X, A_LRE, A_LIM, A_BRE, A_BIM, A_CRE, A_CIM, A_LDT, A_DSK, B_X, B_W1, B_B1, B_W2, B_B2, GATE, OUT, DBG, WS = range(18)

def load_kernargs(k):
    k.e('s_load_dwordx16 s[36:51], s[0:1], 0')
    k.e('s_load_dwordx16 s[52:67], s[0:1], 64')
    k.e('s_load_dwordx4 s[68:71], s[0:1], 128')

def srd(k, dst, ptr, nbytes):
    k.e('s_mov_b32 s%d, s%d' % (dst, P(ptr)))
    k.e('s_and_b32 s%d, s%d, 0xffff' % (dst + 1, P(ptr) + 1))
    k.e('s_mov_b32 s%d, 0x%x' % (dst + 2, nbytes))
    k.e('s_mov_b32 s%d, 0x00020000' % (dst + 3))

def cfma(k, dr, di, ar, ai, br, bi, cr, ci):
    k.e('v_fma_f32 %s, %s, %s, %s' % (v(dr), v(ar), v(br), v(cr)))
    k.e('v_fma_f32 %s, %s, %s, %s' % (v(di), v(ar), v(bi), v(ci)))
    k.e('v_fma_f32 %s, -%s, %s, %s' % (v(dr), v(ai), v(bi), v(dr)))
    k.e('v_fma_f32 %s, %s, %s, %s' % (v(di), v(ai), v(br), v(di)))

def cmul(k, dr, di, ar, ai, br, bi):
    k.e('v_mul_f32 %s, %s, %s' % (v(dr), v(ar), v(br)))
    k.e('v_mul_f32 %s, %s, %s' % (v(di), v(ar), v(bi)))
    k.e('v_fma_f32 %s, -%s, %s, %s' % (v(dr), v(ai), v(bi), v(dr)))
    k.e('v_fma_f32 %s, %s, %s, %s' % (v(di), v(ai), v(br), v(di)))

def rbf(k, a, t):
    k.e('v_cvt_pk_bf16_f32 %s, %s, %s' % (v(t), v(a), v(a)))
    k.e('v_lshlrev_b32 %s, 16, %s' % (v(a), v(t)))

def rbf2(k, a, b, t):
    k.e('v_cvt_pk_bf16_f32 %s, %s, %s' % (v(t), v(a), v(b)))
    k.e('v_lshlrev_b32 %s, 16, %s' % (v(a), v(t)))
    k.e('v_and_b32 %s, 0xffff0000, %s' % (v(b), v(t)))

def lam_params(k, lre, lim, ldt, Lr, Li, t0, t1):
    k.e('v_lshlrev_b32 %s, 16, %s' % (v(lre), v(lre)))
    k.e('v_lshlrev_b32 %s, 16, %s' % (v(lim), v(lim)))
    k.e('v_lshlrev_b32 %s, 16, %s' % (v(ldt), v(ldt)))
    k.e('v_mul_f32 %s, 0x%x, %s' % (v(t0), LOG2E, v(ldt)))
    k.e('v_exp_f32 %s, %s' % (v(t0), v(t0)))
    k.nop(1)
    rbf(k, t0, t1)
    k.e('v_mul_f32 %s, %s, %s' % (v(t1), v(t0), v(lre)))
    k.e('v_mul_f32 %s, %s, %s' % (v(t0), v(t0), v(lim)))
    k.e('v_mul_f32 %s, 0x%x, %s' % (v(t1), LOG2E, v(t1)))
    k.e('v_mul_f32 %s, 0x%x, %s' % (v(t0), INV2PI, v(t0)))
    k.e('v_exp_f32 %s, %s' % (v(t1), v(t1)))
    k.e('v_fract_f32 %s, %s' % (v(t0), v(t0)))
    k.e('v_cos_f32 %s, %s' % (v(Lr), v(t0)))
    k.e('v_sin_f32 %s, %s' % (v(Li), v(t0)))
    k.nop(1)
    k.e('v_mul_f32 %s, %s, %s' % (v(Lr), v(Lr), v(t1)))
    k.e('v_mul_f32 %s, %s, %s' % (v(Li), v(Li), v(t1)))

def finish(k, nvgpr, nsgpr=96):
    if DEBUG: nvgpr = 256; nsgpr = 102
    if TL: nsgpr = 102
    out = []
    out.append('.globl %s' % k.name)
    out.append('.p2align 8')
    out.append('.type %s,@function' % k.name)
    out.append('%s:' % k.name)
    out += k.L
    desc = []
    desc.append('.p2align 6')
    desc.append('.amdhsa_kernel %s' % k.name)
    desc.append('  .amdhsa_next_free_vgpr %d' % nvgpr)
    desc.append('  .amdhsa_next_free_sgpr %d' % nsgpr)
    desc.append('  .amdhsa_accum_offset %d' % ((nvgpr + 3) // 4 * 4))
    desc.append('  .amdhsa_group_segment_fixed_size 0')
    desc.append('  .amdhsa_kernarg_size 144')
    desc.append('  .amdhsa_user_sgpr_count 2')
    desc.append('  .amdhsa_user_sgpr_kernarg_segment_ptr 1')
    desc.append('  .amdhsa_system_sgpr_workgroup_id_x 1')
    desc.append('.end_amdhsa_kernel')
    return out, desc

def gen_k1():
    k = Kern('k1_kernel')
    NS = 6; STG = 24576; NST = 8
    XOFF = NS * STG
    k.e('s_cmp_ge_u32 s2, 256')
    k.e('s_cbranch_scc1 K1_END')
    load_kernargs(k)
    k.tl_start()
    k.e('v_and_b32 v1, 63, v0')
    k.e('v_lshrrev_b32 v2, 6, v0')
    k.nop(1)
    k.e('v_readfirstlane_b32 s3, v2')
    k.e('s_and_b32 s72, s2, 7')
    k.e('s_lshr_b32 s73, s2, 3')
    k.e('s_lshr_b32 s74, s73, 4')
    k.e('s_lshl_b32 s72, s72, 1')
    k.e('s_add_u32 s72, s72, s74')
    k.e('s_and_b32 s73, s73, 15')
    k.e('s_lshl_b32 s74, s72, 7')
    k.e('s_lshl_b32 s75, s73, 5')
    XR0, XR1, GW = 168, 172, 176
    PLRE, PLIM, PLDT = 180, 181, 182
    k.e('s_lshl_b32 s76, s73, 3')
    k.e('s_add_u32 s76, s76, s74')
    k.e('s_lshl_b32 s77, s3, 1')
    k.e('s_add_u32 s76, s76, s77')
    k.e('s_lshl_b32 s77, s76, 10')
    k.e('v_lshlrev_b32 v2, 4, v1')
    k.e('v_and_b32 v3, 31, v1')
    k.e('v_add_u32 v14, s75, v3')
    k.e('v_lshlrev_b32 v14, 1, v14')
    VA = 8; VB = 12
    k.e('v_lshrrev_b32 v4, 3, v1')
    k.e('v_lshrrev_b32 v5, 4, v1')
    k.e('v_and_b32 v6, 7, v1')
    k.e('s_lshl_b32 s78, s3, 5')
    k.e('s_add_u32 s78, s78, s74')
    for j in range(4):
        k.e('v_add_u32 v7, %d, v5' % (4 * j))
        k.e('v_and_b32 v7, 7, v7')
        k.e('v_xor_b32 v7, v7, v6')
        k.e('v_lshlrev_b32 v7, 4, v7')
        k.e('v_add_u32 %s, s78, v4' % v(VA + j))
        k.e('v_add_u32 %s, %d, %s' % (v(VA + j), 7 * j, v(VA + j)))
        k.e('v_lshlrev_b32 %s, 10, %s' % (v(VA + j), v(VA + j)))
        k.e('v_add_u32 %s, %s, v7' % (v(VA + j), v(VA + j)))
    k.e('s_and_b32 s79, s3, 1')
    k.e('s_lshl_b32 s79, s79, 4')
    k.e('s_add_u32 s79, s79, s75')
    for j in range(2):
        k.e('v_add_u32 v7, %d, v5' % (4 * j))
        k.e('v_and_b32 v7, 7, v7')
        k.e('v_xor_b32 v7, v7, v6')
        k.e('v_lshlrev_b32 v7, 4, v7')
        k.e('v_add_u32 %s, s79, v4' % v(VB + j))
        k.e('v_add_u32 %s, %d, %s' % (v(VB + j), 7 * j, v(VB + j)))
        k.e('v_lshlrev_b32 %s, 10, %s' % (v(VB + j), v(VB + j)))
        k.e('v_add_u32 %s, %s, v7' % (v(VB + j), v(VB + j)))
    k.e('s_lshl_b32 s80, s3, 12')
    k.e('s_lshl_b32 s81, s3, 11')
    k.e('s_add_u32 s81, s81, 16384')
    PA = 16; PB = 28
    k.e('v_lshrrev_b32 v4, 5, v1')
    k.e('v_lshrrev_b32 v5, 1, v3')
    k.e('v_and_b32 v5, 7, v5')
    k.e('v_xor_b32 v5, v5, v4')
    k.e('v_lshlrev_b32 v5, 4, v5')
    k.e('v_lshl_add_u32 v5, v3, 7, v5')
    for kk in range(4):
        k.e('v_xor_b32 %s, %d, v5' % (v(PB + kk), kk << 5))
        k.e('v_add_u32 %s, s80, %s' % (v(PA + kk), v(PB + kk)))
        for st in (1, 2):
            k.e('v_add_u32 %s, %d, %s' % (v(PB + 4 * st + kk), 49152 * st, v(PB + kk)))
            k.e('v_add_u32 %s, %d, %s' % (v(PA + 4 * st + kk), 49152 * st, v(PA + kk)))
    k.e('s_waitcnt lgkmcnt(0)')
    k.stamp(60)
    srd(k, 4, A_X, 2 << 20)
    k.e('s_cmp_ge_u32 s3, 2')
    k.e('s_cselect_b32 s8, s%d, s%d' % (P(A_BIM), P(A_BRE)))
    k.e('s_cselect_b32 s9, s%d, s%d' % (P(A_BIM) + 1, P(A_BRE) + 1))
    k.e('s_and_b32 s9, s9, 0xffff')
    k.e('s_mov_b32 s10, 0x80000')
    k.e('s_mov_b32 s11, 0x00020000')
    srd(k, 32, GATE, 1024)
    k.vm('buffer_load_dwordx4 %s, v2, s[4:7], s77 offen' % v(XR0, 4), 'ln')
    k.vm('buffer_load_dwordx4 %s, v2, s[4:7], s77 offen offset:1024' % v(XR1, 4), 'ln')
    k.vm('buffer_load_dwordx4 %s, v2, s[32:35], 0 offen' % v(GW, 4), 'ln')
    def issue_groups(st):
        slot = (st % NS) * STG
        tg = 'st%d' % st
        g = [[('e', 's_mov_b32 s82, %d' % (st * 128)), ('e', 's_add_u32 m0, s80, %d' % slot), ('e', 's_nop 0')], [], [], []]
        for j in range(4):
            g[j // 2].append(('v', 'buffer_load_dwordx4 %s, s[4:7], s82 offen offset:%d lds' % (v(VA + j), 1024 * j), tg))
        g[2] += [('e', 's_add_u32 m0, s81, %d' % slot), ('e', 's_nop 0')]
        for j in range(2):
            g[2 + j].append(('v', 'buffer_load_dwordx4 %s, s[8:11], s82 offen offset:%d lds' % (v(VB + j), 1024 * j), tg))
        return g
    def issue_stage(st):
        for g in issue_groups(st): emit_items(k, g)
    issue_stage(0)
    srd(k, 16, WS, WS_SZ)
    srd(k, 20, A_LRE, 1024); srd(k, 24, A_LIM, 1024); srd(k, 28, A_LDT, 1024)
    k.vm('buffer_load_ushort %s, v14, s[20:23], 0 offen' % v(PLRE), 'par')
    k.vm('buffer_load_ushort %s, v14, s[24:27], 0 offen' % v(PLIM), 'par')
    k.vm('buffer_load_ushort %s, v14, s[28:31], 0 offen' % v(PLDT), 'par')
    issue_stage(1)
    issue_stage(2)
    k.stamp(1)
    k.wait_vm('ln')
    k.stamp(2)
    X = [100, 110]
    G = 120
    def unpack8(dst, src):
        for i in range(4):
            k.e('v_lshlrev_b32 %s, 16, %s' % (v(dst + 2 * i), v(src + i)))
            k.e('v_and_b32 %s, 0xffff0000, %s' % (v(dst + 2 * i + 1), v(src + i)))
    unpack8(X[0], XR0); unpack8(X[1], XR1); unpack8(G, GW)
    SUM = [130, 131]; GS = [132, 133]; TT = 134
    for r in range(2):
        k.e('v_add_f32 %s, %s, %s' % (v(SUM[r]), v(X[r]), v(X[r] + 1)))
        for i in range(2, 8):
            k.e('v_add_f32 %s, %s, %s' % (v(SUM[r]), v(SUM[r]), v(X[r] + i)))
        for i in range(8):
            k.e('v_mul_f32 %s, %s, %s' % (v(TT + i), v(X[r] + i), v(G + i)))
        for i in range(0, 8, 2):
            rbf2(k, TT + i, TT + i + 1, TT + 8)
        k.e('v_add_f32 %s, %s, %s' % (v(GS[r]), v(TT), v(TT + 1)))
        for i in range(2, 8):
            k.e('v_add_f32 %s, %s, %s' % (v(GS[r]), v(GS[r]), v(TT + i)))
    def wave_reduce(regs, sdst):
        for ctl in ('quad_perm:[1,0,3,2] row_mask:0xf bank_mask:0xf', 'quad_perm:[2,3,0,1] row_mask:0xf bank_mask:0xf',
                    'row_half_mirror row_mask:0xf bank_mask:0xf', 'row_mirror row_mask:0xf bank_mask:0xf',
                    'row_bcast:15 row_mask:0xa bank_mask:0xf', 'row_bcast:31 row_mask:0xc bank_mask:0xf'):
            k.nop(2)
            for r in regs:
                k.e('v_add_f32_dpp %s, %s, %s %s' % (v(r), v(r), v(r), ctl))
        k.nop(1)
        for r, sd in zip(regs, sdst):
            k.e('v_readlane_b32 s%d, %s, 63' % (sd, v(r)))
        k.nop(2)
    wave_reduce([SUM[0], SUM[1], GS[0], GS[1]], [84, 85, 86, 87])
    issue_stage(3)
    MEAN = [140, 141]; SQ = [142, 143]
    for r in range(2):
        k.e('v_mov_b32 %s, 0x3b000000' % v(MEAN[r]))
        k.e('v_mul_f32 %s, s%d, %s' % (v(MEAN[r]), 84 + r, v(MEAN[r])))
        k.e('v_sub_f32 %s, %s, %s' % (v(TT), v(X[r]), v(MEAN[r])))
        k.e('v_mul_f32 %s, %s, %s' % (v(SQ[r]), v(TT), v(TT)))
        for i in range(1, 8):
            k.e('v_sub_f32 %s, %s, %s' % (v(TT), v(X[r] + i), v(MEAN[r])))
            k.e('v_fmac_f32 %s, %s, %s' % (v(SQ[r]), v(TT), v(TT)))
    wave_reduce(SQ, [88, 89])
    issue_stage(4)
    HO = [150, 154]
    for r in range(2):
        SD = 144; RC = 145; Q = 146; E_ = 147
        k.e('v_mov_b32 %s, 0x3b000000' % v(SD))
        k.e('v_mul_f32 %s, s%d, %s' % (v(SD), 88 + r, v(SD)))
        rbf(k, SD, TT)
        k.e('v_add_f32 %s, 0x3727c5ac, %s' % (v(SD), v(SD)))
        rbf(k, SD, TT)
        k.e('v_sqrt_f32 %s, %s' % (v(SD), v(SD)))
        k.nop(1)
        rbf(k, SD, TT)
        k.e('v_rcp_f32 %s, %s' % (v(RC), v(SD)))
        rbf(k, MEAN[r], TT)
        for i in range(8):
            k.e('v_sub_f32 %s, %s, %s' % (v(X[r] + i), v(X[r] + i), v(MEAN[r])))
        for i in range(0, 8, 2):
            rbf2(k, X[r] + i, X[r] + i + 1, TT)
        for i in range(8):
            k.e('v_mul_f32 %s, %s, %s' % (v(Q), v(X[r] + i), v(RC)))
            k.e('v_fma_f32 %s, -%s, %s, %s' % (v(E_), v(Q), v(SD), v(X[r] + i)))
            k.e('v_fma_f32 %s, %s, %s, %s' % (v(X[r] + i), v(E_), v(RC), v(Q)))
        for i in range(4):
            k.e('v_cvt_pk_bf16_f32 %s, %s, %s' % (v(HO[r] + i), v(X[r] + 2 * i), v(X[r] + 2 * i + 1)))
        k.e('v_mov_b32 %s, s%d' % (v(GS[r]), 86 + r))
        rbf(k, GS[r], TT)
        k.e('v_mul_f32 %s, 0x%x, %s' % (v(GS[r]), LOG2E | 0x80000000, v(GS[r])))
        k.e('v_exp_f32 %s, %s' % (v(GS[r]), v(GS[r])))
        k.nop(1)
        k.e('v_add_f32 %s, 1.0, %s' % (v(GS[r]), v(GS[r])))
        k.e('v_rcp_f32 %s, %s' % (v(GS[r]), v(GS[r])))
        k.nop(1)
        rbf(k, GS[r], TT)
        if r == 0:
            issue_stage(5)
    k.e('s_add_u32 s83, s77, %d' % WS_H)
    k.vm('buffer_store_dwordx4 %s, v2, s[16:19], s83 offen' % v(HO[0], 4), 'lnst')
    k.vm('buffer_store_dwordx4 %s, v2, s[16:19], s83 offen offset:1024' % v(HO[1], 4), 'lnst')
    k.e('s_lshl_b32 s83, s76, 2')
    k.e('s_add_u32 s83, s83, %d' % WS_G)
    k.e('v_mov_b32 v6, 0')
    k.e('s_mov_b64 exec, 1')
    k.vm('buffer_store_dwordx2 %s, v6, s[16:19], s83 offen' % v(GS[0], 2), 'lnst')
    k.e('s_mov_b64 exec, -1')
    LR, LI = 184, 185
    L2R, L2I, L3R, L3I, L4R, L4I = 186, 187, 188, 189, 190, 191
    L32R, L32I = 194, 195
    k.wait_vm('par')
    lam_params(k, PLRE, PLIM, PLDT, LR, LI, 192, 193)
    cmul(k, L2R, L2I, LR, LI, LR, LI)
    cmul(k, L3R, L3I, L2R, L2I, LR, LI)
    cmul(k, L4R, L4I, L2R, L2I, L2R, L2I)
    cmul(k, L32R, L32I, L4R, L4I, L4R, L4I)
    cmul(k, 196, 197, L32R, L32I, L32R, L32I)
    cmul(k, L32R, L32I, 196, 197, 196, 197)
    k.stamp(3)
    ACR, ACI = 40, 56
    FB_ = [(72, 88, 104), (120, 136, 152)]
    def mfma(st, kk):
        FA, FBR, FBI = FB_[st & 1]
        c = '0' if (st == 0 and kk == 0) else v(ACR, 16)
        k.e('v_mfma_f32_32x32x16_bf16 %s, %s, %s, %s' % (v(ACR, 16), v(FA + 4 * kk, 4), v(FBR + 4 * kk, 4), c))
        c = '0' if (st == 0 and kk == 0) else v(ACI, 16)
        k.e('v_mfma_f32_32x32x16_bf16 %s, %s, %s, %s' % (v(ACI, 16), v(FA + 4 * kk, 4), v(FBI + 4 * kk, 4), c))
    for st in range(NST):
        k.wait_vm('st%d' % st)
        k.e('s_barrier')
        k.stamp(4 + st)
        groups = [[], [], [], []]
        if st >= 1 and st + NS - 1 < NST:
            groups = issue_groups(st + NS - 1)
        slot = st % NS
        sset = slot // 2
        off = (slot % 2) * STG
        FA, FBR, FBI = FB_[st & 1]
        for kk in range(4):
            emit_items(k, groups[kk])
            k.e('ds_read_b128 %s, %s offset:%d' % (v(FA + 4 * kk, 4), v(PA + 4 * sset + kk), off))
            k.e('ds_read_b128 %s, %s offset:%d' % (v(FBR + 4 * kk, 4), v(PB + 4 * sset + kk), off + 16384))
            k.e('ds_read_b128 %s, %s offset:%d' % (v(FBI + 4 * kk, 4), v(PB + 4 * sset + kk), off + 16384 + 4096))
            if st >= 1:
                mfma(st - 1, kk)
        if PFX and st == 3:
            srd(k, 12, B_W1, 2048 * 2752)
            k.e('s_lshr_b32 s90, s2, 3')
            k.e('s_lshl_b32 s90, s90, 6')
            k.e('s_lshl_b32 s91, s3, 4')
            k.e('s_add_u32 s90, s90, s91')
            k.e('s_and_b32 s92, s2, 7')
            k.e('s_mul_i32 s92, s92, 22')
            k.e('s_lshr_b32 s92, s92, 3')
            k.e('s_lshl_b32 s92, s92, 7')
            k.e('s_mov_b32 s93, 2752')
            k.e('v_lshrrev_b32 v4, 2, v1')
            k.e('v_add_u32 v4, s90, v4')
            k.e('v_mul_lo_u32 v4, v4, s93')
            k.e('v_and_b32 v5, 3, v1')
            k.e('v_lshl_add_u32 v4, v5, 7, v4')
            k.vm('buffer_load_dword v198, v4, s[12:15], s92 offen', 'pf')
            k.e('v_and_b32 v4, 15, v1')
            k.e('v_add_u32 v4, s90, v4')
            k.e('v_mul_lo_u32 v4, v4, s93')
            k.vm('buffer_load_dword v198, v4, s[12:15], s92 offen offset:512', 'pf')
        k.e('s_waitcnt lgkmcnt(0)')
    for kk in range(4):
        mfma(NST - 1, kk)
    k.e('v_lshlrev_b32 v6, 3, v3')
    k.e('v_add_u32 v6, %d, v6' % XOFF)
    k.e('s_lshl_b32 s83, s3, 8')
    k.e('v_add_u32 v7, s83, v6')
    k.nop(10)
    k.stamp(12)
    for j in range(1, 4):
        for q in range(4):
            r = 4 * q + j
            cfma(k, ACR + r, ACI + r, LR, LI, ACR + r - 1, ACI + r - 1, ACR + r, ACI + r)
    EV, OD = 72, 80
    for q in range(4):
        k.e('v_mov_b32 %s, %s' % (v(EV + q), v(ACR + 4 * q + 3)))
        k.e('v_mov_b32 %s, %s' % (v(OD + q), v(ACR + 4 * q + 3)))
        k.e('v_mov_b32 %s, %s' % (v(EV + 4 + q), v(ACI + 4 * q + 3)))
        k.e('v_mov_b32 %s, %s' % (v(OD + 4 + q), v(ACI + 4 * q + 3)))
    k.nop(2)
    for q in range(8):
        k.e('v_permlane32_swap_b32 %s, %s' % (v(EV + q), v(OD + q)))
    k.nop(2)
    CR, CI = 88, 97
    pr, pi_ = EV, EV + 4
    for i in range(1, 8):
        er = (EV if i % 2 == 0 else OD) + i // 2
        dr, di = (126, 127) if i == 7 else (CR + i, CI + i)
        cfma(k, dr, di, L4R, L4I, pr, pi_, er, er + 4)
        pr, pi_ = dr, di
    k.e('ds_write_b64 v7, v[126:127]')
    k.e('s_waitcnt lgkmcnt(0)')
    k.e('s_barrier')
    EW = 110
    for w in range(4):
        k.e('ds_read_b64 %s, v6 offset:%d' % (v(EW + 2 * w, 2), 256 * w))
    k.e('s_waitcnt lgkmcnt(0)')
    cfma(k, 118, 119, L32R, L32I, EW, EW + 1, EW + 2, EW + 3)
    cfma(k, 120, 121, L32R, L32I, 118, 119, EW + 4, EW + 5)
    cfma(k, 122, 123, L32R, L32I, 120, 121, EW + 6, EW + 7)
    k.e('v_mov_b32 %s, 0' % v(CR)); k.e('v_mov_b32 %s, 0' % v(CI))
    for w, (a, b) in ((1, (EW, EW + 1)), (2, (118, 119)), (3, (120, 121))):
        k.e('s_cmp_eq_u32 s3, %d' % w)
        k.e('s_cselect_b64 vcc, -1, 0')
        k.e('v_cndmask_b32 %s, %s, %s, vcc' % (v(CR), v(CR), v(a)))
        k.e('v_cndmask_b32 %s, %s, %s, vcc' % (v(CI), v(CI), v(b)))
    for i in range(0, 7):
        er = (EV if i % 2 == 0 else OD) + i // 2
        cfma(k, CR + i + 1, CI + i + 1, L4R, L4I, CR + i, CI + i, er, er + 4)
    k.e('v_cmp_lt_u32 vcc, 31, v1')
    OWR, OWI = 106, 110
    k.nop(1)
    for q in range(4):
        k.e('v_cndmask_b32 %s, %s, %s, vcc' % (v(OWR + q), v(CR + 2 * q), v(CR + 2 * q + 1)))
        k.e('v_cndmask_b32 %s, %s, %s, vcc' % (v(OWI + q), v(CI + 2 * q), v(CI + 2 * q + 1)))
    PO = 128
    LP = [(LR, LI), (L2R, L2I), (L3R, L3I), (L4R, L4I)]
    k.e('v_lshrrev_b32 v4, 5, v1')
    k.e('v_lshlrev_b32 v4, 2, v4')
    k.e('v_add_u32 v4, s78, v4')
    k.e('v_lshlrev_b32 v4, 12, v4')
    k.e('v_add_u32 v5, s75, v3')
    k.e('v_lshlrev_b32 v5, 3, v5')
    k.e('v_add_u32 v4, v4, v5')
    k.e('s_lshl_b32 s82, s72, 12')
    k.e('s_add_u32 s82, s82, %d' % WS_E)
    k.vm('buffer_store_dwordx2 v[122:123], v5, s[16:19], s82 offen', 'out')
    for q in range(4):
        for j in range(4):
            r = 4 * q + j
            cfma(k, PO + 2 * r, PO + 2 * r + 1, LP[j][0], LP[j][1], OWR + q, OWI + q, ACR + r, ACI + r)
            k.e('s_mov_b32 s82, %d' % (WS_S + (8 * q + j) * 4096))
            k.vm('buffer_store_dwordx2 %s, v4, s[16:19], s82 offen' % v(PO + 2 * r, 2), 'out')
    k.stamp(13)
    k.e('s_waitcnt vmcnt(0)')
    k.stamp(14)
    k.stamp_flush(DBGWG)
    k.tl_end(0)
    k.label('K1_END')
    k.e('s_endpgm')
    return finish(k, 200)

def dma_voff(k, dst, rowbase_s, pitch_s, colbase_s, tr, I3, I4, I7, tmp):
    for j in range(2):
        if tr:
            k.e('v_and_b32 %s, 1, %s' % (v(tmp), v(I4)))
            k.e('v_lshlrev_b32 %s, 2, %s' % (v(tmp), v(tmp)))
        else:
            k.e('v_add_u32 %s, %d, %s' % (v(tmp), 4 * j, v(I4)))
            k.e('v_and_b32 %s, 7, %s' % (v(tmp), v(tmp)))
        k.e('v_xor_b32 %s, %s, %s' % (v(tmp), v(tmp), v(I7)))
        k.e('v_lshlrev_b32 %s, 4, %s' % (v(tmp), v(tmp)))
        k.e('v_add_u32 %s, s%d, %s' % (v(dst + j), rowbase_s, v(I3)))
        if j:
            k.e('v_add_u32 %s, 8, %s' % (v(dst + j), v(dst + j)))
        k.e('v_mul_lo_u32 %s, %s, s%d' % (v(dst + j), v(dst + j), pitch_s))
        k.e('v_add_u32 %s, %s, %s' % (v(dst + j), v(dst + j), v(tmp)))
        k.e('v_add_u32 %s, s%d, %s' % (v(dst + j), colbase_s, v(dst + j)))
        if j:
            k.e('v_subrev_u32 %s, 1024, %s' % (v(dst + j), v(dst + j)))

def pat_direct(k, dst, sub_s, base, LANE, t0, t1):
    k.e('v_and_b32 %s, 31, %s' % (v(t0), v(LANE)))
    k.e('v_lshrrev_b32 %s, 1, %s' % (v(t1), v(t0)))
    k.e('v_and_b32 %s, 7, %s' % (v(t1), v(t1)))
    k.e('v_lshrrev_b32 %s, 5, %s' % (v(dst), v(LANE)))
    k.e('v_xor_b32 %s, %s, %s' % (v(t1), v(t1), v(dst)))
    k.e('v_lshlrev_b32 %s, 4, %s' % (v(t1), v(t1)))
    k.e('v_lshl_add_u32 %s, %s, 7, %s' % (v(t1), v(t0), v(t1)))
    k.e('v_add_u32 %s, s%d, %s' % (v(t1), sub_s, v(t1)))
    if base:
        k.e('v_add_u32 %s, %d, %s' % (v(t1), base, v(t1)))
    for kk in range(4):
        k.e('v_xor_b32 %s, %d, %s' % (v(dst + kk), kk << 5, v(t1)))
        k.e('v_add_u32 %s, 65536, %s' % (v(dst + 4 + kk), v(dst + kk)))

def pat_tr(k, dst, subchunk_s, base, LANE, t0, t1, t2):
    k.e('v_and_b32 %s, 15, %s' % (v(t0), v(LANE)))
    k.e('v_lshrrev_b32 %s, 4, %s' % (v(t1), v(LANE)))
    k.e('v_and_b32 %s, 1, %s' % (v(t1), v(t1)))
    k.e('v_lshlrev_b32 %s, 1, %s' % (v(t1), v(t1)))
    k.e('v_bfe_u32 %s, %s, 1, 1' % (v(t2), v(t0)))
    k.e('v_add_u32 %s, %s, %s' % (v(t1), v(t1), v(t2)))
    k.e('v_add_u32 %s, s%d, %s' % (v(t1), subchunk_s, v(t1)))
    k.e('v_bfe_u32 %s, %s, 3, 1' % (v(t2), v(t0)))
    k.e('v_lshlrev_b32 %s, 2, %s' % (v(t2), v(t2)))
    k.e('v_xor_b32 %s, %s, %s' % (v(t1), v(t1), v(t2)))
    k.e('v_lshlrev_b32 %s, 4, %s' % (v(t1), v(t1)))
    k.e('v_and_b32 %s, 1, %s' % (v(t2), v(t0)))
    k.e('v_lshl_add_u32 %s, %s, 3, %s' % (v(t1), v(t2), v(t1)))
    k.e('v_lshrrev_b32 %s, 2, %s' % (v(t2), v(t0)))
    k.e('v_lshrrev_b32 %s, 5, %s' % (v(t0), v(LANE)))
    k.e('v_lshl_add_u32 %s, %s, 3, %s' % (v(t2), v(t0), v(t2)))
    k.e('v_lshl_add_u32 %s, %s, 7, %s' % (v(dst), v(t2), v(t1)))
    if base:
        k.e('v_add_u32 %s, %d, %s' % (v(dst), base, v(dst)))
    k.e('v_add_u32 %s, 65536, %s' % (v(dst + 1), v(dst)))

def read_frag(k, dstreg, mode, pat, slot, kk):
    sset = slot // 4; off = (slot % 4) * 16384
    if mode == 'd':
        k.e('ds_read_b128 %s, %s offset:%d' % (v(dstreg, 4), v(pat + 4 * sset + kk), off))
        return 1
    else:
        k.e('ds_read_b64_tr_b16 %s, %s offset:%d' % (v(dstreg, 2), v(pat + sset), off + kk * 2048))
        k.e('ds_read_b64_tr_b16 %s, %s offset:%d' % (v(dstreg + 2, 2), v(pat + sset), off + kk * 2048 + 512))
        return 2

def emit_items(k, items):
    for it in items:
        if it[0] == 'e': k.e(it[1])
        else: k.vm(it[1], it[2])

def gemm_loop(k, stages, NS, FBUF, pro={}):
    n = len(stages)
    k.stamp(0)
    if -1 in pro: emit_items(k, pro[-1]())
    for st in range(min(NS, n)):
        for g in stages[st]['issue'](st):
            emit_items(k, g)
        if st in pro: emit_items(k, pro[st]())
    k.stamp(1)
    yield 'prologue'
    def mfma(st, kk):
        S = stages[st]
        FA, FB = FBUF[st & 1]
        c = '0' if (S['first'] and kk == 0) else v(S['acc'], 16)
        k.e('v_mfma_f32_32x32x16_bf16 %s, %s, %s, %s' % (v(S['acc'], 16), v(FA + 4 * kk, 4), v(FB + 4 * kk, 4), c))
    for st in range(n):
        S = stages[st]
        k.wait_vm('st%d' % st)
        k.e('s_barrier')
        k.stamp(2 + st)
        groups = [[], [], [], []]
        if st >= 1 and st + NS - 1 < n:
            groups = stages[st + NS - 1]['issue'](st + NS - 1)
        slot = st % NS
        FA, FB = FBUF[st & 1]
        for kk in range(4):
            emit_items(k, groups[kk])
            read_frag(k, FA + 4 * kk, S['modeA'], S['patA'], slot, kk)
            read_frag(k, FB + 4 * kk, S['modeB'], S['patB'], slot, kk)
            if st >= 1:
                mfma(st - 1, kk)
        if S.get('extra'):
            emit_items(k, S['extra']())
        k.e('s_waitcnt lgkmcnt(0)')
    for kk in range(4):
        mfma(n - 1, kk)

def gen_k2():
    k = Kern('k2_kernel')
    NS = 8
    k.e('s_cmp_ge_u32 s2, 256')
    k.e('s_cbranch_scc1 K2_END')
    load_kernargs(k)
    k.tl_start()
    k.e('v_and_b32 v1, 63, v0')
    k.e('v_lshrrev_b32 v2, 6, v0')
    k.nop(1)
    k.e('v_readfirstlane_b32 s3, v2')
    k.e('s_and_b32 s72, s2, 7')
    k.e('s_lshr_b32 s73, s2, 3')
    k.e('s_mul_i32 s74, s72, 22')
    k.e('s_add_u32 s74, s74, s73')
    k.e('s_and_b32 s75, s74, 7')
    k.e('s_lshl_b32 s75, s75, 6')
    k.e('s_lshr_b32 s74, s74, 3')
    k.e('s_lshl_b32 s74, s74, 6')
    k.e('s_lshr_b32 s76, s3, 1')
    k.e('s_and_b32 s77, s3, 1')
    B1R = 120
    k.e('v_lshrrev_b32 v2, 5, v1')
    k.e('v_lshlrev_b32 v2, 3, v2')
    k.e('s_lshl_b32 s78, s76, 5')
    k.e('s_add_u32 s78, s78, s74')
    k.e('s_lshl_b32 s79, s78, 1')
    k.e('v_add_u32 v2, s79, v2')
    I3, I4, I7 = 4, 5, 6
    k.e('v_lshrrev_b32 v4, 3, v1'); k.e('v_lshrrev_b32 v5, 4, v1'); k.e('v_and_b32 v6, 7, v1')
    VA, VB = 8, 10
    k.e('s_lshl_b32 s80, s3, 4')
    k.e('s_mov_b32 s81, 2752')
    k.e('s_lshl_b32 s82, s74, 1')
    dma_voff(k, VA, 80, 81, 82, True, I3, I4, I7, 7)
    k.e('s_mov_b32 s81, 1024')
    k.e('s_lshl_b32 s82, s75, 1')
    k.e('s_add_u32 s82, s82, %d' % WS_H)
    dma_voff(k, VB, 80, 81, 82, True, I3, I4, I7, 7)
    k.e('s_lshl_b32 s83, s3, 11')
    PA, PB = 12, 14
    k.e('s_lshl_b32 s86, s76, 2')
    k.e('s_lshl_b32 s87, s77, 2')
    pat_tr(k, PA, 86, 0, 1, 64, 65, 66)
    pat_tr(k, PB, 87, 8192, 1, 64, 65, 66)
    k.e('s_mov_b32 s93, 2752')
    k.e('s_cmp_lt_u32 s3, 2')
    k.e('s_cselect_b32 s93, 1024, s93')
    k.e('s_lshl_b32 s92, s93, 9')
    k.e('s_mul_i32 s91, s72, 22')
    k.e('s_lshr_b32 s91, s91, 3')
    k.e('s_lshl_b32 s91, s91, 7')
    k.e('s_cmp_lt_u32 s3, 2')
    k.e('s_cselect_b32 s91, %d, s91' % WS_H)
    k.e('s_cmp_lt_u32 s3, 2')
    k.e('s_cselect_b32 s90, 8, 5')
    k.e('s_and_b32 s89, s3, 1')
    k.e('s_lshl_b32 s89, s89, 3')
    k.e('s_lshl_b32 s88, s73, 4')
    k.e('s_add_u32 s89, s89, s88')
    k.e('v_lshrrev_b32 v4, 3, v1')
    k.e('v_add_u32 v4, s89, v4')
    k.e('v_mul_lo_u32 v4, v4, s93')
    k.e('v_and_b32 v5, 7, v1')
    k.e('v_lshl_add_u32 v230, v5, 7, v4')
    k.e('v_mov_b32 v4, 0x7f000000')
    k.e('v_cmp_gt_u32 vcc, s90, v5')
    k.e('v_cndmask_b32 v230, v4, v230, vcc')
    k.e('s_waitcnt lgkmcnt(0)')
    k.stamp(60)
    srd(k, 16, WS, WS_SZ)
    srd(k, 4, B_W1, 2048 * 2752)
    k.e('s_cmp_lt_u32 s3, 2')
    k.e('s_cselect_b32 s12, s%d, s%d' % (P(WS), P(B_W1)))
    k.e('s_cselect_b32 s13, s%d, s%d' % (P(WS) + 1, P(B_W1) + 1))
    k.e('s_and_b32 s13, s13, 0xffff')
    k.e('s_mov_b32 s14, 0x%x' % (2048 * 2752))
    k.e('s_mov_b32 s15, 0x00020000')
    def pf_slot():
        if not PF: return []
        return [('v', 'buffer_load_dword v231, v230, s[12:15], s91 offen', 'pf'), ('e', 's_add_u32 s91, s91, s92')]
    k.e('s_cmp_lt_u32 s73, 22')
    k.e('s_cbranch_scc1 K2_GEMM')
    for i in range(4): emit_items(k, pf_slot())
    k.vmq = []
    k.e('s_cmp_ge_u32 s73, 30')
    k.e('s_cbranch_scc1 K2_HELP')
    k.e('s_branch K2_FIX')
    k.label('K2_GEMM')
    srd(k, 8, B_B1, 2752)
    def b1_loads():
        return [('v', 'buffer_load_dwordx2 %s, v2, s[8:11], 0 offen offset:%d' % (v(B1R + 2 * q, 2), 16 * q), 'b1') for q in range(4)]
    def issue(st):
        slot = (st % NS) * 16384
        tg = 'st%d' % st
        return [[('e', 's_mov_b32 s84, %d' % (st * 64 * 2752)), ('e', 's_add_u32 m0, s83, %d' % slot), ('e', 's_mov_b32 s85, %d' % (st * 65536)),
                 ('v', 'buffer_load_dwordx4 %s, s[4:7], s84 offen lds' % v(VA), tg)],
                [('v', 'buffer_load_dwordx4 %s, s[4:7], s84 offen offset:1024 lds' % v(VA + 1), tg)],
                [('e', 's_add_u32 m0, s83, %d' % (slot + 8192)), ('e', 's_nop 0'),
                 ('v', 'buffer_load_dwordx4 %s, s[16:19], s85 offen lds' % v(VB), tg)],
                [('v', 'buffer_load_dwordx4 %s, s[16:19], s85 offen offset:1024 lds' % v(VB + 1), tg)]]
    ACC = 16
    FBUF = [(32, 48), (128, 144)]
    stages = [dict(issue=issue, modeA='t', patA=PA, modeB='t', patB=PB, acc=ACC, first=(st == 0), extra=(pf_slot if st in PF2 else (b1_loads if st == 12 else None))) for st in range(32)]
    gl = gemm_loop(k, stages, NS, FBUF, {PRO[0]: pf_slot, PRO[1]: pf_slot})
    next(gl)
    for _ in gl: pass
    k.nop(13)
    B1F = 64
    for i in range(8):
        k.e('v_lshlrev_b32 %s, 16, %s' % (v(B1F + 2 * i), v(B1R + i)))
        k.e('v_and_b32 %s, 0xffff0000, %s' % (v(B1F + 2 * i + 1), v(B1R + i)))
    T = 80
    for r in range(0, 16, 2):
        rbf2(k, ACC + r, ACC + r + 1, T)
    for r in range(16):
        k.e('v_add_f32 %s, %s, %s' % (v(ACC + r), v(ACC + r), v(B1F + r)))
    for r in range(0, 16, 2):
        rbf2(k, ACC + r, ACC + r + 1, T)
    import struct
    def f2u(x): return struct.unpack('<I', struct.pack('<f', x))[0]
    C1 = f2u(0.044715); C2 = f2u(-2.0 * 1.4426950408889634 * 0.7978845608028654)
    k.e('s_mov_b32 s88, 0x%x' % C1)
    for r in range(16):
        t = T + r
        k.e('v_mul_f32 %s, %s, %s' % (v(t), v(ACC + r), v(ACC + r)))
        k.e('v_mul_f32 %s, %s, %s' % (v(t), v(t), v(ACC + r)))
        k.e('v_fma_f32 %s, %s, s88, %s' % (v(t), v(t), v(ACC + r)))
        k.e('v_mul_f32 %s, 0x%x, %s' % (v(t), C2, v(t)))
        k.e('v_exp_f32 %s, %s' % (v(t), v(t)))
    for r in range(16):
        t = T + r
        k.e('v_add_f32 %s, 1.0, %s' % (v(t), v(t)))
        k.e('v_rcp_f32 %s, %s' % (v(t), v(t)))
    for r in range(16):
        t = T + r
        k.e('v_mul_f32 %s, %s, %s' % (v(ACC + r), v(ACC + r), v(t)))
    UO = 100
    for r in range(0, 16, 2):
        k.e('v_cvt_pk_bf16_f32 %s, %s, %s' % (v(UO + r // 2), v(ACC + r), v(ACC + r + 1)))
    k.e('s_cmp_lt_u32 s78, 1376')
    k.e('s_cbranch_scc1 K2_ST')
    for i in range(8):
        k.e('v_mov_b32 %s, 0' % v(UO + i))
    k.label('K2_ST')
    k.e('v_and_b32 v3, 31, v1')
    k.e('s_lshl_b32 s89, s77, 5')
    k.e('s_add_u32 s89, s89, s75')
    k.e('v_add_u32 v3, s89, v3')
    k.e('s_mov_b32 s90, %d' % UP)
    k.e('v_mul_lo_u32 v3, v3, s90')
    k.e('v_add_u32 v3, v3, v2')
    k.e('s_mov_b32 s90, %d' % WS_U)
    for q in range(4):
        k.e('buffer_store_dwordx2 %s, v3, s[16:19], s90 offen offset:%d' % (v(UO + 2 * q, 2), 16 * q))
    k.stamp(50)
    k.e('s_waitcnt vmcnt(0)')
    k.stamp(51)
    k.stamp_flush(DBGWG)
    k.tl_end(1)
    k.e('s_endpgm')
    k.label('K2_FIX')
    k.vmq = []
    srd(k, 20, A_LRE, 1024); srd(k, 24, A_LIM, 1024); srd(k, 28, A_LDT, 1024)
    k.e('s_lshl_b32 s74, s72, 3')
    k.e('s_add_u32 s74, s74, s73')
    k.e('s_sub_u32 s74, s74, 22')
    k.e('s_lshr_b32 s75, s74, 2')
    k.e('s_and_b32 s76, s74, 3')
    k.e('s_lshl_b32 s77, s74, 17')
    k.e('s_add_u32 s77, s77, %d' % WS_S)
    k.e('s_lshl_b32 s78, s74, 16')
    k.e('s_add_u32 s78, s78, %d' % WS_HB)
    k.stamp(0)
    EB = 4; SB = 64
    k.e('v_lshlrev_b32 v2, 2, v0')
    k.e('v_lshlrev_b32 v3, 4, v0')
    k.vm('buffer_load_dword v192, v2, s[20:23], 0 offen', 'p')
    k.vm('buffer_load_dword v193, v2, s[24:27], 0 offen', 'p')
    k.vm('buffer_load_dword v194, v2, s[28:31], 0 offen', 'p')
    for c in range(15):
        k.e('s_mov_b32 s79, %d' % (WS_E + c * 4096))
        k.vm('buffer_load_dwordx4 %s, v3, s[16:19], s79 offen' % v(EB + 4 * c, 4), 'e')
    for j in range(32):
        k.e('s_add_u32 s79, s77, %d' % (j * 4096))
        k.vm('buffer_load_dwordx4 %s, v3, s[16:19], s79 offen' % v(SB + 4 * j, 4), 'h%d' % j)
    k.stamp(1)
    k.wait_vm('p')
    k.stamp(2)
    def pmul(d, a, b, t):
        k.e('v_pk_mul_f32 %s, %s, %s op_sel_hi:[0,1]' % (v(t, 2), v(a, 2), v(b, 2)))
        k.e('v_pk_fma_f32 %s, %s, %s, %s op_sel:[1,1,0] op_sel_hi:[1,0,1] neg_lo:[1,0,0]' % (v(d, 2), v(a, 2), v(b, 2), v(t, 2)))
    def pfma(d, a, b, c, t):
        k.e('v_pk_fma_f32 %s, %s, %s, %s op_sel_hi:[0,1,1]' % (v(t, 2), v(a, 2), v(b, 2), v(c, 2)))
        k.e('v_pk_fma_f32 %s, %s, %s, %s op_sel:[1,1,0] op_sel_hi:[1,0,1] neg_lo:[1,0,0]' % (v(d, 2), v(a, 2), v(b, 2), v(t, 2)))
    LP = [196, 198]; CP = [200, 202]; L32 = [204, 206]; L64 = [208, 210]; L128 = [212, 214]; U = [216, 218]; T = [220, 222]
    for h in range(2):
        lre, lim, ldt = 224, 225, 226
        for d_, s_ in ((lre, 192), (lim, 193), (ldt, 194)):
            if h == 0: k.e('v_and_b32 %s, 0xffff, %s' % (v(d_), v(s_)))
            else: k.e('v_lshrrev_b32 %s, 16, %s' % (v(d_), v(s_)))
        LR, LI = LP[h], LP[h] + 1
        lam_params(k, lre, lim, ldt, LR, LI, 227, 228)
        CR_, CI_ = CP[h], CP[h] + 1
        k.e('v_add_f32 v227, -1.0, %s' % v(LR))
        k.e('v_mul_f32 v228, v224, v224')
        k.e('v_fmac_f32 v228, v225, v225')
        k.e('v_rcp_f32 v228, v228')
        k.e('v_mul_f32 %s, v227, v224' % v(CR_))
        k.e('v_fmac_f32 %s, %s, v225' % (v(CR_), v(LI)))
        k.e('v_mul_f32 %s, %s, v224' % (v(CI_), v(LI)))
        k.e('v_fma_f32 %s, -v227, v225, %s' % (v(CI_), v(CI_)))
        k.e('v_add_f32 v228, v228, v228')
        k.e('v_mul_f32 %s, %s, v228' % (v(CR_), v(CR_)))
        k.e('v_mul_f32 %s, %s, v228' % (v(CI_), v(CI_)))
    for h in range(2): pmul(L64[h], LP[h], LP[h], T[h])
    for h in range(2): pmul(L32[h], L64[h], L64[h], T[h])
    for h in range(2): pmul(L64[h], L32[h], L32[h], T[h])
    for h in range(2): pmul(L128[h], L64[h], L64[h], T[h])
    for h in range(2): pmul(L32[h], L128[h], L128[h], T[h])
    for h in range(2): pmul(L64[h], L32[h], L32[h], T[h])
    for h in range(2): pmul(L128[h], L64[h], L64[h], T[h])
    for i in range(4): k.e('v_mov_b32 %s, 0' % v(U[0] + i))
    k.wait_vm('e')
    k.stamp(3)
    for c in range(15):
        k.e('s_cmp_le_u32 s75, %d' % c)
        k.e('s_cbranch_scc1 K2_CL')
        for h in range(2):
            k.e('v_pk_fma_f32 %s, %s, %s, %s op_sel_hi:[0,1,1]' % (v(EB + 4 * c + 2 * h, 2), v(L128[h], 2), v(U[h], 2), v(EB + 4 * c + 2 * h, 2)))
        for h in range(2):
            k.e('v_pk_fma_f32 %s, %s, %s, %s op_sel:[1,1,0] op_sel_hi:[1,0,1] neg_lo:[1,0,0]' % (v(U[h], 2), v(L128[h], 2), v(U[h], 2), v(EB + 4 * c + 2 * h, 2)))
    k.label('K2_CL')
    for h in range(2): pmul(U[h], CP[h], U[h], T[h])
    k.e('s_bitcmp0_b32 s76, 0')
    k.e('s_cbranch_scc1 K2_R1')
    for h in range(2): pmul(U[h], L32[h], U[h], T[h])
    k.label('K2_R1')
    k.e('s_bitcmp0_b32 s76, 1')
    k.e('s_cbranch_scc1 K2_R2')
    for h in range(2): pmul(U[h], L64[h], U[h], T[h])
    k.label('K2_R2')
    k.stamp(4)
    for j in range(32):
        S_ = SB + 4 * j
        for h in range(2):
            k.e('v_pk_mul_f32 %s, %s, %s op_sel_hi:[0,1]' % (v(T[h], 2), v(LP[h], 2), v(U[h], 2)))
        for h in range(2):
            k.e('v_pk_fma_f32 %s, %s, %s, %s op_sel:[1,1,0] op_sel_hi:[1,0,1] neg_lo:[1,0,0]' % (v(U[h], 2), v(LP[h], 2), v(U[h], 2), v(T[h], 2)))
        k.wait_vm('h%d' % j)
        for h in range(2):
            k.e('v_pk_fma_f32 %s, %s, %s, %s op_sel_hi:[0,1,1]' % (v(T[h], 2), v(CP[h], 2), v(S_ + 2 * h, 2), v(U[h], 2)))
        for h in range(2):
            k.e('v_pk_fma_f32 %s, %s, %s, %s op_sel:[1,1,0] op_sel_hi:[1,0,1] neg_lo:[1,0,0]' % (v(S_ + 2 * h, 2), v(CP[h], 2), v(S_ + 2 * h, 2), v(T[h], 2)))
        k.e('v_cvt_pk_bf16_f32 %s, %s, %s' % (v(S_), v(S_), v(S_ + 2)))
        k.e('v_cvt_pk_bf16_f32 %s, -%s, -%s' % (v(S_ + 1), v(S_ + 1), v(S_ + 3)))
        k.e('s_add_u32 s79, s78, %d' % (j * 2048))
        k.vm('buffer_store_dword %s, v2, s[16:19], s79 offen' % v(S_), 'o')
        k.vm('buffer_store_dword %s, v2, s[16:19], s79 offen offset:1024' % v(S_ + 1), 'o')
    k.stamp(5)
    k.e('s_branch K2_PF3')
    k.label('K2_HELP')
    k.e('s_sleep 100')
    k.label('K2_PF3')
    if PFX:
        srd(k, 20, A_CRE, 1 << 19); srd(k, 24, A_CIM, 1 << 19); srd(k, 28, B_W2, 1376 * 4096)
        k.e('s_sub_u32 s74, s73, 22')
        k.e('s_lshl_b32 s74, s74, 8')
        k.e('v_add_u32 v4, s74, v0')
        k.e('v_lshlrev_b32 v5, 7, v4')
        k.e('buffer_load_dword v1, v5, s[20:23], 0 offen')
        k.e('buffer_load_dword v1, v5, s[24:27], 0 offen')
        k.e('v_add_u32 v6, %d, v5' % (2560 * 128))
        k.e('buffer_load_dword v1, v6, s[20:23], 0 offen')
        k.e('buffer_load_dword v1, v6, s[24:27], 0 offen')
        k.e('v_lshrrev_b32 v5, 2, v4')
        k.e('v_lshlrev_b32 v5, 12, v5')
        k.e('v_and_b32 v6, 3, v4')
        k.e('v_lshl_add_u32 v5, v6, 7, v5')
        k.e('s_lshl_b32 s75, s72, 9')
        k.e('v_add_u32 v5, s75, v5')
        k.e('v_add_u32 v6, %d, v5' % (640 * 4096))
        k.e('v_add_u32 v7, %d, v5' % (1280 * 4096))
        for r_ in (5, 6, 7):
            k.e('buffer_load_dword v1, v%d, s[28:31], 0 offen' % r_)
    k.wait_vm_all()
    k.stamp(6)
    k.stamp_flush(DBGWG)
    k.tl_end(1)
    k.label('K2_END')
    k.e('s_waitcnt vmcnt(0)')
    k.e('s_endpgm')
    return finish(k, 232)

def gen_k3():
    k = Kern('k3_kernel')
    NS = 8
    k.e('s_cmp_ge_u32 s2, 256')
    k.e('s_cbranch_scc1 K3_END')
    load_kernargs(k)
    k.tl_start()
    k.e('v_and_b32 v1, 63, v0')
    k.e('v_lshrrev_b32 v2, 6, v0')
    k.nop(1)
    k.e('v_readfirstlane_b32 s3, v2')
    k.e('s_and_b32 s72, s2, 7')
    k.e('s_lshr_b32 s73, s2, 3')
    k.e('s_lshr_b32 s74, s73, 3')
    k.e('s_lshl_b32 s72, s72, 2')
    k.e('s_add_u32 s72, s72, s74')
    k.e('s_and_b32 s73, s73, 7')
    k.e('s_lshl_b32 s74, s72, 6')
    k.e('s_lshl_b32 s75, s73, 6')
    k.e('s_lshr_b32 s76, s3, 1')
    k.e('s_and_b32 s77, s3, 1')
    GR, B2R, XR, DR = 120, 121, 122, 130
    k.e('v_and_b32 v3, 31, v1')
    k.e('s_lshl_b32 s78, s77, 5')
    k.e('s_add_u32 s78, s78, s74')
    k.e('v_add_u32 v3, s78, v3')
    k.e('v_lshlrev_b32 v176, 2, v3')
    k.e('v_lshlrev_b32 v177, 1, v3')
    k.e('s_lshl_b32 s79, s76, 5')
    k.e('s_add_u32 s79, s79, s75')
    k.e('v_lshrrev_b32 v4, 5, v1')
    k.e('v_lshlrev_b32 v4, 2, v4')
    k.e('v_add_u32 v4, s79, v4')
    k.e('v_lshlrev_b32 v178, 1, v4')
    k.e('v_lshl_add_u32 v179, v3, 10, v178')
    k.e('v_lshlrev_b32 v138, 1, v179')
    I3, I4, I7 = 4, 5, 6
    k.e('v_lshrrev_b32 v4, 3, v1'); k.e('v_lshrrev_b32 v5, 4, v1'); k.e('v_and_b32 v6, 7, v1')
    VC, VH, VU, VW = 8, 10, 12, 14
    k.e('s_lshl_b32 s80, s3, 4')
    k.e('s_add_u32 s81, s80, s75')
    k.e('s_add_u32 s82, s80, s74')
    k.e('s_mov_b32 s83, 1024'); k.e('s_mov_b32 s84, 0')
    dma_voff(k, VC, 81, 83, 84, False, I3, I4, I7, 7)
    k.e('s_mov_b32 s83, 2048'); k.e('s_mov_b32 s84, %d' % WS_HB)
    dma_voff(k, VH, 82, 83, 84, False, I3, I4, I7, 7)
    k.e('s_mov_b32 s83, %d' % UP); k.e('s_mov_b32 s84, %d' % WS_U)
    dma_voff(k, VU, 81, 83, 84, False, I3, I4, I7, 7)
    k.e('s_mov_b32 s83, 4096'); k.e('s_lshl_b32 s84, s74, 1')
    dma_voff(k, VW, 80, 83, 84, True, I3, I4, I7, 7)
    k.e('s_lshl_b32 s83, s3, 11')
    PA, PB, PT = 16, 24, 32
    k.e('s_lshl_b32 s86, s76, 12')
    k.e('s_lshl_b32 s87, s77, 12')
    k.e('s_lshl_b32 s88, s77, 2')
    pat_direct(k, PA, 86, 0, 1, 100, 101)
    pat_direct(k, PB, 87, 8192, 1, 100, 101)
    pat_tr(k, PT, 88, 8192, 1, 100, 101, 102)
    def sel(d, a_, b_):
        k.e('s_cmp_lt_u32 s3, 2')
        k.e('s_cselect_b32 %s, %s, %s' % (d, a_, b_))
    k.e('s_lshr_b32 s94, s2, 3')
    k.e('s_and_b32 s95, s2, 7')
    k.e('s_lshl_b32 s84, s94, 4')
    k.e('s_lshl_b32 s85, s3, 3')
    k.e('s_add_u32 s84, s84, s85')
    k.e('s_lshl_b32 s85, s95, 8')
    k.e('s_lshl_b32 s93, s94, 3')
    k.e('s_add_u32 s85, s85, s93')
    sel('s85', 's84', 's85')
    k.e('s_mov_b32 s93, 2048')
    sel('s93', '1024', 's93')
    sel('s89', '0', '%d' % WS_HB)
    sel('s90', '0', '%d' % (WS_HB + 1024))
    k.e('v_lshrrev_b32 v4, 3, v1')
    k.e('v_and_b32 v5, 7, v1')
    k.e('v_add_u32 v6, s85, v4')
    k.e('v_mul_lo_u32 v6, v6, s93')
    k.e('v_lshl_add_u32 v173, v5, 7, v6')
    k.e('s_mov_b32 s93, %d' % UP)
    k.e('v_add_u32 v6, s84, v4')
    k.e('v_mul_lo_u32 v6, v6, s93')
    k.e('v_lshl_add_u32 v172, v5, 7, v6')
    k.e('s_lshl_b32 s93, s94, 4')
    k.e('v_lshrrev_b32 v4, 2, v1')
    k.e('v_add_u32 v4, s93, v4')
    k.e('v_lshlrev_b32 v4, 12, v4')
    k.e('v_and_b32 v5, 3, v1')
    k.e('v_lshl_add_u32 v4, v5, 7, v4')
    k.e('s_cmp_lt_u32 s3, 2')
    k.e('s_cselect_b64 vcc, -1, 0')
    k.e('v_cndmask_b32 v172, v4, v172, vcc')
    k.e('s_lshl_b32 s91, s95, 9')
    sel('s91', '%d' % WS_U, 's91')
    k.e('s_mov_b32 s92, 0x200000')
    sel('s92', '1024', 's92')
    k.e('s_cmp_eq_u32 s3, 3')
    k.e('s_cselect_b64 vcc, -1, 0')
    k.e('v_mov_b32 v4, 0x7f000000')
    k.e('v_cndmask_b32 v172, v172, v4, vcc')
    k.e('v_cndmask_b32 v173, v173, v4, vcc')
    k.e('s_mov_b32 s93, 0x%x' % WS_SZ)
    k.e('s_waitcnt lgkmcnt(0)')
    k.stamp(60)
    srd(k, 16, WS, WS_SZ)
    srd(k, 4, A_CRE, 1 << 19)
    def rest_srds():
        srd(k, 8, A_CIM, 1 << 19); srd(k, 12, B_W2, 1376 * 4096)
        srd(k, 20, A_X, 2 << 20); srd(k, 24, A_DSK, 1024); srd(k, 28, B_B2, 4096); srd(k, 32, OUT, 4 << 20)
        for d, pa, pb in ((96, A_CRE, WS), (36, A_CIM, WS), (40, WS, B_W2)):
            k.e('s_cmp_lt_u32 s3, 2')
            k.e('s_cselect_b32 s%d, s%d, s%d' % (d, P(pa), P(pb)))
            k.e('s_cselect_b32 s%d, s%d, s%d' % (d + 1, P(pa) + 1, P(pb) + 1))
            if d == 40: k.e('s_cselect_b32 s%d, s93, 0x%x' % (d + 2, 1376 * 4096))
            else: k.e('s_cselect_b32 s%d, 0x80000, s93' % (d + 2))
            k.e('s_and_b32 s%d, s%d, 0xffff' % (d + 1, d + 1))
            k.e('s_mov_b32 s%d, 0x00020000' % (d + 3))
        return [('v', 'buffer_load_dword v174, v173, s[96:99], s89 offen', 'pf')] if PF else []
    def pf1():
        return [('v', 'buffer_load_dword v174, v173, s[36:39], s90 offen', 'pf')] if PF else []
    def pf_slot():
        if not PF: return []
        return [('v', 'buffer_load_dword v174, v172, s[40:43], s91 offen', 'pf'), ('e', 's_add_u32 s91, s91, s92')]
    def ep_loads():
        L = [('e', 's_mov_b32 s79, %d' % WS_G), ('v', 'buffer_load_dword %s, v176, s[16:19], s79 offen' % v(GR), 'ep'),
             ('v', 'buffer_load_ushort %s, v177, s[28:31], 0 offen' % v(B2R), 'ep')]
        for q in range(4):
            L.append(('v', 'buffer_load_dwordx2 %s, v178, s[24:27], 0 offen offset:%d' % (v(DR + 2 * q, 2), 16 * q), 'ep'))
        for q in range(4):
            L.append(('v', 'buffer_load_dwordx2 %s, v179, s[20:23], 0 offen offset:%d' % (v(XR + 2 * q, 2), 16 * q), 'ep'))
        return L
    def issue(st):
        slot = (st % NS) * 16384
        tg = 'st%d' % st
        if st < 16:
            srdA = 4 if st < 8 else 8
            oa, ob = (st % 8) * 128, st * 128
            va, vb, srdB = VC, VH, 16
        else:
            srdA = 16
            oa, ob = (st - 16) * 128, (st - 16) * 262144
            va, vb, srdB = VU, VW, 12
        return [[('e', 's_mov_b32 s84, %d' % oa), ('e', 's_add_u32 m0, s83, %d' % slot), ('e', 's_mov_b32 s85, %d' % ob),
                 ('v', 'buffer_load_dwordx4 %s, s[%d:%d], s84 offen lds' % (v(va), srdA, srdA + 3), tg)],
                [('v', 'buffer_load_dwordx4 %s, s[%d:%d], s84 offen offset:1024 lds' % (v(va + 1), srdA, srdA + 3), tg)],
                [('e', 's_add_u32 m0, s83, %d' % (slot + 8192)), ('e', 's_nop 0'),
                 ('v', 'buffer_load_dwordx4 %s, s[%d:%d], s85 offen lds' % (v(vb), srdB, srdB + 3), tg)],
                [('v', 'buffer_load_dwordx4 %s, s[%d:%d], s85 offen offset:1024 lds' % (v(vb + 1), srdB, srdB + 3), tg)]]
    ACA, ACB = 36, 52
    FBUF = [(68, 84), (140, 156)]
    stages = []
    for st in range(38):
        ex = pf_slot if st in PF3 else (ep_loads if st == 22 else None)
        if st < 16:
            stages.append(dict(issue=issue, modeA='d', patA=PA, modeB='d', patB=PB, acc=ACA, first=(st == 0), extra=ex))
        else:
            stages.append(dict(issue=issue, modeA='d', patA=PA, modeB='t', patB=PT, acc=ACB, first=(st == 16), extra=ex))
    gl = gemm_loop(k, stages, NS, FBUF, {PRO[0]: rest_srds, PRO[1]: pf1})
    next(gl)
    for _ in gl: pass
    k.nop(13)
    XF, DF, T = 68, 84, 100
    for i in range(8):
        k.e('v_lshlrev_b32 %s, 16, %s' % (v(XF + 2 * i), v(XR + i)))
        k.e('v_and_b32 %s, 0xffff0000, %s' % (v(XF + 2 * i + 1), v(XR + i)))
        k.e('v_lshlrev_b32 %s, 16, %s' % (v(DF + 2 * i), v(DR + i)))
        k.e('v_and_b32 %s, 0xffff0000, %s' % (v(DF + 2 * i + 1), v(DR + i)))
    k.e('v_lshlrev_b32 %s, 16, %s' % (v(B2R), v(B2R)))
    OMG = 101
    k.e('v_sub_f32 %s, 1.0, %s' % (v(OMG), v(GR)))
    rbf(k, OMG, T)
    for r in range(16):
        k.e('v_mul_f32 %s, %s, %s' % (v(XF + r), v(XF + r), v(DF + r)))
    for r in range(0, 16, 2):
        rbf2(k, XF + r, XF + r + 1, T)
        rbf2(k, ACB + r, ACB + r + 1, T)
    for r in range(16):
        k.e('v_add_f32 %s, %s, %s' % (v(ACA + r), v(ACA + r), v(XF + r)))
        k.e('v_add_f32 %s, %s, %s' % (v(ACB + r), v(ACB + r), v(B2R)))
    for r in range(0, 16, 2):
        rbf2(k, ACB + r, ACB + r + 1, T)
    for r in range(16):
        k.e('v_mul_f32 %s, %s, %s' % (v(ACB + r), v(ACB + r), v(OMG)))
        k.e('v_mul_f32 %s, %s, %s' % (v(ACA + r), v(ACA + r), v(GR)))
    for r in range(0, 16, 2):
        rbf2(k, ACB + r, ACB + r + 1, T)
    for r in range(16):
        k.e('v_add_f32 %s, %s, %s' % (v(ACA + r), v(ACA + r), v(ACB + r)))
    for q in range(4):
        k.e('buffer_store_dwordx4 %s, v138, s[32:35], 0 offen offset:%d' % (v(ACA + 4 * q, 4), 32 * q))
    k.stamp(50)
    k.e('s_waitcnt vmcnt(0)')
    k.stamp(51)
    k.stamp_flush(DBGWG)
    k.tl_end(2)
    k.label('K3_END')
    k.e('s_endpgm')
    return finish(k, 180, 102)

def main():
    hdr = open('gated_mix__ssm_conv_s5__mixer_token_mlp__prompt.s.ref').read().split('\n')
    top = []
    for l in hdr:
        if l.startswith(';') and '@launch' not in l:
            top.append(l)
        elif not l.startswith(';'):
            break
    top.append('; @launch kernel=k1_kernel grid=(256,1,1) block=(256,1,1) lds=148480')
    top.append('; @launch kernel=k2_kernel grid=(256,1,1) block=(256,1,1) lds=131072')
    top.append('; @launch kernel=k3_kernel grid=(256,1,1) block=(256,1,1) lds=131072')
    top.append('.amdgcn_target "amdgcn-amd-amdhsa--gfx950"')
    top.append('.text')
    ks = [gen_k1(), gen_k2(), gen_k3()]
    body = []
    for b, d in ks:
        body += b
    body.append('.section .rodata,"a"')
    for b, d in ks:
        body += d
    out = '\n'.join(top + body) + '\n'
    path = sys.argv[1] if len(sys.argv) > 1 else 'gated_mix__ssm_conv_s5__mixer_token_mlp__prompt.s'
    open(path, 'w').write(out)
    print('wrote', path, len(out), 'bytes')

if __name__ == '__main__':
    main()
```

```python
import sys, os
DEBUG = int(os.environ.get('DEBUG', '0'))
DBGWG = int(os.environ.get('DBGWG', '0'))
TL = int(os.environ.get('TL', '0'))
PF = int(os.environ.get('PF', '1'))
PFX = int(os.environ.get('PFX', '1'))
PRO = eval(os.environ.get('PRO', '(1,7)'))
PF2 = eval(os.environ.get('PF2', '(1,9)'))
PF3 = eval(os.environ.get('PF3', '(0,8,16)'))

WS_H  = 0
WS_G  = 2 << 20
WS_S  = 4 << 20
WS_E  = 12 << 20
WS_HB = 16 << 20
WS_U  = 20 << 20
WS_SZ = 24 << 20
UP = 2816
LOG2E = 0x3fb8aa3b
INV2PI = 0x3e22f983

class Kern:
    def __init__(self, name):
        self.name = name
        self.L = []
        self.vmq = []
        self.nlab = 0
    def e(self, s):
        self.L.append('    ' + s)
    def c(self, s):
        self.L.append('    ; ' + s)
    def label(self, l):
        self.L.append(l + ':')
    def vm(self, s, tag):
        self.e(s); self.vmq.append(tag)
    def wait_vm(self, tag):
        idxs = [i for i, t in enumerate(self.vmq) if t == tag]
        if not idxs:
            return
        idx = idxs[-1]
        n = len(self.vmq) - 1 - idx
        self.e('s_waitcnt vmcnt(%d)' % min(n, 63))
        self.vmq = self.vmq[idx + 1:]
    def wait_vm_all(self):
        self.e('s_waitcnt vmcnt(0)'); self.vmq = []
    def stamp(self, i):
        if not DEBUG: return
        self.e('s_memtime s[94:95]')
        self.e('s_waitcnt lgkmcnt(0)')
        self.e('v_writelane_b32 v255, s94, %d' % i)
    def stamp_flush(self, wg):
        if not DEBUG: return
        self.nlab += 1
        lab = '%s_DBG%d' % (self.name, self.nlab)
        self.e('s_cmp_lg_u32 s2, %d' % wg)
        self.e('s_cbranch_scc1 %s' % lab)
        self.e('s_cmp_lg_u32 s3, 0')
        self.e('s_cbranch_scc1 %s' % lab)
        self.e('s_mov_b32 s96, s%d' % P(DBG))
        self.e('s_and_b32 s97, s%d, 0xffff' % (P(DBG) + 1))
        self.e('s_mov_b32 s98, 256')
        self.e('s_mov_b32 s99, 0x00020000')
        self.e('v_and_b32 v254, 63, v0')
        self.e('v_lshlrev_b32 v254, 2, v254')
        self.e('buffer_store_dword v255, v254, s[96:99], 0 offen')
        self.label(lab)
    def tl_start(self):
        if not TL: return
        self.e('s_memrealtime s[100:101]')
    def tl_end(self, kidx):
        if not TL: return
        self.nlab += 1
        lab = '%s_TL%d' % (self.name, self.nlab)
        self.e('s_waitcnt vmcnt(0)')
        self.e('s_memrealtime s[94:95]')
        self.e('s_cmp_lg_u32 s3, 0')
        self.e('s_cbranch_scc1 %s' % lab)
        self.e('s_mov_b32 s96, s%d' % P(WS))
        self.e('s_and_b32 s97, s%d, 0xffff' % (P(WS) + 1))
        self.e('s_mov_b32 s98, 0x4000000')
        self.e('s_mov_b32 s99, 0x00020000')
        self.e('s_waitcnt lgkmcnt(0)')
        if TL == 2: self.e('s_getreg_b32 s100, hwreg(HW_REG_XCC_ID)')
        self.e('v_mov_b32 v2, s100'); self.e('v_mov_b32 v3, s94')
        self.e('s_lshl_b32 s94, s2, 3')
        self.e('s_add_u32 s94, s94, %d' % ((32 << 20) + kidx * 4096))
        self.e('v_mov_b32 v4, 0')
        self.e('buffer_store_dwordx2 v[2:3], v4, s[96:99], s94 offen')
        if TL == 3 and kidx == 2:
            self.e('s_cmp_lg_u32 s2, 0')
            self.e('s_cbranch_scc1 %s' % lab)
            self.e('s_mov_b32 s94, %d' % (32 << 20))
            self.e('buffer_load_dwordx2 v[6:7], v4, s[96:99], s94 offen')
            self.e('s_mov_b32 s94, %d' % ((32 << 20) + 4096))
            self.e('buffer_load_dwordx2 v[8:9], v4, s[96:99], s94 offen')
            self.e('s_mov_b32 s96, s%d' % P(DBG))
            self.e('s_and_b32 s97, s%d, 0xffff' % (P(DBG) + 1))
            self.e('s_mov_b32 s98, 256')
            self.e('s_waitcnt vmcnt(0)')
            self.e('v_sub_u32 v7, v7, v6'); self.e('v_sub_u32 v8, v8, v6'); self.e('v_sub_u32 v9, v9, v6')
            self.e('v_sub_u32 v2, v2, v6'); self.e('v_sub_u32 v3, v3, v6')
            self.e('s_getreg_b32 s100, hwreg(HW_REG_XCC_ID)')
            self.e('v_mov_b32 v6, s100')
            self.e('buffer_store_dwordx4 v[6:9], v4, s[96:99], 0 offen')
            self.e('buffer_store_dwordx2 v[2:3], v4, s[96:99], 0 offen offset:16')
        self.label(lab)
    def nop(self, n):
        while n > 0:
            k = min(n, 16)
            self.e('s_nop %d' % (k - 1)); n -= k

def v(i, n=1):
    return 'v%d' % i if n == 1 else 'v[%d:%d]' % (i, i + n - 1)
def s(i, n=1):
    return 's%d' % i if n == 1 else 's[%d:%d]' % (i, i + n - 1)

def P(k): return 36 + 2 * k
A_X, A_LRE, A_LIM, A_BRE, A_BIM, A_CRE, A_CIM, A_LDT, A_DSK, B_X, B_W1, B_B1, B_W2, B_B2, GATE, OUT, DBG, WS = range(18)

def load_kernargs(k):
    k.e('s_load_dwordx16 s[36:51], s[0:1], 0')
    k.e('s_load_dwordx16 s[52:67], s[0:1], 64')
    k.e('s_load_dwordx4 s[68:71], s[0:1], 128')

def srd(k, dst, ptr, nbytes):
    k.e('s_mov_b32 s%d, s%d' % (dst, P(ptr)))
    k.e('s_and_b32 s%d, s%d, 0xffff' % (dst + 1, P(ptr) + 1))
    k.e('s_mov_b32 s%d, 0x%x' % (dst + 2, nbytes))
    k.e('s_mov_b32 s%d, 0x00020000' % (dst + 3))

def cfma(k, dr, di, ar, ai, br, bi, cr, ci):
    k.e('v_fma_f32 %s, %s, %s, %s' % (v(dr), v(ar), v(br), v(cr)))
    k.e('v_fma_f32 %s, %s, %s, %s' % (v(di), v(ar), v(bi), v(ci)))
    k.e('v_fma_f32 %s, -%s, %s, %s' % (v(dr), v(ai), v(bi), v(dr)))
    k.e('v_fma_f32 %s, %s, %s, %s' % (v(di), v(ai), v(br), v(di)))

def cmul(k, dr, di, ar, ai, br, bi):
    k.e('v_mul_f32 %s, %s, %s' % (v(dr), v(ar), v(br)))
    k.e('v_mul_f32 %s, %s, %s' % (v(di), v(ar), v(bi)))
    k.e('v_fma_f32 %s, -%s, %s, %s' % (v(dr), v(ai), v(bi), v(dr)))
    k.e('v_fma_f32 %s, %s, %s, %s' % (v(di), v(ai), v(br), v(di)))

def rbf(k, a, t):
    k.e('v_cvt_pk_bf16_f32 %s, %s, %s' % (v(t), v(a), v(a)))
    k.e('v_lshlrev_b32 %s, 16, %s' % (v(a), v(t)))

def rbf2(k, a, b, t):
    k.e('v_cvt_pk_bf16_f32 %s, %s, %s' % (v(t), v(a), v(b)))
    k.e('v_lshlrev_b32 %s, 16, %s' % (v(a), v(t)))
    k.e('v_and_b32 %s, 0xffff0000, %s' % (v(b), v(t)))

def lam_params(k, lre, lim, ldt, Lr, Li, t0, t1):
    k.e('v_lshlrev_b32 %s, 16, %s' % (v(lre), v(lre)))
    k.e('v_lshlrev_b32 %s, 16, %s' % (v(lim), v(lim)))
    k.e('v_lshlrev_b32 %s, 16, %s' % (v(ldt), v(ldt)))
    k.e('v_mul_f32 %s, 0x%x, %s' % (v(t0), LOG2E, v(ldt)))
    k.e('v_exp_f32 %s, %s' % (v(t0), v(t0)))
    k.nop(1)
    rbf(k, t0, t1)
    k.e('v_mul_f32 %s, %s, %s' % (v(t1), v(t0), v(lre)))
    k.e('v_mul_f32 %s, %s, %s' % (v(t0), v(t0), v(lim)))
    k.e('v_mul_f32 %s, 0x%x, %s' % (v(t1), LOG2E, v(t1)))
    k.e('v_mul_f32 %s, 0x%x, %s' % (v(t0), INV2PI, v(t0)))
    k.e('v_exp_f32 %s, %s' % (v(t1), v(t1)))
    k.e('v_fract_f32 %s, %s' % (v(t0), v(t0)))
    k.e('v_cos_f32 %s, %s' % (v(Lr), v(t0)))
    k.e('v_sin_f32 %s, %s' % (v(Li), v(t0)))
    k.nop(1)
    k.e('v_mul_f32 %s, %s, %s' % (v(Lr), v(Lr), v(t1)))
    k.e('v_mul_f32 %s, %s, %s' % (v(Li), v(Li), v(t1)))

def finish(k, nvgpr, nsgpr=96):
    if DEBUG: nvgpr = 256; nsgpr = 102
    if TL: nsgpr = 102
    out = []
    out.append('.globl %s' % k.name)
    out.append('.p2align 8')
    out.append('.type %s,@function' % k.name)
    out.append('%s:' % k.name)
    out += k.L
    desc = []
    desc.append('.p2align 6')
    desc.append('.amdhsa_kernel %s' % k.name)
    desc.append('  .amdhsa_next_free_vgpr %d' % nvgpr)
    desc.append('  .amdhsa_next_free_sgpr %d' % nsgpr)
    desc.append('  .amdhsa_accum_offset %d' % ((nvgpr + 3) // 4 * 4))
    desc.append('  .amdhsa_group_segment_fixed_size 0')
    desc.append('  .amdhsa_kernarg_size 144')
    desc.append('  .amdhsa_user_sgpr_count 2')
    desc.append('  .amdhsa_user_sgpr_kernarg_segment_ptr 1')
    desc.append('  .amdhsa_system_sgpr_workgroup_id_x 1')
    desc.append('.end_amdhsa_kernel')
    return out, desc

def gen_k1():
    k = Kern('k1_kernel')
    NS = 6; STG = 24576; NST = 8
    XOFF = NS * STG
    k.e('s_cmp_ge_u32 s2, 256')
    k.e('s_cbranch_scc1 K1_END')
    load_kernargs(k)
    k.tl_start()
    k.e('v_and_b32 v1, 63, v0')
    k.e('v_lshrrev_b32 v2, 6, v0')
    k.nop(1)
    k.e('v_readfirstlane_b32 s3, v2')
    k.e('s_and_b32 s72, s2, 7')
    k.e('s_lshr_b32 s73, s2, 3')
    k.e('s_lshr_b32 s74, s73, 4')
    k.e('s_lshl_b32 s72, s72, 1')
    k.e('s_add_u32 s72, s72, s74')
    k.e('s_and_b32 s73, s73, 15')
    k.e('s_lshl_b32 s74, s72, 7')
    k.e('s_lshl_b32 s75, s73, 5')
    XR0, XR1, GW = 168, 172, 176
    PLRE, PLIM, PLDT = 180, 181, 182
    k.e('s_lshl_b32 s76, s73, 3')
    k.e('s_add_u32 s76, s76, s74')
    k.e('s_lshl_b32 s77, s3, 1')
    k.e('s_add_u32 s76, s76, s77')
    k.e('s_lshl_b32 s77, s76, 10')
    k.e('v_lshlrev_b32 v2, 4, v1')
    k.e('v_and_b32 v3, 31, v1')
    k.e('v_add_u32 v14, s75, v3')
    k.e('v_lshlrev_b32 v14, 1, v14')
    VA = 8; VB = 12
    k.e('v_lshrrev_b32 v4, 3, v1')
    k.e('v_lshrrev_b32 v5, 4, v1')
    k.e('v_and_b32 v6, 7, v1')
    k.e('s_lshl_b32 s78, s3, 5')
    k.e('s_add_u32 s78, s78, s74')
    for j in range(4):
        k.e('v_add_u32 v7, %d, v5' % (4 * j))
        k.e('v_and_b32 v7, 7, v7')
        k.e('v_xor_b32 v7, v7, v6')
        k.e('v_lshlrev_b32 v7, 4, v7')
        k.e('v_add_u32 %s, s78, v4' % v(VA + j))
        k.e('v_add_u32 %s, %d, %s' % (v(VA + j), 7 * j, v(VA + j)))
        k.e('v_lshlrev_b32 %s, 10, %s' % (v(VA + j), v(VA + j)))
        k.e('v_add_u32 %s, %s, v7' % (v(VA + j), v(VA + j)))
    k.e('s_and_b32 s79, s3, 1')
    k.e('s_lshl_b32 s79, s79, 4')
    k.e('s_add_u32 s79, s79, s75')
    for j in range(2):
        k.e('v_add_u32 v7, %d, v5' % (4 * j))
        k.e('v_and_b32 v7, 7, v7')
        k.e('v_xor_b32 v7, v7, v6')
        k.e('v_lshlrev_b32 v7, 4, v7')
        k.e('v_add_u32 %s, s79, v4' % v(VB + j))
        k.e('v_add_u32 %s, %d, %s' % (v(VB + j), 7 * j, v(VB + j)))
        k.e('v_lshlrev_b32 %s, 10, %s' % (v(VB + j), v(VB + j)))
        k.e('v_add_u32 %s, %s, v7' % (v(VB + j), v(VB + j)))
    k.e('s_lshl_b32 s80, s3, 12')
    k.e('s_lshl_b32 s81, s3, 11')
    k.e('s_add_u32 s81, s81, 16384')
    PA = 16; PB = 28
    k.e('v_lshrrev_b32 v4, 5, v1')
    k.e('v_lshrrev_b32 v5, 1, v3')
    k.e('v_and_b32 v5, 7, v5')
    k.e('v_xor_b32 v5, v5, v4')
    k.e('v_lshlrev_b32 v5, 4, v5')
    k.e('v_lshl_add_u32 v5, v3, 7, v5')
    for kk in range(4):
        k.e('v_xor_b32 %s, %d, v5' % (v(PB + kk), kk << 5))
        k.e('v_add_u32 %s, s80, %s' % (v(PA + kk), v(PB + kk)))
        for st in (1, 2):
            k.e('v_add_u32 %s, %d, %s' % (v(PB + 4 * st + kk), 49152 * st, v(PB + kk)))
            k.e('v_add_u32 %s, %d, %s' % (v(PA + 4 * st + kk), 49152 * st, v(PA + kk)))
    k.e('s_waitcnt lgkmcnt(0)')
    k.stamp(60)
    srd(k, 4, A_X, 2 << 20)
    k.e('s_cmp_ge_u32 s3, 2')
    k.e('s_cselect_b32 s8, s%d, s%d' % (P(A_BIM), P(A_BRE)))
    k.e('s_cselect_b32 s9, s%d, s%d' % (P(A_BIM) + 1, P(A_BRE) + 1))
    k.e('s_and_b32 s9, s9, 0xffff')
    k.e('s_mov_b32 s10, 0x80000')
    k.e('s_mov_b32 s11, 0x00020000')
    srd(k, 32, GATE, 1024)
    k.vm('buffer_load_dwordx4 %s, v2, s[4:7], s77 offen' % v(XR0, 4), 'ln')
    k.vm('buffer_load_dwordx4 %s, v2, s[4:7], s77 offen offset:1024' % v(XR1, 4), 'ln')
    k.vm('buffer_load_dwordx4 %s, v2, s[32:35], 0 offen' % v(GW, 4), 'ln')
    def issue_groups(st):
        slot = (st % NS) * STG
        tg = 'st%d' % st
        g = [[('e', 's_mov_b32 s82, %d' % (st * 128)), ('e', 's_add_u32 m0, s80, %d' % slot), ('e', 's_nop 0')], [], [], []]
        for j in range(4):
            g[j // 2].append(('v', 'buffer_load_dwordx4 %s, s[4:7], s82 offen offset:%d lds' % (v(VA + j), 1024 * j), tg))
        g[2] += [('e', 's_add_u32 m0, s81, %d' % slot), ('e', 's_nop 0')]
        for j in range(2):
            g[2 + j].append(('v', 'buffer_load_dwordx4 %s, s[8:11], s82 offen offset:%d lds' % (v(VB + j), 1024 * j), tg))
        return g
    def issue_stage(st):
        for g in issue_groups(st): emit_items(k, g)
    issue_stage(0)
    srd(k, 16, WS, WS_SZ)
    srd(k, 20, A_LRE, 1024); srd(k, 24, A_LIM, 1024); srd(k, 28, A_LDT, 1024)
    k.vm('buffer_load_ushort %s, v14, s[20:23], 0 offen' % v(PLRE), 'par')
    k.vm('buffer_load_ushort %s, v14, s[24:27], 0 offen' % v(PLIM), 'par')
    k.vm('buffer_load_ushort %s, v14, s[28:31], 0 offen' % v(PLDT), 'par')
    issue_stage(1)
    issue_stage(2)
    k.stamp(1)
    k.wait_vm('ln')
    k.stamp(2)
    X = [100, 110]
    G = 120
    def unpack8(dst, src):
        for i in range(4):
            k.e('v_lshlrev_b32 %s, 16, %s' % (v(dst + 2 * i), v(src + i)))
            k.e('v_and_b32 %s, 0xffff0000, %s' % (v(dst + 2 * i + 1), v(src + i)))
    unpack8(X[0], XR0); unpack8(X[1], XR1); unpack8(G, GW)
    SUM = [130, 131]; GS = [132, 133]; TT = 134
    for r in range(2):
        k.e('v_add_f32 %s, %s, %s' % (v(SUM[r]), v(X[r]), v(X[r] + 1)))
        for i in range(2, 8):
            k.e('v_add_f32 %s, %s, %s' % (v(SUM[r]), v(SUM[r]), v(X[r] + i)))
        for i in range(8):
            k.e('v_mul_f32 %s, %s, %s' % (v(TT + i), v(X[r] + i), v(G + i)))
        for i in range(0, 8, 2):
            rbf2(k, TT + i, TT + i + 1, TT + 8)
        k.e('v_add_f32 %s, %s, %s' % (v(GS[r]), v(TT), v(TT + 1)))
        for i in range(2, 8):
            k.e('v_add_f32 %s, %s, %s' % (v(GS[r]), v(GS[r]), v(TT + i)))
    def wave_reduce(regs, sdst):
        for ctl in ('quad_perm:[1,0,3,2] row_mask:0xf bank_mask:0xf', 'quad_perm:[2,3,0,1] row_mask:0xf bank_mask:0xf',
                    'row_half_mirror row_mask:0xf bank_mask:0xf', 'row_mirror row_mask:0xf bank_mask:0xf',
                    'row_bcast:15 row_mask:0xa bank_mask:0xf', 'row_bcast:31 row_mask:0xc bank_mask:0xf'):
            k.nop(2)
            for r in regs:
                k.e('v_add_f32_dpp %s, %s, %s %s' % (v(r), v(r), v(r), ctl))
        k.nop(1)
        for r, sd in zip(regs, sdst):
            k.e('v_readlane_b32 s%d, %s, 63' % (sd, v(r)))
        k.nop(2)
    wave_reduce([SUM[0], SUM[1], GS[0], GS[1]], [84, 85, 86, 87])
    issue_stage(3)
    MEAN = [140, 141]; SQ = [142, 143]
    for r in range(2):
        k.e('v_mov_b32 %s, 0x3b000000' % v(MEAN[r]))
        k.e('v_mul_f32 %s, s%d, %s' % (v(MEAN[r]), 84 + r, v(MEAN[r])))
        k.e('v_sub_f32 %s, %s, %s' % (v(TT), v(X[r]), v(MEAN[r])))
        k.e('v_mul_f32 %s, %s, %s' % (v(SQ[r]), v(TT), v(TT)))
        for i in range(1, 8):
            k.e('v_sub_f32 %s, %s, %s' % (v(TT), v(X[r] + i), v(MEAN[r])))
            k.e('v_fmac_f32 %s, %s, %s' % (v(SQ[r]), v(TT), v(TT)))
    wave_reduce(SQ, [88, 89])
    issue_stage(4)
    HO = [150, 154]
    for r in range(2):
        SD = 144; RC = 145; Q = 146; E_ = 147
        k.e('v_mov_b32 %s, 0x3b000000' % v(SD))
        k.e('v_mul_f32 %s, s%d, %s' % (v(SD), 88 + r, v(SD)))
        rbf(k, SD, TT)
        k.e('v_add_f32 %s, 0x3727c5ac, %s' % (v(SD), v(SD)))
        rbf(k, SD, TT)
        k.e('v_sqrt_f32 %s, %s' % (v(SD), v(SD)))
        k.nop(1)
        rbf(k, SD, TT)
        k.e('v_rcp_f32 %s, %s' % (v(RC), v(SD)))
        rbf(k, MEAN[r], TT)
        for i in range(8):
            k.e('v_sub_f32 %s, %s, %s' % (v(X[r] + i), v(X[r] + i), v(MEAN[r])))
        for i in range(0, 8, 2):
            rbf2(k, X[r] + i, X[r] + i + 1, TT)
        for i in range(8):
            k.e('v_mul_f32 %s, %s, %s' % (v(Q), v(X[r] + i), v(RC)))
            k.e('v_fma_f32 %s, -%s, %s, %s' % (v(E_), v(Q), v(SD), v(X[r] + i)))
            k.e('v_fma_f32 %s, %s, %s, %s' % (v(X[r] + i), v(E_), v(RC), v(Q)))
        for i in range(4):
            k.e('v_cvt_pk_bf16_f32 %s, %s, %s' % (v(HO[r] + i), v(X[r] + 2 * i), v(X[r] + 2 * i + 1)))
        k.e('v_mov_b32 %s, s%d' % (v(GS[r]), 86 + r))
        rbf(k, GS[r], TT)
        k.e('v_mul_f32 %s, 0x%x, %s' % (v(GS[r]), LOG2E | 0x80000000, v(GS[r])))
        k.e('v_exp_f32 %s, %s' % (v(GS[r]), v(GS[r])))
        k.nop(1)
        k.e('v_add_f32 %s, 1.0, %s' % (v(GS[r]), v(GS[r])))
        k.e('v_rcp_f32 %s, %s' % (v(GS[r]), v(GS[r])))
        k.nop(1)
        rbf(k, GS[r], TT)
        if r == 0:
            issue_stage(5)
    k.e('s_add_u32 s83, s77, %d' % WS_H)
    k.vm('buffer_store_dwordx4 %s, v2, s[16:19], s83 offen' % v(HO[0], 4), 'lnst')
    k.vm('buffer_store_dwordx4 %s, v2, s[16:19], s83 offen offset:1024' % v(HO[1], 4), 'lnst')
    k.e('s_lshl_b32 s83, s76, 2')
    k.e('s_add_u32 s83, s83, %d' % WS_G)
    k.e('v_mov_b32 v6, 0')
    k.e('s_mov_b64 exec, 1')
    k.vm('buffer_store_dwordx2 %s, v6, s[16:19], s83 offen' % v(GS[0], 2), 'lnst')
    k.e('s_mov_b64 exec, -1')
    LR, LI = 184, 185
    L2R, L2I, L3R, L3I, L4R, L4I = 186, 187, 188, 189, 190, 191
    L32R, L32I = 194, 195
    k.wait_vm('par')
    lam_params(k, PLRE, PLIM, PLDT, LR, LI, 192, 193)
    cmul(k, L2R, L2I, LR, LI, LR, LI)
    cmul(k, L3R, L3I, L2R, L2I, LR, LI)
    cmul(k, L4R, L4I, L2R, L2I, L2R, L2I)
    cmul(k, L32R, L32I, L4R, L4I, L4R, L4I)
    cmul(k, 196, 197, L32R, L32I, L32R, L32I)
    cmul(k, L32R, L32I, 196, 197, 196, 197)
    k.stamp(3)
    ACR, ACI = 40, 56
    FB_ = [(72, 88, 104), (120, 136, 152)]
    def mfma(st, kk):
        FA, FBR, FBI = FB_[st & 1]
        c = '0' if (st == 0 and kk == 0) else v(ACR, 16)
        k.e('v_mfma_f32_32x32x16_bf16 %s, %s, %s, %s' % (v(ACR, 16), v(FA + 4 * kk, 4), v(FBR + 4 * kk, 4), c))
        c = '0' if (st == 0 and kk == 0) else v(ACI, 16)
        k.e('v_mfma_f32_32x32x16_bf16 %s, %s, %s, %s' % (v(ACI, 16), v(FA + 4 * kk, 4), v(FBI + 4 * kk, 4), c))
    for st in range(NST):
        k.wait_vm('st%d' % st)
        k.e('s_barrier')
        k.stamp(4 + st)
        groups = [[], [], [], []]
        if st >= 1 and st + NS - 1 < NST:
            groups = issue_groups(st + NS - 1)
        slot = st % NS
        sset = slot // 2
        off = (slot % 2) * STG
        FA, FBR, FBI = FB_[st & 1]
        for kk in range(4):
            emit_items(k, groups[kk])
            k.e('ds_read_b128 %s, %s offset:%d' % (v(FA + 4 * kk, 4), v(PA + 4 * sset + kk), off))
            k.e('ds_read_b128 %s, %s offset:%d' % (v(FBR + 4 * kk, 4), v(PB + 4 * sset + kk), off + 16384))
            k.e('ds_read_b128 %s, %s offset:%d' % (v(FBI + 4 * kk, 4), v(PB + 4 * sset + kk), off + 16384 + 4096))
            if st >= 1:
                mfma(st - 1, kk)
        if PFX and st == 3:
            srd(k, 12, B_W1, 2048 * 2752)
            k.e('s_lshr_b32 s90, s2, 3')
            k.e('s_lshl_b32 s90, s90, 6')
            k.e('s_lshl_b32 s91, s3, 4')
            k.e('s_add_u32 s90, s90, s91')
            k.e('s_and_b32 s92, s2, 7')
            k.e('s_mul_i32 s92, s92, 22')
            k.e('s_lshr_b32 s92, s92, 3')
            k.e('s_lshl_b32 s92, s92, 7')
            k.e('s_mov_b32 s93, 2752')
            k.e('v_lshrrev_b32 v4, 2, v1')
            k.e('v_add_u32 v4, s90, v4')
            k.e('v_mul_lo_u32 v4, v4, s93')
            k.e('v_and_b32 v5, 3, v1')
            k.e('v_lshl_add_u32 v4, v5, 7, v4')
            k.vm('buffer_load_dword v198, v4, s[12:15], s92 offen', 'pf')
            k.e('v_and_b32 v4, 15, v1')
            k.e('v_add_u32 v4, s90, v4')
            k.e('v_mul_lo_u32 v4, v4, s93')
            k.vm('buffer_load_dword v198, v4, s[12:15], s92 offen offset:512', 'pf')
        k.e('s_waitcnt lgkmcnt(0)')
    for kk in range(4):
        mfma(NST - 1, kk)
    k.e('v_lshlrev_b32 v6, 3, v3')
    k.e('v_add_u32 v6, %d, v6' % XOFF)
    k.e('s_lshl_b32 s83, s3, 8')
    k.e('v_add_u32 v7, s83, v6')
    k.nop(10)
    k.stamp(12)
    for j in range(1, 4):
        for q in range(4):
            r = 4 * q + j
            cfma(k, ACR + r, ACI + r, LR, LI, ACR + r - 1, ACI + r - 1, ACR + r, ACI + r)
    EV, OD = 72, 80
    for q in range(4):
        k.e('v_mov_b32 %s, %s' % (v(EV + q), v(ACR + 4 * q + 3)))
        k.e('v_mov_b32 %s, %s' % (v(OD + q), v(ACR + 4 * q + 3)))
        k.e('v_mov_b32 %s, %s' % (v(EV + 4 + q), v(ACI + 4 * q + 3)))
        k.e('v_mov_b32 %s, %s' % (v(OD + 4 + q), v(ACI + 4 * q + 3)))
    k.nop(2)
    for q in range(8):
        k.e('v_permlane32_swap_b32 %s, %s' % (v(EV + q), v(OD + q)))
    k.nop(2)
    CR, CI = 88, 97
    pr, pi_ = EV, EV + 4
    for i in range(1, 8):
        er = (EV if i % 2 == 0 else OD) + i // 2
        dr, di = (126, 127) if i == 7 else (CR + i, CI + i)
        cfma(k, dr, di, L4R, L4I, pr, pi_, er, er + 4)
        pr, pi_ = dr, di
    k.e('ds_write_b64 v7, v[126:127]')
    k.e('s_waitcnt lgkmcnt(0)')
    k.e('s_barrier')
    EW = 110
    for w in range(4):
        k.e('ds_read_b64 %s, v6 offset:%d' % (v(EW + 2 * w, 2), 256 * w))
    k.e('s_waitcnt lgkmcnt(0)')
    cfma(k, 118, 119, L32R, L32I, EW, EW + 1, EW + 2, EW + 3)
    cfma(k, 120, 121, L32R, L32I, 118, 119, EW + 4, EW + 5)
    cfma(k, 122, 123, L32R, L32I, 120, 121, EW + 6, EW + 7)
    k.e('v_mov_b32 %s, 0' % v(CR)); k.e('v_mov_b32 %s, 0' % v(CI))
    for w, (a, b) in ((1, (EW, EW + 1)), (2, (118, 119)), (3, (120, 121))):
        k.e('s_cmp_eq_u32 s3, %d' % w)
        k.e('s_cselect_b64 vcc, -1, 0')
        k.e('v_cndmask_b32 %s, %s, %s, vcc' % (v(CR), v(CR), v(a)))
        k.e('v_cndmask_b32 %s, %s, %s, vcc' % (v(CI), v(CI), v(b)))
    for i in range(0, 7):
        er = (EV if i % 2 == 0 else OD) + i // 2
        cfma(k, CR + i + 1, CI + i + 1, L4R, L4I, CR + i, CI + i, er, er + 4)
    k.e('v_cmp_lt_u32 vcc, 31, v1')
    OWR, OWI = 106, 110
    k.nop(1)
    for q in range(4):
        k.e('v_cndmask_b32 %s, %s, %s, vcc' % (v(OWR + q), v(CR + 2 * q), v(CR + 2 * q + 1)))
        k.e('v_cndmask_b32 %s, %s, %s, vcc' % (v(OWI + q), v(CI + 2 * q), v(CI + 2 * q + 1)))
    PO = 128
    LP = [(LR, LI), (L2R, L2I), (L3R, L3I), (L4R, L4I)]
    k.e('v_lshrrev_b32 v4, 5, v1')
    k.e('v_lshlrev_b32 v4, 2, v4')
    k.e('v_add_u32 v4, s78, v4')
    k.e('v_lshlrev_b32 v4, 12, v4')
    k.e('v_add_u32 v5, s75, v3')
    k.e('v_lshlrev_b32 v5, 3, v5')
    k.e('v_add_u32 v4, v4, v5')
    k.e('s_lshl_b32 s82, s72, 12')
    k.e('s_add_u32 s82, s82, %d' % WS_E)
    k.vm('buffer_store_dwordx2 v[122:123], v5, s[16:19], s82 offen', 'out')
    for q in range(4):
        for j in range(4):
            r = 4 * q + j
            cfma(k, PO + 2 * r, PO + 2 * r + 1, LP[j][0], LP[j][1], OWR + q, OWI + q, ACR + r, ACI + r)
            k.e('s_mov_b32 s82, %d' % (WS_S + (8 * q + j) * 4096))
            k.vm('buffer_store_dwordx2 %s, v4, s[16:19], s82 offen' % v(PO + 2 * r, 2), 'out')
    k.stamp(13)
    k.e('s_waitcnt vmcnt(0)')
    k.stamp(14)
    k.stamp_flush(DBGWG)
    k.tl_end(0)
    k.label('K1_END')
    k.e('s_endpgm')
    return finish(k, 200)

def dma_voff(k, dst, rowbase_s, pitch_s, colbase_s, tr, I3, I4, I7, tmp):
    for j in range(2):
        if tr:
            k.e('v_and_b32 %s, 1, %s' % (v(tmp), v(I4)))
            k.e('v_lshlrev_b32 %s, 2, %s' % (v(tmp), v(tmp)))
        else:
            k.e('v_add_u32 %s, %d, %s' % (v(tmp), 4 * j, v(I4)))
            k.e('v_and_b32 %s, 7, %s' % (v(tmp), v(tmp)))
        k.e('v_xor_b32 %s, %s, %s' % (v(tmp), v(tmp), v(I7)))
        k.e('v_lshlrev_b32 %s, 4, %s' % (v(tmp), v(tmp)))
        k.e('v_add_u32 %s, s%d, %s' % (v(dst + j), rowbase_s, v(I3)))
        if j:
            k.e('v_add_u32 %s, 8, %s' % (v(dst + j), v(dst + j)))
        k.e('v_mul_lo_u32 %s, %s, s%d' % (v(dst + j), v(dst + j), pitch_s))
        k.e('v_add_u32 %s, %s, %s' % (v(dst + j), v(dst + j), v(tmp)))
        k.e('v_add_u32 %s, s%d, %s' % (v(dst + j), colbase_s, v(dst + j)))
        if j:
            k.e('v_subrev_u32 %s, 1024, %s' % (v(dst + j), v(dst + j)))

def pat_direct(k, dst, sub_s, base, LANE, t0, t1):
    k.e('v_and_b32 %s, 31, %s' % (v(t0), v(LANE)))
    k.e('v_lshrrev_b32 %s, 1, %s' % (v(t1), v(t0)))
    k.e('v_and_b32 %s, 7, %s' % (v(t1), v(t1)))
    k.e('v_lshrrev_b32 %s, 5, %s' % (v(dst), v(LANE)))
    k.e('v_xor_b32 %s, %s, %s' % (v(t1), v(t1), v(dst)))
    k.e('v_lshlrev_b32 %s, 4, %s' % (v(t1), v(t1)))
    k.e('v_lshl_add_u32 %s, %s, 7, %s' % (v(t1), v(t0), v(t1)))
    k.e('v_add_u32 %s, s%d, %s' % (v(t1), sub_s, v(t1)))
    if base:
        k.e('v_add_u32 %s, %d, %s' % (v(t1), base, v(t1)))
    for kk in range(4):
        k.e('v_xor_b32 %s, %d, %s' % (v(dst + kk), kk << 5, v(t1)))
        k.e('v_add_u32 %s, 65536, %s' % (v(dst + 4 + kk), v(dst + kk)))

def pat_tr(k, dst, subchunk_s, base, LANE, t0, t1, t2):
    k.e('v_and_b32 %s, 15, %s' % (v(t0), v(LANE)))
    k.e('v_lshrrev_b32 %s, 4, %s' % (v(t1), v(LANE)))
    k.e('v_and_b32 %s, 1, %s' % (v(t1), v(t1)))
    k.e('v_lshlrev_b32 %s, 1, %s' % (v(t1), v(t1)))
    k.e('v_bfe_u32 %s, %s, 1, 1' % (v(t2), v(t0)))
    k.e('v_add_u32 %s, %s, %s' % (v(t1), v(t1), v(t2)))
    k.e('v_add_u32 %s, s%d, %s' % (v(t1), subchunk_s, v(t1)))
    k.e('v_bfe_u32 %s, %s, 3, 1' % (v(t2), v(t0)))
    k.e('v_lshlrev_b32 %s, 2, %s' % (v(t2), v(t2)))
    k.e('v_xor_b32 %s, %s, %s' % (v(t1), v(t1), v(t2)))
    k.e('v_lshlrev_b32 %s, 4, %s' % (v(t1), v(t1)))
    k.e('v_and_b32 %s, 1, %s' % (v(t2), v(t0)))
    k.e('v_lshl_add_u32 %s, %s, 3, %s' % (v(t1), v(t2), v(t1)))
    k.e('v_lshrrev_b32 %s, 2, %s' % (v(t2), v(t0)))
    k.e('v_lshrrev_b32 %s, 5, %s' % (v(t0), v(LANE)))
    k.e('v_lshl_add_u32 %s, %s, 3, %s' % (v(t2), v(t0), v(t2)))
    k.e('v_lshl_add_u32 %s, %s, 7, %s' % (v(dst), v(t2), v(t1)))
    if base:
        k.e('v_add_u32 %s, %d, %s' % (v(dst), base, v(dst)))
    k.e('v_add_u32 %s, 65536, %s' % (v(dst + 1), v(dst)))

def read_frag(k, dstreg, mode, pat, slot, kk):
    sset = slot // 4; off = (slot % 4) * 16384
    if mode == 'd':
        k.e('ds_read_b128 %s, %s offset:%d' % (v(dstreg, 4), v(pat + 4 * sset + kk), off))
        return 1
    else:
        k.e('ds_read_b64_tr_b16 %s, %s offset:%d' % (v(dstreg, 2), v(pat + sset), off + kk * 2048))
        k.e('ds_read_b64_tr_b16 %s, %s offset:%d' % (v(dstreg + 2, 2), v(pat + sset), off + kk * 2048 + 512))
        return 2

def emit_items(k, items):
    for it in items:
        if it[0] == 'e': k.e(it[1])
        else: k.vm(it[1], it[2])

def gemm_loop(k, stages, NS, FBUF, pro={}):
    n = len(stages)
    k.stamp(0)
    if -1 in pro: emit_items(k, pro[-1]())
    for st in range(min(NS, n)):
        for g in stages[st]['issue'](st):
            emit_items(k, g)
        if st in pro: emit_items(k, pro[st]())
    k.stamp(1)
    yield 'prologue'
    def mfma(st, kk):
        S = stages[st]
        FA, FB = FBUF[st & 1]
        c = '0' if (S['first'] and kk == 0) else v(S['acc'], 16)
        k.e('v_mfma_f32_32x32x16_bf16 %s, %s, %s, %s' % (v(S['acc'], 16), v(FA + 4 * kk, 4), v(FB + 4 * kk, 4), c))
    for st in range(n):
        S = stages[st]
        k.wait_vm('st%d' % st)
        k.e('s_barrier')
        k.stamp(2 + st)
        groups = [[], [], [], []]
        if st >= 1 and st + NS - 1 < n:
            groups = stages[st + NS - 1]['issue'](st + NS - 1)
        slot = st % NS
        FA, FB = FBUF[st & 1]
        for kk in range(4):
            emit_items(k, groups[kk])
            read_frag(k, FA + 4 * kk, S['modeA'], S['patA'], slot, kk)
            read_frag(k, FB + 4 * kk, S['modeB'], S['patB'], slot, kk)
            if st >= 1:
                mfma(st - 1, kk)
        if S.get('extra'):
            emit_items(k, S['extra']())
        k.e('s_waitcnt lgkmcnt(0)')
    for kk in range(4):
        mfma(n - 1, kk)

def gen_k2():
    k = Kern('k2_kernel')
    NS = 8
    k.e('s_cmp_ge_u32 s2, 256')
    k.e('s_cbranch_scc1 K2_END')
    load_kernargs(k)
    k.tl_start()
    k.e('v_and_b32 v1, 63, v0')
    k.e('v_lshrrev_b32 v2, 6, v0')
    k.nop(1)
    k.e('v_readfirstlane_b32 s3, v2')
    k.e('s_and_b32 s72, s2, 7')
    k.e('s_lshr_b32 s73, s2, 3')
    k.e('s_mul_i32 s74, s72, 22')
    k.e('s_add_u32 s74, s74, s73')
    k.e('s_and_b32 s75, s74, 7')
    k.e('s_lshl_b32 s75, s75, 6')
    k.e('s_lshr_b32 s74, s74, 3')
    k.e('s_lshl_b32 s74, s74, 6')
    k.e('s_lshr_b32 s76, s3, 1')
    k.e('s_and_b32 s77, s3, 1')
    B1R = 120
    k.e('v_lshrrev_b32 v2, 5, v1')
    k.e('v_lshlrev_b32 v2, 3, v2')
    k.e('s_lshl_b32 s78, s76, 5')
    k.e('s_add_u32 s78, s78, s74')
    k.e('s_lshl_b32 s79, s78, 1')
    k.e('v_add_u32 v2, s79, v2')
    I3, I4, I7 = 4, 5, 6
    k.e('v_lshrrev_b32 v4, 3, v1'); k.e('v_lshrrev_b32 v5, 4, v1'); k.e('v_and_b32 v6, 7, v1')
    VA, VB = 8, 10
    k.e('s_lshl_b32 s80, s3, 4')
    k.e('s_mov_b32 s81, 2752')
    k.e('s_lshl_b32 s82, s74, 1')
    dma_voff(k, VA, 80, 81, 82, True, I3, I4, I7, 7)
    k.e('s_mov_b32 s81, 1024')
    k.e('s_lshl_b32 s82, s75, 1')
    k.e('s_add_u32 s82, s82, %d' % WS_H)
    dma_voff(k, VB, 80, 81, 82, True, I3, I4, I7, 7)
    k.e('s_lshl_b32 s83, s3, 11')
    PA, PB = 12, 14
    k.e('s_lshl_b32 s86, s76, 2')
    k.e('s_lshl_b32 s87, s77, 2')
    pat_tr(k, PA, 86, 0, 1, 64, 65, 66)
    pat_tr(k, PB, 87, 8192, 1, 64, 65, 66)
    k.e('s_mov_b32 s93, 2752')
    k.e('s_cmp_lt_u32 s3, 2')
    k.e('s_cselect_b32 s93, 1024, s93')
    k.e('s_lshl_b32 s92, s93, 9')
    k.e('s_mul_i32 s91, s72, 22')
    k.e('s_lshr_b32 s91, s91, 3')
    k.e('s_lshl_b32 s91, s91, 7')
    k.e('s_cmp_lt_u32 s3, 2')
    k.e('s_cselect_b32 s91, %d, s91' % WS_H)
    k.e('s_cmp_lt_u32 s3, 2')
    k.e('s_cselect_b32 s90, 8, 5')
    k.e('s_and_b32 s89, s3, 1')
    k.e('s_lshl_b32 s89, s89, 3')
    k.e('s_lshl_b32 s88, s73, 4')
    k.e('s_add_u32 s89, s89, s88')
    k.e('v_lshrrev_b32 v4, 3, v1')
    k.e('v_add_u32 v4, s89, v4')
    k.e('v_mul_lo_u32 v4, v4, s93')
    k.e('v_and_b32 v5, 7, v1')
    k.e('v_lshl_add_u32 v230, v5, 7, v4')
    k.e('v_mov_b32 v4, 0x7f000000')
    k.e('v_cmp_gt_u32 vcc, s90, v5')
    k.e('v_cndmask_b32 v230, v4, v230, vcc')
    k.e('s_waitcnt lgkmcnt(0)')
    k.stamp(60)
    srd(k, 16, WS, WS_SZ)
    srd(k, 4, B_W1, 2048 * 2752)
    k.e('s_cmp_lt_u32 s3, 2')
    k.e('s_cselect_b32 s12, s%d, s%d' % (P(WS), P(B_W1)))
    k.e('s_cselect_b32 s13, s%d, s%d' % (P(WS) + 1, P(B_W1) + 1))
    k.e('s_and_b32 s13, s13, 0xffff')
    k.e('s_mov_b32 s14, 0x%x' % (2048 * 2752))
    k.e('s_mov_b32 s15, 0x00020000')
    def pf_slot():
        if not PF: return []
        return [('v', 'buffer_load_dword v231, v230, s[12:15], s91 offen', 'pf'), ('e', 's_add_u32 s91, s91, s92')]
    k.e('s_cmp_lt_u32 s73, 22')
    k.e('s_cbranch_scc1 K2_GEMM')
    for i in range(4): emit_items(k, pf_slot())
    k.vmq = []
    k.e('s_cmp_ge_u32 s73, 30')
    k.e('s_cbranch_scc1 K2_HELP')
    k.e('s_branch K2_FIX')
    k.label('K2_GEMM')
    srd(k, 8, B_B1, 2752)
    def b1_loads():
        return [('v', 'buffer_load_dwordx2 %s, v2, s[8:11], 0 offen offset:%d' % (v(B1R + 2 * q, 2), 16 * q), 'b1') for q in range(4)]
    def issue(st):
        slot = (st % NS) * 16384
        tg = 'st%d' % st
        return [[('e', 's_mov_b32 s84, %d' % (st * 64 * 2752)), ('e', 's_add_u32 m0, s83, %d' % slot), ('e', 's_mov_b32 s85, %d' % (st * 65536)),
                 ('v', 'buffer_load_dwordx4 %s, s[4:7], s84 offen lds' % v(VA), tg)],
                [('v', 'buffer_load_dwordx4 %s, s[4:7], s84 offen offset:1024 lds' % v(VA + 1), tg)],
                [('e', 's_add_u32 m0, s83, %d' % (slot + 8192)), ('e', 's_nop 0'),
                 ('v', 'buffer_load_dwordx4 %s, s[16:19], s85 offen lds' % v(VB), tg)],
                [('v', 'buffer_load_dwordx4 %s, s[16:19], s85 offen offset:1024 lds' % v(VB + 1), tg)]]
    ACC = 16
    FBUF = [(32, 48), (128, 144)]
    stages = [dict(issue=issue, modeA='t', patA=PA, modeB='t', patB=PB, acc=ACC, first=(st == 0), extra=(pf_slot if st in PF2 else (b1_loads if st == 12 else None))) for st in range(32)]
    gl = gemm_loop(k, stages, NS, FBUF, {PRO[0]: pf_slot, PRO[1]: pf_slot})
    next(gl)
    for _ in gl: pass
    k.nop(13)
    B1F = 64
    for i in range(8):
        k.e('v_lshlrev_b32 %s, 16, %s' % (v(B1F + 2 * i), v(B1R + i)))
        k.e('v_and_b32 %s, 0xffff0000, %s' % (v(B1F + 2 * i + 1), v(B1R + i)))
    T = 80
    for r in range(0, 16, 2):
        rbf2(k, ACC + r, ACC + r + 1, T)
    for r in range(16):
        k.e('v_add_f32 %s, %s, %s' % (v(ACC + r), v(ACC + r), v(B1F + r)))
    for r in range(0, 16, 2):
        rbf2(k, ACC + r, ACC + r + 1, T)
    import struct
    def f2u(x): return struct.unpack('<I', struct.pack('<f', x))[0]
    C1 = f2u(0.044715); C2 = f2u(-2.0 * 1.4426950408889634 * 0.7978845608028654)
    k.e('s_mov_b32 s88, 0x%x' % C1)
    for r in range(16):
        t = T + r
        k.e('v_mul_f32 %s, %s, %s' % (v(t), v(ACC + r), v(ACC + r)))
        k.e('v_mul_f32 %s, %s, %s' % (v(t), v(t), v(ACC + r)))
        k.e('v_fma_f32 %s, %s, s88, %s' % (v(t), v(t), v(ACC + r)))
        k.e('v_mul_f32 %s, 0x%x, %s' % (v(t), C2, v(t)))
        k.e('v_exp_f32 %s, %s' % (v(t), v(t)))
    for r in range(16):
        t = T + r
        k.e('v_add_f32 %s, 1.0, %s' % (v(t), v(t)))
        k.e('v_rcp_f32 %s, %s' % (v(t), v(t)))
    for r in range(16):
        t = T + r
        k.e('v_mul_f32 %s, %s, %s' % (v(ACC + r), v(ACC + r), v(t)))
    UO = 100
    for r in range(0, 16, 2):
        k.e('v_cvt_pk_bf16_f32 %s, %s, %s' % (v(UO + r // 2), v(ACC + r), v(ACC + r + 1)))
    k.e('s_cmp_lt_u32 s78, 1376')
    k.e('s_cbranch_scc1 K2_ST')
    for i in range(8):
        k.e('v_mov_b32 %s, 0' % v(UO + i))
    k.label('K2_ST')
    k.e('v_and_b32 v3, 31, v1')
    k.e('s_lshl_b32 s89, s77, 5')
    k.e('s_add_u32 s89, s89, s75')
    k.e('v_add_u32 v3, s89, v3')
    k.e('s_mov_b32 s90, %d' % UP)
    k.e('v_mul_lo_u32 v3, v3, s90')
    k.e('v_add_u32 v3, v3, v2')
    k.e('s_mov_b32 s90, %d' % WS_U)
    for q in range(4):
        k.e('buffer_store_dwordx2 %s, v3, s[16:19], s90 offen offset:%d' % (v(UO + 2 * q, 2), 16 * q))
    k.stamp(50)
    k.e('s_waitcnt vmcnt(0)')
    k.stamp(51)
    k.stamp_flush(DBGWG)
    k.tl_end(1)
    k.e('s_endpgm')
    k.label('K2_FIX')
    k.vmq = []
    srd(k, 20, A_LRE, 1024); srd(k, 24, A_LIM, 1024); srd(k, 28, A_LDT, 1024)
    k.e('s_lshl_b32 s74, s72, 3')
    k.e('s_add_u32 s74, s74, s73')
    k.e('s_sub_u32 s74, s74, 22')
    k.e('s_lshr_b32 s75, s74, 2')
    k.e('s_and_b32 s76, s74, 3')
    k.e('s_lshl_b32 s77, s74, 17')
    k.e('s_add_u32 s77, s77, %d' % WS_S)
    k.e('s_lshl_b32 s78, s74, 16')
    k.e('s_add_u32 s78, s78, %d' % WS_HB)
    k.stamp(0)
    EB = 4; SB = 64
    k.e('v_lshlrev_b32 v2, 2, v0')
    k.e('v_lshlrev_b32 v3, 4, v0')
    k.vm('buffer_load_dword v192, v2, s[20:23], 0 offen', 'p')
    k.vm('buffer_load_dword v193, v2, s[24:27], 0 offen', 'p')
    k.vm('buffer_load_dword v194, v2, s[28:31], 0 offen', 'p')
    for c in range(15):
        k.e('s_mov_b32 s79, %d' % (WS_E + c * 4096))
        k.vm('buffer_load_dwordx4 %s, v3, s[16:19], s79 offen' % v(EB + 4 * c, 4), 'e')
    for j in range(32):
        k.e('s_add_u32 s79, s77, %d' % (j * 4096))
        k.vm('buffer_load_dwordx4 %s, v3, s[16:19], s79 offen' % v(SB + 4 * j, 4), 'h%d' % j)
    k.stamp(1)
    k.wait_vm('p')
    k.stamp(2)
    def pmul(d, a, b, t):
        k.e('v_pk_mul_f32 %s, %s, %s op_sel_hi:[0,1]' % (v(t, 2), v(a, 2), v(b, 2)))
        k.e('v_pk_fma_f32 %s, %s, %s, %s op_sel:[1,1,0] op_sel_hi:[1,0,1] neg_lo:[1,0,0]' % (v(d, 2), v(a, 2), v(b, 2), v(t, 2)))
    def pfma(d, a, b, c, t):
        k.e('v_pk_fma_f32 %s, %s, %s, %s op_sel_hi:[0,1,1]' % (v(t, 2), v(a, 2), v(b, 2), v(c, 2)))
        k.e('v_pk_fma_f32 %s, %s, %s, %s op_sel:[1,1,0] op_sel_hi:[1,0,1] neg_lo:[1,0,0]' % (v(d, 2), v(a, 2), v(b, 2), v(t, 2)))
    LP = [196, 198]; CP = [200, 202]; L32 = [204, 206]; L64 = [208, 210]; L128 = [212, 214]; U = [216, 218]; T = [220, 222]
    for h in range(2):
        lre, lim, ldt = 224, 225, 226
        for d_, s_ in ((lre, 192), (lim, 193), (ldt, 194)):
            if h == 0: k.e('v_and_b32 %s, 0xffff, %s' % (v(d_), v(s_)))
            else: k.e('v_lshrrev_b32 %s, 16, %s' % (v(d_), v(s_)))
        LR, LI = LP[h], LP[h] + 1
        lam_params(k, lre, lim, ldt, LR, LI, 227, 228)
        CR_, CI_ = CP[h], CP[h] + 1
        k.e('v_add_f32 v227, -1.0, %s' % v(LR))
        k.e('v_mul_f32 v228, v224, v224')
        k.e('v_fmac_f32 v228, v225, v225')
        k.e('v_rcp_f32 v228, v228')
        k.e('v_mul_f32 %s, v227, v224' % v(CR_))
        k.e('v_fmac_f32 %s, %s, v225' % (v(CR_), v(LI)))
        k.e('v_mul_f32 %s, %s, v224' % (v(CI_), v(LI)))
        k.e('v_fma_f32 %s, -v227, v225, %s' % (v(CI_), v(CI_)))
        k.e('v_add_f32 v228, v228, v228')
        k.e('v_mul_f32 %s, %s, v228' % (v(CR_), v(CR_)))
        k.e('v_mul_f32 %s, %s, v228' % (v(CI_), v(CI_)))
    for h in range(2): pmul(L64[h], LP[h], LP[h], T[h])
    for h in range(2): pmul(L32[h], L64[h], L64[h], T[h])
    for h in range(2): pmul(L64[h], L32[h], L32[h], T[h])
    for h in range(2): pmul(L128[h], L64[h], L64[h], T[h])
    for h in range(2): pmul(L32[h], L128[h], L128[h], T[h])
    for h in range(2): pmul(L64[h], L32[h], L32[h], T[h])
    for h in range(2): pmul(L128[h], L64[h], L64[h], T[h])
    for i in range(4): k.e('v_mov_b32 %s, 0' % v(U[0] + i))
    k.wait_vm('e')
    k.stamp(3)
    for c in range(15):
        k.e('s_cmp_le_u32 s75, %d' % c)
        k.e('s_cbranch_scc1 K2_CL')
        for h in range(2):
            k.e('v_pk_fma_f32 %s, %s, %s, %s op_sel_hi:[0,1,1]' % (v(EB + 4 * c + 2 * h, 2), v(L128[h], 2), v(U[h], 2), v(EB + 4 * c + 2 * h, 2)))
        for h in range(2):
            k.e('v_pk_fma_f32 %s, %s, %s, %s op_sel:[1,1,0] op_sel_hi:[1,0,1] neg_lo:[1,0,0]' % (v(U[h], 2), v(L128[h], 2), v(U[h], 2), v(EB + 4 * c + 2 * h, 2)))
    k.label('K2_CL')
    for h in range(2): pmul(U[h], CP[h], U[h], T[h])
    k.e('s_bitcmp0_b32 s76, 0')
    k.e('s_cbranch_scc1 K2_R1')
    for h in range(2): pmul(U[h], L32[h], U[h], T[h])
    k.label('K2_R1')
    k.e('s_bitcmp0_b32 s76, 1')
    k.e('s_cbranch_scc1 K2_R2')
    for h in range(2): pmul(U[h], L64[h], U[h], T[h])
    k.label('K2_R2')
    k.stamp(4)
    for j in range(32):
        S_ = SB + 4 * j
        for h in range(2):
            k.e('v_pk_mul_f32 %s, %s, %s op_sel_hi:[0,1]' % (v(T[h], 2), v(LP[h], 2), v(U[h], 2)))
        for h in range(2):
            k.e('v_pk_fma_f32 %s, %s, %s, %s op_sel:[1,1,0] op_sel_hi:[1,0,1] neg_lo:[1,0,0]' % (v(U[h], 2), v(LP[h], 2), v(U[h], 2), v(T[h], 2)))
        k.wait_vm('h%d' % j)
        for h in range(2):
            k.e('v_pk_fma_f32 %s, %s, %s, %s op_sel_hi:[0,1,1]' % (v(T[h], 2), v(CP[h], 2), v(S_ + 2 * h, 2), v(U[h], 2)))
        for h in range(2):
            k.e('v_pk_fma_f32 %s, %s, %s, %s op_sel:[1,1,0] op_sel_hi:[1,0,1] neg_lo:[1,0,0]' % (v(S_ + 2 * h, 2), v(CP[h], 2), v(S_ + 2 * h, 2), v(T[h], 2)))
        k.e('v_cvt_pk_bf16_f32 %s, %s, %s' % (v(S_), v(S_), v(S_ + 2)))
        k.e('v_cvt_pk_bf16_f32 %s, -%s, -%s' % (v(S_ + 1), v(S_ + 1), v(S_ + 3)))
        k.e('s_add_u32 s79, s78, %d' % (j * 2048))
        k.vm('buffer_store_dword %s, v2, s[16:19], s79 offen' % v(S_), 'o')
        k.vm('buffer_store_dword %s, v2, s[16:19], s79 offen offset:1024' % v(S_ + 1), 'o')
    k.stamp(5)
    k.e('s_branch K2_PF3')
    k.label('K2_HELP')
    k.e('s_sleep 100')
    k.label('K2_PF3')
    if PFX:
        srd(k, 20, A_CRE, 1 << 19); srd(k, 24, A_CIM, 1 << 19); srd(k, 28, B_W2, 1376 * 4096)
        k.e('s_sub_u32 s74, s73, 22')
        k.e('s_lshl_b32 s74, s74, 8')
        k.e('v_add_u32 v4, s74, v0')
        k.e('v_lshlrev_b32 v5, 7, v4')
        k.e('buffer_load_dword v1, v5, s[20:23], 0 offen')
        k.e('buffer_load_dword v1, v5, s[24:27], 0 offen')
        k.e('v_add_u32 v6, %d, v5' % (2560 * 128))
        k.e('buffer_load_dword v1, v6, s[20:23], 0 offen')
        k.e('buffer_load_dword v1, v6, s[24:27], 0 offen')
        k.e('v_lshrrev_b32 v5, 2, v4')
        k.e('v_lshlrev_b32 v5, 12, v5')
        k.e('v_and_b32 v6, 3, v4')
        k.e('v_lshl_add_u32 v5, v6, 7, v5')
        k.e('s_lshl_b32 s75, s72, 9')
        k.e('v_add_u32 v5, s75, v5')
        k.e('v_add_u32 v6, %d, v5' % (640 * 4096))
        k.e('v_add_u32 v7, %d, v5' % (1280 * 4096))
        for r_ in (5, 6, 7):
            k.e('buffer_load_dword v1, v%d, s[28:31], 0 offen' % r_)
    k.wait_vm_all()
    k.stamp(6)
    k.stamp_flush(DBGWG)
    k.tl_end(1)
    k.label('K2_END')
    k.e('s_waitcnt vmcnt(0)')
    k.e('s_endpgm')
    return finish(k, 232)

def gen_k3():
    k = Kern('k3_kernel')
    NS = 8
    k.e('s_cmp_ge_u32 s2, 256')
    k.e('s_cbranch_scc1 K3_END')
    load_kernargs(k)
    k.tl_start()
    k.e('v_and_b32 v1, 63, v0')
    k.e('v_lshrrev_b32 v2, 6, v0')
    k.nop(1)
    k.e('v_readfirstlane_b32 s3, v2')
    k.e('s_and_b32 s72, s2, 7')
    k.e('s_lshr_b32 s73, s2, 3')
    k.e('s_lshr_b32 s74, s73, 3')
    k.e('s_lshl_b32 s72, s72, 2')
    k.e('s_add_u32 s72, s72, s74')
    k.e('s_and_b32 s73, s73, 7')
    k.e('s_lshl_b32 s74, s72, 6')
    k.e('s_lshl_b32 s75, s73, 6')
    k.e('s_lshr_b32 s76, s3, 1')
    k.e('s_and_b32 s77, s3, 1')
    GR, B2R, XR, DR = 120, 121, 122, 130
    k.e('v_and_b32 v3, 31, v1')
    k.e('s_lshl_b32 s78, s77, 5')
    k.e('s_add_u32 s78, s78, s74')
    k.e('v_add_u32 v3, s78, v3')
    k.e('v_lshlrev_b32 v176, 2, v3')
    k.e('v_lshlrev_b32 v177, 1, v3')
    k.e('s_lshl_b32 s79, s76, 5')
    k.e('s_add_u32 s79, s79, s75')
    k.e('v_lshrrev_b32 v4, 5, v1')
    k.e('v_lshlrev_b32 v4, 2, v4')
    k.e('v_add_u32 v4, s79, v4')
    k.e('v_lshlrev_b32 v178, 1, v4')
    k.e('v_lshl_add_u32 v179, v3, 10, v178')
    k.e('v_lshlrev_b32 v138, 1, v179')
    I3, I4, I7 = 4, 5, 6
    k.e('v_lshrrev_b32 v4, 3, v1'); k.e('v_lshrrev_b32 v5, 4, v1'); k.e('v_and_b32 v6, 7, v1')
    VC, VH, VU, VW = 8, 10, 12, 14
    k.e('s_lshl_b32 s80, s3, 4')
    k.e('s_add_u32 s81, s80, s75')
    k.e('s_add_u32 s82, s80, s74')
    k.e('s_mov_b32 s83, 1024'); k.e('s_mov_b32 s84, 0')
    dma_voff(k, VC, 81, 83, 84, False, I3, I4, I7, 7)
    k.e('s_mov_b32 s83, 2048'); k.e('s_mov_b32 s84, %d' % WS_HB)
    dma_voff(k, VH, 82, 83, 84, False, I3, I4, I7, 7)
    k.e('s_mov_b32 s83, %d' % UP); k.e('s_mov_b32 s84, %d' % WS_U)
    dma_voff(k, VU, 81, 83, 84, False, I3, I4, I7, 7)
    k.e('s_mov_b32 s83, 4096'); k.e('s_lshl_b32 s84, s74, 1')
    dma_voff(k, VW, 80, 83, 84, True, I3, I4, I7, 7)
    k.e('s_lshl_b32 s83, s3, 11')
    PA, PB, PT = 16, 24, 32
    k.e('s_lshl_b32 s86, s76, 12')
    k.e('s_lshl_b32 s87, s77, 12')
    k.e('s_lshl_b32 s88, s77, 2')
    pat_direct(k, PA, 86, 0, 1, 100, 101)
    pat_direct(k, PB, 87, 8192, 1, 100, 101)
    pat_tr(k, PT, 88, 8192, 1, 100, 101, 102)
    def sel(d, a_, b_):
        k.e('s_cmp_lt_u32 s3, 2')
        k.e('s_cselect_b32 %s, %s, %s' % (d, a_, b_))
    k.e('s_lshr_b32 s94, s2, 3')
    k.e('s_and_b32 s95, s2, 7')
    k.e('s_lshl_b32 s84, s94, 4')
    k.e('s_lshl_b32 s85, s3, 3')
    k.e('s_add_u32 s84, s84, s85')
    k.e('s_lshl_b32 s85, s95, 8')
    k.e('s_lshl_b32 s93, s94, 3')
    k.e('s_add_u32 s85, s85, s93')
    sel('s85', 's84', 's85')
    k.e('s_mov_b32 s93, 2048')
    sel('s93', '1024', 's93')
    sel('s89', '0', '%d' % WS_HB)
    sel('s90', '0', '%d' % (WS_HB + 1024))
    k.e('v_lshrrev_b32 v4, 3, v1')
    k.e('v_and_b32 v5, 7, v1')
    k.e('v_add_u32 v6, s85, v4')
    k.e('v_mul_lo_u32 v6, v6, s93')
    k.e('v_lshl_add_u32 v173, v5, 7, v6')
    k.e('s_mov_b32 s93, %d' % UP)
    k.e('v_add_u32 v6, s84, v4')
    k.e('v_mul_lo_u32 v6, v6, s93')
    k.e('v_lshl_add_u32 v172, v5, 7, v6')
    k.e('s_lshl_b32 s93, s94, 4')
    k.e('v_lshrrev_b32 v4, 2, v1')
    k.e('v_add_u32 v4, s93, v4')
    k.e('v_lshlrev_b32 v4, 12, v4')
    k.e('v_and_b32 v5, 3, v1')
    k.e('v_lshl_add_u32 v4, v5, 7, v4')
    k.e('s_cmp_lt_u32 s3, 2')
    k.e('s_cselect_b64 vcc, -1, 0')
    k.e('v_cndmask_b32 v172, v4, v172, vcc')
    k.e('s_lshl_b32 s91, s95, 9')
    sel('s91', '%d' % WS_U, 's91')
    k.e('s_mov_b32 s92, 0x200000')
    sel('s92', '1024', 's92')
    k.e('s_cmp_eq_u32 s3, 3')
    k.e('s_cselect_b64 vcc, -1, 0')
    k.e('v_mov_b32 v4, 0x7f000000')
    k.e('v_cndmask_b32 v172, v172, v4, vcc')
    k.e('v_cndmask_b32 v173, v173, v4, vcc')
    k.e('s_mov_b32 s93, 0x%x' % WS_SZ)
    k.e('s_waitcnt lgkmcnt(0)')
    k.stamp(60)
    srd(k, 16, WS, WS_SZ)
    srd(k, 4, A_CRE, 1 << 19)
    def rest_srds():
        srd(k, 8, A_CIM, 1 << 19); srd(k, 12, B_W2, 1376 * 4096)
        srd(k, 20, A_X, 2 << 20); srd(k, 24, A_DSK, 1024); srd(k, 28, B_B2, 4096); srd(k, 32, OUT, 4 << 20)
        for d, pa, pb in ((96, A_CRE, WS), (36, A_CIM, WS), (40, WS, B_W2)):
            k.e('s_cmp_lt_u32 s3, 2')
            k.e('s_cselect_b32 s%d, s%d, s%d' % (d, P(pa), P(pb)))
            k.e('s_cselect_b32 s%d, s%d, s%d' % (d + 1, P(pa) + 1, P(pb) + 1))
            if d == 40: k.e('s_cselect_b32 s%d, s93, 0x%x' % (d + 2, 1376 * 4096))
            else: k.e('s_cselect_b32 s%d, 0x80000, s93' % (d + 2))
            k.e('s_and_b32 s%d, s%d, 0xffff' % (d + 1, d + 1))
            k.e('s_mov_b32 s%d, 0x00020000' % (d + 3))
        return [('v', 'buffer_load_dword v174, v173, s[96:99], s89 offen', 'pf')] if PF else []
    def pf1():
        return [('v', 'buffer_load_dword v174, v173, s[36:39], s90 offen', 'pf')] if PF else []
    def pf_slot():
        if not PF: return []
        return [('v', 'buffer_load_dword v174, v172, s[40:43], s91 offen', 'pf'), ('e', 's_add_u32 s91, s91, s92')]
    def ep_loads():
        L = [('e', 's_mov_b32 s79, %d' % WS_G), ('v', 'buffer_load_dword %s, v176, s[16:19], s79 offen' % v(GR), 'ep'),
             ('v', 'buffer_load_ushort %s, v177, s[28:31], 0 offen' % v(B2R), 'ep')]
        for q in range(4):
            L.append(('v', 'buffer_load_dwordx2 %s, v178, s[24:27], 0 offen offset:%d' % (v(DR + 2 * q, 2), 16 * q), 'ep'))
        for q in range(4):
            L.append(('v', 'buffer_load_dwordx2 %s, v179, s[20:23], 0 offen offset:%d' % (v(XR + 2 * q, 2), 16 * q), 'ep'))
        return L
    def issue(st):
        slot = (st % NS) * 16384
        tg = 'st%d' % st
        if st < 16:
            srdA = 4 if st < 8 else 8
            oa, ob = (st % 8) * 128, st * 128
            va, vb, srdB = VC, VH, 16
        else:
            srdA = 16
            oa, ob = (st - 16) * 128, (st - 16) * 262144
            va, vb, srdB = VU, VW, 12
        return [[('e', 's_mov_b32 s84, %d' % oa), ('e', 's_add_u32 m0, s83, %d' % slot), ('e', 's_mov_b32 s85, %d' % ob),
                 ('v', 'buffer_load_dwordx4 %s, s[%d:%d], s84 offen lds' % (v(va), srdA, srdA + 3), tg)],
                [('v', 'buffer_load_dwordx4 %s, s[%d:%d], s84 offen offset:1024 lds' % (v(va + 1), srdA, srdA + 3), tg)],
                [('e', 's_add_u32 m0, s83, %d' % (slot + 8192)), ('e', 's_nop 0'),
                 ('v', 'buffer_load_dwordx4 %s, s[%d:%d], s85 offen lds' % (v(vb), srdB, srdB + 3), tg)],
                [('v', 'buffer_load_dwordx4 %s, s[%d:%d], s85 offen offset:1024 lds' % (v(vb + 1), srdB, srdB + 3), tg)]]
    ACA, ACB = 36, 52
    FBUF = [(68, 84), (140, 156)]
    stages = []
    for st in range(38):
        ex = pf_slot if st in PF3 else (ep_loads if st == 22 else None)
        if st < 16:
            stages.append(dict(issue=issue, modeA='d', patA=PA, modeB='d', patB=PB, acc=ACA, first=(st == 0), extra=ex))
        else:
            stages.append(dict(issue=issue, modeA='d', patA=PA, modeB='t', patB=PT, acc=ACB, first=(st == 16), extra=ex))
    gl = gemm_loop(k, stages, NS, FBUF, {PRO[0]: rest_srds, PRO[1]: pf1})
    next(gl)
    for _ in gl: pass
    k.nop(13)
    XF, DF, T = 68, 84, 100
    for i in range(8):
        k.e('v_lshlrev_b32 %s, 16, %s' % (v(XF + 2 * i), v(XR + i)))
        k.e('v_and_b32 %s, 0xffff0000, %s' % (v(XF + 2 * i + 1), v(XR + i)))
        k.e('v_lshlrev_b32 %s, 16, %s' % (v(DF + 2 * i), v(DR + i)))
        k.e('v_and_b32 %s, 0xffff0000, %s' % (v(DF + 2 * i + 1), v(DR + i)))
    k.e('v_lshlrev_b32 %s, 16, %s' % (v(B2R), v(B2R)))
    OMG = 101
    k.e('v_sub_f32 %s, 1.0, %s' % (v(OMG), v(GR)))
    rbf(k, OMG, T)
    for r in range(16):
        k.e('v_mul_f32 %s, %s, %s' % (v(XF + r), v(XF + r), v(DF + r)))
    for r in range(0, 16, 2):
        rbf2(k, XF + r, XF + r + 1, T)
        rbf2(k, ACB + r, ACB + r + 1, T)
    for r in range(16):
        k.e('v_add_f32 %s, %s, %s' % (v(ACA + r), v(ACA + r), v(XF + r)))
        k.e('v_add_f32 %s, %s, %s' % (v(ACB + r), v(ACB + r), v(B2R)))
    for r in range(0, 16, 2):
        rbf2(k, ACB + r, ACB + r + 1, T)
    for r in range(16):
        k.e('v_mul_f32 %s, %s, %s' % (v(ACB + r), v(ACB + r), v(OMG)))
        k.e('v_mul_f32 %s, %s, %s' % (v(ACA + r), v(ACA + r), v(GR)))
    for r in range(0, 16, 2):
        rbf2(k, ACB + r, ACB + r + 1, T)
    for r in range(16):
        k.e('v_add_f32 %s, %s, %s' % (v(ACA + r), v(ACA + r), v(ACB + r)))
    for q in range(4):
        k.e('buffer_store_dwordx4 %s, v138, s[32:35], 0 offen offset:%d' % (v(ACA + 4 * q, 4), 32 * q))
    k.stamp(50)
    k.e('s_waitcnt vmcnt(0)')
    k.stamp(51)
    k.stamp_flush(DBGWG)
    k.tl_end(2)
    k.label('K3_END')
    k.e('s_endpgm')
    return finish(k, 180, 102)

def main():
    hdr = open('gated_mix__ssm_conv_s5__mixer_token_mlp__prompt.s.ref').read().split('\n')
    top = []
    for l in hdr:
        if l.startswith(';') and '@launch' not in l:
            top.append(l)
        elif not l.startswith(';'):
            break
    top.append('; @launch kernel=k1_kernel grid=(256,1,1) block=(256,1,1) lds=148480')
    top.append('; @launch kernel=k2_kernel grid=(256,1,1) block=(256,1,1) lds=131072')
    top.append('; @launch kernel=k3_kernel grid=(256,1,1) block=(256,1,1) lds=131072')
    top.append('.amdgcn_target "amdgcn-amd-amdhsa--gfx950"')
    top.append('.text')
    ks = [gen_k1(), gen_k2(), gen_k3()]
    body = []
    for b, d in ks:
        body += b
    body.append('.section .rodata,"a"')
    for b, d in ks:
        body += d
    out = '\n'.join(top + body) + '\n'
    path = sys.argv[1] if len(sys.argv) > 1 else 'gated_mix__ssm_conv_s5__mixer_token_mlp__prompt.s'
    open(path, 'w').write(out)
    print('wrote', path, len(out), 'bytes')

if __name__ == '__main__':
    main()
```

```python
import sys, os
DEBUG = int(os.environ.get('DEBUG', '0'))
DBGWG = int(os.environ.get('DBGWG', '0'))
TL = int(os.environ.get('TL', '0'))
PF = int(os.environ.get('PF', '1'))
PFX = int(os.environ.get('PFX', '1'))
PRO = eval(os.environ.get('PRO', '(1,7)'))
PF2 = eval(os.environ.get('PF2', '(1,9)'))
PF3 = eval(os.environ.get('PF3', '(0,8,16)'))

WS_H  = 0
WS_G  = 2 << 20
WS_S  = 4 << 20
WS_E  = 12 << 20
WS_HB = 16 << 20
WS_U  = 20 << 20
WS_SZ = 24 << 20
UP = 2816
LOG2E = 0x3fb8aa3b
INV2PI = 0x3e22f983

class Kern:
    def __init__(self, name):
        self.name = name
        self.L = []
        self.vmq = []
        self.nlab = 0
    def e(self, s):
        self.L.append('    ' + s)
    def c(self, s):
        self.L.append('    ; ' + s)
    def label(self, l):
        self.L.append(l + ':')
    def vm(self, s, tag):
        self.e(s); self.vmq.append(tag)
    def wait_vm(self, tag):
        idxs = [i for i, t in enumerate(self.vmq) if t == tag]
        if not idxs:
            return
        idx = idxs[-1]
        n = len(self.vmq) - 1 - idx
        self.e('s_waitcnt vmcnt(%d)' % min(n, 63))
        self.vmq = self.vmq[idx + 1:]
    def wait_vm_all(self):
        self.e('s_waitcnt vmcnt(0)'); self.vmq = []
    def stamp(self, i):
        if not DEBUG: return
        self.e('s_memtime s[94:95]')
        self.e('s_waitcnt lgkmcnt(0)')
        self.e('v_writelane_b32 v255, s94, %d' % i)
    def stamp_flush(self, wg):
        if not DEBUG: return
        self.nlab += 1
        lab = '%s_DBG%d' % (self.name, self.nlab)
        self.e('s_cmp_lg_u32 s2, %d' % wg)
        self.e('s_cbranch_scc1 %s' % lab)
        self.e('s_cmp_lg_u32 s3, 0')
        self.e('s_cbranch_scc1 %s' % lab)
        self.e('s_mov_b32 s96, s%d' % P(DBG))
        self.e('s_and_b32 s97, s%d, 0xffff' % (P(DBG) + 1))
        self.e('s_mov_b32 s98, 256')
        self.e('s_mov_b32 s99, 0x00020000')
        self.e('v_and_b32 v254, 63, v0')
        self.e('v_lshlrev_b32 v254, 2, v254')
        self.e('buffer_store_dword v255, v254, s[96:99], 0 offen')
        self.label(lab)
    def tl_start(self):
        if not TL: return
        self.e('s_memrealtime s[100:101]')
    def tl_end(self, kidx):
        if not TL: return
        self.nlab += 1
        lab = '%s_TL%d' % (self.name, self.nlab)
        self.e('s_waitcnt vmcnt(0)')
        self.e('s_memrealtime s[94:95]')
        self.e('s_cmp_lg_u32 s3, 0')
        self.e('s_cbranch_scc1 %s' % lab)
        self.e('s_mov_b32 s96, s%d' % P(WS))
        self.e('s_and_b32 s97, s%d, 0xffff' % (P(WS) + 1))
        self.e('s_mov_b32 s98, 0x4000000')
        self.e('s_mov_b32 s99, 0x00020000')
        self.e('s_waitcnt lgkmcnt(0)')
        if TL == 2: self.e('s_getreg_b32 s100, hwreg(HW_REG_XCC_ID)')
        self.e('v_mov_b32 v2, s100'); self.e('v_mov_b32 v3, s94')
        self.e('s_lshl_b32 s94, s2, 3')
        self.e('s_add_u32 s94, s94, %d' % ((32 << 20) + kidx * 4096))
        self.e('v_mov_b32 v4, 0')
        self.e('buffer_store_dwordx2 v[2:3], v4, s[96:99], s94 offen')
        if TL == 3:
            self.e('s_getreg_b32 s100, hwreg(HW_REG_XCC_ID)')
            self.e('v_mov_b32 v5, s100')
            self.e('buffer_store_dword v5, v4, s[96:99], s94 offen offset:2048')
        if TL == 3 and kidx == 2:
            self.e('s_cmp_lg_u32 s2, 0')
            self.e('s_cbranch_scc1 %s' % lab)
            self.e('s_mov_b32 s94, %d' % (32 << 20))
            self.e('buffer_load_dwordx2 v[6:7], v4, s[96:99], s94 offen')
            self.e('s_mov_b32 s94, %d' % ((32 << 20) + 4096))
            self.e('buffer_load_dwordx2 v[8:9], v4, s[96:99], s94 offen')
            self.e('buffer_load_dword v11, v4, s[96:99], s94 offen offset:2048')
            self.e('s_mov_b32 s94, %d' % (32 << 20))
            self.e('buffer_load_dword v10, v4, s[96:99], s94 offen offset:2048')
            self.e('s_waitcnt vmcnt(0)')
            self.e('s_mov_b32 s96, s%d' % P(DBG))
            self.e('s_and_b32 s97, s%d, 0xffff' % (P(DBG) + 1))
            self.e('s_mov_b32 s98, 256')
            self.e('buffer_store_dwordx2 v[10:11], v4, s[96:99], 0 offen offset:24')
            self.e('v_sub_u32 v7, v7, v6'); self.e('v_sub_u32 v8, v8, v6'); self.e('v_sub_u32 v9, v9, v6')
            self.e('v_sub_u32 v2, v2, v6'); self.e('v_sub_u32 v3, v3, v6')
            self.e('s_getreg_b32 s100, hwreg(HW_REG_XCC_ID)')
            self.e('v_mov_b32 v6, s100')
            self.e('buffer_store_dwordx4 v[6:9], v4, s[96:99], 0 offen')
            self.e('buffer_store_dwordx2 v[2:3], v4, s[96:99], 0 offen offset:16')
        self.label(lab)
    def nop(self, n):
        while n > 0:
            k = min(n, 16)
            self.e('s_nop %d' % (k - 1)); n -= k

def v(i, n=1):
    return 'v%d' % i if n == 1 else 'v[%d:%d]' % (i, i + n - 1)
def s(i, n=1):
    return 's%d' % i if n == 1 else 's[%d:%d]' % (i, i + n - 1)

def P(k): return 36 + 2 * k
A_X, A_LRE, A_LIM, A_BRE, A_BIM, A_CRE, A_CIM, A_LDT, A_DSK, B_X, B_W1, B_B1, B_W2, B_B2, GATE, OUT, DBG, WS = range(18)

def load_kernargs(k):
    k.e('s_load_dwordx16 s[36:51], s[0:1], 0')
    k.e('s_load_dwordx16 s[52:67], s[0:1], 64')
    k.e('s_load_dwordx4 s[68:71], s[0:1], 128')

def srd(k, dst, ptr, nbytes):
    k.e('s_mov_b32 s%d, s%d' % (dst, P(ptr)))
    k.e('s_and_b32 s%d, s%d, 0xffff' % (dst + 1, P(ptr) + 1))
    k.e('s_mov_b32 s%d, 0x%x' % (dst + 2, nbytes))
    k.e('s_mov_b32 s%d, 0x00020000' % (dst + 3))

def cfma(k, dr, di, ar, ai, br, bi, cr, ci):
    k.e('v_fma_f32 %s, %s, %s, %s' % (v(dr), v(ar), v(br), v(cr)))
    k.e('v_fma_f32 %s, %s, %s, %s' % (v(di), v(ar), v(bi), v(ci)))
    k.e('v_fma_f32 %s, -%s, %s, %s' % (v(dr), v(ai), v(bi), v(dr)))
    k.e('v_fma_f32 %s, %s, %s, %s' % (v(di), v(ai), v(br), v(di)))

def cmul(k, dr, di, ar, ai, br, bi):
    k.e('v_mul_f32 %s, %s, %s' % (v(dr), v(ar), v(br)))
    k.e('v_mul_f32 %s, %s, %s' % (v(di), v(ar), v(bi)))
    k.e('v_fma_f32 %s, -%s, %s, %s' % (v(dr), v(ai), v(bi), v(dr)))
    k.e('v_fma_f32 %s, %s, %s, %s' % (v(di), v(ai), v(br), v(di)))

def rbf(k, a, t):
    k.e('v_cvt_pk_bf16_f32 %s, %s, %s' % (v(t), v(a), v(a)))
    k.e('v_lshlrev_b32 %s, 16, %s' % (v(a), v(t)))

def rbf2(k, a, b, t):
    k.e('v_cvt_pk_bf16_f32 %s, %s, %s' % (v(t), v(a), v(b)))
    k.e('v_lshlrev_b32 %s, 16, %s' % (v(a), v(t)))
    k.e('v_and_b32 %s, 0xffff0000, %s' % (v(b), v(t)))

def lam_params(k, lre, lim, ldt, Lr, Li, t0, t1):
    k.e('v_lshlrev_b32 %s, 16, %s' % (v(lre), v(lre)))
    k.e('v_lshlrev_b32 %s, 16, %s' % (v(lim), v(lim)))
    k.e('v_lshlrev_b32 %s, 16, %s' % (v(ldt), v(ldt)))
    k.e('v_mul_f32 %s, 0x%x, %s' % (v(t0), LOG2E, v(ldt)))
    k.e('v_exp_f32 %s, %s' % (v(t0), v(t0)))
    k.nop(1)
    rbf(k, t0, t1)
    k.e('v_mul_f32 %s, %s, %s' % (v(t1), v(t0), v(lre)))
    k.e('v_mul_f32 %s, %s, %s' % (v(t0), v(t0), v(lim)))
    k.e('v_mul_f32 %s, 0x%x, %s' % (v(t1), LOG2E, v(t1)))
    k.e('v_mul_f32 %s, 0x%x, %s' % (v(t0), INV2PI, v(t0)))
    k.e('v_exp_f32 %s, %s' % (v(t1), v(t1)))
    k.e('v_fract_f32 %s, %s' % (v(t0), v(t0)))
    k.e('v_cos_f32 %s, %s' % (v(Lr), v(t0)))
    k.e('v_sin_f32 %s, %s' % (v(Li), v(t0)))
    k.nop(1)
    k.e('v_mul_f32 %s, %s, %s' % (v(Lr), v(Lr), v(t1)))
    k.e('v_mul_f32 %s, %s, %s' % (v(Li), v(Li), v(t1)))

def finish(k, nvgpr, nsgpr=96):
    if DEBUG: nvgpr = 256; nsgpr = 102
    if TL: nsgpr = 102
    out = []
    out.append('.globl %s' % k.name)
    out.append('.p2align 8')
    out.append('.type %s,@function' % k.name)
    out.append('%s:' % k.name)
    out += k.L
    desc = []
    desc.append('.p2align 6')
    desc.append('.amdhsa_kernel %s' % k.name)
    desc.append('  .amdhsa_next_free_vgpr %d' % nvgpr)
    desc.append('  .amdhsa_next_free_sgpr %d' % nsgpr)
    desc.append('  .amdhsa_accum_offset %d' % ((nvgpr + 3) // 4 * 4))
    desc.append('  .amdhsa_group_segment_fixed_size 0')
    desc.append('  .amdhsa_kernarg_size 144')
    desc.append('  .amdhsa_user_sgpr_count 2')
    desc.append('  .amdhsa_user_sgpr_kernarg_segment_ptr 1')
    desc.append('  .amdhsa_system_sgpr_workgroup_id_x 1')
    desc.append('.end_amdhsa_kernel')
    return out, desc

def gen_k1():
    k = Kern('k1_kernel')
    NS = 6; STG = 24576; NST = 8
    XOFF = NS * STG
    k.e('s_cmp_ge_u32 s2, 256')
    k.e('s_cbranch_scc1 K1_END')
    load_kernargs(k)
    k.tl_start()
    k.e('v_and_b32 v1, 63, v0')
    k.e('v_lshrrev_b32 v2, 6, v0')
    k.nop(1)
    k.e('v_readfirstlane_b32 s3, v2')
    k.e('s_and_b32 s72, s2, 7')
    k.e('s_lshr_b32 s73, s2, 3')
    k.e('s_lshr_b32 s74, s73, 4')
    k.e('s_lshl_b32 s72, s72, 1')
    k.e('s_add_u32 s72, s72, s74')
    k.e('s_and_b32 s73, s73, 15')
    k.e('s_lshl_b32 s74, s72, 7')
    k.e('s_lshl_b32 s75, s73, 5')
    XR0, XR1, GW = 168, 172, 176
    PLRE, PLIM, PLDT = 180, 181, 182
    k.e('s_lshl_b32 s76, s73, 3')
    k.e('s_add_u32 s76, s76, s74')
    k.e('s_lshl_b32 s77, s3, 1')
    k.e('s_add_u32 s76, s76, s77')
    k.e('s_lshl_b32 s77, s76, 10')
    k.e('v_lshlrev_b32 v2, 4, v1')
    k.e('v_and_b32 v3, 31, v1')
    k.e('v_add_u32 v14, s75, v3')
    k.e('v_lshlrev_b32 v14, 1, v14')
    VA = 8; VB = 12
    k.e('v_lshrrev_b32 v4, 3, v1')
    k.e('v_lshrrev_b32 v5, 4, v1')
    k.e('v_and_b32 v6, 7, v1')
    k.e('s_lshl_b32 s78, s3, 5')
    k.e('s_add_u32 s78, s78, s74')
    for j in range(4):
        k.e('v_add_u32 v7, %d, v5' % (4 * j))
        k.e('v_and_b32 v7, 7, v7')
        k.e('v_xor_b32 v7, v7, v6')
        k.e('v_lshlrev_b32 v7, 4, v7')
        k.e('v_add_u32 %s, s78, v4' % v(VA + j))
        k.e('v_add_u32 %s, %d, %s' % (v(VA + j), 7 * j, v(VA + j)))
        k.e('v_lshlrev_b32 %s, 10, %s' % (v(VA + j), v(VA + j)))
        k.e('v_add_u32 %s, %s, v7' % (v(VA + j), v(VA + j)))
    k.e('s_and_b32 s79, s3, 1')
    k.e('s_lshl_b32 s79, s79, 4')
    k.e('s_add_u32 s79, s79, s75')
    for j in range(2):
        k.e('v_add_u32 v7, %d, v5' % (4 * j))
        k.e('v_and_b32 v7, 7, v7')
        k.e('v_xor_b32 v7, v7, v6')
        k.e('v_lshlrev_b32 v7, 4, v7')
        k.e('v_add_u32 %s, s79, v4' % v(VB + j))
        k.e('v_add_u32 %s, %d, %s' % (v(VB + j), 7 * j, v(VB + j)))
        k.e('v_lshlrev_b32 %s, 10, %s' % (v(VB + j), v(VB + j)))
        k.e('v_add_u32 %s, %s, v7' % (v(VB + j), v(VB + j)))
    k.e('s_lshl_b32 s80, s3, 12')
    k.e('s_lshl_b32 s81, s3, 11')
    k.e('s_add_u32 s81, s81, 16384')
    PA = 16; PB = 28
    k.e('v_lshrrev_b32 v4, 5, v1')
    k.e('v_lshrrev_b32 v5, 1, v3')
    k.e('v_and_b32 v5, 7, v5')
    k.e('v_xor_b32 v5, v5, v4')
    k.e('v_lshlrev_b32 v5, 4, v5')
    k.e('v_lshl_add_u32 v5, v3, 7, v5')
    for kk in range(4):
        k.e('v_xor_b32 %s, %d, v5' % (v(PB + kk), kk << 5))
        k.e('v_add_u32 %s, s80, %s' % (v(PA + kk), v(PB + kk)))
        for st in (1, 2):
            k.e('v_add_u32 %s, %d, %s' % (v(PB + 4 * st + kk), 49152 * st, v(PB + kk)))
            k.e('v_add_u32 %s, %d, %s' % (v(PA + 4 * st + kk), 49152 * st, v(PA + kk)))
    k.e('s_waitcnt lgkmcnt(0)')
    k.stamp(60)
    srd(k, 4, A_X, 2 << 20)
    k.e('s_cmp_ge_u32 s3, 2')
    k.e('s_cselect_b32 s8, s%d, s%d' % (P(A_BIM), P(A_BRE)))
    k.e('s_cselect_b32 s9, s%d, s%d' % (P(A_BIM) + 1, P(A_BRE) + 1))
    k.e('s_and_b32 s9, s9, 0xffff')
    k.e('s_mov_b32 s10, 0x80000')
    k.e('s_mov_b32 s11, 0x00020000')
    srd(k, 32, GATE, 1024)
    k.vm('buffer_load_dwordx4 %s, v2, s[4:7], s77 offen' % v(XR0, 4), 'ln')
    k.vm('buffer_load_dwordx4 %s, v2, s[4:7], s77 offen offset:1024' % v(XR1, 4), 'ln')
    k.vm('buffer_load_dwordx4 %s, v2, s[32:35], 0 offen' % v(GW, 4), 'ln')
    def issue_groups(st):
        slot = (st % NS) * STG
        tg = 'st%d' % st
        g = [[('e', 's_mov_b32 s82, %d' % (st * 128)), ('e', 's_add_u32 m0, s80, %d' % slot), ('e', 's_nop 0')], [], [], []]
        for j in range(4):
            g[j // 2].append(('v', 'buffer_load_dwordx4 %s, s[4:7], s82 offen offset:%d lds' % (v(VA + j), 1024 * j), tg))
        g[2] += [('e', 's_add_u32 m0, s81, %d' % slot), ('e', 's_nop 0')]
        for j in range(2):
            g[2 + j].append(('v', 'buffer_load_dwordx4 %s, s[8:11], s82 offen offset:%d lds' % (v(VB + j), 1024 * j), tg))
        return g
    def issue_stage(st):
        for g in issue_groups(st): emit_items(k, g)
    issue_stage(0)
    srd(k, 16, WS, WS_SZ)
    srd(k, 20, A_LRE, 1024); srd(k, 24, A_LIM, 1024); srd(k, 28, A_LDT, 1024)
    k.vm('buffer_load_ushort %s, v14, s[20:23], 0 offen' % v(PLRE), 'par')
    k.vm('buffer_load_ushort %s, v14, s[24:27], 0 offen' % v(PLIM), 'par')
    k.vm('buffer_load_ushort %s, v14, s[28:31], 0 offen' % v(PLDT), 'par')
    issue_stage(1)
    issue_stage(2)
    k.stamp(1)
    k.wait_vm('ln')
    k.stamp(2)
    X = [100, 110]
    G = 120
    def unpack8(dst, src):
        for i in range(4):
            k.e('v_lshlrev_b32 %s, 16, %s' % (v(dst + 2 * i), v(src + i)))
            k.e('v_and_b32 %s, 0xffff0000, %s' % (v(dst + 2 * i + 1), v(src + i)))
    unpack8(X[0], XR0); unpack8(X[1], XR1); unpack8(G, GW)
    SUM = [130, 131]; GS = [132, 133]; TT = 134
    for r in range(2):
        k.e('v_add_f32 %s, %s, %s' % (v(SUM[r]), v(X[r]), v(X[r] + 1)))
        for i in range(2, 8):
            k.e('v_add_f32 %s, %s, %s' % (v(SUM[r]), v(SUM[r]), v(X[r] + i)))
        for i in range(8):
            k.e('v_mul_f32 %s, %s, %s' % (v(TT + i), v(X[r] + i), v(G + i)))
        for i in range(0, 8, 2):
            rbf2(k, TT + i, TT + i + 1, TT + 8)
        k.e('v_add_f32 %s, %s, %s' % (v(GS[r]), v(TT), v(TT + 1)))
        for i in range(2, 8):
            k.e('v_add_f32 %s, %s, %s' % (v(GS[r]), v(GS[r]), v(TT + i)))
    def wave_reduce(regs, sdst):
        for ctl in ('quad_perm:[1,0,3,2] row_mask:0xf bank_mask:0xf', 'quad_perm:[2,3,0,1] row_mask:0xf bank_mask:0xf',
                    'row_half_mirror row_mask:0xf bank_mask:0xf', 'row_mirror row_mask:0xf bank_mask:0xf',
                    'row_bcast:15 row_mask:0xa bank_mask:0xf', 'row_bcast:31 row_mask:0xc bank_mask:0xf'):
            k.nop(2)
            for r in regs:
                k.e('v_add_f32_dpp %s, %s, %s %s' % (v(r), v(r), v(r), ctl))
        k.nop(1)
        for r, sd in zip(regs, sdst):
            k.e('v_readlane_b32 s%d, %s, 63' % (sd, v(r)))
        k.nop(2)
    wave_reduce([SUM[0], SUM[1], GS[0], GS[1]], [84, 85, 86, 87])
    issue_stage(3)
    MEAN = [140, 141]; SQ = [142, 143]
    for r in range(2):
        k.e('v_mov_b32 %s, 0x3b000000' % v(MEAN[r]))
        k.e('v_mul_f32 %s, s%d, %s' % (v(MEAN[r]), 84 + r, v(MEAN[r])))
        k.e('v_sub_f32 %s, %s, %s' % (v(TT), v(X[r]), v(MEAN[r])))
        k.e('v_mul_f32 %s, %s, %s' % (v(SQ[r]), v(TT), v(TT)))
        for i in range(1, 8):
            k.e('v_sub_f32 %s, %s, %s' % (v(TT), v(X[r] + i), v(MEAN[r])))
            k.e('v_fmac_f32 %s, %s, %s' % (v(SQ[r]), v(TT), v(TT)))
    wave_reduce(SQ, [88, 89])
    issue_stage(4)
    HO = [150, 154]
    for r in range(2):
        SD = 144; RC = 145; Q = 146; E_ = 147
        k.e('v_mov_b32 %s, 0x3b000000' % v(SD))
        k.e('v_mul_f32 %s, s%d, %s' % (v(SD), 88 + r, v(SD)))
        rbf(k, SD, TT)
        k.e('v_add_f32 %s, 0x3727c5ac, %s' % (v(SD), v(SD)))
        rbf(k, SD, TT)
        k.e('v_sqrt_f32 %s, %s' % (v(SD), v(SD)))
        k.nop(1)
        rbf(k, SD, TT)
        k.e('v_rcp_f32 %s, %s' % (v(RC), v(SD)))
        rbf(k, MEAN[r], TT)
        for i in range(8):
            k.e('v_sub_f32 %s, %s, %s' % (v(X[r] + i), v(X[r] + i), v(MEAN[r])))
        for i in range(0, 8, 2):
            rbf2(k, X[r] + i, X[r] + i + 1, TT)
        for i in range(8):
            k.e('v_mul_f32 %s, %s, %s' % (v(Q), v(X[r] + i), v(RC)))
            k.e('v_fma_f32 %s, -%s, %s, %s' % (v(E_), v(Q), v(SD), v(X[r] + i)))
            k.e('v_fma_f32 %s, %s, %s, %s' % (v(X[r] + i), v(E_), v(RC), v(Q)))
        for i in range(4):
            k.e('v_cvt_pk_bf16_f32 %s, %s, %s' % (v(HO[r] + i), v(X[r] + 2 * i), v(X[r] + 2 * i + 1)))
        k.e('v_mov_b32 %s, s%d' % (v(GS[r]), 86 + r))
        rbf(k, GS[r], TT)
        k.e('v_mul_f32 %s, 0x%x, %s' % (v(GS[r]), LOG2E | 0x80000000, v(GS[r])))
        k.e('v_exp_f32 %s, %s' % (v(GS[r]), v(GS[r])))
        k.nop(1)
        k.e('v_add_f32 %s, 1.0, %s' % (v(GS[r]), v(GS[r])))
        k.e('v_rcp_f32 %s, %s' % (v(GS[r]), v(GS[r])))
        k.nop(1)
        rbf(k, GS[r], TT)
        if r == 0:
            issue_stage(5)
    k.e('s_add_u32 s83, s77, %d' % WS_H)
    k.vm('buffer_store_dwordx4 %s, v2, s[16:19], s83 offen' % v(HO[0], 4), 'lnst')
    k.vm('buffer_store_dwordx4 %s, v2, s[16:19], s83 offen offset:1024' % v(HO[1], 4), 'lnst')
    k.e('s_lshl_b32 s83, s76, 2')
    k.e('s_add_u32 s83, s83, %d' % WS_G)
    k.e('v_mov_b32 v6, 0')
    k.e('s_mov_b64 exec, 1')
    k.vm('buffer_store_dwordx2 %s, v6, s[16:19], s83 offen' % v(GS[0], 2), 'lnst')
    k.e('s_mov_b64 exec, -1')
    LR, LI = 184, 185
    L2R, L2I, L3R, L3I, L4R, L4I = 186, 187, 188, 189, 190, 191
    L32R, L32I = 194, 195
    k.wait_vm('par')
    lam_params(k, PLRE, PLIM, PLDT, LR, LI, 192, 193)
    cmul(k, L2R, L2I, LR, LI, LR, LI)
    cmul(k, L3R, L3I, L2R, L2I, LR, LI)
    cmul(k, L4R, L4I, L2R, L2I, L2R, L2I)
    cmul(k, L32R, L32I, L4R, L4I, L4R, L4I)
    cmul(k, 196, 197, L32R, L32I, L32R, L32I)
    cmul(k, L32R, L32I, 196, 197, 196, 197)
    k.stamp(3)
    ACR, ACI = 40, 56
    FB_ = [(72, 88, 104), (120, 136, 152)]
    def mfma(st, kk):
        FA, FBR, FBI = FB_[st & 1]
        c = '0' if (st == 0 and kk == 0) else v(ACR, 16)
        k.e('v_mfma_f32_32x32x16_bf16 %s, %s, %s, %s' % (v(ACR, 16), v(FA + 4 * kk, 4), v(FBR + 4 * kk, 4), c))
        c = '0' if (st == 0 and kk == 0) else v(ACI, 16)
        k.e('v_mfma_f32_32x32x16_bf16 %s, %s, %s, %s' % (v(ACI, 16), v(FA + 4 * kk, 4), v(FBI + 4 * kk, 4), c))
    for st in range(NST):
        k.wait_vm('st%d' % st)
        k.e('s_barrier')
        k.stamp(4 + st)
        groups = [[], [], [], []]
        if st >= 1 and st + NS - 1 < NST:
            groups = issue_groups(st + NS - 1)
        slot = st % NS
        sset = slot // 2
        off = (slot % 2) * STG
        FA, FBR, FBI = FB_[st & 1]
        for kk in range(4):
            emit_items(k, groups[kk])
            k.e('ds_read_b128 %s, %s offset:%d' % (v(FA + 4 * kk, 4), v(PA + 4 * sset + kk), off))
            k.e('ds_read_b128 %s, %s offset:%d' % (v(FBR + 4 * kk, 4), v(PB + 4 * sset + kk), off + 16384))
            k.e('ds_read_b128 %s, %s offset:%d' % (v(FBI + 4 * kk, 4), v(PB + 4 * sset + kk), off + 16384 + 4096))
            if st >= 1:
                mfma(st - 1, kk)
        if PFX and st == 3:
            srd(k, 12, B_W1, 2048 * 2752)
            k.e('s_lshr_b32 s90, s2, 3')
            k.e('s_lshl_b32 s90, s90, 6')
            k.e('s_lshl_b32 s91, s3, 4')
            k.e('s_add_u32 s90, s90, s91')
            k.e('s_and_b32 s92, s2, 7')
            k.e('s_mul_i32 s92, s92, 22')
            k.e('s_lshr_b32 s92, s92, 3')
            k.e('s_lshl_b32 s92, s92, 7')
            k.e('s_mov_b32 s93, 2752')
            k.e('v_lshrrev_b32 v4, 2, v1')
            k.e('v_add_u32 v4, s90, v4')
            k.e('v_mul_lo_u32 v4, v4, s93')
            k.e('v_and_b32 v5, 3, v1')
            k.e('v_lshl_add_u32 v4, v5, 7, v4')
            k.vm('buffer_load_dword v198, v4, s[12:15], s92 offen', 'pf')
            k.e('v_and_b32 v4, 15, v1')
            k.e('v_add_u32 v4, s90, v4')
            k.e('v_mul_lo_u32 v4, v4, s93')
            k.vm('buffer_load_dword v198, v4, s[12:15], s92 offen offset:512', 'pf')
        k.e('s_waitcnt lgkmcnt(0)')
    for kk in range(4):
        mfma(NST - 1, kk)
    k.e('v_lshlrev_b32 v6, 3, v3')
    k.e('v_add_u32 v6, %d, v6' % XOFF)
    k.e('s_lshl_b32 s83, s3, 8')
    k.e('v_add_u32 v7, s83, v6')
    k.nop(10)
    k.stamp(12)
    for j in range(1, 4):
        for q in range(4):
            r = 4 * q + j
            cfma(k, ACR + r, ACI + r, LR, LI, ACR + r - 1, ACI + r - 1, ACR + r, ACI + r)
    EV, OD = 72, 80
    for q in range(4):
        k.e('v_mov_b32 %s, %s' % (v(EV + q), v(ACR + 4 * q + 3)))
        k.e('v_mov_b32 %s, %s' % (v(OD + q), v(ACR + 4 * q + 3)))
        k.e('v_mov_b32 %s, %s' % (v(EV + 4 + q), v(ACI + 4 * q + 3)))
        k.e('v_mov_b32 %s, %s' % (v(OD + 4 + q), v(ACI + 4 * q + 3)))
    k.nop(2)
    for q in range(8):
        k.e('v_permlane32_swap_b32 %s, %s' % (v(EV + q), v(OD + q)))
    k.nop(2)
    CR, CI = 88, 97
    pr, pi_ = EV, EV + 4
    for i in range(1, 8):
        er = (EV if i % 2 == 0 else OD) + i // 2
        dr, di = (126, 127) if i == 7 else (CR + i, CI + i)
        cfma(k, dr, di, L4R, L4I, pr, pi_, er, er + 4)
        pr, pi_ = dr, di
    k.e('ds_write_b64 v7, v[126:127]')
    k.e('s_waitcnt lgkmcnt(0)')
    k.e('s_barrier')
    EW = 110
    for w in range(4):
        k.e('ds_read_b64 %s, v6 offset:%d' % (v(EW + 2 * w, 2), 256 * w))
    k.e('s_waitcnt lgkmcnt(0)')
    cfma(k, 118, 119, L32R, L32I, EW, EW + 1, EW + 2, EW + 3)
    cfma(k, 120, 121, L32R, L32I, 118, 119, EW + 4, EW + 5)
    cfma(k, 122, 123, L32R, L32I, 120, 121, EW + 6, EW + 7)
    k.e('v_mov_b32 %s, 0' % v(CR)); k.e('v_mov_b32 %s, 0' % v(CI))
    for w, (a, b) in ((1, (EW, EW + 1)), (2, (118, 119)), (3, (120, 121))):
        k.e('s_cmp_eq_u32 s3, %d' % w)
        k.e('s_cselect_b64 vcc, -1, 0')
        k.e('v_cndmask_b32 %s, %s, %s, vcc' % (v(CR), v(CR), v(a)))
        k.e('v_cndmask_b32 %s, %s, %s, vcc' % (v(CI), v(CI), v(b)))
    for i in range(0, 7):
        er = (EV if i % 2 == 0 else OD) + i // 2
        cfma(k, CR + i + 1, CI + i + 1, L4R, L4I, CR + i, CI + i, er, er + 4)
    k.e('v_cmp_lt_u32 vcc, 31, v1')
    OWR, OWI = 106, 110
    k.nop(1)
    for q in range(4):
        k.e('v_cndmask_b32 %s, %s, %s, vcc' % (v(OWR + q), v(CR + 2 * q), v(CR + 2 * q + 1)))
        k.e('v_cndmask_b32 %s, %s, %s, vcc' % (v(OWI + q), v(CI + 2 * q), v(CI + 2 * q + 1)))
    PO = 128
    LP = [(LR, LI), (L2R, L2I), (L3R, L3I), (L4R, L4I)]
    k.e('v_lshrrev_b32 v4, 5, v1')
    k.e('v_lshlrev_b32 v4, 2, v4')
    k.e('v_add_u32 v4, s78, v4')
    k.e('v_lshlrev_b32 v4, 12, v4')
    k.e('v_add_u32 v5, s75, v3')
    k.e('v_lshlrev_b32 v5, 3, v5')
    k.e('v_add_u32 v4, v4, v5')
    k.e('s_lshl_b32 s82, s72, 12')
    k.e('s_add_u32 s82, s82, %d' % WS_E)
    k.vm('buffer_store_dwordx2 v[122:123], v5, s[16:19], s82 offen', 'out')
    for q in range(4):
        for j in range(4):
            r = 4 * q + j
            cfma(k, PO + 2 * r, PO + 2 * r + 1, LP[j][0], LP[j][1], OWR + q, OWI + q, ACR + r, ACI + r)
            k.e('s_mov_b32 s82, %d' % (WS_S + (8 * q + j) * 4096))
            k.vm('buffer_store_dwordx2 %s, v4, s[16:19], s82 offen' % v(PO + 2 * r, 2), 'out')
    k.stamp(13)
    k.e('s_waitcnt vmcnt(0)')
    k.stamp(14)
    k.stamp_flush(DBGWG)
    k.tl_end(0)
    k.label('K1_END')
    k.e('s_endpgm')
    return finish(k, 200)

def dma_voff(k, dst, rowbase_s, pitch_s, colbase_s, tr, I3, I4, I7, tmp):
    for j in range(2):
        if tr:
            k.e('v_and_b32 %s, 1, %s' % (v(tmp), v(I4)))
            k.e('v_lshlrev_b32 %s, 2, %s' % (v(tmp), v(tmp)))
        else:
            k.e('v_add_u32 %s, %d, %s' % (v(tmp), 4 * j, v(I4)))
            k.e('v_and_b32 %s, 7, %s' % (v(tmp), v(tmp)))
        k.e('v_xor_b32 %s, %s, %s' % (v(tmp), v(tmp), v(I7)))
        k.e('v_lshlrev_b32 %s, 4, %s' % (v(tmp), v(tmp)))
        k.e('v_add_u32 %s, s%d, %s' % (v(dst + j), rowbase_s, v(I3)))
        if j:
            k.e('v_add_u32 %s, 8, %s' % (v(dst + j), v(dst + j)))
        k.e('v_mul_lo_u32 %s, %s, s%d' % (v(dst + j), v(dst + j), pitch_s))
        k.e('v_add_u32 %s, %s, %s' % (v(dst + j), v(dst + j), v(tmp)))
        k.e('v_add_u32 %s, s%d, %s' % (v(dst + j), colbase_s, v(dst + j)))
        if j:
            k.e('v_subrev_u32 %s, 1024, %s' % (v(dst + j), v(dst + j)))

def pat_direct(k, dst, sub_s, base, LANE, t0, t1):
    k.e('v_and_b32 %s, 31, %s' % (v(t0), v(LANE)))
    k.e('v_lshrrev_b32 %s, 1, %s' % (v(t1), v(t0)))
    k.e('v_and_b32 %s, 7, %s' % (v(t1), v(t1)))
    k.e('v_lshrrev_b32 %s, 5, %s' % (v(dst), v(LANE)))
    k.e('v_xor_b32 %s, %s, %s' % (v(t1), v(t1), v(dst)))
    k.e('v_lshlrev_b32 %s, 4, %s' % (v(t1), v(t1)))
    k.e('v_lshl_add_u32 %s, %s, 7, %s' % (v(t1), v(t0), v(t1)))
    k.e('v_add_u32 %s, s%d, %s' % (v(t1), sub_s, v(t1)))
    if base:
        k.e('v_add_u32 %s, %d, %s' % (v(t1), base, v(t1)))
    for kk in range(4):
        k.e('v_xor_b32 %s, %d, %s' % (v(dst + kk), kk << 5, v(t1)))
        k.e('v_add_u32 %s, 65536, %s' % (v(dst + 4 + kk), v(dst + kk)))

def pat_tr(k, dst, subchunk_s, base, LANE, t0, t1, t2):
    k.e('v_and_b32 %s, 15, %s' % (v(t0), v(LANE)))
    k.e('v_lshrrev_b32 %s, 4, %s' % (v(t1), v(LANE)))
    k.e('v_and_b32 %s, 1, %s' % (v(t1), v(t1)))
    k.e('v_lshlrev_b32 %s, 1, %s' % (v(t1), v(t1)))
    k.e('v_bfe_u32 %s, %s, 1, 1' % (v(t2), v(t0)))
    k.e('v_add_u32 %s, %s, %s' % (v(t1), v(t1), v(t2)))
    k.e('v_add_u32 %s, s%d, %s' % (v(t1), subchunk_s, v(t1)))
    k.e('v_bfe_u32 %s, %s, 3, 1' % (v(t2), v(t0)))
    k.e('v_lshlrev_b32 %s, 2, %s' % (v(t2), v(t2)))
    k.e('v_xor_b32 %s, %s, %s' % (v(t1), v(t1), v(t2)))
    k.e('v_lshlrev_b32 %s, 4, %s' % (v(t1), v(t1)))
    k.e('v_and_b32 %s, 1, %s' % (v(t2), v(t0)))
    k.e('v_lshl_add_u32 %s, %s, 3, %s' % (v(t1), v(t2), v(t1)))
    k.e('v_lshrrev_b32 %s, 2, %s' % (v(t2), v(t0)))
    k.e('v_lshrrev_b32 %s, 5, %s' % (v(t0), v(LANE)))
    k.e('v_lshl_add_u32 %s, %s, 3, %s' % (v(t2), v(t0), v(t2)))
    k.e('v_lshl_add_u32 %s, %s, 7, %s' % (v(dst), v(t2), v(t1)))
    if base:
        k.e('v_add_u32 %s, %d, %s' % (v(dst), base, v(dst)))
    k.e('v_add_u32 %s, 65536, %s' % (v(dst + 1), v(dst)))

def read_frag(k, dstreg, mode, pat, slot, kk):
    sset = slot // 4; off = (slot % 4) * 16384
    if mode == 'd':
        k.e('ds_read_b128 %s, %s offset:%d' % (v(dstreg, 4), v(pat + 4 * sset + kk), off))
        return 1
    else:
        k.e('ds_read_b64_tr_b16 %s, %s offset:%d' % (v(dstreg, 2), v(pat + sset), off + kk * 2048))
        k.e('ds_read_b64_tr_b16 %s, %s offset:%d' % (v(dstreg + 2, 2), v(pat + sset), off + kk * 2048 + 512))
        return 2

def emit_items(k, items):
    for it in items:
        if it[0] == 'e': k.e(it[1])
        else: k.vm(it[1], it[2])

def gemm_loop(k, stages, NS, FBUF, pro={}):
    n = len(stages)
    k.stamp(0)
    if -1 in pro: emit_items(k, pro[-1]())
    for st in range(min(NS, n)):
        for g in stages[st]['issue'](st):
            emit_items(k, g)
        if st in pro: emit_items(k, pro[st]())
    k.stamp(1)
    yield 'prologue'
    def mfma(st, kk):
        S = stages[st]
        FA, FB = FBUF[st & 1]
        c = '0' if (S['first'] and kk == 0) else v(S['acc'], 16)
        k.e('v_mfma_f32_32x32x16_bf16 %s, %s, %s, %s' % (v(S['acc'], 16), v(FA + 4 * kk, 4), v(FB + 4 * kk, 4), c))
    for st in range(n):
        S = stages[st]
        k.wait_vm('st%d' % st)
        k.e('s_barrier')
        k.stamp(2 + st)
        groups = [[], [], [], []]
        if st >= 1 and st + NS - 1 < n:
            groups = stages[st + NS - 1]['issue'](st + NS - 1)
        slot = st % NS
        FA, FB = FBUF[st & 1]
        for kk in range(4):
            emit_items(k, groups[kk])
            read_frag(k, FA + 4 * kk, S['modeA'], S['patA'], slot, kk)
            read_frag(k, FB + 4 * kk, S['modeB'], S['patB'], slot, kk)
            if st >= 1:
                mfma(st - 1, kk)
        if S.get('extra'):
            emit_items(k, S['extra']())
        k.e('s_waitcnt lgkmcnt(0)')
    for kk in range(4):
        mfma(n - 1, kk)

def gen_k2():
    k = Kern('k2_kernel')
    NS = 8
    k.e('s_cmp_ge_u32 s2, 256')
    k.e('s_cbranch_scc1 K2_END')
    load_kernargs(k)
    k.tl_start()
    k.e('v_and_b32 v1, 63, v0')
    k.e('v_lshrrev_b32 v2, 6, v0')
    k.nop(1)
    k.e('v_readfirstlane_b32 s3, v2')
    k.e('s_and_b32 s72, s2, 7')
    k.e('s_lshr_b32 s73, s2, 3')
    k.e('s_mul_i32 s74, s72, 22')
    k.e('s_add_u32 s74, s74, s73')
    k.e('s_and_b32 s75, s74, 7')
    k.e('s_lshl_b32 s75, s75, 6')
    k.e('s_lshr_b32 s74, s74, 3')
    k.e('s_lshl_b32 s74, s74, 6')
    k.e('s_lshr_b32 s76, s3, 1')
    k.e('s_and_b32 s77, s3, 1')
    B1R = 120
    k.e('v_lshrrev_b32 v2, 5, v1')
    k.e('v_lshlrev_b32 v2, 3, v2')
    k.e('s_lshl_b32 s78, s76, 5')
    k.e('s_add_u32 s78, s78, s74')
    k.e('s_lshl_b32 s79, s78, 1')
    k.e('v_add_u32 v2, s79, v2')
    I3, I4, I7 = 4, 5, 6
    k.e('v_lshrrev_b32 v4, 3, v1'); k.e('v_lshrrev_b32 v5, 4, v1'); k.e('v_and_b32 v6, 7, v1')
    VA, VB = 8, 10
    k.e('s_lshl_b32 s80, s3, 4')
    k.e('s_mov_b32 s81, 2752')
    k.e('s_lshl_b32 s82, s74, 1')
    dma_voff(k, VA, 80, 81, 82, True, I3, I4, I7, 7)
    k.e('s_mov_b32 s81, 1024')
    k.e('s_lshl_b32 s82, s75, 1')
    k.e('s_add_u32 s82, s82, %d' % WS_H)
    dma_voff(k, VB, 80, 81, 82, True, I3, I4, I7, 7)
    k.e('s_lshl_b32 s83, s3, 11')
    PA, PB = 12, 14
    k.e('s_lshl_b32 s86, s76, 2')
    k.e('s_lshl_b32 s87, s77, 2')
    pat_tr(k, PA, 86, 0, 1, 64, 65, 66)
    pat_tr(k, PB, 87, 8192, 1, 64, 65, 66)
    k.e('s_mov_b32 s93, 2752')
    k.e('s_cmp_lt_u32 s3, 2')
    k.e('s_cselect_b32 s93, 1024, s93')
    k.e('s_lshl_b32 s92, s93, 9')
    k.e('s_mul_i32 s91, s72, 22')
    k.e('s_lshr_b32 s91, s91, 3')
    k.e('s_lshl_b32 s91, s91, 7')
    k.e('s_cmp_lt_u32 s3, 2')
    k.e('s_cselect_b32 s91, %d, s91' % WS_H)
    k.e('s_cmp_lt_u32 s3, 2')
    k.e('s_cselect_b32 s90, 8, 5')
    k.e('s_and_b32 s89, s3, 1')
    k.e('s_lshl_b32 s89, s89, 3')
    k.e('s_lshl_b32 s88, s73, 4')
    k.e('s_add_u32 s89, s89, s88')
    k.e('v_lshrrev_b32 v4, 3, v1')
    k.e('v_add_u32 v4, s89, v4')
    k.e('v_mul_lo_u32 v4, v4, s93')
    k.e('v_and_b32 v5, 7, v1')
    k.e('v_lshl_add_u32 v230, v5, 7, v4')
    k.e('v_mov_b32 v4, 0x7f000000')
    k.e('v_cmp_gt_u32 vcc, s90, v5')
    k.e('v_cndmask_b32 v230, v4, v230, vcc')
    k.e('s_waitcnt lgkmcnt(0)')
    k.stamp(60)
    srd(k, 16, WS, WS_SZ)
    srd(k, 4, B_W1, 2048 * 2752)
    k.e('s_cmp_lt_u32 s3, 2')
    k.e('s_cselect_b32 s12, s%d, s%d' % (P(WS), P(B_W1)))
    k.e('s_cselect_b32 s13, s%d, s%d' % (P(WS) + 1, P(B_W1) + 1))
    k.e('s_and_b32 s13, s13, 0xffff')
    k.e('s_mov_b32 s14, 0x%x' % (2048 * 2752))
    k.e('s_mov_b32 s15, 0x00020000')
    def pf_slot():
        if not PF: return []
        return [('v', 'buffer_load_dword v231, v230, s[12:15], s91 offen', 'pf'), ('e', 's_add_u32 s91, s91, s92')]
    k.e('s_cmp_lt_u32 s73, 22')
    k.e('s_cbranch_scc1 K2_GEMM')
    for i in range(4): emit_items(k, pf_slot())
    k.vmq = []
    k.e('s_cmp_ge_u32 s73, 30')
    k.e('s_cbranch_scc1 K2_HELP')
    k.e('s_branch K2_FIX')
    k.label('K2_GEMM')
    srd(k, 8, B_B1, 2752)
    def b1_loads():
        return [('v', 'buffer_load_dwordx2 %s, v2, s[8:11], 0 offen offset:%d' % (v(B1R + 2 * q, 2), 16 * q), 'b1') for q in range(4)]
    def issue(st):
        slot = (st % NS) * 16384
        tg = 'st%d' % st
        return [[('e', 's_mov_b32 s84, %d' % (st * 64 * 2752)), ('e', 's_add_u32 m0, s83, %d' % slot), ('e', 's_mov_b32 s85, %d' % (st * 65536)),
                 ('v', 'buffer_load_dwordx4 %s, s[4:7], s84 offen lds' % v(VA), tg)],
                [('v', 'buffer_load_dwordx4 %s, s[4:7], s84 offen offset:1024 lds' % v(VA + 1), tg)],
                [('e', 's_add_u32 m0, s83, %d' % (slot + 8192)), ('e', 's_nop 0'),
                 ('v', 'buffer_load_dwordx4 %s, s[16:19], s85 offen lds' % v(VB), tg)],
                [('v', 'buffer_load_dwordx4 %s, s[16:19], s85 offen offset:1024 lds' % v(VB + 1), tg)]]
    ACC = 16
    FBUF = [(32, 48), (128, 144)]
    stages = [dict(issue=issue, modeA='t', patA=PA, modeB='t', patB=PB, acc=ACC, first=(st == 0), extra=(pf_slot if st in PF2 else (b1_loads if st == 12 else None))) for st in range(32)]
    gl = gemm_loop(k, stages, NS, FBUF, {PRO[0]: pf_slot, PRO[1]: pf_slot})
    next(gl)
    for _ in gl: pass
    k.nop(13)
    B1F = 64
    for i in range(8):
        k.e('v_lshlrev_b32 %s, 16, %s' % (v(B1F + 2 * i), v(B1R + i)))
        k.e('v_and_b32 %s, 0xffff0000, %s' % (v(B1F + 2 * i + 1), v(B1R + i)))
    T = 80
    for r in range(0, 16, 2):
        rbf2(k, ACC + r, ACC + r + 1, T)
    for r in range(16):
        k.e('v_add_f32 %s, %s, %s' % (v(ACC + r), v(ACC + r), v(B1F + r)))
    for r in range(0, 16, 2):
        rbf2(k, ACC + r, ACC + r + 1, T)
    import struct
    def f2u(x): return struct.unpack('<I', struct.pack('<f', x))[0]
    C1 = f2u(0.044715); C2 = f2u(-2.0 * 1.4426950408889634 * 0.7978845608028654)
    k.e('s_mov_b32 s88, 0x%x' % C1)
    for r in range(16):
        t = T + r
        k.e('v_mul_f32 %s, %s, %s' % (v(t), v(ACC + r), v(ACC + r)))
        k.e('v_mul_f32 %s, %s, %s' % (v(t), v(t), v(ACC + r)))
        k.e('v_fma_f32 %s, %s, s88, %s' % (v(t), v(t), v(ACC + r)))
        k.e('v_mul_f32 %s, 0x%x, %s' % (v(t), C2, v(t)))
        k.e('v_exp_f32 %s, %s' % (v(t), v(t)))
    for r in range(16):
        t = T + r
        k.e('v_add_f32 %s, 1.0, %s' % (v(t), v(t)))
        k.e('v_rcp_f32 %s, %s' % (v(t), v(t)))
    for r in range(16):
        t = T + r
        k.e('v_mul_f32 %s, %s, %s' % (v(ACC + r), v(ACC + r), v(t)))
    UO = 100
    for r in range(0, 16, 2):
        k.e('v_cvt_pk_bf16_f32 %s, %s, %s' % (v(UO + r // 2), v(ACC + r), v(ACC + r + 1)))
    k.e('s_cmp_lt_u32 s78, 1376')
    k.e('s_cbranch_scc1 K2_ST')
    for i in range(8):
        k.e('v_mov_b32 %s, 0' % v(UO + i))
    k.label('K2_ST')
    k.e('v_and_b32 v3, 31, v1')
    k.e('s_lshl_b32 s89, s77, 5')
    k.e('s_add_u32 s89, s89, s75')
    k.e('v_add_u32 v3, s89, v3')
    k.e('s_mov_b32 s90, %d' % UP)
    k.e('v_mul_lo_u32 v3, v3, s90')
    k.e('v_add_u32 v3, v3, v2')
    k.e('s_mov_b32 s90, %d' % WS_U)
    for q in range(4):
        k.e('buffer_store_dwordx2 %s, v3, s[16:19], s90 offen offset:%d' % (v(UO + 2 * q, 2), 16 * q))
    k.stamp(50)
    k.e('s_waitcnt vmcnt(0)')
    k.stamp(51)
    k.stamp_flush(DBGWG)
    k.tl_end(1)
    k.e('s_endpgm')
    k.label('K2_FIX')
    k.vmq = []
    srd(k, 20, A_LRE, 1024); srd(k, 24, A_LIM, 1024); srd(k, 28, A_LDT, 1024)
    k.e('s_lshl_b32 s74, s72, 3')
    k.e('s_add_u32 s74, s74, s73')
    k.e('s_sub_u32 s74, s74, 22')
    k.e('s_lshr_b32 s75, s74, 2')
    k.e('s_and_b32 s76, s74, 3')
    k.e('s_lshl_b32 s77, s74, 17')
    k.e('s_add_u32 s77, s77, %d' % WS_S)
    k.e('s_lshl_b32 s78, s74, 16')
    k.e('s_add_u32 s78, s78, %d' % WS_HB)
    k.stamp(0)
    EB = 4; SB = 64
    k.e('v_lshlrev_b32 v2, 2, v0')
    k.e('v_lshlrev_b32 v3, 4, v0')
    k.vm('buffer_load_dword v192, v2, s[20:23], 0 offen', 'p')
    k.vm('buffer_load_dword v193, v2, s[24:27], 0 offen', 'p')
    k.vm('buffer_load_dword v194, v2, s[28:31], 0 offen', 'p')
    for c in range(15):
        k.e('s_mov_b32 s79, %d' % (WS_E + c * 4096))
        k.vm('buffer_load_dwordx4 %s, v3, s[16:19], s79 offen' % v(EB + 4 * c, 4), 'e')
    for j in range(32):
        k.e('s_add_u32 s79, s77, %d' % (j * 4096))
        k.vm('buffer_load_dwordx4 %s, v3, s[16:19], s79 offen' % v(SB + 4 * j, 4), 'h%d' % j)
    k.stamp(1)
    k.wait_vm('p')
    k.stamp(2)
    def pmul(d, a, b, t):
        k.e('v_pk_mul_f32 %s, %s, %s op_sel_hi:[0,1]' % (v(t, 2), v(a, 2), v(b, 2)))
        k.e('v_pk_fma_f32 %s, %s, %s, %s op_sel:[1,1,0] op_sel_hi:[1,0,1] neg_lo:[1,0,0]' % (v(d, 2), v(a, 2), v(b, 2), v(t, 2)))
    def pfma(d, a, b, c, t):
        k.e('v_pk_fma_f32 %s, %s, %s, %s op_sel_hi:[0,1,1]' % (v(t, 2), v(a, 2), v(b, 2), v(c, 2)))
        k.e('v_pk_fma_f32 %s, %s, %s, %s op_sel:[1,1,0] op_sel_hi:[1,0,1] neg_lo:[1,0,0]' % (v(d, 2), v(a, 2), v(b, 2), v(t, 2)))
    LP = [196, 198]; CP = [200, 202]; L32 = [204, 206]; L64 = [208, 210]; L128 = [212, 214]; U = [216, 218]; T = [220, 222]
    for h in range(2):
        lre, lim, ldt = 224, 225, 226
        for d_, s_ in ((lre, 192), (lim, 193), (ldt, 194)):
            if h == 0: k.e('v_and_b32 %s, 0xffff, %s' % (v(d_), v(s_)))
            else: k.e('v_lshrrev_b32 %s, 16, %s' % (v(d_), v(s_)))
        LR, LI = LP[h], LP[h] + 1
        lam_params(k, lre, lim, ldt, LR, LI, 227, 228)
        CR_, CI_ = CP[h], CP[h] + 1
        k.e('v_add_f32 v227, -1.0, %s' % v(LR))
        k.e('v_mul_f32 v228, v224, v224')
        k.e('v_fmac_f32 v228, v225, v225')
        k.e('v_rcp_f32 v228, v228')
        k.e('v_mul_f32 %s, v227, v224' % v(CR_))
        k.e('v_fmac_f32 %s, %s, v225' % (v(CR_), v(LI)))
        k.e('v_mul_f32 %s, %s, v224' % (v(CI_), v(LI)))
        k.e('v_fma_f32 %s, -v227, v225, %s' % (v(CI_), v(CI_)))
        k.e('v_add_f32 v228, v228, v228')
        k.e('v_mul_f32 %s, %s, v228' % (v(CR_), v(CR_)))
        k.e('v_mul_f32 %s, %s, v228' % (v(CI_), v(CI_)))
    for h in range(2): pmul(L64[h], LP[h], LP[h], T[h])
    for h in range(2): pmul(L32[h], L64[h], L64[h], T[h])
    for h in range(2): pmul(L64[h], L32[h], L32[h], T[h])
    for h in range(2): pmul(L128[h], L64[h], L64[h], T[h])
    for h in range(2): pmul(L32[h], L128[h], L128[h], T[h])
    for h in range(2): pmul(L64[h], L32[h], L32[h], T[h])
    for h in range(2): pmul(L128[h], L64[h], L64[h], T[h])
    for i in range(4): k.e('v_mov_b32 %s, 0' % v(U[0] + i))
    k.wait_vm('e')
    k.stamp(3)
    for c in range(15):
        k.e('s_cmp_le_u32 s75, %d' % c)
        k.e('s_cbranch_scc1 K2_CL')
        for h in range(2):
            k.e('v_pk_fma_f32 %s, %s, %s, %s op_sel_hi:[0,1,1]' % (v(EB + 4 * c + 2 * h, 2), v(L128[h], 2), v(U[h], 2), v(EB + 4 * c + 2 * h, 2)))
        for h in range(2):
            k.e('v_pk_fma_f32 %s, %s, %s, %s op_sel:[1,1,0] op_sel_hi:[1,0,1] neg_lo:[1,0,0]' % (v(U[h], 2), v(L128[h], 2), v(U[h], 2), v(EB + 4 * c + 2 * h, 2)))
    k.label('K2_CL')
    for h in range(2): pmul(U[h], CP[h], U[h], T[h])
    k.e('s_bitcmp0_b32 s76, 0')
    k.e('s_cbranch_scc1 K2_R1')
    for h in range(2): pmul(U[h], L32[h], U[h], T[h])
    k.label('K2_R1')
    k.e('s_bitcmp0_b32 s76, 1')
    k.e('s_cbranch_scc1 K2_R2')
    for h in range(2): pmul(U[h], L64[h], U[h], T[h])
    k.label('K2_R2')
    k.stamp(4)
    for j in range(32):
        S_ = SB + 4 * j
        for h in range(2):
            k.e('v_pk_mul_f32 %s, %s, %s op_sel_hi:[0,1]' % (v(T[h], 2), v(LP[h], 2), v(U[h], 2)))
        for h in range(2):
            k.e('v_pk_fma_f32 %s, %s, %s, %s op_sel:[1,1,0] op_sel_hi:[1,0,1] neg_lo:[1,0,0]' % (v(U[h], 2), v(LP[h], 2), v(U[h], 2), v(T[h], 2)))
        k.wait_vm('h%d' % j)
        for h in range(2):
            k.e('v_pk_fma_f32 %s, %s, %s, %s op_sel_hi:[0,1,1]' % (v(T[h], 2), v(CP[h], 2), v(S_ + 2 * h, 2), v(U[h], 2)))
        for h in range(2):
            k.e('v_pk_fma_f32 %s, %s, %s, %s op_sel:[1,1,0] op_sel_hi:[1,0,1] neg_lo:[1,0,0]' % (v(S_ + 2 * h, 2), v(CP[h], 2), v(S_ + 2 * h, 2), v(T[h], 2)))
        k.e('v_cvt_pk_bf16_f32 %s, %s, %s' % (v(S_), v(S_), v(S_ + 2)))
        k.e('v_cvt_pk_bf16_f32 %s, -%s, -%s' % (v(S_ + 1), v(S_ + 1), v(S_ + 3)))
        k.e('s_add_u32 s79, s78, %d' % (j * 2048))
        k.vm('buffer_store_dword %s, v2, s[16:19], s79 offen' % v(S_), 'o')
        k.vm('buffer_store_dword %s, v2, s[16:19], s79 offen offset:1024' % v(S_ + 1), 'o')
    k.stamp(5)
    k.e('s_branch K2_PF3')
    k.label('K2_HELP')
    k.e('s_sleep 100')
    k.label('K2_PF3')
    if PFX:
        srd(k, 20, A_CRE, 1 << 19); srd(k, 24, A_CIM, 1 << 19); srd(k, 28, B_W2, 1376 * 4096)
        k.e('s_sub_u32 s74, s73, 22')
        k.e('s_lshl_b32 s74, s74, 8')
        k.e('v_add_u32 v4, s74, v0')
        k.e('v_lshlrev_b32 v5, 7, v4')
        k.e('buffer_load_dword v1, v5, s[20:23], 0 offen')
        k.e('buffer_load_dword v1, v5, s[24:27], 0 offen')
        k.e('v_add_u32 v6, %d, v5' % (2560 * 128))
        k.e('buffer_load_dword v1, v6, s[20:23], 0 offen')
        k.e('buffer_load_dword v1, v6, s[24:27], 0 offen')
        k.e('v_lshrrev_b32 v5, 2, v4')
        k.e('v_lshlrev_b32 v5, 12, v5')
        k.e('v_and_b32 v6, 3, v4')
        k.e('v_lshl_add_u32 v5, v6, 7, v5')
        k.e('s_lshl_b32 s75, s72, 9')
        k.e('v_add_u32 v5, s75, v5')
        k.e('v_add_u32 v6, %d, v5' % (640 * 4096))
        k.e('v_add_u32 v7, %d, v5' % (1280 * 4096))
        for r_ in (5, 6, 7):
            k.e('buffer_load_dword v1, v%d, s[28:31], 0 offen' % r_)
    k.wait_vm_all()
    k.stamp(6)
    k.stamp_flush(DBGWG)
    k.tl_end(1)
    k.label('K2_END')
    k.e('s_waitcnt vmcnt(0)')
    k.e('s_endpgm')
    return finish(k, 232)

def gen_k3():
    k = Kern('k3_kernel')
    NS = 8
    k.e('s_cmp_ge_u32 s2, 256')
    k.e('s_cbranch_scc1 K3_END')
    load_kernargs(k)
    k.tl_start()
    k.e('v_and_b32 v1, 63, v0')
    k.e('v_lshrrev_b32 v2, 6, v0')
    k.nop(1)
    k.e('v_readfirstlane_b32 s3, v2')
    k.e('s_and_b32 s72, s2, 7')
    k.e('s_lshr_b32 s73, s2, 3')
    k.e('s_lshr_b32 s74, s73, 3')
    k.e('s_lshl_b32 s72, s72, 2')
    k.e('s_add_u32 s72, s72, s74')
    k.e('s_and_b32 s73, s73, 7')
    k.e('s_lshl_b32 s74, s72, 6')
    k.e('s_lshl_b32 s75, s73, 6')
    k.e('s_lshr_b32 s76, s3, 1')
    k.e('s_and_b32 s77, s3, 1')
    GR, B2R, XR, DR = 120, 121, 122, 130
    k.e('v_and_b32 v3, 31, v1')
    k.e('s_lshl_b32 s78, s77, 5')
    k.e('s_add_u32 s78, s78, s74')
    k.e('v_add_u32 v3, s78, v3')
    k.e('v_lshlrev_b32 v176, 2, v3')
    k.e('v_lshlrev_b32 v177, 1, v3')
    k.e('s_lshl_b32 s79, s76, 5')
    k.e('s_add_u32 s79, s79, s75')
    k.e('v_lshrrev_b32 v4, 5, v1')
    k.e('v_lshlrev_b32 v4, 2, v4')
    k.e('v_add_u32 v4, s79, v4')
    k.e('v_lshlrev_b32 v178, 1, v4')
    k.e('v_lshl_add_u32 v179, v3, 10, v178')
    k.e('v_lshlrev_b32 v138, 1, v179')
    I3, I4, I7 = 4, 5, 6
    k.e('v_lshrrev_b32 v4, 3, v1'); k.e('v_lshrrev_b32 v5, 4, v1'); k.e('v_and_b32 v6, 7, v1')
    VC, VH, VU, VW = 8, 10, 12, 14
    k.e('s_lshl_b32 s80, s3, 4')
    k.e('s_add_u32 s81, s80, s75')
    k.e('s_add_u32 s82, s80, s74')
    k.e('s_mov_b32 s83, 1024'); k.e('s_mov_b32 s84, 0')
    dma_voff(k, VC, 81, 83, 84, False, I3, I4, I7, 7)
    k.e('s_mov_b32 s83, 2048'); k.e('s_mov_b32 s84, %d' % WS_HB)
    dma_voff(k, VH, 82, 83, 84, False, I3, I4, I7, 7)
    k.e('s_mov_b32 s83, %d' % UP); k.e('s_mov_b32 s84, %d' % WS_U)
    dma_voff(k, VU, 81, 83, 84, False, I3, I4, I7, 7)
    k.e('s_mov_b32 s83, 4096'); k.e('s_lshl_b32 s84, s74, 1')
    dma_voff(k, VW, 80, 83, 84, True, I3, I4, I7, 7)
    k.e('s_lshl_b32 s83, s3, 11')
    PA, PB, PT = 16, 24, 32
    k.e('s_lshl_b32 s86, s76, 12')
    k.e('s_lshl_b32 s87, s77, 12')
    k.e('s_lshl_b32 s88, s77, 2')
    pat_direct(k, PA, 86, 0, 1, 100, 101)
    pat_direct(k, PB, 87, 8192, 1, 100, 101)
    pat_tr(k, PT, 88, 8192, 1, 100, 101, 102)
    def sel(d, a_, b_):
        k.e('s_cmp_lt_u32 s3, 2')
        k.e('s_cselect_b32 %s, %s, %s' % (d, a_, b_))
    k.e('s_lshr_b32 s94, s2, 3')
    k.e('s_and_b32 s95, s2, 7')
    k.e('s_lshl_b32 s84, s94, 4')
    k.e('s_lshl_b32 s85, s3, 3')
    k.e('s_add_u32 s84, s84, s85')
    k.e('s_lshl_b32 s85, s95, 8')
    k.e('s_lshl_b32 s93, s94, 3')
    k.e('s_add_u32 s85, s85, s93')
    sel('s85', 's84', 's85')
    k.e('s_mov_b32 s93, 2048')
    sel('s93', '1024', 's93')
    sel('s89', '0', '%d' % WS_HB)
    sel('s90', '0', '%d' % (WS_HB + 1024))
    k.e('v_lshrrev_b32 v4, 3, v1')
    k.e('v_and_b32 v5, 7, v1')
    k.e('v_add_u32 v6, s85, v4')
    k.e('v_mul_lo_u32 v6, v6, s93')
    k.e('v_lshl_add_u32 v173, v5, 7, v6')
    k.e('s_mov_b32 s93, %d' % UP)
    k.e('v_add_u32 v6, s84, v4')
    k.e('v_mul_lo_u32 v6, v6, s93')
    k.e('v_lshl_add_u32 v172, v5, 7, v6')
    k.e('s_lshl_b32 s93, s94, 4')
    k.e('v_lshrrev_b32 v4, 2, v1')
    k.e('v_add_u32 v4, s93, v4')
    k.e('v_lshlrev_b32 v4, 12, v4')
    k.e('v_and_b32 v5, 3, v1')
    k.e('v_lshl_add_u32 v4, v5, 7, v4')
    k.e('s_cmp_lt_u32 s3, 2')
    k.e('s_cselect_b64 vcc, -1, 0')
    k.e('v_cndmask_b32 v172, v4, v172, vcc')
    k.e('s_lshl_b32 s91, s95, 9')
    sel('s91', '%d' % WS_U, 's91')
    k.e('s_mov_b32 s92, 0x200000')
    sel('s92', '1024', 's92')
    k.e('s_cmp_eq_u32 s3, 3')
    k.e('s_cselect_b64 vcc, -1, 0')
    k.e('v_mov_b32 v4, 0x7f000000')
    k.e('v_cndmask_b32 v172, v172, v4, vcc')
    k.e('v_cndmask_b32 v173, v173, v4, vcc')
    k.e('s_mov_b32 s93, 0x%x' % WS_SZ)
    k.e('s_waitcnt lgkmcnt(0)')
    k.stamp(60)
    srd(k, 16, WS, WS_SZ)
    srd(k, 4, A_CRE, 1 << 19)
    def rest_srds():
        srd(k, 8, A_CIM, 1 << 19); srd(k, 12, B_W2, 1376 * 4096)
        srd(k, 20, A_X, 2 << 20); srd(k, 24, A_DSK, 1024); srd(k, 28, B_B2, 4096); srd(k, 32, OUT, 4 << 20)
        for d, pa, pb in ((96, A_CRE, WS), (36, A_CIM, WS), (40, WS, B_W2)):
            k.e('s_cmp_lt_u32 s3, 2')
            k.e('s_cselect_b32 s%d, s%d, s%d' % (d, P(pa), P(pb)))
            k.e('s_cselect_b32 s%d, s%d, s%d' % (d + 1, P(pa) + 1, P(pb) + 1))
            if d == 40: k.e('s_cselect_b32 s%d, s93, 0x%x' % (d + 2, 1376 * 4096))
            else: k.e('s_cselect_b32 s%d, 0x80000, s93' % (d + 2))
            k.e('s_and_b32 s%d, s%d, 0xffff' % (d + 1, d + 1))
            k.e('s_mov_b32 s%d, 0x00020000' % (d + 3))
        return [('v', 'buffer_load_dword v174, v173, s[96:99], s89 offen', 'pf')] if PF else []
    def pf1():
        return [('v', 'buffer_load_dword v174, v173, s[36:39], s90 offen', 'pf')] if PF else []
    def pf_slot():
        if not PF: return []
        return [('v', 'buffer_load_dword v174, v172, s[40:43], s91 offen', 'pf'), ('e', 's_add_u32 s91, s91, s92')]
    def ep_loads():
        L = [('e', 's_mov_b32 s79, %d' % WS_G), ('v', 'buffer_load_dword %s, v176, s[16:19], s79 offen' % v(GR), 'ep'),
             ('v', 'buffer_load_ushort %s, v177, s[28:31], 0 offen' % v(B2R), 'ep')]
        for q in range(4):
            L.append(('v', 'buffer_load_dwordx2 %s, v178, s[24:27], 0 offen offset:%d' % (v(DR + 2 * q, 2), 16 * q), 'ep'))
        for q in range(4):
            L.append(('v', 'buffer_load_dwordx2 %s, v179, s[20:23], 0 offen offset:%d' % (v(XR + 2 * q, 2), 16 * q), 'ep'))
        return L
    def issue(st):
        slot = (st % NS) * 16384
        tg = 'st%d' % st
        if st < 16:
            srdA = 4 if st < 8 else 8
            oa, ob = (st % 8) * 128, st * 128
            va, vb, srdB = VC, VH, 16
        else:
            srdA = 16
            oa, ob = (st - 16) * 128, (st - 16) * 262144
            va, vb, srdB = VU, VW, 12
        return [[('e', 's_mov_b32 s84, %d' % oa), ('e', 's_add_u32 m0, s83, %d' % slot), ('e', 's_mov_b32 s85, %d' % ob),
                 ('v', 'buffer_load_dwordx4 %s, s[%d:%d], s84 offen lds' % (v(va), srdA, srdA + 3), tg)],
                [('v', 'buffer_load_dwordx4 %s, s[%d:%d], s84 offen offset:1024 lds' % (v(va + 1), srdA, srdA + 3), tg)],
                [('e', 's_add_u32 m0, s83, %d' % (slot + 8192)), ('e', 's_nop 0'),
                 ('v', 'buffer_load_dwordx4 %s, s[%d:%d], s85 offen lds' % (v(vb), srdB, srdB + 3), tg)],
                [('v', 'buffer_load_dwordx4 %s, s[%d:%d], s85 offen offset:1024 lds' % (v(vb + 1), srdB, srdB + 3), tg)]]
    ACA, ACB = 36, 52
    FBUF = [(68, 84), (140, 156)]
    stages = []
    for st in range(38):
        ex = pf_slot if st in PF3 else (ep_loads if st == 22 else None)
        if st < 16:
            stages.append(dict(issue=issue, modeA='d', patA=PA, modeB='d', patB=PB, acc=ACA, first=(st == 0), extra=ex))
        else:
            stages.append(dict(issue=issue, modeA='d', patA=PA, modeB='t', patB=PT, acc=ACB, first=(st == 16), extra=ex))
    gl = gemm_loop(k, stages, NS, FBUF, {PRO[0]: rest_srds, PRO[1]: pf1})
    next(gl)
    for _ in gl: pass
    k.nop(13)
    XF, DF, T = 68, 84, 100
    for i in range(8):
        k.e('v_lshlrev_b32 %s, 16, %s' % (v(XF + 2 * i), v(XR + i)))
        k.e('v_and_b32 %s, 0xffff0000, %s' % (v(XF + 2 * i + 1), v(XR + i)))
        k.e('v_lshlrev_b32 %s, 16, %s' % (v(DF + 2 * i), v(DR + i)))
        k.e('v_and_b32 %s, 0xffff0000, %s' % (v(DF + 2 * i + 1), v(DR + i)))
    k.e('v_lshlrev_b32 %s, 16, %s' % (v(B2R), v(B2R)))
    OMG = 101
    k.e('v_sub_f32 %s, 1.0, %s' % (v(OMG), v(GR)))
    rbf(k, OMG, T)
    for r in range(16):
        k.e('v_mul_f32 %s, %s, %s' % (v(XF + r), v(XF + r), v(DF + r)))
    for r in range(0, 16, 2):
        rbf2(k, XF + r, XF + r + 1, T)
        rbf2(k, ACB + r, ACB + r + 1, T)
    for r in range(16):
        k.e('v_add_f32 %s, %s, %s' % (v(ACA + r), v(ACA + r), v(XF + r)))
        k.e('v_add_f32 %s, %s, %s' % (v(ACB + r), v(ACB + r), v(B2R)))
    for r in range(0, 16, 2):
        rbf2(k, ACB + r, ACB + r + 1, T)
    for r in range(16):
        k.e('v_mul_f32 %s, %s, %s' % (v(ACB + r), v(ACB + r), v(OMG)))
        k.e('v_mul_f32 %s, %s, %s' % (v(ACA + r), v(ACA + r), v(GR)))
    for r in range(0, 16, 2):
        rbf2(k, ACB + r, ACB + r + 1, T)
    for r in range(16):
        k.e('v_add_f32 %s, %s, %s' % (v(ACA + r), v(ACA + r), v(ACB + r)))
    for q in range(4):
        k.e('buffer_store_dwordx4 %s, v138, s[32:35], 0 offen offset:%d' % (v(ACA + 4 * q, 4), 32 * q))
    k.stamp(50)
    k.e('s_waitcnt vmcnt(0)')
    k.stamp(51)
    k.stamp_flush(DBGWG)
    k.tl_end(2)
    k.label('K3_END')
    k.e('s_endpgm')
    return finish(k, 180, 102)

def main():
    hdr = open('gated_mix__ssm_conv_s5__mixer_token_mlp__prompt.s.ref').read().split('\n')
    top = []
    for l in hdr:
        if l.startswith(';') and '@launch' not in l:
            top.append(l)
        elif not l.startswith(';'):
            break
    top.append('; @launch kernel=k1_kernel grid=(256,1,1) block=(256,1,1) lds=148480')
    top.append('; @launch kernel=k2_kernel grid=(256,1,1) block=(256,1,1) lds=131072')
    top.append('; @launch kernel=k3_kernel grid=(256,1,1) block=(256,1,1) lds=131072')
    top.append('.amdgcn_target "amdgcn-amd-amdhsa--gfx950"')
    top.append('.text')
    ks = [gen_k1(), gen_k2(), gen_k3()]
    body = []
    for b, d in ks:
        body += b
    body.append('.section .rodata,"a"')
    for b, d in ks:
        body += d
    out = '\n'.join(top + body) + '\n'
    path = sys.argv[1] if len(sys.argv) > 1 else 'gated_mix__ssm_conv_s5__mixer_token_mlp__prompt.s'
    open(path, 'w').write(out)
    print('wrote', path, len(out), 'bytes')

if __name__ == '__main__':
    main()
```

```python
import sys, os
DEBUG = int(os.environ.get('DEBUG', '0'))
DBGWG = int(os.environ.get('DBGWG', '0'))
TL = int(os.environ.get('TL', '0'))
PF = int(os.environ.get('PF', '1'))
PF3A = int(os.environ.get('PF3A', '1'))
PFX = int(os.environ.get('PFX', '1'))
PRO = eval(os.environ.get('PRO', '(1,7)'))
PF2 = eval(os.environ.get('PF2', '(1,9)'))
PF3 = eval(os.environ.get('PF3', '(0,8,16)'))

WS_H  = 0
WS_G  = 2 << 20
WS_S  = 4 << 20
WS_E  = 12 << 20
WS_HB = 16 << 20
WS_U  = 20 << 20
WS_SZ = 24 << 20
UP = 2816
LOG2E = 0x3fb8aa3b
INV2PI = 0x3e22f983

class Kern:
    def __init__(self, name):
        self.name = name
        self.L = []
        self.vmq = []
        self.nlab = 0
    def e(self, s):
        self.L.append('    ' + s)
    def c(self, s):
        self.L.append('    ; ' + s)
    def label(self, l):
        self.L.append(l + ':')
    def vm(self, s, tag):
        self.e(s); self.vmq.append(tag)
    def wait_vm(self, tag):
        idxs = [i for i, t in enumerate(self.vmq) if t == tag]
        if not idxs:
            return
        idx = idxs[-1]
        n = len(self.vmq) - 1 - idx
        self.e('s_waitcnt vmcnt(%d)' % min(n, 63))
        self.vmq = self.vmq[idx + 1:]
    def wait_vm_all(self):
        self.e('s_waitcnt vmcnt(0)'); self.vmq = []
    def stamp(self, i):
        if not DEBUG: return
        self.e('s_memtime s[94:95]')
        self.e('s_waitcnt lgkmcnt(0)')
        self.e('v_writelane_b32 v255, s94, %d' % i)
    def stamp_flush(self, wg):
        if not DEBUG: return
        self.nlab += 1
        lab = '%s_DBG%d' % (self.name, self.nlab)
        self.e('s_cmp_lg_u32 s2, %d' % wg)
        self.e('s_cbranch_scc1 %s' % lab)
        self.e('s_cmp_lg_u32 s3, 0')
        self.e('s_cbranch_scc1 %s' % lab)
        self.e('s_mov_b32 s96, s%d' % P(DBG))
        self.e('s_and_b32 s97, s%d, 0xffff' % (P(DBG) + 1))
        self.e('s_mov_b32 s98, 256')
        self.e('s_mov_b32 s99, 0x00020000')
        self.e('v_and_b32 v254, 63, v0')
        self.e('v_lshlrev_b32 v254, 2, v254')
        self.e('buffer_store_dword v255, v254, s[96:99], 0 offen')
        self.label(lab)
    def tl_start(self):
        if not TL: return
        self.e('s_memrealtime s[100:101]')
    def tl_end(self, kidx):
        if not TL: return
        self.nlab += 1
        lab = '%s_TL%d' % (self.name, self.nlab)
        self.e('s_waitcnt vmcnt(0)')
        self.e('s_memrealtime s[94:95]')
        self.e('s_cmp_lg_u32 s3, 0')
        self.e('s_cbranch_scc1 %s' % lab)
        self.e('s_mov_b32 s96, s%d' % P(WS))
        self.e('s_and_b32 s97, s%d, 0xffff' % (P(WS) + 1))
        self.e('s_mov_b32 s98, 0x4000000')
        self.e('s_mov_b32 s99, 0x00020000')
        self.e('s_waitcnt lgkmcnt(0)')
        if TL == 2: self.e('s_getreg_b32 s100, hwreg(HW_REG_XCC_ID)')
        self.e('v_mov_b32 v2, s100'); self.e('v_mov_b32 v3, s94')
        self.e('s_lshl_b32 s94, s2, 3')
        self.e('s_add_u32 s94, s94, %d' % ((32 << 20) + kidx * 4096))
        self.e('v_mov_b32 v4, 0')
        self.e('buffer_store_dwordx2 v[2:3], v4, s[96:99], s94 offen')
        if TL == 3:
            self.e('s_getreg_b32 s100, hwreg(HW_REG_XCC_ID)')
            self.e('v_mov_b32 v5, s100')
            self.e('buffer_store_dword v5, v4, s[96:99], s94 offen offset:2048')
        if TL == 3 and kidx == 2:
            self.e('s_cmp_lg_u32 s2, 0')
            self.e('s_cbranch_scc1 %s' % lab)
            self.e('s_mov_b32 s94, %d' % (32 << 20))
            self.e('buffer_load_dwordx2 v[6:7], v4, s[96:99], s94 offen')
            self.e('s_mov_b32 s94, %d' % ((32 << 20) + 4096))
            self.e('buffer_load_dwordx2 v[8:9], v4, s[96:99], s94 offen')
            self.e('buffer_load_dword v11, v4, s[96:99], s94 offen offset:2048')
            self.e('s_mov_b32 s94, %d' % (32 << 20))
            self.e('buffer_load_dword v10, v4, s[96:99], s94 offen offset:2048')
            self.e('s_waitcnt vmcnt(0)')
            self.e('s_mov_b32 s96, s%d' % P(DBG))
            self.e('s_and_b32 s97, s%d, 0xffff' % (P(DBG) + 1))
            self.e('s_mov_b32 s98, 256')
            self.e('buffer_store_dwordx2 v[10:11], v4, s[96:99], 0 offen offset:24')
            self.e('v_sub_u32 v7, v7, v6'); self.e('v_sub_u32 v8, v8, v6'); self.e('v_sub_u32 v9, v9, v6')
            self.e('v_sub_u32 v2, v2, v6'); self.e('v_sub_u32 v3, v3, v6')
            self.e('s_getreg_b32 s100, hwreg(HW_REG_XCC_ID)')
            self.e('v_mov_b32 v6, s100')
            self.e('buffer_store_dwordx4 v[6:9], v4, s[96:99], 0 offen')
            self.e('buffer_store_dwordx2 v[2:3], v4, s[96:99], 0 offen offset:16')
        self.label(lab)
    def nop(self, n):
        while n > 0:
            k = min(n, 16)
            self.e('s_nop %d' % (k - 1)); n -= k

def v(i, n=1):
    return 'v%d' % i if n == 1 else 'v[%d:%d]' % (i, i + n - 1)
def s(i, n=1):
    return 's%d' % i if n == 1 else 's[%d:%d]' % (i, i + n - 1)

def P(k): return 36 + 2 * k
A_X, A_LRE, A_LIM, A_BRE, A_BIM, A_CRE, A_CIM, A_LDT, A_DSK, B_X, B_W1, B_B1, B_W2, B_B2, GATE, OUT, DBG, WS = range(18)

def load_kernargs(k):
    k.e('s_load_dwordx16 s[36:51], s[0:1], 0')
    k.e('s_load_dwordx16 s[52:67], s[0:1], 64')
    k.e('s_load_dwordx4 s[68:71], s[0:1], 128')

def srd(k, dst, ptr, nbytes):
    k.e('s_mov_b32 s%d, s%d' % (dst, P(ptr)))
    k.e('s_and_b32 s%d, s%d, 0xffff' % (dst + 1, P(ptr) + 1))
    k.e('s_mov_b32 s%d, 0x%x' % (dst + 2, nbytes))
    k.e('s_mov_b32 s%d, 0x00020000' % (dst + 3))

def cfma(k, dr, di, ar, ai, br, bi, cr, ci):
    k.e('v_fma_f32 %s, %s, %s, %s' % (v(dr), v(ar), v(br), v(cr)))
    k.e('v_fma_f32 %s, %s, %s, %s' % (v(di), v(ar), v(bi), v(ci)))
    k.e('v_fma_f32 %s, -%s, %s, %s' % (v(dr), v(ai), v(bi), v(dr)))
    k.e('v_fma_f32 %s, %s, %s, %s' % (v(di), v(ai), v(br), v(di)))

def cmul(k, dr, di, ar, ai, br, bi):
    k.e('v_mul_f32 %s, %s, %s' % (v(dr), v(ar), v(br)))
    k.e('v_mul_f32 %s, %s, %s' % (v(di), v(ar), v(bi)))
    k.e('v_fma_f32 %s, -%s, %s, %s' % (v(dr), v(ai), v(bi), v(dr)))
    k.e('v_fma_f32 %s, %s, %s, %s' % (v(di), v(ai), v(br), v(di)))

def rbf(k, a, t):
    k.e('v_cvt_pk_bf16_f32 %s, %s, %s' % (v(t), v(a), v(a)))
    k.e('v_lshlrev_b32 %s, 16, %s' % (v(a), v(t)))

def rbf2(k, a, b, t):
    k.e('v_cvt_pk_bf16_f32 %s, %s, %s' % (v(t), v(a), v(b)))
    k.e('v_lshlrev_b32 %s, 16, %s' % (v(a), v(t)))
    k.e('v_and_b32 %s, 0xffff0000, %s' % (v(b), v(t)))

def lam_params(k, lre, lim, ldt, Lr, Li, t0, t1):
    k.e('v_lshlrev_b32 %s, 16, %s' % (v(lre), v(lre)))
    k.e('v_lshlrev_b32 %s, 16, %s' % (v(lim), v(lim)))
    k.e('v_lshlrev_b32 %s, 16, %s' % (v(ldt), v(ldt)))
    k.e('v_mul_f32 %s, 0x%x, %s' % (v(t0), LOG2E, v(ldt)))
    k.e('v_exp_f32 %s, %s' % (v(t0), v(t0)))
    k.nop(1)
    rbf(k, t0, t1)
    k.e('v_mul_f32 %s, %s, %s' % (v(t1), v(t0), v(lre)))
    k.e('v_mul_f32 %s, %s, %s' % (v(t0), v(t0), v(lim)))
    k.e('v_mul_f32 %s, 0x%x, %s' % (v(t1), LOG2E, v(t1)))
    k.e('v_mul_f32 %s, 0x%x, %s' % (v(t0), INV2PI, v(t0)))
    k.e('v_exp_f32 %s, %s' % (v(t1), v(t1)))
    k.e('v_fract_f32 %s, %s' % (v(t0), v(t0)))
    k.e('v_cos_f32 %s, %s' % (v(Lr), v(t0)))
    k.e('v_sin_f32 %s, %s' % (v(Li), v(t0)))
    k.nop(1)
    k.e('v_mul_f32 %s, %s, %s' % (v(Lr), v(Lr), v(t1)))
    k.e('v_mul_f32 %s, %s, %s' % (v(Li), v(Li), v(t1)))

def finish(k, nvgpr, nsgpr=96):
    if DEBUG: nvgpr = 256; nsgpr = 102
    if TL: nsgpr = 102
    out = []
    out.append('.globl %s' % k.name)
    out.append('.p2align 8')
    out.append('.type %s,@function' % k.name)
    out.append('%s:' % k.name)
    out += k.L
    desc = []
    desc.append('.p2align 6')
    desc.append('.amdhsa_kernel %s' % k.name)
    desc.append('  .amdhsa_next_free_vgpr %d' % nvgpr)
    desc.append('  .amdhsa_next_free_sgpr %d' % nsgpr)
    desc.append('  .amdhsa_accum_offset %d' % ((nvgpr + 3) // 4 * 4))
    desc.append('  .amdhsa_group_segment_fixed_size 0')
    desc.append('  .amdhsa_kernarg_size 144')
    desc.append('  .amdhsa_user_sgpr_count 2')
    desc.append('  .amdhsa_user_sgpr_kernarg_segment_ptr 1')
    desc.append('  .amdhsa_system_sgpr_workgroup_id_x 1')
    desc.append('.end_amdhsa_kernel')
    return out, desc

def gen_k1():
    k = Kern('k1_kernel')
    NS = 6; STG = 24576; NST = 8
    XOFF = NS * STG
    k.e('s_cmp_ge_u32 s2, 256')
    k.e('s_cbranch_scc1 K1_END')
    load_kernargs(k)
    k.tl_start()
    k.e('v_and_b32 v1, 63, v0')
    k.e('v_lshrrev_b32 v2, 6, v0')
    k.nop(1)
    k.e('v_readfirstlane_b32 s3, v2')
    k.e('s_and_b32 s72, s2, 7')
    k.e('s_lshr_b32 s73, s2, 3')
    k.e('s_lshr_b32 s74, s73, 4')
    k.e('s_lshl_b32 s72, s72, 1')
    k.e('s_add_u32 s72, s72, s74')
    k.e('s_and_b32 s73, s73, 15')
    k.e('s_lshl_b32 s74, s72, 7')
    k.e('s_lshl_b32 s75, s73, 5')
    XR0, XR1, GW = 168, 172, 176
    PLRE, PLIM, PLDT = 180, 181, 182
    k.e('s_lshl_b32 s76, s73, 3')
    k.e('s_add_u32 s76, s76, s74')
    k.e('s_lshl_b32 s77, s3, 1')
    k.e('s_add_u32 s76, s76, s77')
    k.e('s_lshl_b32 s77, s76, 10')
    k.e('v_lshlrev_b32 v2, 4, v1')
    k.e('v_and_b32 v3, 31, v1')
    k.e('v_add_u32 v14, s75, v3')
    k.e('v_lshlrev_b32 v14, 1, v14')
    VA = 8; VB = 12
    k.e('v_lshrrev_b32 v4, 3, v1')
    k.e('v_lshrrev_b32 v5, 4, v1')
    k.e('v_and_b32 v6, 7, v1')
    k.e('s_lshl_b32 s78, s3, 5')
    k.e('s_add_u32 s78, s78, s74')
    for j in range(4):
        k.e('v_add_u32 v7, %d, v5' % (4 * j))
        k.e('v_and_b32 v7, 7, v7')
        k.e('v_xor_b32 v7, v7, v6')
        k.e('v_lshlrev_b32 v7, 4, v7')
        k.e('v_add_u32 %s, s78, v4' % v(VA + j))
        k.e('v_add_u32 %s, %d, %s' % (v(VA + j), 7 * j, v(VA + j)))
        k.e('v_lshlrev_b32 %s, 10, %s' % (v(VA + j), v(VA + j)))
        k.e('v_add_u32 %s, %s, v7' % (v(VA + j), v(VA + j)))
    k.e('s_and_b32 s79, s3, 1')
    k.e('s_lshl_b32 s79, s79, 4')
    k.e('s_add_u32 s79, s79, s75')
    for j in range(2):
        k.e('v_add_u32 v7, %d, v5' % (4 * j))
        k.e('v_and_b32 v7, 7, v7')
        k.e('v_xor_b32 v7, v7, v6')
        k.e('v_lshlrev_b32 v7, 4, v7')
        k.e('v_add_u32 %s, s79, v4' % v(VB + j))
        k.e('v_add_u32 %s, %d, %s' % (v(VB + j), 7 * j, v(VB + j)))
        k.e('v_lshlrev_b32 %s, 10, %s' % (v(VB + j), v(VB + j)))
        k.e('v_add_u32 %s, %s, v7' % (v(VB + j), v(VB + j)))
    k.e('s_lshl_b32 s80, s3, 12')
    k.e('s_lshl_b32 s81, s3, 11')
    k.e('s_add_u32 s81, s81, 16384')
    PA = 16; PB = 28
    k.e('v_lshrrev_b32 v4, 5, v1')
    k.e('v_lshrrev_b32 v5, 1, v3')
    k.e('v_and_b32 v5, 7, v5')
    k.e('v_xor_b32 v5, v5, v4')
    k.e('v_lshlrev_b32 v5, 4, v5')
    k.e('v_lshl_add_u32 v5, v3, 7, v5')
    for kk in range(4):
        k.e('v_xor_b32 %s, %d, v5' % (v(PB + kk), kk << 5))
        k.e('v_add_u32 %s, s80, %s' % (v(PA + kk), v(PB + kk)))
        for st in (1, 2):
            k.e('v_add_u32 %s, %d, %s' % (v(PB + 4 * st + kk), 49152 * st, v(PB + kk)))
            k.e('v_add_u32 %s, %d, %s' % (v(PA + 4 * st + kk), 49152 * st, v(PA + kk)))
    k.e('s_waitcnt lgkmcnt(0)')
    k.stamp(60)
    srd(k, 4, A_X, 2 << 20)
    k.e('s_cmp_ge_u32 s3, 2')
    k.e('s_cselect_b32 s8, s%d, s%d' % (P(A_BIM), P(A_BRE)))
    k.e('s_cselect_b32 s9, s%d, s%d' % (P(A_BIM) + 1, P(A_BRE) + 1))
    k.e('s_and_b32 s9, s9, 0xffff')
    k.e('s_mov_b32 s10, 0x80000')
    k.e('s_mov_b32 s11, 0x00020000')
    srd(k, 32, GATE, 1024)
    k.vm('buffer_load_dwordx4 %s, v2, s[4:7], s77 offen' % v(XR0, 4), 'ln')
    k.vm('buffer_load_dwordx4 %s, v2, s[4:7], s77 offen offset:1024' % v(XR1, 4), 'ln')
    k.vm('buffer_load_dwordx4 %s, v2, s[32:35], 0 offen' % v(GW, 4), 'ln')
    def issue_groups(st):
        slot = (st % NS) * STG
        tg = 'st%d' % st
        g = [[('e', 's_mov_b32 s82, %d' % (st * 128)), ('e', 's_add_u32 m0, s80, %d' % slot), ('e', 's_nop 0')], [], [], []]
        for j in range(4):
            g[j // 2].append(('v', 'buffer_load_dwordx4 %s, s[4:7], s82 offen offset:%d lds' % (v(VA + j), 1024 * j), tg))
        g[2] += [('e', 's_add_u32 m0, s81, %d' % slot), ('e', 's_nop 0')]
        for j in range(2):
            g[2 + j].append(('v', 'buffer_load_dwordx4 %s, s[8:11], s82 offen offset:%d lds' % (v(VB + j), 1024 * j), tg))
        return g
    def issue_stage(st):
        for g in issue_groups(st): emit_items(k, g)
    issue_stage(0)
    srd(k, 16, WS, WS_SZ)
    srd(k, 20, A_LRE, 1024); srd(k, 24, A_LIM, 1024); srd(k, 28, A_LDT, 1024)
    k.vm('buffer_load_ushort %s, v14, s[20:23], 0 offen' % v(PLRE), 'par')
    k.vm('buffer_load_ushort %s, v14, s[24:27], 0 offen' % v(PLIM), 'par')
    k.vm('buffer_load_ushort %s, v14, s[28:31], 0 offen' % v(PLDT), 'par')
    issue_stage(1)
    issue_stage(2)
    k.stamp(1)
    k.wait_vm('ln')
    k.stamp(2)
    X = [100, 110]
    G = 120
    def unpack8(dst, src):
        for i in range(4):
            k.e('v_lshlrev_b32 %s, 16, %s' % (v(dst + 2 * i), v(src + i)))
            k.e('v_and_b32 %s, 0xffff0000, %s' % (v(dst + 2 * i + 1), v(src + i)))
    unpack8(X[0], XR0); unpack8(X[1], XR1); unpack8(G, GW)
    SUM = [130, 131]; GS = [132, 133]; TT = 134
    for r in range(2):
        k.e('v_add_f32 %s, %s, %s' % (v(SUM[r]), v(X[r]), v(X[r] + 1)))
        for i in range(2, 8):
            k.e('v_add_f32 %s, %s, %s' % (v(SUM[r]), v(SUM[r]), v(X[r] + i)))
        for i in range(8):
            k.e('v_mul_f32 %s, %s, %s' % (v(TT + i), v(X[r] + i), v(G + i)))
        for i in range(0, 8, 2):
            rbf2(k, TT + i, TT + i + 1, TT + 8)
        k.e('v_add_f32 %s, %s, %s' % (v(GS[r]), v(TT), v(TT + 1)))
        for i in range(2, 8):
            k.e('v_add_f32 %s, %s, %s' % (v(GS[r]), v(GS[r]), v(TT + i)))
    def wave_reduce(regs, sdst):
        for ctl in ('quad_perm:[1,0,3,2] row_mask:0xf bank_mask:0xf', 'quad_perm:[2,3,0,1] row_mask:0xf bank_mask:0xf',
                    'row_half_mirror row_mask:0xf bank_mask:0xf', 'row_mirror row_mask:0xf bank_mask:0xf',
                    'row_bcast:15 row_mask:0xa bank_mask:0xf', 'row_bcast:31 row_mask:0xc bank_mask:0xf'):
            k.nop(2)
            for r in regs:
                k.e('v_add_f32_dpp %s, %s, %s %s' % (v(r), v(r), v(r), ctl))
        k.nop(1)
        for r, sd in zip(regs, sdst):
            k.e('v_readlane_b32 s%d, %s, 63' % (sd, v(r)))
        k.nop(2)
    wave_reduce([SUM[0], SUM[1], GS[0], GS[1]], [84, 85, 86, 87])
    issue_stage(3)
    MEAN = [140, 141]; SQ = [142, 143]
    for r in range(2):
        k.e('v_mov_b32 %s, 0x3b000000' % v(MEAN[r]))
        k.e('v_mul_f32 %s, s%d, %s' % (v(MEAN[r]), 84 + r, v(MEAN[r])))
        k.e('v_sub_f32 %s, %s, %s' % (v(TT), v(X[r]), v(MEAN[r])))
        k.e('v_mul_f32 %s, %s, %s' % (v(SQ[r]), v(TT), v(TT)))
        for i in range(1, 8):
            k.e('v_sub_f32 %s, %s, %s' % (v(TT), v(X[r] + i), v(MEAN[r])))
            k.e('v_fmac_f32 %s, %s, %s' % (v(SQ[r]), v(TT), v(TT)))
    wave_reduce(SQ, [88, 89])
    issue_stage(4)
    HO = [150, 154]
    for r in range(2):
        SD = 144; RC = 145; Q = 146; E_ = 147
        k.e('v_mov_b32 %s, 0x3b000000' % v(SD))
        k.e('v_mul_f32 %s, s%d, %s' % (v(SD), 88 + r, v(SD)))
        rbf(k, SD, TT)
        k.e('v_add_f32 %s, 0x3727c5ac, %s' % (v(SD), v(SD)))
        rbf(k, SD, TT)
        k.e('v_sqrt_f32 %s, %s' % (v(SD), v(SD)))
        k.nop(1)
        rbf(k, SD, TT)
        k.e('v_rcp_f32 %s, %s' % (v(RC), v(SD)))
        rbf(k, MEAN[r], TT)
        for i in range(8):
            k.e('v_sub_f32 %s, %s, %s' % (v(X[r] + i), v(X[r] + i), v(MEAN[r])))
        for i in range(0, 8, 2):
            rbf2(k, X[r] + i, X[r] + i + 1, TT)
        for i in range(8):
            k.e('v_mul_f32 %s, %s, %s' % (v(Q), v(X[r] + i), v(RC)))
            k.e('v_fma_f32 %s, -%s, %s, %s' % (v(E_), v(Q), v(SD), v(X[r] + i)))
            k.e('v_fma_f32 %s, %s, %s, %s' % (v(X[r] + i), v(E_), v(RC), v(Q)))
        for i in range(4):
            k.e('v_cvt_pk_bf16_f32 %s, %s, %s' % (v(HO[r] + i), v(X[r] + 2 * i), v(X[r] + 2 * i + 1)))
        k.e('v_mov_b32 %s, s%d' % (v(GS[r]), 86 + r))
        rbf(k, GS[r], TT)
        k.e('v_mul_f32 %s, 0x%x, %s' % (v(GS[r]), LOG2E | 0x80000000, v(GS[r])))
        k.e('v_exp_f32 %s, %s' % (v(GS[r]), v(GS[r])))
        k.nop(1)
        k.e('v_add_f32 %s, 1.0, %s' % (v(GS[r]), v(GS[r])))
        k.e('v_rcp_f32 %s, %s' % (v(GS[r]), v(GS[r])))
        k.nop(1)
        rbf(k, GS[r], TT)
        if r == 0:
            issue_stage(5)
    k.e('s_add_u32 s83, s77, %d' % WS_H)
    k.vm('buffer_store_dwordx4 %s, v2, s[16:19], s83 offen' % v(HO[0], 4), 'lnst')
    k.vm('buffer_store_dwordx4 %s, v2, s[16:19], s83 offen offset:1024' % v(HO[1], 4), 'lnst')
    k.e('s_lshl_b32 s83, s76, 2')
    k.e('s_add_u32 s83, s83, %d' % WS_G)
    k.e('v_mov_b32 v6, 0')
    k.e('s_mov_b64 exec, 1')
    k.vm('buffer_store_dwordx2 %s, v6, s[16:19], s83 offen' % v(GS[0], 2), 'lnst')
    k.e('s_mov_b64 exec, -1')
    LR, LI = 184, 185
    L2R, L2I, L3R, L3I, L4R, L4I = 186, 187, 188, 189, 190, 191
    L32R, L32I = 194, 195
    k.wait_vm('par')
    lam_params(k, PLRE, PLIM, PLDT, LR, LI, 192, 193)
    cmul(k, L2R, L2I, LR, LI, LR, LI)
    cmul(k, L3R, L3I, L2R, L2I, LR, LI)
    cmul(k, L4R, L4I, L2R, L2I, L2R, L2I)
    cmul(k, L32R, L32I, L4R, L4I, L4R, L4I)
    cmul(k, 196, 197, L32R, L32I, L32R, L32I)
    cmul(k, L32R, L32I, 196, 197, 196, 197)
    k.stamp(3)
    ACR, ACI = 40, 56
    FB_ = [(72, 88, 104), (120, 136, 152)]
    def mfma(st, kk):
        FA, FBR, FBI = FB_[st & 1]
        c = '0' if (st == 0 and kk == 0) else v(ACR, 16)
        k.e('v_mfma_f32_32x32x16_bf16 %s, %s, %s, %s' % (v(ACR, 16), v(FA + 4 * kk, 4), v(FBR + 4 * kk, 4), c))
        c = '0' if (st == 0 and kk == 0) else v(ACI, 16)
        k.e('v_mfma_f32_32x32x16_bf16 %s, %s, %s, %s' % (v(ACI, 16), v(FA + 4 * kk, 4), v(FBI + 4 * kk, 4), c))
    for st in range(NST):
        k.wait_vm('st%d' % st)
        k.e('s_barrier')
        k.stamp(4 + st)
        groups = [[], [], [], []]
        if st >= 1 and st + NS - 1 < NST:
            groups = issue_groups(st + NS - 1)
        slot = st % NS
        sset = slot // 2
        off = (slot % 2) * STG
        FA, FBR, FBI = FB_[st & 1]
        for kk in range(4):
            emit_items(k, groups[kk])
            k.e('ds_read_b128 %s, %s offset:%d' % (v(FA + 4 * kk, 4), v(PA + 4 * sset + kk), off))
            k.e('ds_read_b128 %s, %s offset:%d' % (v(FBR + 4 * kk, 4), v(PB + 4 * sset + kk), off + 16384))
            k.e('ds_read_b128 %s, %s offset:%d' % (v(FBI + 4 * kk, 4), v(PB + 4 * sset + kk), off + 16384 + 4096))
            if st >= 1:
                mfma(st - 1, kk)
        if PFX and st == 3:
            srd(k, 12, B_W1, 2048 * 2752)
            k.e('s_lshr_b32 s90, s2, 3')
            k.e('s_lshl_b32 s90, s90, 6')
            k.e('s_lshl_b32 s91, s3, 4')
            k.e('s_add_u32 s90, s90, s91')
            k.e('s_and_b32 s92, s2, 7')
            k.e('s_mul_i32 s92, s92, 22')
            k.e('s_lshr_b32 s92, s92, 3')
            k.e('s_lshl_b32 s92, s92, 7')
            k.e('s_mov_b32 s93, 2752')
            k.e('v_lshrrev_b32 v4, 2, v1')
            k.e('v_add_u32 v4, s90, v4')
            k.e('v_mul_lo_u32 v4, v4, s93')
            k.e('v_and_b32 v5, 3, v1')
            k.e('v_lshl_add_u32 v4, v5, 7, v4')
            k.vm('buffer_load_dword v198, v4, s[12:15], s92 offen', 'pf')
            k.e('v_and_b32 v4, 15, v1')
            k.e('v_add_u32 v4, s90, v4')
            k.e('v_mul_lo_u32 v4, v4, s93')
            k.vm('buffer_load_dword v198, v4, s[12:15], s92 offen offset:512', 'pf')
        k.e('s_waitcnt lgkmcnt(0)')
    for kk in range(4):
        mfma(NST - 1, kk)
    k.e('v_lshlrev_b32 v6, 3, v3')
    k.e('v_add_u32 v6, %d, v6' % XOFF)
    k.e('s_lshl_b32 s83, s3, 8')
    k.e('v_add_u32 v7, s83, v6')
    k.nop(10)
    k.stamp(12)
    for j in range(1, 4):
        for q in range(4):
            r = 4 * q + j
            cfma(k, ACR + r, ACI + r, LR, LI, ACR + r - 1, ACI + r - 1, ACR + r, ACI + r)
    EV, OD = 72, 80
    for q in range(4):
        k.e('v_mov_b32 %s, %s' % (v(EV + q), v(ACR + 4 * q + 3)))
        k.e('v_mov_b32 %s, %s' % (v(OD + q), v(ACR + 4 * q + 3)))
        k.e('v_mov_b32 %s, %s' % (v(EV + 4 + q), v(ACI + 4 * q + 3)))
        k.e('v_mov_b32 %s, %s' % (v(OD + 4 + q), v(ACI + 4 * q + 3)))
    k.nop(2)
    for q in range(8):
        k.e('v_permlane32_swap_b32 %s, %s' % (v(EV + q), v(OD + q)))
    k.nop(2)
    CR, CI = 88, 97
    pr, pi_ = EV, EV + 4
    for i in range(1, 8):
        er = (EV if i % 2 == 0 else OD) + i // 2
        dr, di = (126, 127) if i == 7 else (CR + i, CI + i)
        cfma(k, dr, di, L4R, L4I, pr, pi_, er, er + 4)
        pr, pi_ = dr, di
    k.e('ds_write_b64 v7, v[126:127]')
    k.e('s_waitcnt lgkmcnt(0)')
    k.e('s_barrier')
    EW = 110
    for w in range(4):
        k.e('ds_read_b64 %s, v6 offset:%d' % (v(EW + 2 * w, 2), 256 * w))
    k.e('s_waitcnt lgkmcnt(0)')
    cfma(k, 118, 119, L32R, L32I, EW, EW + 1, EW + 2, EW + 3)
    cfma(k, 120, 121, L32R, L32I, 118, 119, EW + 4, EW + 5)
    cfma(k, 122, 123, L32R, L32I, 120, 121, EW + 6, EW + 7)
    k.e('v_mov_b32 %s, 0' % v(CR)); k.e('v_mov_b32 %s, 0' % v(CI))
    for w, (a, b) in ((1, (EW, EW + 1)), (2, (118, 119)), (3, (120, 121))):
        k.e('s_cmp_eq_u32 s3, %d' % w)
        k.e('s_cselect_b64 vcc, -1, 0')
        k.e('v_cndmask_b32 %s, %s, %s, vcc' % (v(CR), v(CR), v(a)))
        k.e('v_cndmask_b32 %s, %s, %s, vcc' % (v(CI), v(CI), v(b)))
    for i in range(0, 7):
        er = (EV if i % 2 == 0 else OD) + i // 2
        cfma(k, CR + i + 1, CI + i + 1, L4R, L4I, CR + i, CI + i, er, er + 4)
    k.e('v_cmp_lt_u32 vcc, 31, v1')
    OWR, OWI = 106, 110
    k.nop(1)
    for q in range(4):
        k.e('v_cndmask_b32 %s, %s, %s, vcc' % (v(OWR + q), v(CR + 2 * q), v(CR + 2 * q + 1)))
        k.e('v_cndmask_b32 %s, %s, %s, vcc' % (v(OWI + q), v(CI + 2 * q), v(CI + 2 * q + 1)))
    PO = 128
    LP = [(LR, LI), (L2R, L2I), (L3R, L3I), (L4R, L4I)]
    k.e('v_lshrrev_b32 v4, 5, v1')
    k.e('v_lshlrev_b32 v4, 2, v4')
    k.e('v_add_u32 v4, s78, v4')
    k.e('v_lshlrev_b32 v4, 12, v4')
    k.e('v_add_u32 v5, s75, v3')
    k.e('v_lshlrev_b32 v5, 3, v5')
    k.e('v_add_u32 v4, v4, v5')
    k.e('s_lshl_b32 s82, s72, 12')
    k.e('s_add_u32 s82, s82, %d' % WS_E)
    k.vm('buffer_store_dwordx2 v[122:123], v5, s[16:19], s82 offen', 'out')
    for q in range(4):
        for j in range(4):
            r = 4 * q + j
            cfma(k, PO + 2 * r, PO + 2 * r + 1, LP[j][0], LP[j][1], OWR + q, OWI + q, ACR + r, ACI + r)
            k.e('s_mov_b32 s82, %d' % (WS_S + (8 * q + j) * 4096))
            k.vm('buffer_store_dwordx2 %s, v4, s[16:19], s82 offen' % v(PO + 2 * r, 2), 'out')
    k.stamp(13)
    k.e('s_waitcnt vmcnt(0)')
    k.stamp(14)
    k.stamp_flush(DBGWG)
    k.tl_end(0)
    k.label('K1_END')
    k.e('s_endpgm')
    return finish(k, 200)

def dma_voff(k, dst, rowbase_s, pitch_s, colbase_s, tr, I3, I4, I7, tmp):
    for j in range(2):
        if tr:
            k.e('v_and_b32 %s, 1, %s' % (v(tmp), v(I4)))
            k.e('v_lshlrev_b32 %s, 2, %s' % (v(tmp), v(tmp)))
        else:
            k.e('v_add_u32 %s, %d, %s' % (v(tmp), 4 * j, v(I4)))
            k.e('v_and_b32 %s, 7, %s' % (v(tmp), v(tmp)))
        k.e('v_xor_b32 %s, %s, %s' % (v(tmp), v(tmp), v(I7)))
        k.e('v_lshlrev_b32 %s, 4, %s' % (v(tmp), v(tmp)))
        k.e('v_add_u32 %s, s%d, %s' % (v(dst + j), rowbase_s, v(I3)))
        if j:
            k.e('v_add_u32 %s, 8, %s' % (v(dst + j), v(dst + j)))
        k.e('v_mul_lo_u32 %s, %s, s%d' % (v(dst + j), v(dst + j), pitch_s))
        k.e('v_add_u32 %s, %s, %s' % (v(dst + j), v(dst + j), v(tmp)))
        k.e('v_add_u32 %s, s%d, %s' % (v(dst + j), colbase_s, v(dst + j)))
        if j:
            k.e('v_subrev_u32 %s, 1024, %s' % (v(dst + j), v(dst + j)))

def pat_direct(k, dst, sub_s, base, LANE, t0, t1):
    k.e('v_and_b32 %s, 31, %s' % (v(t0), v(LANE)))
    k.e('v_lshrrev_b32 %s, 1, %s' % (v(t1), v(t0)))
    k.e('v_and_b32 %s, 7, %s' % (v(t1), v(t1)))
    k.e('v_lshrrev_b32 %s, 5, %s' % (v(dst), v(LANE)))
    k.e('v_xor_b32 %s, %s, %s' % (v(t1), v(t1), v(dst)))
    k.e('v_lshlrev_b32 %s, 4, %s' % (v(t1), v(t1)))
    k.e('v_lshl_add_u32 %s, %s, 7, %s' % (v(t1), v(t0), v(t1)))
    k.e('v_add_u32 %s, s%d, %s' % (v(t1), sub_s, v(t1)))
    if base:
        k.e('v_add_u32 %s, %d, %s' % (v(t1), base, v(t1)))
    for kk in range(4):
        k.e('v_xor_b32 %s, %d, %s' % (v(dst + kk), kk << 5, v(t1)))
        k.e('v_add_u32 %s, 65536, %s' % (v(dst + 4 + kk), v(dst + kk)))

def pat_tr(k, dst, subchunk_s, base, LANE, t0, t1, t2):
    k.e('v_and_b32 %s, 15, %s' % (v(t0), v(LANE)))
    k.e('v_lshrrev_b32 %s, 4, %s' % (v(t1), v(LANE)))
    k.e('v_and_b32 %s, 1, %s' % (v(t1), v(t1)))
    k.e('v_lshlrev_b32 %s, 1, %s' % (v(t1), v(t1)))
    k.e('v_bfe_u32 %s, %s, 1, 1' % (v(t2), v(t0)))
    k.e('v_add_u32 %s, %s, %s' % (v(t1), v(t1), v(t2)))
    k.e('v_add_u32 %s, s%d, %s' % (v(t1), subchunk_s, v(t1)))
    k.e('v_bfe_u32 %s, %s, 3, 1' % (v(t2), v(t0)))
    k.e('v_lshlrev_b32 %s, 2, %s' % (v(t2), v(t2)))
    k.e('v_xor_b32 %s, %s, %s' % (v(t1), v(t1), v(t2)))
    k.e('v_lshlrev_b32 %s, 4, %s' % (v(t1), v(t1)))
    k.e('v_and_b32 %s, 1, %s' % (v(t2), v(t0)))
    k.e('v_lshl_add_u32 %s, %s, 3, %s' % (v(t1), v(t2), v(t1)))
    k.e('v_lshrrev_b32 %s, 2, %s' % (v(t2), v(t0)))
    k.e('v_lshrrev_b32 %s, 5, %s' % (v(t0), v(LANE)))
    k.e('v_lshl_add_u32 %s, %s, 3, %s' % (v(t2), v(t0), v(t2)))
    k.e('v_lshl_add_u32 %s, %s, 7, %s' % (v(dst), v(t2), v(t1)))
    if base:
        k.e('v_add_u32 %s, %d, %s' % (v(dst), base, v(dst)))
    k.e('v_add_u32 %s, 65536, %s' % (v(dst + 1), v(dst)))

def read_frag(k, dstreg, mode, pat, slot, kk):
    sset = slot // 4; off = (slot % 4) * 16384
    if mode == 'd':
        k.e('ds_read_b128 %s, %s offset:%d' % (v(dstreg, 4), v(pat + 4 * sset + kk), off))
        return 1
    else:
        k.e('ds_read_b64_tr_b16 %s, %s offset:%d' % (v(dstreg, 2), v(pat + sset), off + kk * 2048))
        k.e('ds_read_b64_tr_b16 %s, %s offset:%d' % (v(dstreg + 2, 2), v(pat + sset), off + kk * 2048 + 512))
        return 2

def emit_items(k, items):
    for it in items:
        if it[0] == 'e': k.e(it[1])
        else: k.vm(it[1], it[2])

def gemm_loop(k, stages, NS, FBUF, pro={}):
    n = len(stages)
    k.stamp(0)
    if -1 in pro: emit_items(k, pro[-1]())
    for st in range(min(NS, n)):
        for g in stages[st]['issue'](st):
            emit_items(k, g)
        if st in pro: emit_items(k, pro[st]())
    k.stamp(1)
    yield 'prologue'
    def mfma(st, kk):
        S = stages[st]
        FA, FB = FBUF[st & 1]
        c = '0' if (S['first'] and kk == 0) else v(S['acc'], 16)
        k.e('v_mfma_f32_32x32x16_bf16 %s, %s, %s, %s' % (v(S['acc'], 16), v(FA + 4 * kk, 4), v(FB + 4 * kk, 4), c))
    for st in range(n):
        S = stages[st]
        k.wait_vm('st%d' % st)
        k.e('s_barrier')
        k.stamp(2 + st)
        groups = [[], [], [], []]
        if st >= 1 and st + NS - 1 < n:
            groups = stages[st + NS - 1]['issue'](st + NS - 1)
        slot = st % NS
        FA, FB = FBUF[st & 1]
        for kk in range(4):
            emit_items(k, groups[kk])
            read_frag(k, FA + 4 * kk, S['modeA'], S['patA'], slot, kk)
            read_frag(k, FB + 4 * kk, S['modeB'], S['patB'], slot, kk)
            if st >= 1:
                mfma(st - 1, kk)
        if S.get('extra'):
            emit_items(k, S['extra']())
        k.e('s_waitcnt lgkmcnt(0)')
    for kk in range(4):
        mfma(n - 1, kk)

def gen_k2():
    k = Kern('k2_kernel')
    NS = 8
    k.e('s_cmp_ge_u32 s2, 256')
    k.e('s_cbranch_scc1 K2_END')
    load_kernargs(k)
    k.tl_start()
    k.e('v_and_b32 v1, 63, v0')
    k.e('v_lshrrev_b32 v2, 6, v0')
    k.nop(1)
    k.e('v_readfirstlane_b32 s3, v2')
    k.e('s_and_b32 s72, s2, 7')
    k.e('s_lshr_b32 s73, s2, 3')
    k.e('s_mul_i32 s74, s72, 22')
    k.e('s_add_u32 s74, s74, s73')
    k.e('s_and_b32 s75, s74, 7')
    k.e('s_lshl_b32 s75, s75, 6')
    k.e('s_lshr_b32 s74, s74, 3')
    k.e('s_lshl_b32 s74, s74, 6')
    k.e('s_lshr_b32 s76, s3, 1')
    k.e('s_and_b32 s77, s3, 1')
    B1R = 120
    k.e('v_lshrrev_b32 v2, 5, v1')
    k.e('v_lshlrev_b32 v2, 3, v2')
    k.e('s_lshl_b32 s78, s76, 5')
    k.e('s_add_u32 s78, s78, s74')
    k.e('s_lshl_b32 s79, s78, 1')
    k.e('v_add_u32 v2, s79, v2')
    I3, I4, I7 = 4, 5, 6
    k.e('v_lshrrev_b32 v4, 3, v1'); k.e('v_lshrrev_b32 v5, 4, v1'); k.e('v_and_b32 v6, 7, v1')
    VA, VB = 8, 10
    k.e('s_lshl_b32 s80, s3, 4')
    k.e('s_mov_b32 s81, 2752')
    k.e('s_lshl_b32 s82, s74, 1')
    dma_voff(k, VA, 80, 81, 82, True, I3, I4, I7, 7)
    k.e('s_mov_b32 s81, 1024')
    k.e('s_lshl_b32 s82, s75, 1')
    k.e('s_add_u32 s82, s82, %d' % WS_H)
    dma_voff(k, VB, 80, 81, 82, True, I3, I4, I7, 7)
    k.e('s_lshl_b32 s83, s3, 11')
    PA, PB = 12, 14
    k.e('s_lshl_b32 s86, s76, 2')
    k.e('s_lshl_b32 s87, s77, 2')
    pat_tr(k, PA, 86, 0, 1, 64, 65, 66)
    pat_tr(k, PB, 87, 8192, 1, 64, 65, 66)
    k.e('s_mov_b32 s93, 2752')
    k.e('s_cmp_lt_u32 s3, 2')
    k.e('s_cselect_b32 s93, 1024, s93')
    k.e('s_lshl_b32 s92, s93, 9')
    k.e('s_mul_i32 s91, s72, 22')
    k.e('s_lshr_b32 s91, s91, 3')
    k.e('s_lshl_b32 s91, s91, 7')
    k.e('s_cmp_lt_u32 s3, 2')
    k.e('s_cselect_b32 s91, %d, s91' % WS_H)
    k.e('s_cmp_lt_u32 s3, 2')
    k.e('s_cselect_b32 s90, 8, 5')
    k.e('s_and_b32 s89, s3, 1')
    k.e('s_lshl_b32 s89, s89, 3')
    k.e('s_lshl_b32 s88, s73, 4')
    k.e('s_add_u32 s89, s89, s88')
    k.e('v_lshrrev_b32 v4, 3, v1')
    k.e('v_add_u32 v4, s89, v4')
    k.e('v_mul_lo_u32 v4, v4, s93')
    k.e('v_and_b32 v5, 7, v1')
    k.e('v_lshl_add_u32 v230, v5, 7, v4')
    k.e('v_mov_b32 v4, 0x7f000000')
    k.e('v_cmp_gt_u32 vcc, s90, v5')
    k.e('v_cndmask_b32 v230, v4, v230, vcc')
    k.e('s_waitcnt lgkmcnt(0)')
    k.stamp(60)
    srd(k, 16, WS, WS_SZ)
    srd(k, 4, B_W1, 2048 * 2752)
    k.e('s_cmp_lt_u32 s3, 2')
    k.e('s_cselect_b32 s12, s%d, s%d' % (P(WS), P(B_W1)))
    k.e('s_cselect_b32 s13, s%d, s%d' % (P(WS) + 1, P(B_W1) + 1))
    k.e('s_and_b32 s13, s13, 0xffff')
    k.e('s_mov_b32 s14, 0x%x' % (2048 * 2752))
    k.e('s_mov_b32 s15, 0x00020000')
    def pf_slot():
        if not PF: return []
        return [('v', 'buffer_load_dword v231, v230, s[12:15], s91 offen', 'pf'), ('e', 's_add_u32 s91, s91, s92')]
    k.e('s_cmp_lt_u32 s73, 22')
    k.e('s_cbranch_scc1 K2_GEMM')
    for i in range(4): emit_items(k, pf_slot())
    k.vmq = []
    k.e('s_cmp_ge_u32 s73, 30')
    k.e('s_cbranch_scc1 K2_HELP')
    k.e('s_branch K2_FIX')
    k.label('K2_GEMM')
    srd(k, 8, B_B1, 2752)
    def b1_loads():
        return [('v', 'buffer_load_dwordx2 %s, v2, s[8:11], 0 offen offset:%d' % (v(B1R + 2 * q, 2), 16 * q), 'b1') for q in range(4)]
    def issue(st):
        slot = (st % NS) * 16384
        tg = 'st%d' % st
        return [[('e', 's_mov_b32 s84, %d' % (st * 64 * 2752)), ('e', 's_add_u32 m0, s83, %d' % slot), ('e', 's_mov_b32 s85, %d' % (st * 65536)),
                 ('v', 'buffer_load_dwordx4 %s, s[4:7], s84 offen lds' % v(VA), tg)],
                [('v', 'buffer_load_dwordx4 %s, s[4:7], s84 offen offset:1024 lds' % v(VA + 1), tg)],
                [('e', 's_add_u32 m0, s83, %d' % (slot + 8192)), ('e', 's_nop 0'),
                 ('v', 'buffer_load_dwordx4 %s, s[16:19], s85 offen lds' % v(VB), tg)],
                [('v', 'buffer_load_dwordx4 %s, s[16:19], s85 offen offset:1024 lds' % v(VB + 1), tg)]]
    ACC = 16
    FBUF = [(32, 48), (128, 144)]
    stages = [dict(issue=issue, modeA='t', patA=PA, modeB='t', patB=PB, acc=ACC, first=(st == 0), extra=(pf_slot if st in PF2 else (b1_loads if st == 12 else None))) for st in range(32)]
    gl = gemm_loop(k, stages, NS, FBUF, {PRO[0]: pf_slot, PRO[1]: pf_slot})
    next(gl)
    for _ in gl: pass
    k.nop(13)
    B1F = 64
    for i in range(8):
        k.e('v_lshlrev_b32 %s, 16, %s' % (v(B1F + 2 * i), v(B1R + i)))
        k.e('v_and_b32 %s, 0xffff0000, %s' % (v(B1F + 2 * i + 1), v(B1R + i)))
    T = 80
    for r in range(0, 16, 2):
        rbf2(k, ACC + r, ACC + r + 1, T)
    for r in range(16):
        k.e('v_add_f32 %s, %s, %s' % (v(ACC + r), v(ACC + r), v(B1F + r)))
    for r in range(0, 16, 2):
        rbf2(k, ACC + r, ACC + r + 1, T)
    import struct
    def f2u(x): return struct.unpack('<I', struct.pack('<f', x))[0]
    C1 = f2u(0.044715); C2 = f2u(-2.0 * 1.4426950408889634 * 0.7978845608028654)
    k.e('s_mov_b32 s88, 0x%x' % C1)
    for r in range(16):
        t = T + r
        k.e('v_mul_f32 %s, %s, %s' % (v(t), v(ACC + r), v(ACC + r)))
        k.e('v_mul_f32 %s, %s, %s' % (v(t), v(t), v(ACC + r)))
        k.e('v_fma_f32 %s, %s, s88, %s' % (v(t), v(t), v(ACC + r)))
        k.e('v_mul_f32 %s, 0x%x, %s' % (v(t), C2, v(t)))
        k.e('v_exp_f32 %s, %s' % (v(t), v(t)))
    for r in range(16):
        t = T + r
        k.e('v_add_f32 %s, 1.0, %s' % (v(t), v(t)))
        k.e('v_rcp_f32 %s, %s' % (v(t), v(t)))
    for r in range(16):
        t = T + r
        k.e('v_mul_f32 %s, %s, %s' % (v(ACC + r), v(ACC + r), v(t)))
    UO = 100
    for r in range(0, 16, 2):
        k.e('v_cvt_pk_bf16_f32 %s, %s, %s' % (v(UO + r // 2), v(ACC + r), v(ACC + r + 1)))
    k.e('s_cmp_lt_u32 s78, 1376')
    k.e('s_cbranch_scc1 K2_ST')
    for i in range(8):
        k.e('v_mov_b32 %s, 0' % v(UO + i))
    k.label('K2_ST')
    k.e('v_and_b32 v3, 31, v1')
    k.e('s_lshl_b32 s89, s77, 5')
    k.e('s_add_u32 s89, s89, s75')
    k.e('v_add_u32 v3, s89, v3')
    k.e('s_mov_b32 s90, %d' % UP)
    k.e('v_mul_lo_u32 v3, v3, s90')
    k.e('v_add_u32 v3, v3, v2')
    k.e('s_mov_b32 s90, %d' % WS_U)
    for q in range(4):
        k.e('buffer_store_dwordx2 %s, v3, s[16:19], s90 offen offset:%d' % (v(UO + 2 * q, 2), 16 * q))
    k.stamp(50)
    k.e('s_waitcnt vmcnt(0)')
    k.stamp(51)
    k.stamp_flush(DBGWG)
    k.tl_end(1)
    k.e('s_endpgm')
    k.label('K2_FIX')
    k.vmq = []
    srd(k, 20, A_LRE, 1024); srd(k, 24, A_LIM, 1024); srd(k, 28, A_LDT, 1024)
    k.e('s_lshl_b32 s74, s72, 3')
    k.e('s_add_u32 s74, s74, s73')
    k.e('s_sub_u32 s74, s74, 22')
    k.e('s_lshr_b32 s75, s74, 2')
    k.e('s_and_b32 s76, s74, 3')
    k.e('s_lshl_b32 s77, s74, 17')
    k.e('s_add_u32 s77, s77, %d' % WS_S)
    k.e('s_lshl_b32 s78, s74, 16')
    k.e('s_add_u32 s78, s78, %d' % WS_HB)
    k.stamp(0)
    EB = 4; SB = 64
    k.e('v_lshlrev_b32 v2, 2, v0')
    k.e('v_lshlrev_b32 v3, 4, v0')
    k.vm('buffer_load_dword v192, v2, s[20:23], 0 offen', 'p')
    k.vm('buffer_load_dword v193, v2, s[24:27], 0 offen', 'p')
    k.vm('buffer_load_dword v194, v2, s[28:31], 0 offen', 'p')
    for c in range(15):
        k.e('s_mov_b32 s79, %d' % (WS_E + c * 4096))
        k.vm('buffer_load_dwordx4 %s, v3, s[16:19], s79 offen' % v(EB + 4 * c, 4), 'e')
    for j in range(32):
        k.e('s_add_u32 s79, s77, %d' % (j * 4096))
        k.vm('buffer_load_dwordx4 %s, v3, s[16:19], s79 offen' % v(SB + 4 * j, 4), 'h%d' % j)
    k.stamp(1)
    k.wait_vm('p')
    k.stamp(2)
    def pmul(d, a, b, t):
        k.e('v_pk_mul_f32 %s, %s, %s op_sel_hi:[0,1]' % (v(t, 2), v(a, 2), v(b, 2)))
        k.e('v_pk_fma_f32 %s, %s, %s, %s op_sel:[1,1,0] op_sel_hi:[1,0,1] neg_lo:[1,0,0]' % (v(d, 2), v(a, 2), v(b, 2), v(t, 2)))
    def pfma(d, a, b, c, t):
        k.e('v_pk_fma_f32 %s, %s, %s, %s op_sel_hi:[0,1,1]' % (v(t, 2), v(a, 2), v(b, 2), v(c, 2)))
        k.e('v_pk_fma_f32 %s, %s, %s, %s op_sel:[1,1,0] op_sel_hi:[1,0,1] neg_lo:[1,0,0]' % (v(d, 2), v(a, 2), v(b, 2), v(t, 2)))
    LP = [196, 198]; CP = [200, 202]; L32 = [204, 206]; L64 = [208, 210]; L128 = [212, 214]; U = [216, 218]; T = [220, 222]
    for h in range(2):
        lre, lim, ldt = 224, 225, 226
        for d_, s_ in ((lre, 192), (lim, 193), (ldt, 194)):
            if h == 0: k.e('v_and_b32 %s, 0xffff, %s' % (v(d_), v(s_)))
            else: k.e('v_lshrrev_b32 %s, 16, %s' % (v(d_), v(s_)))
        LR, LI = LP[h], LP[h] + 1
        lam_params(k, lre, lim, ldt, LR, LI, 227, 228)
        CR_, CI_ = CP[h], CP[h] + 1
        k.e('v_add_f32 v227, -1.0, %s' % v(LR))
        k.e('v_mul_f32 v228, v224, v224')
        k.e('v_fmac_f32 v228, v225, v225')
        k.e('v_rcp_f32 v228, v228')
        k.e('v_mul_f32 %s, v227, v224' % v(CR_))
        k.e('v_fmac_f32 %s, %s, v225' % (v(CR_), v(LI)))
        k.e('v_mul_f32 %s, %s, v224' % (v(CI_), v(LI)))
        k.e('v_fma_f32 %s, -v227, v225, %s' % (v(CI_), v(CI_)))
        k.e('v_add_f32 v228, v228, v228')
        k.e('v_mul_f32 %s, %s, v228' % (v(CR_), v(CR_)))
        k.e('v_mul_f32 %s, %s, v228' % (v(CI_), v(CI_)))
    for h in range(2): pmul(L64[h], LP[h], LP[h], T[h])
    for h in range(2): pmul(L32[h], L64[h], L64[h], T[h])
    for h in range(2): pmul(L64[h], L32[h], L32[h], T[h])
    for h in range(2): pmul(L128[h], L64[h], L64[h], T[h])
    for h in range(2): pmul(L32[h], L128[h], L128[h], T[h])
    for h in range(2): pmul(L64[h], L32[h], L32[h], T[h])
    for h in range(2): pmul(L128[h], L64[h], L64[h], T[h])
    for i in range(4): k.e('v_mov_b32 %s, 0' % v(U[0] + i))
    k.wait_vm('e')
    k.stamp(3)
    for c in range(15):
        k.e('s_cmp_le_u32 s75, %d' % c)
        k.e('s_cbranch_scc1 K2_CL')
        for h in range(2):
            k.e('v_pk_fma_f32 %s, %s, %s, %s op_sel_hi:[0,1,1]' % (v(EB + 4 * c + 2 * h, 2), v(L128[h], 2), v(U[h], 2), v(EB + 4 * c + 2 * h, 2)))
        for h in range(2):
            k.e('v_pk_fma_f32 %s, %s, %s, %s op_sel:[1,1,0] op_sel_hi:[1,0,1] neg_lo:[1,0,0]' % (v(U[h], 2), v(L128[h], 2), v(U[h], 2), v(EB + 4 * c + 2 * h, 2)))
    k.label('K2_CL')
    for h in range(2): pmul(U[h], CP[h], U[h], T[h])
    k.e('s_bitcmp0_b32 s76, 0')
    k.e('s_cbranch_scc1 K2_R1')
    for h in range(2): pmul(U[h], L32[h], U[h], T[h])
    k.label('K2_R1')
    k.e('s_bitcmp0_b32 s76, 1')
    k.e('s_cbranch_scc1 K2_R2')
    for h in range(2): pmul(U[h], L64[h], U[h], T[h])
    k.label('K2_R2')
    k.stamp(4)
    for j in range(32):
        S_ = SB + 4 * j
        for h in range(2):
            k.e('v_pk_mul_f32 %s, %s, %s op_sel_hi:[0,1]' % (v(T[h], 2), v(LP[h], 2), v(U[h], 2)))
        for h in range(2):
            k.e('v_pk_fma_f32 %s, %s, %s, %s op_sel:[1,1,0] op_sel_hi:[1,0,1] neg_lo:[1,0,0]' % (v(U[h], 2), v(LP[h], 2), v(U[h], 2), v(T[h], 2)))
        k.wait_vm('h%d' % j)
        for h in range(2):
            k.e('v_pk_fma_f32 %s, %s, %s, %s op_sel_hi:[0,1,1]' % (v(T[h], 2), v(CP[h], 2), v(S_ + 2 * h, 2), v(U[h], 2)))
        for h in range(2):
            k.e('v_pk_fma_f32 %s, %s, %s, %s op_sel:[1,1,0] op_sel_hi:[1,0,1] neg_lo:[1,0,0]' % (v(S_ + 2 * h, 2), v(CP[h], 2), v(S_ + 2 * h, 2), v(T[h], 2)))
        k.e('v_cvt_pk_bf16_f32 %s, %s, %s' % (v(S_), v(S_), v(S_ + 2)))
        k.e('v_cvt_pk_bf16_f32 %s, -%s, -%s' % (v(S_ + 1), v(S_ + 1), v(S_ + 3)))
        k.e('s_add_u32 s79, s78, %d' % (j * 2048))
        k.vm('buffer_store_dword %s, v2, s[16:19], s79 offen' % v(S_), 'o')
        k.vm('buffer_store_dword %s, v2, s[16:19], s79 offen offset:1024' % v(S_ + 1), 'o')
    k.stamp(5)
    k.e('s_branch K2_PF3')
    k.label('K2_HELP')
    k.e('s_sleep 100')
    k.label('K2_PF3')
    if PFX:
        srd(k, 20, A_CRE, 1 << 19); srd(k, 24, A_CIM, 1 << 19); srd(k, 28, B_W2, 1376 * 4096)
        k.e('s_sub_u32 s74, s73, 22')
        k.e('s_lshl_b32 s74, s74, 8')
        k.e('v_add_u32 v4, s74, v0')
        k.e('v_lshlrev_b32 v5, 7, v4')
        k.e('buffer_load_dword v1, v5, s[20:23], 0 offen')
        k.e('buffer_load_dword v1, v5, s[24:27], 0 offen')
        k.e('v_add_u32 v6, %d, v5' % (2560 * 128))
        k.e('buffer_load_dword v1, v6, s[20:23], 0 offen')
        k.e('buffer_load_dword v1, v6, s[24:27], 0 offen')
        k.e('v_lshrrev_b32 v5, 2, v4')
        k.e('v_lshlrev_b32 v5, 12, v5')
        k.e('v_and_b32 v6, 3, v4')
        k.e('v_lshl_add_u32 v5, v6, 7, v5')
        k.e('s_lshl_b32 s75, s72, 9')
        k.e('v_add_u32 v5, s75, v5')
        k.e('v_add_u32 v6, %d, v5' % (640 * 4096))
        k.e('v_add_u32 v7, %d, v5' % (1280 * 4096))
        for r_ in (5, 6, 7):
            k.e('buffer_load_dword v1, v%d, s[28:31], 0 offen' % r_)
    k.wait_vm_all()
    k.stamp(6)
    k.stamp_flush(DBGWG)
    k.tl_end(1)
    k.label('K2_END')
    k.e('s_waitcnt vmcnt(0)')
    k.e('s_endpgm')
    return finish(k, 232)

def gen_k3():
    k = Kern('k3_kernel')
    NS = 8
    k.e('s_cmp_ge_u32 s2, 256')
    k.e('s_cbranch_scc1 K3_END')
    load_kernargs(k)
    k.tl_start()
    k.e('v_and_b32 v1, 63, v0')
    k.e('v_lshrrev_b32 v2, 6, v0')
    k.nop(1)
    k.e('v_readfirstlane_b32 s3, v2')
    k.e('s_and_b32 s72, s2, 7')
    k.e('s_lshr_b32 s73, s2, 3')
    k.e('s_lshr_b32 s74, s73, 3')
    k.e('s_lshl_b32 s72, s72, 2')
    k.e('s_add_u32 s72, s72, s74')
    k.e('s_and_b32 s73, s73, 7')
    k.e('s_lshl_b32 s74, s72, 6')
    k.e('s_lshl_b32 s75, s73, 6')
    k.e('s_lshr_b32 s76, s3, 1')
    k.e('s_and_b32 s77, s3, 1')
    GR, B2R, XR, DR = 120, 121, 122, 130
    k.e('v_and_b32 v3, 31, v1')
    k.e('s_lshl_b32 s78, s77, 5')
    k.e('s_add_u32 s78, s78, s74')
    k.e('v_add_u32 v3, s78, v3')
    k.e('v_lshlrev_b32 v176, 2, v3')
    k.e('v_lshlrev_b32 v177, 1, v3')
    k.e('s_lshl_b32 s79, s76, 5')
    k.e('s_add_u32 s79, s79, s75')
    k.e('v_lshrrev_b32 v4, 5, v1')
    k.e('v_lshlrev_b32 v4, 2, v4')
    k.e('v_add_u32 v4, s79, v4')
    k.e('v_lshlrev_b32 v178, 1, v4')
    k.e('v_lshl_add_u32 v179, v3, 10, v178')
    k.e('v_lshlrev_b32 v138, 1, v179')
    I3, I4, I7 = 4, 5, 6
    k.e('v_lshrrev_b32 v4, 3, v1'); k.e('v_lshrrev_b32 v5, 4, v1'); k.e('v_and_b32 v6, 7, v1')
    VC, VH, VU, VW = 8, 10, 12, 14
    k.e('s_lshl_b32 s80, s3, 4')
    k.e('s_add_u32 s81, s80, s75')
    k.e('s_add_u32 s82, s80, s74')
    k.e('s_mov_b32 s83, 1024'); k.e('s_mov_b32 s84, 0')
    dma_voff(k, VC, 81, 83, 84, False, I3, I4, I7, 7)
    k.e('s_mov_b32 s83, 2048'); k.e('s_mov_b32 s84, %d' % WS_HB)
    dma_voff(k, VH, 82, 83, 84, False, I3, I4, I7, 7)
    k.e('s_mov_b32 s83, %d' % UP); k.e('s_mov_b32 s84, %d' % WS_U)
    dma_voff(k, VU, 81, 83, 84, False, I3, I4, I7, 7)
    k.e('s_mov_b32 s83, 4096'); k.e('s_lshl_b32 s84, s74, 1')
    dma_voff(k, VW, 80, 83, 84, True, I3, I4, I7, 7)
    k.e('s_lshl_b32 s83, s3, 11')
    PA, PB, PT = 16, 24, 32
    k.e('s_lshl_b32 s86, s76, 12')
    k.e('s_lshl_b32 s87, s77, 12')
    k.e('s_lshl_b32 s88, s77, 2')
    pat_direct(k, PA, 86, 0, 1, 100, 101)
    pat_direct(k, PB, 87, 8192, 1, 100, 101)
    pat_tr(k, PT, 88, 8192, 1, 100, 101, 102)
    def sel(d, a_, b_):
        k.e('s_cmp_lt_u32 s3, 2')
        k.e('s_cselect_b32 %s, %s, %s' % (d, a_, b_))
    k.e('s_lshr_b32 s94, s2, 3')
    k.e('s_and_b32 s95, s2, 7')
    k.e('s_lshl_b32 s84, s94, 4')
    k.e('s_lshl_b32 s85, s3, 3')
    k.e('s_add_u32 s84, s84, s85')
    k.e('s_lshl_b32 s85, s95, 8')
    k.e('s_lshl_b32 s93, s94, 3')
    k.e('s_add_u32 s85, s85, s93')
    sel('s85', 's84', 's85')
    k.e('s_mov_b32 s93, 2048')
    sel('s93', '1024', 's93')
    sel('s89', '0', '%d' % WS_HB)
    sel('s90', '0', '%d' % (WS_HB + 1024))
    k.e('v_lshrrev_b32 v4, 3, v1')
    k.e('v_and_b32 v5, 7, v1')
    k.e('v_add_u32 v6, s85, v4')
    k.e('v_mul_lo_u32 v6, v6, s93')
    k.e('v_lshl_add_u32 v173, v5, 7, v6')
    k.e('s_mov_b32 s93, %d' % UP)
    k.e('v_add_u32 v6, s84, v4')
    k.e('v_mul_lo_u32 v6, v6, s93')
    k.e('v_lshl_add_u32 v172, v5, 7, v6')
    k.e('s_lshl_b32 s93, s94, 4')
    k.e('v_lshrrev_b32 v4, 2, v1')
    k.e('v_add_u32 v4, s93, v4')
    k.e('v_lshlrev_b32 v4, 12, v4')
    k.e('v_and_b32 v5, 3, v1')
    k.e('v_lshl_add_u32 v4, v5, 7, v4')
    k.e('s_cmp_lt_u32 s3, 2')
    k.e('s_cselect_b64 vcc, -1, 0')
    k.e('v_cndmask_b32 v172, v4, v172, vcc')
    k.e('s_lshl_b32 s91, s95, 9')
    sel('s91', '%d' % WS_U, 's91')
    k.e('s_mov_b32 s92, 0x200000')
    sel('s92', '1024', 's92')
    k.e('s_cmp_eq_u32 s3, 3')
    k.e('s_cselect_b64 vcc, -1, 0')
    k.e('v_mov_b32 v4, 0x7f000000')
    k.e('v_cndmask_b32 v172, v172, v4, vcc')
    k.e('v_cndmask_b32 v173, v173, v4, vcc')
    k.e('s_mov_b32 s93, 0x%x' % WS_SZ)
    k.e('s_waitcnt lgkmcnt(0)')
    k.stamp(60)
    srd(k, 16, WS, WS_SZ)
    srd(k, 4, A_CRE, 1 << 19)
    def rest_srds():
        srd(k, 8, A_CIM, 1 << 19); srd(k, 12, B_W2, 1376 * 4096)
        srd(k, 20, A_X, 2 << 20); srd(k, 24, A_DSK, 1024); srd(k, 28, B_B2, 4096); srd(k, 32, OUT, 4 << 20)
        for d, pa, pb in ((96, A_CRE, WS), (36, A_CIM, WS), (40, WS, B_W2)):
            k.e('s_cmp_lt_u32 s3, 2')
            k.e('s_cselect_b32 s%d, s%d, s%d' % (d, P(pa), P(pb)))
            k.e('s_cselect_b32 s%d, s%d, s%d' % (d + 1, P(pa) + 1, P(pb) + 1))
            if d == 40: k.e('s_cselect_b32 s%d, s93, 0x%x' % (d + 2, 1376 * 4096))
            else: k.e('s_cselect_b32 s%d, 0x80000, s93' % (d + 2))
            k.e('s_and_b32 s%d, s%d, 0xffff' % (d + 1, d + 1))
            k.e('s_mov_b32 s%d, 0x00020000' % (d + 3))
        return [('v', 'buffer_load_dword v174, v173, s[96:99], s89 offen', 'pf')] if PF3A else []
    def pf1():
        return [('v', 'buffer_load_dword v174, v173, s[36:39], s90 offen', 'pf')] if PF3A else []
    def pf_slot():
        if not PF: return []
        return [('v', 'buffer_load_dword v174, v172, s[40:43], s91 offen', 'pf'), ('e', 's_add_u32 s91, s91, s92')]
    def ep_loads():
        L = [('e', 's_mov_b32 s79, %d' % WS_G), ('v', 'buffer_load_dword %s, v176, s[16:19], s79 offen' % v(GR), 'ep'),
             ('v', 'buffer_load_ushort %s, v177, s[28:31], 0 offen' % v(B2R), 'ep')]
        for q in range(4):
            L.append(('v', 'buffer_load_dwordx2 %s, v178, s[24:27], 0 offen offset:%d' % (v(DR + 2 * q, 2), 16 * q), 'ep'))
        for q in range(4):
            L.append(('v', 'buffer_load_dwordx2 %s, v179, s[20:23], 0 offen offset:%d' % (v(XR + 2 * q, 2), 16 * q), 'ep'))
        return L
    def issue(st):
        slot = (st % NS) * 16384
        tg = 'st%d' % st
        if st < 16:
            srdA = 4 if st < 8 else 8
            oa, ob = (st % 8) * 128, st * 128
            va, vb, srdB = VC, VH, 16
        else:
            srdA = 16
            oa, ob = (st - 16) * 128, (st - 16) * 262144
            va, vb, srdB = VU, VW, 12
        return [[('e', 's_mov_b32 s84, %d' % oa), ('e', 's_add_u32 m0, s83, %d' % slot), ('e', 's_mov_b32 s85, %d' % ob),
                 ('v', 'buffer_load_dwordx4 %s, s[%d:%d], s84 offen lds' % (v(va), srdA, srdA + 3), tg)],
                [('v', 'buffer_load_dwordx4 %s, s[%d:%d], s84 offen offset:1024 lds' % (v(va + 1), srdA, srdA + 3), tg)],
                [('e', 's_add_u32 m0, s83, %d' % (slot + 8192)), ('e', 's_nop 0'),
                 ('v', 'buffer_load_dwordx4 %s, s[%d:%d], s85 offen lds' % (v(vb), srdB, srdB + 3), tg)],
                [('v', 'buffer_load_dwordx4 %s, s[%d:%d], s85 offen offset:1024 lds' % (v(vb + 1), srdB, srdB + 3), tg)]]
    ACA, ACB = 36, 52
    FBUF = [(68, 84), (140, 156)]
    stages = []
    for st in range(38):
        ex = pf_slot if st in PF3 else (ep_loads if st == 22 else None)
        if st < 16:
            stages.append(dict(issue=issue, modeA='d', patA=PA, modeB='d', patB=PB, acc=ACA, first=(st == 0), extra=ex))
        else:
            stages.append(dict(issue=issue, modeA='d', patA=PA, modeB='t', patB=PT, acc=ACB, first=(st == 16), extra=ex))
    gl = gemm_loop(k, stages, NS, FBUF, {PRO[0]: rest_srds, PRO[1]: pf1})
    next(gl)
    for _ in gl: pass
    k.nop(13)
    XF, DF, T = 68, 84, 100
    for i in range(8):
        k.e('v_lshlrev_b32 %s, 16, %s' % (v(XF + 2 * i), v(XR + i)))
        k.e('v_and_b32 %s, 0xffff0000, %s' % (v(XF + 2 * i + 1), v(XR + i)))
        k.e('v_lshlrev_b32 %s, 16, %s' % (v(DF + 2 * i), v(DR + i)))
        k.e('v_and_b32 %s, 0xffff0000, %s' % (v(DF + 2 * i + 1), v(DR + i)))
    k.e('v_lshlrev_b32 %s, 16, %s' % (v(B2R), v(B2R)))
    OMG = 101
    k.e('v_sub_f32 %s, 1.0, %s' % (v(OMG), v(GR)))
    rbf(k, OMG, T)
    for r in range(16):
        k.e('v_mul_f32 %s, %s, %s' % (v(XF + r), v(XF + r), v(DF + r)))
    for r in range(0, 16, 2):
        rbf2(k, XF + r, XF + r + 1, T)
        rbf2(k, ACB + r, ACB + r + 1, T)
    for r in range(16):
        k.e('v_add_f32 %s, %s, %s' % (v(ACA + r), v(ACA + r), v(XF + r)))
        k.e('v_add_f32 %s, %s, %s' % (v(ACB + r), v(ACB + r), v(B2R)))
    for r in range(0, 16, 2):
        rbf2(k, ACB + r, ACB + r + 1, T)
    for r in range(16):
        k.e('v_mul_f32 %s, %s, %s' % (v(ACB + r), v(ACB + r), v(OMG)))
        k.e('v_mul_f32 %s, %s, %s' % (v(ACA + r), v(ACA + r), v(GR)))
    for r in range(0, 16, 2):
        rbf2(k, ACB + r, ACB + r + 1, T)
    for r in range(16):
        k.e('v_add_f32 %s, %s, %s' % (v(ACA + r), v(ACA + r), v(ACB + r)))
    for q in range(4):
        k.e('buffer_store_dwordx4 %s, v138, s[32:35], 0 offen offset:%d' % (v(ACA + 4 * q, 4), 32 * q))
    k.stamp(50)
    k.e('s_waitcnt vmcnt(0)')
    k.stamp(51)
    k.stamp_flush(DBGWG)
    k.tl_end(2)
    k.label('K3_END')
    k.e('s_endpgm')
    return finish(k, 180, 102)

def main():
    hdr = open('gated_mix__ssm_conv_s5__mixer_token_mlp__prompt.s.ref').read().split('\n')
    top = []
    for l in hdr:
        if l.startswith(';') and '@launch' not in l:
            top.append(l)
        elif not l.startswith(';'):
            break
    top.append('; @launch kernel=k1_kernel grid=(256,1,1) block=(256,1,1) lds=148480')
    top.append('; @launch kernel=k2_kernel grid=(256,1,1) block=(256,1,1) lds=131072')
    top.append('; @launch kernel=k3_kernel grid=(256,1,1) block=(256,1,1) lds=131072')
    top.append('.amdgcn_target "amdgcn-amd-amdhsa--gfx950"')
    top.append('.text')
    ks = [gen_k1(), gen_k2(), gen_k3()]
    body = []
    for b, d in ks:
        body += b
    body.append('.section .rodata,"a"')
    for b, d in ks:
        body += d
    out = '\n'.join(top + body) + '\n'
    path = sys.argv[1] if len(sys.argv) > 1 else 'gated_mix__ssm_conv_s5__mixer_token_mlp__prompt.s'
    open(path, 'w').write(out)
    print('wrote', path, len(out), 'bytes')

if __name__ == '__main__':
    main()
```

```python
import sys, os, struct
DEBUG = int(os.environ.get('DEBUG', '0'))
DBGWG = int(os.environ.get('DBGWG', '0'))
TL = int(os.environ.get('TL', '0'))
PF = int(os.environ.get('PF', '1'))
PFX = int(os.environ.get('PFX', '1'))
PRO = eval(os.environ.get('PRO', '(1,7)'))
PF2 = eval(os.environ.get('PF2', '(1,9)'))

WS_H  = 0
WS_G  = 2 << 20
WS_E  = 12 << 20
WS_FA = 13 << 20
WS_FU = WS_FA + 32768
WS_HB = 16 << 20
WS_U  = 20 << 20
WS_SZ = 24 << 20
if DEBUG or TL: WS_SZ = 64 << 20
UP = 2816
LOG2E = 0x3fb8aa3b
INV2PI = 0x3e22f983
UC = int(os.environ.get('UC', '12'))
UW = int(os.environ.get('UW', '7'))
GOL = int(os.environ.get('GOL', '4'))
GOC = int(os.environ.get('GOC', '7'))
PFXST = int(os.environ.get('PFXST', '5'))
TMO = 1 << 13

class Kern:
    def __init__(self, name):
        self.name = name
        self.L = []
        self.vmq = []
        self.nlab = 0
    def e(self, s):
        self.L.append('    ' + s)
    def c(self, s):
        self.L.append('    ; ' + s)
    def label(self, l):
        self.L.append(l + ':')
    def vm(self, s, tag):
        self.e(s); self.vmq.append((tag, 1))
    def mark(self, tag):
        self.vmq.append((tag, 0))
    def wait_vm(self, tag):
        idxs = [i for i, t in enumerate(self.vmq) if t[0] == tag]
        if not idxs:
            return
        idx = idxs[-1]
        n = sum(t[1] for t in self.vmq[idx + 1:])
        self.e('s_waitcnt vmcnt(%d)' % min(n, 63))
        self.vmq = self.vmq[idx + 1:]
    def wait_vm_all(self):
        self.e('s_waitcnt vmcnt(0)'); self.vmq = []
    def stamp(self, i):
        if not DEBUG: return
        self.e('s_memtime s[94:95]')
        self.e('s_waitcnt lgkmcnt(0)')
        self.e('v_writelane_b32 v%d, s94, %d' % (255 - i // 64, i % 64))
    def tl(self, i):
        if not TL: return
        self.e('s_memrealtime s[94:95]')
        self.e('s_waitcnt lgkmcnt(0)')
        self.e('v_writelane_b32 v252, s94, %d' % i)
    def flush_dbg(self):
        if not (DEBUG or TL): return
        self.nlab += 1
        lab = '%s_DBG%d' % (self.name, self.nlab)
        self.e('s_cmp_lg_u32 s3, 0')
        self.e('s_cbranch_scc1 %s' % lab)
        self.e('v_and_b32 v251, 63, v0')
        self.e('v_lshlrev_b32 v251, 2, v251')
        if TL:
            self.e('s_lshl_b32 s94, s2, 8')
            self.e('s_add_u32 s94, s94, %d' % (32 << 20))
            self.e('buffer_store_dword v252, v251, s[16:19], s94 offen')
        if DEBUG:
            self.e('s_cmp_lg_u32 s2, %d' % DBGWG)
            self.e('s_cbranch_scc1 %s' % lab)
            self.e('s_mov_b32 s94, %d' % (33 << 20))
            self.e('buffer_store_dword v255, v251, s[16:19], s94 offen')
            self.e('buffer_store_dword v254, v251, s[16:19], s94 offen offset:256')
            self.e('buffer_store_dword v253, v251, s[16:19], s94 offen offset:512')
        self.label(lab)
    def nop(self, n):
        while n > 0:
            k = min(n, 16)
            self.e('s_nop %d' % (k - 1)); n -= k
def v(i, n=1):
    return 'v%d' % i if n == 1 else 'v[%d:%d]' % (i, i + n - 1)
def s(i, n=1):
    return 's%d' % i if n == 1 else 's[%d:%d]' % (i, i + n - 1)

def P(k): return 36 + 2 * k
A_X, A_LRE, A_LIM, A_BRE, A_BIM, A_CRE, A_CIM, A_LDT, A_DSK, B_X, B_W1, B_B1, B_W2, B_B2, GATE, OUT, DBG, WS = range(18)

def load_kernargs(k):
    k.e('s_load_dwordx16 s[36:51], s[0:1], 0')
    k.e('s_load_dwordx16 s[52:67], s[0:1], 64')
    k.e('s_load_dwordx4 s[68:71], s[0:1], 128')

def srd(k, dst, ptr, nbytes):
    k.e('s_mov_b32 s%d, s%d' % (dst, P(ptr)))
    k.e('s_and_b32 s%d, s%d, 0xffff' % (dst + 1, P(ptr) + 1))
    k.e('s_mov_b32 s%d, 0x%x' % (dst + 2, nbytes))
    k.e('s_mov_b32 s%d, 0x00020000' % (dst + 3))

def cfma(k, dr, di, ar, ai, br, bi, cr, ci):
    k.e('v_fma_f32 %s, %s, %s, %s' % (v(dr), v(ar), v(br), v(cr)))
    k.e('v_fma_f32 %s, %s, %s, %s' % (v(di), v(ar), v(bi), v(ci)))
    k.e('v_fma_f32 %s, -%s, %s, %s' % (v(dr), v(ai), v(bi), v(dr)))
    k.e('v_fma_f32 %s, %s, %s, %s' % (v(di), v(ai), v(br), v(di)))

def cmul(k, dr, di, ar, ai, br, bi):
    k.e('v_mul_f32 %s, %s, %s' % (v(dr), v(ar), v(br)))
    k.e('v_mul_f32 %s, %s, %s' % (v(di), v(ar), v(bi)))
    k.e('v_fma_f32 %s, -%s, %s, %s' % (v(dr), v(ai), v(bi), v(dr)))
    k.e('v_fma_f32 %s, %s, %s, %s' % (v(di), v(ai), v(br), v(di)))

def rbf(k, a, t):
    k.e('v_cvt_pk_bf16_f32 %s, %s, %s' % (v(t), v(a), v(a)))
    k.e('v_lshlrev_b32 %s, 16, %s' % (v(a), v(t)))

def rbf2(k, a, b, t):
    k.e('v_cvt_pk_bf16_f32 %s, %s, %s' % (v(t), v(a), v(b)))
    k.e('v_lshlrev_b32 %s, 16, %s' % (v(a), v(t)))
    k.e('v_and_b32 %s, 0xffff0000, %s' % (v(b), v(t)))

def lam_params(k, lre, lim, ldt, Lr, Li, t0, t1):
    k.e('v_lshlrev_b32 %s, 16, %s' % (v(lre), v(lre)))
    k.e('v_lshlrev_b32 %s, 16, %s' % (v(lim), v(lim)))
    k.e('v_lshlrev_b32 %s, 16, %s' % (v(ldt), v(ldt)))
    k.e('v_mul_f32 %s, 0x%x, %s' % (v(t0), LOG2E, v(ldt)))
    k.e('v_exp_f32 %s, %s' % (v(t0), v(t0)))
    k.nop(1)
    rbf(k, t0, t1)
    k.e('v_mul_f32 %s, %s, %s' % (v(t1), v(t0), v(lre)))
    k.e('v_mul_f32 %s, %s, %s' % (v(t0), v(t0), v(lim)))
    k.e('v_mul_f32 %s, 0x%x, %s' % (v(t1), LOG2E, v(t1)))
    k.e('v_mul_f32 %s, 0x%x, %s' % (v(t0), INV2PI, v(t0)))
    k.e('v_exp_f32 %s, %s' % (v(t1), v(t1)))
    k.e('v_fract_f32 %s, %s' % (v(t0), v(t0)))
    k.e('v_cos_f32 %s, %s' % (v(Lr), v(t0)))
    k.e('v_sin_f32 %s, %s' % (v(Li), v(t0)))
    k.nop(1)
    k.e('v_mul_f32 %s, %s, %s' % (v(Lr), v(Lr), v(t1)))
    k.e('v_mul_f32 %s, %s, %s' % (v(Li), v(Li), v(t1)))

def finish(k, nvgpr, nsgpr=96):
    if DEBUG: nvgpr = 256; nsgpr = 102
    if TL: nsgpr = 102
    out = []
    out.append('.globl %s' % k.name)
    out.append('.p2align 8')
    out.append('.type %s,@function' % k.name)
    out.append('%s:' % k.name)
    out += k.L
    desc = []
    desc.append('.p2align 6')
    desc.append('.amdhsa_kernel %s' % k.name)
    desc.append('  .amdhsa_next_free_vgpr %d' % nvgpr)
    desc.append('  .amdhsa_next_free_sgpr %d' % nsgpr)
    desc.append('  .amdhsa_accum_offset %d' % ((nvgpr + 3) // 4 * 4))
    desc.append('  .amdhsa_group_segment_fixed_size 0')
    desc.append('  .amdhsa_kernarg_size 144')
    desc.append('  .amdhsa_user_sgpr_count 2')
    desc.append('  .amdhsa_user_sgpr_kernarg_segment_ptr 1')
    desc.append('  .amdhsa_system_sgpr_workgroup_id_x 1')
    desc.append('.end_amdhsa_kernel')
    return out, desc

def dma_voff(k, dst, rowbase_s, pitch_s, colbase_s, tr, I3, I4, I7, tmp, hb=False):
    for j in range(2):
        if tr:
            k.e('v_and_b32 %s, 1, %s' % (v(tmp), v(I4)))
            k.e('v_lshlrev_b32 %s, 2, %s' % (v(tmp), v(tmp)))
        else:
            k.e('v_add_u32 %s, %d, %s' % (v(tmp), 4 * j, v(I4)))
            k.e('v_and_b32 %s, 7, %s' % (v(tmp), v(tmp)))
        k.e('v_xor_b32 %s, %s, %s' % (v(tmp), v(tmp), v(I7)))
        if hb:
            k.e('v_and_b32 %s, 4, %s' % (v(dst + j), v(tmp)))
            k.e('v_add_u32 %s, %s, %s' % (v(tmp), v(tmp), v(dst + j)))
        k.e('v_lshlrev_b32 %s, 4, %s' % (v(tmp), v(tmp)))
        k.e('v_add_u32 %s, s%d, %s' % (v(dst + j), rowbase_s, v(I3)))
        if j:
            k.e('v_add_u32 %s, 8, %s' % (v(dst + j), v(dst + j)))
        k.e('v_mul_lo_u32 %s, %s, s%d' % (v(dst + j), v(dst + j), pitch_s))
        k.e('v_add_u32 %s, %s, %s' % (v(dst + j), v(dst + j), v(tmp)))
        k.e('v_add_u32 %s, s%d, %s' % (v(dst + j), colbase_s, v(dst + j)))
        if j:
            k.e('v_subrev_u32 %s, 1024, %s' % (v(dst + j), v(dst + j)))

def pat_direct(k, dst, sub_s, base, LANE, t0, t1):
    k.e('v_and_b32 %s, 31, %s' % (v(t0), v(LANE)))
    k.e('v_lshrrev_b32 %s, 1, %s' % (v(t1), v(t0)))
    k.e('v_and_b32 %s, 7, %s' % (v(t1), v(t1)))
    k.e('v_lshrrev_b32 %s, 5, %s' % (v(dst), v(LANE)))
    k.e('v_xor_b32 %s, %s, %s' % (v(t1), v(t1), v(dst)))
    k.e('v_lshlrev_b32 %s, 4, %s' % (v(t1), v(t1)))
    k.e('v_lshl_add_u32 %s, %s, 7, %s' % (v(t1), v(t0), v(t1)))
    k.e('v_add_u32 %s, s%d, %s' % (v(t1), sub_s, v(t1)))
    if base:
        k.e('v_add_u32 %s, %d, %s' % (v(t1), base, v(t1)))
    for kk in range(4):
        k.e('v_xor_b32 %s, %d, %s' % (v(dst + kk), kk << 5, v(t1)))
        k.e('v_add_u32 %s, 65536, %s' % (v(dst + 4 + kk), v(dst + kk)))

def pat_tr(k, dst, subchunk_s, base, LANE, t0, t1, t2):
    k.e('v_and_b32 %s, 15, %s' % (v(t0), v(LANE)))
    k.e('v_lshrrev_b32 %s, 4, %s' % (v(t1), v(LANE)))
    k.e('v_and_b32 %s, 1, %s' % (v(t1), v(t1)))
    k.e('v_lshlrev_b32 %s, 1, %s' % (v(t1), v(t1)))
    k.e('v_bfe_u32 %s, %s, 1, 1' % (v(t2), v(t0)))
    k.e('v_add_u32 %s, %s, %s' % (v(t1), v(t1), v(t2)))
    k.e('v_add_u32 %s, s%d, %s' % (v(t1), subchunk_s, v(t1)))
    k.e('v_bfe_u32 %s, %s, 3, 1' % (v(t2), v(t0)))
    k.e('v_lshlrev_b32 %s, 2, %s' % (v(t2), v(t2)))
    k.e('v_xor_b32 %s, %s, %s' % (v(t1), v(t1), v(t2)))
    k.e('v_lshlrev_b32 %s, 4, %s' % (v(t1), v(t1)))
    k.e('v_and_b32 %s, 1, %s' % (v(t2), v(t0)))
    k.e('v_lshl_add_u32 %s, %s, 3, %s' % (v(t1), v(t2), v(t1)))
    k.e('v_lshrrev_b32 %s, 2, %s' % (v(t2), v(t0)))
    k.e('v_lshrrev_b32 %s, 5, %s' % (v(t0), v(LANE)))
    k.e('v_lshl_add_u32 %s, %s, 3, %s' % (v(t2), v(t0), v(t2)))
    k.e('v_lshl_add_u32 %s, %s, 7, %s' % (v(dst), v(t2), v(t1)))
    if base:
        k.e('v_add_u32 %s, %d, %s' % (v(dst), base, v(dst)))
    k.e('v_add_u32 %s, 65536, %s' % (v(dst + 1), v(dst)))

def read_frag(k, dstreg, mode, pat, slot, kk):
    sset = slot // 4; off = (slot % 4) * 16384
    if mode == 'd':
        k.e('ds_read_b128 %s, %s offset:%d' % (v(dstreg, 4), v(pat + 4 * sset + kk), off))
        return 1
    else:
        k.e('ds_read_b64_tr_b16 %s, %s offset:%d' % (v(dstreg, 2), v(pat + sset), off + kk * 2048))
        k.e('ds_read_b64_tr_b16 %s, %s offset:%d' % (v(dstreg + 2, 2), v(pat + sset), off + kk * 2048 + 512))
        return 2

def emit_items(k, items):
    for it in items:
        if it[0] == 'e': k.e(it[1])
        elif it[0] == 'w': k.wait_vm(it[1])
        elif it[0] == 'm': k.mark(it[1])
        elif it[0] == 'f': it[1]()
        else: k.vm(it[1], it[2])

def gemm_loop(k, stages, NS, FBUF, pro={}, sb=0):
    n = len(stages)
    if -1 in pro: emit_items(k, pro[-1]())
    for st in range(min(NS, n)):
        for g in stages[st]['issue'](st):
            emit_items(k, g)
        if st in pro: emit_items(k, pro[st]())
    yield 'prologue'
    def mfma(st, kk):
        S = stages[st]
        FA, FB = FBUF[st & 1]
        c = '0' if (S['first'] and kk == 0) else v(S['acc'], 16)
        k.e('v_mfma_f32_32x32x16_bf16 %s, %s, %s, %s' % (v(S['acc'], 16), v(FA + 4 * kk, 4), v(FB + 4 * kk, 4), c))
    for st in range(n):
        S = stages[st]
        if S.get('label'): k.label(S['label'])
        k.wait_vm('st%d' % st)
        k.e('s_barrier')
        k.stamp(sb + st)
        if S.get('pre'):
            emit_items(k, S['pre']())
        groups = [[], [], [], []]
        if st >= 1 and st + NS - 1 < n:
            groups = stages[st + NS - 1]['issue'](st + NS - 1)
        slot = st % NS
        FA, FB = FBUF[st & 1]
        for kk in range(4):
            emit_items(k, groups[kk])
            read_frag(k, FA + 4 * kk, S['modeA'], S['patA'], slot, kk)
            read_frag(k, FB + 4 * kk, S['modeB'], S['patB'], slot, kk)
            if st >= 1:
                mfma(st - 1, kk)
        if S.get('extra'):
            emit_items(k, S['extra']())
        k.e('s_waitcnt lgkmcnt(0)')
    for kk in range(4):
        mfma(n - 1, kk)

def poll_tail(k, lab_chk, lab_ok, reload_lines):
    k.e('s_cmp_eq_u32 s96, 0')
    k.e('s_cbranch_scc1 %s' % lab_ok)
    k.e('s_sub_u32 s96, s96, 1')
    k.e('s_sleep 1')
    for l in reload_lines: k.e(l)
    k.e('s_waitcnt vmcnt(0)')
    k.e('s_branch %s' % lab_chk)
    k.label(lab_ok)

def flag_store(k, lab, soff, voff_imm, cond=None):
    L = [('e', 's_cmp_lg_u32 s3, 0'), ('e', 's_cbranch_scc1 %s' % lab)]
    if cond: L += cond + [('e', 's_cbranch_scc1 %s' % lab)]
    L += [('e', 's_mov_b64 exec, 1'),
          ('e', 'buffer_store_dword v250, off, s[16:19], %s offset:%d sc1' % (soff, voff_imm)),
          ('e', 's_mov_b64 exec, -1'), ('e', '%s:' % lab)]
    return L
def gen_p1(k):
    NS = 6; STG = 24576; NST = 8
    XOFF = NS * STG
    TB = 131072
    k.e('s_cmp_ge_u32 s2, 256')
    k.e('s_cbranch_scc1 K_END')
    load_kernargs(k)
    k.e('s_memrealtime s[84:85]')
    k.tl(0)
    k.e('v_and_b32 v1, 63, v0')
    k.e('v_lshrrev_b32 v2, 6, v0')
    k.e('s_mov_b32 s96, %d' % TMO)
    k.e('v_readfirstlane_b32 s3, v2')
    k.e('s_and_b32 s72, s2, 7')
    k.e('s_lshr_b32 s73, s2, 3')
    k.e('s_lshr_b32 s74, s73, 4')
    k.e('s_lshl_b32 s72, s72, 1')
    k.e('s_add_u32 s72, s72, s74')
    k.e('s_and_b32 s73, s73, 15')
    k.e('s_lshl_b32 s74, s72, 7')
    k.e('s_lshl_b32 s75, s73, 5')
    XR0, XR1, GW = 168, 172, 176
    PLRE, PLIM, PLDT = 180, 181, 182
    k.e('s_lshl_b32 s76, s73, 3')
    k.e('s_add_u32 s76, s76, s74')
    k.e('s_lshl_b32 s77, s3, 1')
    k.e('s_add_u32 s76, s76, s77')
    k.e('s_lshl_b32 s77, s76, 10')
    k.e('v_lshlrev_b32 v2, 4, v1')
    k.e('v_and_b32 v3, 31, v1')
    k.e('v_add_u32 v14, s75, v3')
    k.e('v_lshlrev_b32 v248, 3, v14')
    k.e('v_lshlrev_b32 v14, 1, v14')
    VA = 8; VB = 12
    k.e('v_lshrrev_b32 v4, 3, v1')
    k.e('v_lshrrev_b32 v5, 4, v1')
    k.e('v_and_b32 v6, 7, v1')
    k.e('s_lshl_b32 s78, s3, 5')
    k.e('s_add_u32 s78, s78, s74')
    for j in range(4):
        k.e('v_add_u32 v7, %d, v5' % (4 * j))
        k.e('v_and_b32 v7, 7, v7')
        k.e('v_xor_b32 v7, v7, v6')
        k.e('v_lshlrev_b32 v7, 4, v7')
        k.e('v_add_u32 %s, s78, v4' % v(VA + j))
        k.e('v_add_u32 %s, %d, %s' % (v(VA + j), 7 * j, v(VA + j)))
        k.e('v_lshlrev_b32 %s, 10, %s' % (v(VA + j), v(VA + j)))
        k.e('v_add_u32 %s, %s, v7' % (v(VA + j), v(VA + j)))
    k.e('s_and_b32 s79, s3, 1')
    k.e('s_lshl_b32 s79, s79, 4')
    k.e('s_add_u32 s79, s79, s75')
    for j in range(2):
        k.e('v_add_u32 v7, %d, v5' % (4 * j))
        k.e('v_and_b32 v7, 7, v7')
        k.e('v_xor_b32 v7, v7, v6')
        k.e('v_lshlrev_b32 v7, 4, v7')
        k.e('v_add_u32 %s, s79, v4' % v(VB + j))
        k.e('v_add_u32 %s, %d, %s' % (v(VB + j), 7 * j, v(VB + j)))
        k.e('v_lshlrev_b32 %s, 10, %s' % (v(VB + j), v(VB + j)))
        k.e('v_add_u32 %s, %s, v7' % (v(VB + j), v(VB + j)))
    k.e('s_lshl_b32 s80, s3, 12')
    k.e('s_lshl_b32 s81, s3, 11')
    k.e('s_add_u32 s81, s81, 16384')
    k.e('v_lshlrev_b32 v242, 11, v4')
    k.e('v_lshl_add_u32 v242, v6, 4, v242')
    k.e('v_lshrrev_b32 v7, 5, v1')
    k.e('v_lshlrev_b32 v233, 2, v7')
    k.e('v_xor_b32 v233, v233, v6')
    k.e('v_lshlrev_b32 v233, 4, v233')
    k.e('v_lshl_add_u32 v233, v4, 7, v233')
    k.e('s_add_u32 s82, s80, %d' % TB)
    k.e('v_add_u32 v233, s82, v233')
    k.e('v_lshlrev_b32 v232, 6, v7')
    k.e('v_lshl_add_u32 v232, v3, 1, v232')
    k.e('v_lshl_add_u32 v232, v7, 9, v232')
    k.e('v_add_u32 v232, s82, v232')
    k.e('v_xor_b32 v249, 64, v232')
    k.e('v_lshlrev_b32 v243, 7, v1')
    k.e('s_mov_b32 s97, s72')
    k.e('s_lshl_b32 s98, s78, 11')
    k.e('s_lshl_b32 s99, s73, 7')
    k.e('s_add_u32 s98, s98, s99')
    k.e('s_add_u32 s98, s98, %d' % WS_HB)
    k.e('s_lshl_b32 s100, s72, 11')
    k.e('s_add_u32 s99, s99, s100')
    k.e('s_add_u32 s99, s99, %d' % WS_FA)
    PA = 16; PB = 28
    k.e('v_lshrrev_b32 v4, 5, v1')
    k.e('v_lshrrev_b32 v5, 1, v3')
    k.e('v_and_b32 v5, 7, v5')
    k.e('v_xor_b32 v5, v5, v4')
    k.e('v_lshlrev_b32 v5, 4, v5')
    k.e('v_lshl_add_u32 v5, v3, 7, v5')
    for kk in range(4):
        k.e('v_xor_b32 %s, %d, v5' % (v(PB + kk), kk << 5))
        k.e('v_add_u32 %s, s80, %s' % (v(PA + kk), v(PB + kk)))
        for st in (1, 2):
            k.e('v_add_u32 %s, %d, %s' % (v(PB + 4 * st + kk), 49152 * st, v(PB + kk)))
            k.e('v_add_u32 %s, %d, %s' % (v(PA + 4 * st + kk), 49152 * st, v(PA + kk)))
    k.e('s_waitcnt lgkmcnt(0)')
    k.stamp(60)
    srd(k, 4, A_X, 2 << 20)
    k.e('s_cmp_ge_u32 s3, 2')
    k.e('s_cselect_b32 s8, s%d, s%d' % (P(A_BIM), P(A_BRE)))
    k.e('s_cselect_b32 s9, s%d, s%d' % (P(A_BIM) + 1, P(A_BRE) + 1))
    k.e('s_and_b32 s9, s9, 0xffff')
    k.e('s_mov_b32 s10, 0x80000')
    k.e('s_mov_b32 s11, 0x00020000')
    srd(k, 32, GATE, 1024)
    srd(k, 16, WS, WS_SZ)
    srd(k, 12, DBG, 256)
    k.e('s_or_b32 s83, s2, s3')
    k.e('s_cmp_lg_u32 s83, 0')
    k.e('s_cbranch_scc1 P1_NOZ')
    k.e('s_or_b32 s84, s84, 1')
    k.e('v_mov_b32 v6, s84')
    k.e('s_mov_b64 exec, 1')
    k.e('buffer_store_dword v6, off, s[12:15], 0 sc1')
    k.e('s_mov_b64 exec, -1')
    k.label('P1_NOZ')
    k.vm('buffer_load_dwordx4 %s, v2, s[4:7], s77 offen' % v(XR0, 4), 'ln')
    k.vm('buffer_load_dwordx4 %s, v2, s[4:7], s77 offen offset:1024' % v(XR1, 4), 'ln')
    k.vm('buffer_load_dwordx4 %s, v2, s[32:35], 0 offen' % v(GW, 4), 'ln')
    def issue_groups(st):
        slot = (st % NS) * STG
        tg = 'st%d' % st
        g = [[('e', 's_mov_b32 s82, %d' % (st * 128)), ('e', 's_add_u32 m0, s80, %d' % slot), ('e', 's_nop 0')], [], [], []]
        for j in range(4):
            g[j // 2].append(('v', 'buffer_load_dwordx4 %s, s[4:7], s82 offen offset:%d lds' % (v(VA + j), 1024 * j), tg))
        g[2] += [('e', 's_add_u32 m0, s81, %d' % slot), ('e', 's_nop 0')]
        for j in range(2):
            g[2 + j].append(('v', 'buffer_load_dwordx4 %s, s[8:11], s82 offen offset:%d lds' % (v(VB + j), 1024 * j), tg))
        return g
    def issue_stage(st):
        for g in issue_groups(st): emit_items(k, g)
    issue_stage(0)
    srd(k, 20, A_LRE, 1024); srd(k, 24, A_LIM, 1024); srd(k, 28, A_LDT, 1024)
    k.vm('buffer_load_ushort %s, v14, s[20:23], 0 offen' % v(PLRE), 'par')
    k.vm('buffer_load_ushort %s, v14, s[24:27], 0 offen' % v(PLIM), 'par')
    k.vm('buffer_load_ushort %s, v14, s[28:31], 0 offen' % v(PLDT), 'par')
    k.e('v_mov_b32 v4, -1'); k.e('v_mov_b32 v5, -1')
    k.e('s_lshl_b32 s101, s72, 12')
    k.e('s_add_u32 s101, s101, %d' % WS_E)
    k.vm('buffer_store_dwordx2 v[4:5], v248, s[16:19], s101 offen sc1', 'mk')
    issue_stage(1)
    issue_stage(2)
    k.stamp(1)
    k.wait_vm('ln')
    k.stamp(2)
    X = [100, 110]
    G = 120
    def unpack8(dst, src):
        for i in range(4):
            k.e('v_lshlrev_b32 %s, 16, %s' % (v(dst + 2 * i), v(src + i)))
            k.e('v_and_b32 %s, 0xffff0000, %s' % (v(dst + 2 * i + 1), v(src + i)))
    unpack8(X[0], XR0); unpack8(X[1], XR1); unpack8(G, GW)
    SUM = [130, 131]; GS = [132, 133]; TT = 134
    for r in range(2):
        k.e('v_add_f32 %s, %s, %s' % (v(SUM[r]), v(X[r]), v(X[r] + 1)))
        for i in range(2, 8):
            k.e('v_add_f32 %s, %s, %s' % (v(SUM[r]), v(SUM[r]), v(X[r] + i)))
        for i in range(8):
            k.e('v_mul_f32 %s, %s, %s' % (v(TT + i), v(X[r] + i), v(G + i)))
        for i in range(0, 8, 2):
            rbf2(k, TT + i, TT + i + 1, TT + 8)
        k.e('v_add_f32 %s, %s, %s' % (v(GS[r]), v(TT), v(TT + 1)))
        for i in range(2, 8):
            k.e('v_add_f32 %s, %s, %s' % (v(GS[r]), v(GS[r]), v(TT + i)))
    def wave_reduce(regs, sdst):
        for ctl in ('quad_perm:[1,0,3,2] row_mask:0xf bank_mask:0xf', 'quad_perm:[2,3,0,1] row_mask:0xf bank_mask:0xf',
                    'row_half_mirror row_mask:0xf bank_mask:0xf', 'row_mirror row_mask:0xf bank_mask:0xf',
                    'row_bcast:15 row_mask:0xa bank_mask:0xf', 'row_bcast:31 row_mask:0xc bank_mask:0xf'):
            k.nop(2)
            for r in regs:
                k.e('v_add_f32_dpp %s, %s, %s %s' % (v(r), v(r), v(r), ctl))
        k.nop(1)
        for r, sd in zip(regs, sdst):
            k.e('v_readlane_b32 s%d, %s, 63' % (sd, v(r)))
        k.nop(2)
    wave_reduce([SUM[0], SUM[1], GS[0], GS[1]], [84, 85, 86, 87])
    issue_stage(3)
    MEAN = [140, 141]; SQ = [142, 143]
    for r in range(2):
        k.e('v_mov_b32 %s, 0x3b000000' % v(MEAN[r]))
        k.e('v_mul_f32 %s, s%d, %s' % (v(MEAN[r]), 84 + r, v(MEAN[r])))
        k.e('v_sub_f32 %s, %s, %s' % (v(TT), v(X[r]), v(MEAN[r])))
        k.e('v_mul_f32 %s, %s, %s' % (v(SQ[r]), v(TT), v(TT)))
        for i in range(1, 8):
            k.e('v_sub_f32 %s, %s, %s' % (v(TT), v(X[r] + i), v(MEAN[r])))
            k.e('v_fmac_f32 %s, %s, %s' % (v(SQ[r]), v(TT), v(TT)))
    wave_reduce(SQ, [88, 89])
    issue_stage(4)
    HO = [150, 154]
    for r in range(2):
        SD = 144; RC = 145; Q = 146; E_ = 147
        k.e('v_mov_b32 %s, 0x3b000000' % v(SD))
        k.e('v_mul_f32 %s, s%d, %s' % (v(SD), 88 + r, v(SD)))
        rbf(k, SD, TT)
        k.e('v_add_f32 %s, 0x3727c5ac, %s' % (v(SD), v(SD)))
        rbf(k, SD, TT)
        k.e('v_sqrt_f32 %s, %s' % (v(SD), v(SD)))
        k.nop(1)
        rbf(k, SD, TT)
        k.e('v_rcp_f32 %s, %s' % (v(RC), v(SD)))
        rbf(k, MEAN[r], TT)
        for i in range(8):
            k.e('v_sub_f32 %s, %s, %s' % (v(X[r] + i), v(X[r] + i), v(MEAN[r])))
        for i in range(0, 8, 2):
            rbf2(k, X[r] + i, X[r] + i + 1, TT)
        for i in range(8):
            k.e('v_mul_f32 %s, %s, %s' % (v(Q), v(X[r] + i), v(RC)))
            k.e('v_fma_f32 %s, -%s, %s, %s' % (v(E_), v(Q), v(SD), v(X[r] + i)))
            k.e('v_fma_f32 %s, %s, %s, %s' % (v(X[r] + i), v(E_), v(RC), v(Q)))
        for i in range(4):
            k.e('v_cvt_pk_bf16_f32 %s, %s, %s' % (v(HO[r] + i), v(X[r] + 2 * i), v(X[r] + 2 * i + 1)))
        k.e('v_mov_b32 %s, s%d' % (v(GS[r]), 86 + r))
        rbf(k, GS[r], TT)
        k.e('v_mul_f32 %s, 0x%x, %s' % (v(GS[r]), LOG2E | 0x80000000, v(GS[r])))
        k.e('v_exp_f32 %s, %s' % (v(GS[r]), v(GS[r])))
        k.nop(1)
        k.e('v_add_f32 %s, 1.0, %s' % (v(GS[r]), v(GS[r])))
        k.e('v_rcp_f32 %s, %s' % (v(GS[r]), v(GS[r])))
        k.nop(1)
        rbf(k, GS[r], TT)
        if r == 0:
            issue_stage(5)
    k.e('s_add_u32 s83, s77, %d' % WS_H)
    k.vm('buffer_store_dwordx4 %s, v2, s[16:19], s83 offen sc1' % v(HO[0], 4), 'lnst')
    k.vm('buffer_store_dwordx4 %s, v2, s[16:19], s83 offen offset:1024 sc1' % v(HO[1], 4), 'lnst')
    k.e('s_lshr_b32 s83, s76, 3')
    k.e('s_lshl_b32 s83, s83, 7')
    k.e('s_lshl_b32 s84, s3, 3')
    k.e('s_add_u32 s83, s83, s84')
    k.e('s_add_u32 s83, s83, %d' % WS_G)
    k.e('s_mov_b64 exec, 1')
    k.vm('buffer_store_dwordx2 %s, off, s[16:19], s83 sc1' % v(GS[0], 2), 'lnst')
    k.e('s_mov_b64 exec, -1')
    LR, LI = 184, 185
    L2R, L2I, L3R, L3I, L4R, L4I = 186, 187, 188, 189, 190, 191
    L32R, L32I = 194, 195
    CFR, CFI = 234, 235
    L128 = 238
    k.wait_vm('par')
    lam_params(k, PLRE, PLIM, PLDT, LR, LI, 192, 193)
    cmul(k, L2R, L2I, LR, LI, LR, LI)
    cmul(k, L3R, L3I, L2R, L2I, LR, LI)
    cmul(k, L4R, L4I, L2R, L2I, L2R, L2I)
    cmul(k, L32R, L32I, L4R, L4I, L4R, L4I)
    cmul(k, 196, 197, L32R, L32I, L32R, L32I)
    cmul(k, L32R, L32I, 196, 197, 196, 197)
    cmul(k, 236, 237, L32R, L32I, L32R, L32I)
    cmul(k, L128, L128 + 1, 236, 237, 236, 237)
    k.e('v_add_f32 v192, -1.0, %s' % v(LR))
    k.e('v_mul_f32 v193, %s, %s' % (v(PLRE), v(PLRE)))
    k.e('v_fmac_f32 v193, %s, %s' % (v(PLIM), v(PLIM)))
    k.e('v_rcp_f32 v193, v193')
    k.e('v_mul_f32 %s, v192, %s' % (v(CFR), v(PLRE)))
    k.e('v_fmac_f32 %s, %s, %s' % (v(CFR), v(LI), v(PLIM)))
    k.e('v_mul_f32 %s, %s, %s' % (v(CFI), v(LI), v(PLRE)))
    k.e('v_fma_f32 %s, -v192, %s, %s' % (v(CFI), v(PLIM), v(CFI)))
    k.e('v_add_f32 v193, v193, v193')
    k.e('v_mul_f32 %s, %s, v193' % (v(CFR), v(CFR)))
    k.e('v_mul_f32 %s, %s, v193' % (v(CFI), v(CFI)))
    k.stamp(3)
    ACR, ACI = 40, 56
    FB_ = [(72, 88, 104), (120, 136, 152)]
    FH = 244
    def fh_loads():
        return ['s_lshl_b32 s84, s3, 13', 's_add_u32 s84, s84, %d' % WS_FA,
                'buffer_load_dword %s, v243, s[16:19], s84 offen sc1' % v(FH)]
    def mfma(st, kk):
        FA, FBR, FBI = FB_[st & 1]
        c = '0' if (st == 0 and kk == 0) else v(ACR, 16)
        k.e('v_mfma_f32_32x32x16_bf16 %s, %s, %s, %s' % (v(ACR, 16), v(FA + 4 * kk, 4), v(FBR + 4 * kk, 4), c))
        c = '0' if (st == 0 and kk == 0) else v(ACI, 16)
        k.e('v_mfma_f32_32x32x16_bf16 %s, %s, %s, %s' % (v(ACI, 16), v(FA + 4 * kk, 4), v(FBI + 4 * kk, 4), c))
    for st in range(NST):
        k.wait_vm('st%d' % st)
        k.e('s_barrier')
        k.stamp(4 + st)
        if st == GOL:
            k.e('s_cmp_lg_u32 s3, 0')
            k.e('s_cbranch_scc1 P1_NOGL')
            k.e('buffer_load_dword v250, off, s[12:15], 0 sc1')
            k.label('P1_NOGL')
            k.mark('go')
        if st == GOC:
            k.e('s_cmp_lg_u32 s3, 0')
            k.e('s_cbranch_scc1 P1_NOFH')
            k.wait_vm('go')
            k.label('P1_GOCHK')
            k.e('v_readfirstlane_b32 s84, v250')
            k.e('s_cmp_lg_u32 s84, 0')
            k.e('s_cbranch_scc1 P1_GOOK')
            poll_tail(k, 'P1_GOCHK', 'P1_GOOK', ['buffer_load_dword v250, off, s[12:15], 0 sc1'])
            k.e('s_mov_b64 exec, 1')
            k.e('buffer_store_dword v250, off, s[16:19], s99 sc1')
            k.e('v_mov_b32 v4, %d' % (XOFF + 1024))
            k.e('ds_write_b32 v4, v250')
            k.e('s_mov_b64 exec, -1')
            k.label('P1_NOFH')
        groups = [[], [], [], []]
        if st >= 1 and st + NS - 1 < NST:
            groups = issue_groups(st + NS - 1)
        slot = st % NS
        sset = slot // 2
        off = (slot % 2) * STG
        FA, FBR, FBI = FB_[st & 1]
        for kk in range(4):
            emit_items(k, groups[kk])
            k.e('ds_read_b128 %s, %s offset:%d' % (v(FA + 4 * kk, 4), v(PA + 4 * sset + kk), off))
            k.e('ds_read_b128 %s, %s offset:%d' % (v(FBR + 4 * kk, 4), v(PB + 4 * sset + kk), off + 16384))
            k.e('ds_read_b128 %s, %s offset:%d' % (v(FBI + 4 * kk, 4), v(PB + 4 * sset + kk), off + 16384 + 4096))
            if st >= 1:
                mfma(st - 1, kk)
        if PFX and st == PFXST:
            srd(k, 20, B_W1, 2048 * 2752)
            k.e('s_lshr_b32 s90, s2, 3')
            k.e('s_lshl_b32 s90, s90, 6')
            k.e('s_lshl_b32 s91, s3, 4')
            k.e('s_add_u32 s90, s90, s91')
            k.e('s_and_b32 s92, s2, 7')
            k.e('s_mul_i32 s92, s92, 22')
            k.e('s_lshr_b32 s92, s92, 3')
            k.e('s_lshl_b32 s92, s92, 7')
            k.e('s_mov_b32 s93, 2752')
            k.e('v_lshrrev_b32 v4, 2, v1')
            k.e('v_add_u32 v4, s90, v4')
            k.e('v_mul_lo_u32 v4, v4, s93')
            k.e('v_and_b32 v5, 3, v1')
            k.e('v_lshl_add_u32 v4, v5, 7, v4')
            k.vm('buffer_load_dword v198, v4, s[20:23], s92 offen', 'pf')
            k.e('v_and_b32 v4, 15, v1')
            k.e('v_add_u32 v4, s90, v4')
            k.e('v_mul_lo_u32 v4, v4, s93')
            k.vm('buffer_load_dword v198, v4, s[20:23], s92 offen offset:512', 'pf')
        k.e('s_waitcnt lgkmcnt(0)')
    for kk in range(4):
        mfma(NST - 1, kk)
    for l in fh_loads():
        if l.startswith('buffer'): k.vm(l, 'fh')
        else: k.e(l)
    k.e('v_lshlrev_b32 v6, 3, v3')
    k.e('v_add_u32 v6, %d, v6' % XOFF)
    k.e('s_lshl_b32 s83, s3, 8')
    k.e('v_add_u32 v7, s83, v6')
    k.nop(10)
    k.stamp(12)
    for j in range(1, 4):
        for q in range(4):
            r = 4 * q + j
            cfma(k, ACR + r, ACI + r, LR, LI, ACR + r - 1, ACI + r - 1, ACR + r, ACI + r)
    EV, OD = 72, 80
    for q in range(4):
        k.e('v_mov_b32 %s, %s' % (v(EV + q), v(ACR + 4 * q + 3)))
        k.e('v_mov_b32 %s, %s' % (v(OD + q), v(ACR + 4 * q + 3)))
        k.e('v_mov_b32 %s, %s' % (v(EV + 4 + q), v(ACI + 4 * q + 3)))
        k.e('v_mov_b32 %s, %s' % (v(OD + 4 + q), v(ACI + 4 * q + 3)))
    k.nop(2)
    for q in range(8):
        k.e('v_permlane32_swap_b32 %s, %s' % (v(EV + q), v(OD + q)))
    k.nop(2)
    CR, CI = 88, 97
    pr, pi_ = EV, EV + 4
    for i in range(1, 8):
        er = (EV if i % 2 == 0 else OD) + i // 2
        dr, di = (126, 127) if i == 7 else (CR + i, CI + i)
        cfma(k, dr, di, L4R, L4I, pr, pi_, er, er + 4)
        pr, pi_ = dr, di
    k.e('ds_write_b64 v7, v[126:127]')
    k.e('s_waitcnt lgkmcnt(0)')
    k.e('s_barrier')
    EW = 110
    for w in range(4):
        k.e('ds_read_b64 %s, v6 offset:%d' % (v(EW + 2 * w, 2), 256 * w))
    k.e('v_mov_b32 v4, %d' % (XOFF + 1024))
    k.e('ds_read_b32 v250, v4')
    k.e('s_waitcnt lgkmcnt(0)')
    cfma(k, 118, 119, L32R, L32I, EW, EW + 1, EW + 2, EW + 3)
    cfma(k, 120, 121, L32R, L32I, 118, 119, EW + 4, EW + 5)
    cfma(k, 122, 123, L32R, L32I, 120, 121, EW + 6, EW + 7)
    k.vm('buffer_store_dwordx2 v[122:123], v248, s[16:19], s101 offen sc1', 'est')
    k.stamp(13)
    k.tl(1)
    k.wait_vm('fh')
    k.label('P1_FHCHK')
    k.e('v_cmp_ne_u32 vcc, v250, %s' % v(FH))
    k.e('s_cbranch_vccz P1_FHOK')
    poll_tail(k, 'P1_FHCHK', 'P1_FHOK', fh_loads())
    k.e('s_barrier')
    k.stamp(14)
    k.tl(2)
    EB = 200
    def e_loads():
        L = []
        for c in range(15):
            L.append('s_mov_b32 s84, %d' % (WS_E + c * 4096))
            L.append('buffer_load_dwordx2 %s, v248, s[16:19], s84 offen sc1' % v(EB + 2 * c, 2))
        return L
    for l in e_loads():
        if l.startswith('buffer'): k.vm(l, 'e')
        else: k.e(l)
    yield 'mid'
    for r in range(16):
        k.e('v_mul_f32 v124, %s, %s' % (v(CFI), v(ACR + r)))
        k.e('v_mul_f32 %s, %s, %s' % (v(ACR + r), v(CFR), v(ACR + r)))
        k.e('v_fma_f32 %s, -%s, %s, %s' % (v(ACR + r), v(CFI), v(ACI + r), v(ACR + r)))
        k.e('v_fma_f32 %s, -%s, %s, -v124' % (v(ACI + r), v(CFR), v(ACI + r)))
    yield 'mid2'
    k.stamp(15)
    k.label('P1_ECHK')
    k.e('s_mov_b64 s[84:85], 0')
    for c in range(15):
        k.e('s_cmp_le_u32 s97, %d' % c)
        k.e('s_cbranch_scc1 P1_EC2')
        k.e('v_cmp_eq_u32 vcc, -1, %s' % v(EB + 2 * c))
        k.e('s_or_b64 s[84:85], s[84:85], vcc')
        k.e('v_cmp_eq_u32 vcc, -1, %s' % v(EB + 2 * c + 1))
        k.e('s_or_b64 s[84:85], s[84:85], vcc')
    k.label('P1_EC2')
    k.e('s_cmp_eq_u64 s[84:85], 0')
    k.e('s_cbranch_scc1 P1_EOK')
    poll_tail(k, 'P1_ECHK', 'P1_EOK', e_loads())
    k.stamp(16)
    k.tl(3)
    U = 240
    k.e('v_mov_b32 %s, 0' % v(U)); k.e('v_mov_b32 %s, 0' % v(U + 1))
    for c in range(15):
        k.e('s_cmp_le_u32 s97, %d' % c)
        k.e('s_cbranch_scc1 P1_CL')
        k.e('v_pk_fma_f32 %s, %s, %s, %s op_sel_hi:[0,1,1]' % (v(EB + 2 * c, 2), v(L128, 2), v(U, 2), v(EB + 2 * c, 2)))
        k.e('v_pk_fma_f32 %s, %s, %s, %s op_sel:[1,1,0] op_sel_hi:[1,0,1] neg_lo:[1,0,0]' % (v(U, 2), v(L128, 2), v(U, 2), v(EB + 2 * c, 2)))
    k.label('P1_CL')
    cfma(k, 118, 119, L32R, L32I, U, U + 1, EW, EW + 1)
    cfma(k, 120, 121, L32R, L32I, 118, 119, EW + 2, EW + 3)
    cfma(k, 122, 123, L32R, L32I, 120, 121, EW + 4, EW + 5)
    k.e('v_mov_b32 %s, %s' % (v(CR), v(U))); k.e('v_mov_b32 %s, %s' % (v(CI), v(U + 1)))
    for w, (a, b) in ((1, (118, 119)), (2, (120, 121)), (3, (122, 123))):
        k.e('s_cmp_eq_u32 s3, %d' % w)
        k.e('s_cselect_b64 vcc, -1, 0')
        k.e('v_cndmask_b32 %s, %s, %s, vcc' % (v(CR), v(CR), v(a)))
        k.e('v_cndmask_b32 %s, %s, %s, vcc' % (v(CI), v(CI), v(b)))
    for i in range(0, 7):
        er = (EV if i % 2 == 0 else OD) + i // 2
        cfma(k, CR + i + 1, CI + i + 1, L4R, L4I, CR + i, CI + i, er, er + 4)
    k.e('v_cmp_lt_u32 vcc, 31, v1')
    OWR, OWI = 106, 110
    k.nop(1)
    for q in range(4):
        k.e('v_cndmask_b32 %s, %s, %s, vcc' % (v(114 + q), v(CR + 2 * q), v(CR + 2 * q + 1)))
        k.e('v_cndmask_b32 %s, %s, %s, vcc' % (v(118 + q), v(CI + 2 * q), v(CI + 2 * q + 1)))
    for q in range(4):
        cmul(k, OWR + q, OWI + q, CFR, CFI, 114 + q, 118 + q)
    LP = [(LR, LI), (L2R, L2I), (L3R, L3I), (L4R, L4I)]
    for q in range(4):
        for j in range(4):
            r = 4 * q + j
            lr, li_ = LP[j]
            k.e('v_fma_f32 %s, %s, %s, %s' % (v(ACR + r), v(lr), v(OWR + q), v(ACR + r)))
            k.e('v_fma_f32 %s, -%s, %s, %s' % (v(ACI + r), v(lr), v(OWI + q), v(ACI + r)))
            k.e('v_fma_f32 %s, -%s, %s, %s' % (v(ACR + r), v(li_), v(OWI + q), v(ACR + r)))
            k.e('v_fma_f32 %s, -%s, %s, %s' % (v(ACI + r), v(li_), v(OWR + q), v(ACI + r)))
            k.e('v_cvt_pk_bf16_f32 %s, %s, %s' % (v(ACR + r), v(ACR + r), v(ACI + r)))
            k.e('ds_write_b16 v232, %s offset:%d' % (v(ACR + r), (8 * q + j) * 128))
            k.e('ds_write_b16_d16_hi v249, %s offset:%d' % (v(ACR + r), (8 * q + j) * 128))
    k.e('s_waitcnt lgkmcnt(0)')
    for n in range(4):
        k.e('ds_read_b128 %s, v233 offset:%d' % (v(72 + 4 * n, 4), 1024 * n))
    for n in range(4):
        k.e('s_waitcnt lgkmcnt(%d)' % (3 - n))
        k.e('s_add_u32 s84, s98, %d' % (n * 16384))
        k.vm('buffer_store_dwordx4 %s, v242, s[16:19], s84 offen sc1' % v(72 + 4 * n, 4), 'hb')
    k.stamp(17)
    k.tl(4)
    yield 'done'
def fc1_setup(k):
    k.e('s_and_b32 s72, s2, 7')
    k.e('s_lshr_b32 s73, s2, 3')
    k.e('s_mov_b32 s101, s73')
    k.e('s_mul_i32 s74, s72, 22')
    k.e('s_add_u32 s74, s74, s73')
    k.e('s_lshl_b32 s100, s74, 7')
    k.e('s_add_u32 s100, s100, %d' % WS_FU)
    k.e('s_and_b32 s75, s74, 7')
    k.e('s_lshl_b32 s75, s75, 6')
    k.e('s_lshr_b32 s74, s74, 3')
    k.e('s_lshl_b32 s74, s74, 6')
    k.e('s_lshr_b32 s76, s3, 1')
    k.e('s_and_b32 s77, s3, 1')
    k.e('v_lshrrev_b32 v2, 5, v1')
    k.e('v_lshlrev_b32 v2, 3, v2')
    k.e('s_lshl_b32 s78, s76, 5')
    k.e('s_add_u32 s78, s78, s74')
    k.e('s_lshl_b32 s79, s78, 1')
    k.e('v_add_u32 v2, s79, v2')
    I3, I4, I7 = 4, 5, 6
    k.e('v_lshrrev_b32 v4, 3, v1'); k.e('v_lshrrev_b32 v5, 4, v1'); k.e('v_and_b32 v6, 7, v1')
    VA, VB = 8, 10
    k.e('s_lshl_b32 s80, s3, 4')
    k.e('s_mov_b32 s81, 2752')
    k.e('s_lshl_b32 s82, s74, 1')
    dma_voff(k, VA, 80, 81, 82, True, I3, I4, I7, 7)
    k.e('s_mov_b32 s81, 1024')
    k.e('s_lshl_b32 s82, s75, 1')
    k.e('s_add_u32 s82, s82, %d' % WS_H)
    dma_voff(k, VB, 80, 81, 82, True, I3, I4, I7, 7)
    k.e('s_lshl_b32 s83, s3, 11')
    srd(k, 4, B_W1, 2048 * 2752)

def fc1_setup2(k):
    PA, PB = 12, 14
    k.e('s_lshl_b32 s86, s76, 2')
    k.e('s_lshl_b32 s87, s77, 2')
    pat_tr(k, PA, 86, 0, 1, 16, 17, 18)
    pat_tr(k, PB, 87, 8192, 1, 16, 17, 18)
    k.e('v_and_b32 v4, 31, v1')
    k.e('s_lshl_b32 s89, s77, 5')
    k.e('s_add_u32 s89, s89, s75')
    k.e('v_add_u32 v4, s89, v4')
    k.e('s_mov_b32 s90, %d' % UP)
    k.e('v_mul_lo_u32 v4, v4, s90')
    k.e('v_add_u32 v199, v4, v2')
    srd(k, 8, B_B1, 2752)

def fc1_setup_pf(k):
    k.e('s_mov_b32 s93, 2752')
    k.e('s_cmp_lt_u32 s3, 2')
    k.e('s_cselect_b32 s93, 1024, s93')
    k.e('s_lshl_b32 s92, s93, 9')
    k.e('s_mul_i32 s91, s72, 22')
    k.e('s_lshr_b32 s91, s91, 3')
    k.e('s_lshl_b32 s91, s91, 7')
    k.e('s_cmp_lt_u32 s3, 2')
    k.e('s_cselect_b32 s91, %d, s91' % WS_H)
    k.e('s_cmp_lt_u32 s3, 2')
    k.e('s_cselect_b32 s90, 8, 5')
    k.e('s_and_b32 s89, s3, 1')
    k.e('s_lshl_b32 s89, s89, 3')
    k.e('s_lshl_b32 s88, s73, 4')
    k.e('s_add_u32 s89, s89, s88')
    k.e('v_lshrrev_b32 v4, 3, v1')
    k.e('v_add_u32 v4, s89, v4')
    k.e('v_mul_lo_u32 v4, v4, s93')
    k.e('v_and_b32 v5, 7, v1')
    k.e('v_lshl_add_u32 v230, v5, 7, v4')
    k.e('v_mov_b32 v4, 0x7f000000')
    k.e('v_cmp_gt_u32 vcc, s90, v5')
    k.e('v_cndmask_b32 v230, v4, v230, vcc')
    k.e('s_cmp_lt_u32 s3, 2')
    k.e('s_cselect_b32 s12, s%d, s%d' % (P(WS), P(B_W1)))
    k.e('s_cselect_b32 s13, s%d, s%d' % (P(WS) + 1, P(B_W1) + 1))
    k.e('s_and_b32 s13, s13, 0xffff')
    k.e('s_mov_b32 s14, 0x%x' % (2048 * 2752))
    k.e('s_mov_b32 s15, 0x00020000')
    k.e('s_mov_b32 s93, s78')

def pf_slot():
    if not PF: return []
    return [('v', 'buffer_load_dword v231, v230, s[12:15], s91 offen', 'pf'), ('e', 's_add_u32 s91, s91, s92')]

HBL = 'buffer_load_dword v227, v226, s[16:19], s97 offen offset:4 sc1'
FUL = 'buffer_load_dword v229, v228, s[16:19], s98 offen sc1'
P3_VC, P3_VH, P3_VU, P3_VW = 200, 202, 204, 206
P3_PA, P3_PB, P3_PT = 180, 188, 196
P3_OUTA = 198

def p3_setup(k, part):
    I3, I4, I7 = 4, 5, 6
    if part == 0:
        k.e('s_and_b32 s72, s2, 7')
        k.e('s_lshr_b32 s73, s2, 3')
        k.e('s_lshr_b32 s74, s73, 3')
        k.e('s_lshl_b32 s72, s72, 2')
        k.e('s_add_u32 s72, s72, s74')
        k.e('s_and_b32 s73, s73, 7')
        k.e('s_lshr_b32 s86, s72, 1')
        k.e('s_lshl_b32 s86, s86, 11')
        k.e('s_add_u32 s97, s86, %d' % WS_FA)
        k.e('v_and_b32 v4, 15, v1')
        k.e('v_lshlrev_b32 v226, 7, v4')
        k.e('v_min_u32 v4, 21, v1')
        k.e('v_lshlrev_b32 v228, 10, v4')
        k.e('s_lshl_b32 s98, s73, 7')
        k.e('s_add_u32 s98, s98, %d' % WS_FU)
        k.e('s_lshl_b32 s74, s72, 6')
        k.e('s_lshl_b32 s75, s73, 6')
        k.e('s_lshr_b32 s76, s3, 1')
        k.e('s_and_b32 s77, s3, 1')
        k.e('v_and_b32 v3, 31, v1')
        k.e('s_lshl_b32 s78, s77, 5')
        k.e('s_add_u32 s78, s78, s74')
        k.e('v_add_u32 v3, s78, v3')
        k.e('v_lshrrev_b32 v176, 3, v3')
        k.e('v_lshlrev_b32 v176, 7, v176')
        k.e('v_and_b32 v4, 7, v3')
        k.e('v_lshl_add_u32 v176, v4, 2, v176')
        k.e('v_lshlrev_b32 v177, 1, v3')
        k.e('s_lshl_b32 s79, s76, 5')
        k.e('s_add_u32 s79, s79, s75')
        k.e('v_lshrrev_b32 v4, 5, v1')
        k.e('v_lshlrev_b32 v4, 2, v4')
        k.e('v_add_u32 v4, s79, v4')
        k.e('v_lshlrev_b32 v178, 1, v4')
        k.e('v_lshl_add_u32 v179, v3, 10, v178')
        k.e('v_lshlrev_b32 v%d, 1, v179' % P3_OUTA)
        k.e('v_lshrrev_b32 v4, 3, v1'); k.e('v_lshrrev_b32 v5, 4, v1'); k.e('v_and_b32 v6, 7, v1')
        k.e('s_lshl_b32 s80, s3, 4')
        k.e('s_add_u32 s81, s80, s75')
        k.e('s_add_u32 s82, s80, s74')
    elif part == 1:
        k.e('s_mov_b32 s86, 1024'); k.e('s_mov_b32 s87, 0')
        dma_voff(k, P3_VC, 81, 86, 87, False, I3, I4, I7, 7)
        k.e('s_mov_b32 s86, 2048'); k.e('s_mov_b32 s87, %d' % WS_HB)
        dma_voff(k, P3_VH, 82, 86, 87, False, I3, I4, I7, 7, hb=True)
    elif part == 2:
        k.e('s_mov_b32 s86, %d' % UP); k.e('s_mov_b32 s87, %d' % WS_U)
        dma_voff(k, P3_VU, 81, 86, 87, False, I3, I4, I7, 7)
        k.e('s_mov_b32 s86, 4096'); k.e('s_lshl_b32 s87, s74, 1')
        dma_voff(k, P3_VW, 80, 86, 87, True, I3, I4, I7, 7)
    elif part == 3:
        k.e('s_lshl_b32 s86, s76, 12')
        k.e('s_lshl_b32 s87, s77, 12')
        k.e('s_lshl_b32 s88, s77, 2')
        pat_direct(k, P3_PA, 86, 0, 1, 113, 114)
        pat_direct(k, P3_PB, 87, 8192, 1, 113, 114)
        pat_tr(k, P3_PT, 88, 8192, 1, 113, 114, 115)
    elif part == 4:
        srd(k, 20, A_CRE, 1 << 19); srd(k, 24, A_CIM, 1 << 19); srd(k, 28, B_W2, 1376 * 4096); srd(k, 32, OUT, 4 << 20)

def hb_check(k, sfx):
    k.label('HBCHK' + sfx)
    k.e('v_cmp_ne_u32 vcc, v250, v227')
    k.e('s_cbranch_vccz HBOK' + sfx)
    poll_tail(k, 'HBCHK' + sfx, 'HBOK' + sfx, [HBL])
    k.tl(7)

def g_stages(k):
    NS = 8
    VA, VB, PA, PB = 8, 10, 12, 14
    B1R = 104
    ACC = 16
    def b1_loads():
        return [('v', 'buffer_load_dwordx2 %s, v2, s[8:11], 0 offen offset:%d' % (v(B1R + 2 * q, 2), 16 * q), 'b1') for q in range(4)]
    def parts(g):
        slot = (g % NS) * 16384
        tg = 'st%d' % g
        if g < 32:
            srdA, srdB, va, vb = 4, 16, VA, VB
            oa, ob = g * 64 * 2752, g * 65536
        else:
            st = g - 32
            if st < 16:
                srdA = 20 if st % 2 == 0 else 24
                oa, ob = (st // 2) * 128, (st // 2) * 256 + (st % 2) * 64
                va, vb, srdB = P3_VC, P3_VH, 16
            else:
                srdA = 16
                oa, ob = (st - 16) * 128, (st - 16) * 262144
                va, vb, srdB = P3_VU, P3_VW, 28
        A = [[('e', 's_mov_b32 s84, %d' % oa), ('e', 's_add_u32 m0, s83, %d' % slot), ('e', 's_nop 0'),
              ('v', 'buffer_load_dwordx4 %s, s[%d:%d], s84 offen lds' % (v(va), srdA, srdA + 3), tg)],
             [('v', 'buffer_load_dwordx4 %s, s[%d:%d], s84 offen offset:1024 lds' % (v(va + 1), srdA, srdA + 3), tg)]]
        B = [[('e', 's_mov_b32 s85, %d' % ob), ('e', 's_add_u32 m0, s83, %d' % (slot + 8192)), ('e', 's_nop 0'),
              ('v', 'buffer_load_dwordx4 %s, s[%d:%d], s85 offen lds' % (v(vb), srdB, srdB + 3), tg)],
             [('v', 'buffer_load_dwordx4 %s, s[%d:%d], s85 offen offset:1024 lds' % (v(vb + 1), srdB, srdB + 3), tg)]]
        return A, B
    GU = 32 + UC
    def issue(g):
        A, B = parts(g)
        if g >= 48 and g - 7 < GU:
            return [[], [], B[0], B[1]]
        return A + B
    ACA, ACB = 160, 208
    GR, B2R, XR, DR = 224, 225, 232, 240
    stages = []
    for g in range(70):
        if g < 32:
            stages.append(dict(issue=issue, modeA='t', patA=PA, modeB='t', patB=PB, acc=ACC, first=(g == 0)))
        elif g < 48:
            stages.append(dict(issue=issue, modeA='d', patA=P3_PA, modeB='d', patB=P3_PB, acc=ACA, first=(g == 32)))
        else:
            stages.append(dict(issue=issue, modeA='d', patA=P3_PA, modeB='t', patB=P3_PT, acc=ACB, first=(g == 48)))
    for g in PF2: stages[g]['extra'] = pf_slot
    stages[12]['extra'] = b1_loads
    stages[8]['pre'] = lambda: flag_store(k, 'F_HBFL', 's99', 4)
    for i in range(5):
        stages[13 + i]['extra'] = (lambda i=i: [('f', lambda: p3_setup(k, i))])
    stages[20]['extra'] = lambda: [('v', HBL, 'fhb')]
    stages[25]['pre'] = lambda: [('w', 'fhb'), ('f', lambda: hb_check(k, 'F'))]
    stages[32]['label'] = 'G32'
    B1F, T, UO = 64, 80, 96
    def f2u(x): return struct.unpack('<I', struct.pack('<f', x))[0]
    C1 = f2u(0.044715); C2 = f2u(-2.0 * 1.4426950408889634 * 0.7978845608028654)
    def ep(i):
        lab = 'F_EP%d' % i
        k.e('s_cmp_ge_u32 s101, 22')
        k.e('s_cbranch_scc1 %s' % lab)
        if i == 0:
            k.tl(5)
            for j in range(8):
                k.e('v_lshlrev_b32 %s, 16, %s' % (v(B1F + 2 * j), v(B1R + j)))
                k.e('v_and_b32 %s, 0xffff0000, %s' % (v(B1F + 2 * j + 1), v(B1R + j)))
            for r in range(0, 16, 2):
                rbf2(k, ACC + r, ACC + r + 1, T)
            for r in range(16):
                k.e('v_add_f32 %s, %s, %s' % (v(ACC + r), v(ACC + r), v(B1F + r)))
            for r in range(0, 16, 2):
                rbf2(k, ACC + r, ACC + r + 1, T)
        elif i == 1:
            k.e('s_mov_b32 s88, 0x%x' % C1)
            for r in range(16):
                t = T + r
                k.e('v_mul_f32 %s, %s, %s' % (v(t), v(ACC + r), v(ACC + r)))
                k.e('v_mul_f32 %s, %s, %s' % (v(t), v(t), v(ACC + r)))
                k.e('v_fma_f32 %s, %s, s88, %s' % (v(t), v(t), v(ACC + r)))
                k.e('v_mul_f32 %s, 0x%x, %s' % (v(t), C2, v(t)))
                k.e('v_exp_f32 %s, %s' % (v(t), v(t)))
        elif i == 2:
            for r in range(16):
                t = T + r
                k.e('v_add_f32 %s, 1.0, %s' % (v(t), v(t)))
                k.e('v_rcp_f32 %s, %s' % (v(t), v(t)))
            for r in range(16):
                t = T + r
                k.e('v_mul_f32 %s, %s, %s' % (v(ACC + r), v(ACC + r), v(t)))
            for r in range(0, 16, 2):
                k.e('v_cvt_pk_bf16_f32 %s, %s, %s' % (v(UO + r // 2), v(ACC + r), v(ACC + r + 1)))
            k.e('s_cmp_lt_u32 s93, 1376')
            k.e('s_cbranch_scc1 F_ST')
            for j in range(8):
                k.e('v_mov_b32 %s, 0' % v(UO + j))
            k.label('F_ST')
            k.e('s_mov_b32 s90, %d' % WS_U)
            for q in range(4):
                k.e('buffer_store_dwordx2 %s, v199, s[16:19], s90 offen offset:%d sc1' % (v(UO + 2 * q, 2), 16 * q))
            k.tl(6)
        k.label(lab)
        if i == 2: k.mark('ust')
    for i in range(3):
        stages[33 + i]['extra'] = (lambda i=i: [('f', lambda: ep(i))])
    stages[32 + UW - 1]['extra'] = lambda: [('w', 'ust')]
    stages[32 + UW]['pre'] = lambda: flag_store(k, 'P3_UFL', 's100', 0, cond=[('e', 's_cmp_ge_u32 s101, 22')])
    def late_srds():
        srd(k, 4, A_X, 2 << 20); srd(k, 8, A_DSK, 1024); srd(k, 12, B_B2, 4096)
    stages[GU - 2]['extra'] = lambda: [('v', FUL, 'fu'), ('f', late_srds)]
    def uchk():
        k.wait_vm('fu')
        k.label('P3_UCHK')
        k.e('v_cmp_ne_u32 vcc, v250, v229')
        k.e('s_cbranch_vccz P3_UOK')
        poll_tail(k, 'P3_UCHK', 'P3_UOK', [FUL])
        k.tl(8)
        for g in range(48, GU + 7):
            A, B = parts(g)
            emit_items(k, A[0] + A[1])
    stages[GU]['pre'] = lambda: [('f', uchk)]
    def ep_loads():
        L = [('e', 's_mov_b32 s79, %d' % WS_G), ('v', 'buffer_load_dword %s, v176, s[16:19], s79 offen' % v(GR), 'ep'),
             ('v', 'buffer_load_ushort %s, v177, s[12:15], 0 offen' % v(B2R), 'ep')]
        for q in range(4):
            L.append(('v', 'buffer_load_dwordx2 %s, v178, s[8:11], 0 offen offset:%d' % (v(DR + 2 * q, 2), 16 * q), 'ep'))
        for q in range(4):
            L.append(('v', 'buffer_load_dwordx2 %s, v179, s[4:7], 0 offen offset:%d' % (v(XR + 2 * q, 2), 16 * q), 'ep'))
        return L
    stages[54]['extra'] = ep_loads
    return stages, issue

def g_run(k, stages):
    FBUF = [(32, 48), (128, 144)]
    ACA, ACB = 160, 208
    GR, B2R, XR, DR = 224, 225, 232, 240
    gl = gemm_loop(k, stages, 8, FBUF, {PRO[0]: pf_slot, PRO[1]: pf_slot}, sb=64)
    next(gl)
    yield 'prologue'
    for _ in gl: pass
    k.tl(9)
    k.nop(13)
    XF, DF, T = 64, 80, 100
    for i in range(8):
        k.e('v_lshlrev_b32 %s, 16, %s' % (v(XF + 2 * i), v(XR + i)))
        k.e('v_and_b32 %s, 0xffff0000, %s' % (v(XF + 2 * i + 1), v(XR + i)))
        k.e('v_lshlrev_b32 %s, 16, %s' % (v(DF + 2 * i), v(DR + i)))
        k.e('v_and_b32 %s, 0xffff0000, %s' % (v(DF + 2 * i + 1), v(DR + i)))
    k.e('v_lshlrev_b32 %s, 16, %s' % (v(B2R), v(B2R)))
    OMG = 101
    k.e('v_sub_f32 %s, 1.0, %s' % (v(OMG), v(GR)))
    rbf(k, OMG, T)
    for r in range(16):
        k.e('v_mul_f32 %s, %s, %s' % (v(XF + r), v(XF + r), v(DF + r)))
    for r in range(0, 16, 2):
        rbf2(k, XF + r, XF + r + 1, T)
        rbf2(k, ACB + r, ACB + r + 1, T)
    for r in range(16):
        k.e('v_add_f32 %s, %s, %s' % (v(ACA + r), v(ACA + r), v(XF + r)))
        k.e('v_add_f32 %s, %s, %s' % (v(ACB + r), v(ACB + r), v(B2R)))
    for r in range(0, 16, 2):
        rbf2(k, ACB + r, ACB + r + 1, T)
    for r in range(16):
        k.e('v_mul_f32 %s, %s, %s' % (v(ACB + r), v(ACB + r), v(OMG)))
        k.e('v_mul_f32 %s, %s, %s' % (v(ACA + r), v(ACA + r), v(GR)))
    for r in range(0, 16, 2):
        rbf2(k, ACB + r, ACB + r + 1, T)
    for r in range(16):
        k.e('v_add_f32 %s, %s, %s' % (v(ACA + r), v(ACA + r), v(ACB + r)))
    for q in range(4):
        k.e('buffer_store_dwordx4 %s, v%d, s[32:35], 0 offen offset:%d' % (v(ACA + 4 * q, 4), P3_OUTA, 32 * q))
    k.stamp(140)
    if DEBUG or TL:
        k.e('s_waitcnt vmcnt(0)')
    k.stamp(141)
    k.tl(10)
    k.flush_dbg()
    yield 'done'

def r_role(k, issue):
    k.e('s_waitcnt vmcnt(0)')
    k.e('s_barrier')
    emit_items(k, flag_store(k, 'R_HBFL', 's99', 4))
    for i in range(4): emit_items(k, pf_slot())
    if PFX:
        srd(k, 20, A_CRE, 1 << 19); srd(k, 24, A_CIM, 1 << 19); srd(k, 28, B_W2, 1376 * 4096)
        k.e('s_sub_u32 s74, s73, 22')
        k.e('s_lshl_b32 s74, s74, 8')
        k.e('v_add_u32 v4, s74, v0')
        k.e('v_lshlrev_b32 v5, 7, v4')
        k.e('buffer_load_dword v231, v5, s[20:23], 0 offen')
        k.e('buffer_load_dword v231, v5, s[24:27], 0 offen')
        k.e('v_add_u32 v6, %d, v5' % (2560 * 128))
        k.e('buffer_load_dword v231, v6, s[20:23], 0 offen')
        k.e('buffer_load_dword v231, v6, s[24:27], 0 offen')
        k.e('v_lshrrev_b32 v5, 2, v4')
        k.e('v_lshlrev_b32 v5, 12, v5')
        k.e('v_and_b32 v6, 3, v4')
        k.e('v_lshl_add_u32 v5, v6, 7, v5')
        k.e('s_lshl_b32 s75, s72, 9')
        k.e('v_add_u32 v5, s75, v5')
        k.e('v_add_u32 v6, %d, v5' % (640 * 4096))
        k.e('v_add_u32 v7, %d, v5' % (1280 * 4096))
        for r_ in (5, 6, 7):
            k.e('buffer_load_dword v231, v%d, s[28:31], 0 offen' % r_)
    k.tl(5)
    for i in range(5): p3_setup(k, i)
    k.e(HBL)
    k.e('s_waitcnt vmcnt(0)')
    k.tl(6)
    hb_check(k, 'R')
    for g in range(32, 39):
        for grp in issue(g): emit_items(k, grp)
    k.e('s_branch G32')
def gen_fused():
    k = Kern('gated_mix__ssm_conv_s5__mixer_token_mlp__prompt_kernel')
    p1 = gen_p1(k)
    next(p1)
    fc1_setup(k)
    fc1_setup_pf(k)
    stages, issue = g_stages(k)
    k.e('s_cmp_ge_u32 s73, 22')
    k.e('s_cbranch_scc1 P1_RW')
    gr = g_run(k, stages)
    next(gr)
    k.label('P1_RW')
    fc1_setup2(k)
    next(p1)
    k.e('s_cmp_ge_u32 s73, 22')
    k.e('s_cbranch_scc1 P1_RW2')
    k.wait_vm('e')
    k.e('s_branch P1_EW')
    k.label('P1_RW2')
    k.e('s_waitcnt vmcnt(0)')
    k.label('P1_EW')
    next(p1)
    k.e('s_cmp_lt_u32 s73, 22')
    k.e('s_cbranch_scc1 F_ROLE')
    q = list(k.vmq)
    r_role(k, issue)
    k.vmq = q
    k.label('F_ROLE')
    next(gr)
    k.label('K_END')
    k.e('s_endpgm')
    return finish(k, 256 if (DEBUG or TL) else 252, 102)

def main():
    hdr = open('gated_mix__ssm_conv_s5__mixer_token_mlp__prompt.s.ref').read().split('\n')
    top = []
    for l in hdr:
        if l.startswith(';') and '@launch' not in l:
            top.append(l)
        elif not l.startswith(';'):
            break
    top.append('; @launch grid=(256,1,1) block=(256,1,1) lds=148736')
    top.append('.amdgcn_target "amdgcn-amd-amdhsa--gfx950"')
    top.append('.text')
    ks = [gen_fused()]
    body = []
    for b, d in ks:
        body += b
    body.append('.section .rodata,"a"')
    for b, d in ks:
        body += d
    out = '\n'.join(top + body) + '\n'
    path = sys.argv[1]
    open(path, 'w').write(out)
    print('wrote', path, len(out), 'bytes')

if __name__ == '__main__':
    main()
```

```python
import sys, os, struct
DEBUG = int(os.environ.get('DEBUG', '0'))
DBGWG = int(os.environ.get('DBGWG', '0'))
TL = int(os.environ.get('TL', '0'))
PF = int(os.environ.get('PF', '0'))
PFX = int(os.environ.get('PFX', '1'))
PRO = eval(os.environ.get('PRO', '(1,7)'))
PF2 = eval(os.environ.get('PF2', '(1,9)'))

WS_H  = 0
WS_G  = 2 << 20
WS_E  = 12 << 20
WS_FA = 13 << 20
WS_FB = WS_FA + 16384
WS_FU = WS_FA + 32768
WS_HB = 16 << 20
WS_U  = 20 << 20
WS_SZ = 24 << 20
if DEBUG or TL: WS_SZ = 64 << 20
UP = 2816
LOG2E = 0x3fb8aa3b
INV2PI = 0x3e22f983
UC = int(os.environ.get('UC', '12'))
UW = int(os.environ.get('UW', '7'))
FHST = int(os.environ.get('FHST', '3'))
EC = int(os.environ.get('EC', '4'))
HBF = int(os.environ.get('HBF', '16'))
HBLG = int(os.environ.get('HBLG', '20'))
HBC = int(os.environ.get('HBC', '25'))
RPF = int(os.environ.get('RPF', '1'))
PFXST = int(os.environ.get('PFXST', '5'))
TMO = 1 << 13

class Kern:
    def __init__(self, name):
        self.name = name
        self.L = []
        self.vmq = []
        self.nlab = 0
    def e(self, s):
        self.L.append('    ' + s)
    def c(self, s):
        self.L.append('    ; ' + s)
    def label(self, l):
        self.L.append(l + ':')
    def vm(self, s, tag):
        self.e(s); self.vmq.append((tag, 1))
    def mark(self, tag):
        self.vmq.append((tag, 0))
    def wait_vm(self, tag):
        idxs = [i for i, t in enumerate(self.vmq) if t[0] == tag]
        if not idxs:
            return
        idx = idxs[-1]
        n = sum(t[1] for t in self.vmq[idx + 1:])
        self.e('s_waitcnt vmcnt(%d)' % min(n, 63))
        self.vmq = self.vmq[idx + 1:]
    def wait_vm_all(self):
        self.e('s_waitcnt vmcnt(0)'); self.vmq = []
    def stamp(self, i):
        if not DEBUG: return
        self.e('s_memtime s[94:95]')
        self.e('s_waitcnt lgkmcnt(0)')
        self.e('v_writelane_b32 v%d, s94, %d' % (255 - i // 64, i % 64))
    def tl(self, i):
        if not TL: return
        self.e('s_memrealtime s[94:95]')
        self.e('s_waitcnt lgkmcnt(0)')
        self.e('v_writelane_b32 v252, s94, %d' % i)
    def flush_dbg(self):
        if not (DEBUG or TL): return
        self.nlab += 1
        lab = '%s_DBG%d' % (self.name, self.nlab)
        self.e('s_cmp_lg_u32 s3, 0')
        self.e('s_cbranch_scc1 %s' % lab)
        self.e('v_and_b32 v251, 63, v0')
        self.e('v_lshlrev_b32 v251, 2, v251')
        if TL:
            self.e('s_lshl_b32 s94, s2, 8')
            self.e('s_add_u32 s94, s94, %d' % (32 << 20))
            self.e('buffer_store_dword v252, v251, s[16:19], s94 offen')
        if DEBUG:
            self.e('s_cmp_lg_u32 s2, %d' % DBGWG)
            self.e('s_cbranch_scc1 %s' % lab)
            self.e('s_mov_b32 s94, %d' % (33 << 20))
            self.e('buffer_store_dword v255, v251, s[16:19], s94 offen')
            self.e('buffer_store_dword v254, v251, s[16:19], s94 offen offset:256')
            self.e('buffer_store_dword v253, v251, s[16:19], s94 offen offset:512')
        self.label(lab)
    def nop(self, n):
        while n > 0:
            k = min(n, 16)
            self.e('s_nop %d' % (k - 1)); n -= k
def v(i, n=1):
    return 'v%d' % i if n == 1 else 'v[%d:%d]' % (i, i + n - 1)
def a(i, n=1):
    return 'a%d' % i if n == 1 else 'a[%d:%d]' % (i, i + n - 1)
def s(i, n=1):
    return 's%d' % i if n == 1 else 's[%d:%d]' % (i, i + n - 1)

def P(k): return 36 + 2 * k
A_X, A_LRE, A_LIM, A_BRE, A_BIM, A_CRE, A_CIM, A_LDT, A_DSK, B_X, B_W1, B_B1, B_W2, B_B2, GATE, OUT, DBG, WS = range(18)

def load_kernargs(k):
    k.e('s_load_dwordx16 s[36:51], s[0:1], 0')
    k.e('s_load_dwordx16 s[52:67], s[0:1], 64')
    k.e('s_load_dwordx4 s[68:71], s[0:1], 128')

def srd(k, dst, ptr, nbytes):
    k.e('s_mov_b32 s%d, s%d' % (dst, P(ptr)))
    k.e('s_and_b32 s%d, s%d, 0xffff' % (dst + 1, P(ptr) + 1))
    k.e('s_mov_b32 s%d, 0x%x' % (dst + 2, nbytes))
    k.e('s_mov_b32 s%d, 0x00020000' % (dst + 3))

def cfma(k, dr, di, ar, ai, br, bi, cr, ci):
    k.e('v_fma_f32 %s, %s, %s, %s' % (v(dr), v(ar), v(br), v(cr)))
    k.e('v_fma_f32 %s, %s, %s, %s' % (v(di), v(ar), v(bi), v(ci)))
    k.e('v_fma_f32 %s, -%s, %s, %s' % (v(dr), v(ai), v(bi), v(dr)))
    k.e('v_fma_f32 %s, %s, %s, %s' % (v(di), v(ai), v(br), v(di)))

def cmul(k, dr, di, ar, ai, br, bi):
    k.e('v_mul_f32 %s, %s, %s' % (v(dr), v(ar), v(br)))
    k.e('v_mul_f32 %s, %s, %s' % (v(di), v(ar), v(bi)))
    k.e('v_fma_f32 %s, -%s, %s, %s' % (v(dr), v(ai), v(bi), v(dr)))
    k.e('v_fma_f32 %s, %s, %s, %s' % (v(di), v(ai), v(br), v(di)))

def rbf(k, a, t):
    k.e('v_cvt_pk_bf16_f32 %s, %s, %s' % (v(t), v(a), v(a)))
    k.e('v_lshlrev_b32 %s, 16, %s' % (v(a), v(t)))

def rbf2(k, a, b, t):
    k.e('v_cvt_pk_bf16_f32 %s, %s, %s' % (v(t), v(a), v(b)))
    k.e('v_lshlrev_b32 %s, 16, %s' % (v(a), v(t)))
    k.e('v_and_b32 %s, 0xffff0000, %s' % (v(b), v(t)))

def lam_params(k, lre, lim, ldt, Lr, Li, t0, t1):
    k.e('v_lshlrev_b32 %s, 16, %s' % (v(lre), v(lre)))
    k.e('v_lshlrev_b32 %s, 16, %s' % (v(lim), v(lim)))
    k.e('v_lshlrev_b32 %s, 16, %s' % (v(ldt), v(ldt)))
    k.e('v_mul_f32 %s, 0x%x, %s' % (v(t0), LOG2E, v(ldt)))
    k.e('v_exp_f32 %s, %s' % (v(t0), v(t0)))
    k.nop(1)
    rbf(k, t0, t1)
    k.e('v_mul_f32 %s, %s, %s' % (v(t1), v(t0), v(lre)))
    k.e('v_mul_f32 %s, %s, %s' % (v(t0), v(t0), v(lim)))
    k.e('v_mul_f32 %s, 0x%x, %s' % (v(t1), LOG2E, v(t1)))
    k.e('v_mul_f32 %s, 0x%x, %s' % (v(t0), INV2PI, v(t0)))
    k.e('v_exp_f32 %s, %s' % (v(t1), v(t1)))
    k.e('v_fract_f32 %s, %s' % (v(t0), v(t0)))
    k.e('v_cos_f32 %s, %s' % (v(Lr), v(t0)))
    k.e('v_sin_f32 %s, %s' % (v(Li), v(t0)))
    k.nop(1)
    k.e('v_mul_f32 %s, %s, %s' % (v(Lr), v(Lr), v(t1)))
    k.e('v_mul_f32 %s, %s, %s' % (v(Li), v(Li), v(t1)))

def finish(k, nvgpr, nsgpr=96):
    out = []
    out.append('.globl %s' % k.name)
    out.append('.p2align 8')
    out.append('.type %s,@function' % k.name)
    out.append('%s:' % k.name)
    out += k.L
    desc = []
    desc.append('.p2align 6')
    desc.append('.amdhsa_kernel %s' % k.name)
    desc.append('  .amdhsa_next_free_vgpr %d' % nvgpr)
    desc.append('  .amdhsa_next_free_sgpr %d' % nsgpr)
    desc.append('  .amdhsa_accum_offset 256')
    desc.append('  .amdhsa_group_segment_fixed_size 0')
    desc.append('  .amdhsa_kernarg_size 144')
    desc.append('  .amdhsa_user_sgpr_count 2')
    desc.append('  .amdhsa_user_sgpr_kernarg_segment_ptr 1')
    desc.append('  .amdhsa_system_sgpr_workgroup_id_x 1')
    desc.append('.end_amdhsa_kernel')
    return out, desc

def dma_voff(k, dst, rowbase_s, pitch_s, colbase_s, tr, I3, I4, I7, tmp, hb=False):
    for j in range(2):
        if tr:
            k.e('v_and_b32 %s, 1, %s' % (v(tmp), v(I4)))
            k.e('v_lshlrev_b32 %s, 2, %s' % (v(tmp), v(tmp)))
        else:
            k.e('v_add_u32 %s, %d, %s' % (v(tmp), 4 * j, v(I4)))
            k.e('v_and_b32 %s, 7, %s' % (v(tmp), v(tmp)))
        k.e('v_xor_b32 %s, %s, %s' % (v(tmp), v(tmp), v(I7)))
        if hb:
            k.e('v_and_b32 %s, 4, %s' % (v(dst + j), v(tmp)))
            k.e('v_add_u32 %s, %s, %s' % (v(tmp), v(tmp), v(dst + j)))
        k.e('v_lshlrev_b32 %s, 4, %s' % (v(tmp), v(tmp)))
        k.e('v_add_u32 %s, s%d, %s' % (v(dst + j), rowbase_s, v(I3)))
        if j:
            k.e('v_add_u32 %s, 8, %s' % (v(dst + j), v(dst + j)))
        k.e('v_mul_lo_u32 %s, %s, s%d' % (v(dst + j), v(dst + j), pitch_s))
        k.e('v_add_u32 %s, %s, %s' % (v(dst + j), v(dst + j), v(tmp)))
        k.e('v_add_u32 %s, s%d, %s' % (v(dst + j), colbase_s, v(dst + j)))
        if j:
            k.e('v_subrev_u32 %s, 1024, %s' % (v(dst + j), v(dst + j)))

def pat_direct(k, dst, sub_s, base, LANE, t0, t1):
    k.e('v_and_b32 %s, 31, %s' % (v(t0), v(LANE)))
    k.e('v_lshrrev_b32 %s, 1, %s' % (v(t1), v(t0)))
    k.e('v_and_b32 %s, 7, %s' % (v(t1), v(t1)))
    k.e('v_lshrrev_b32 %s, 5, %s' % (v(dst), v(LANE)))
    k.e('v_xor_b32 %s, %s, %s' % (v(t1), v(t1), v(dst)))
    k.e('v_lshlrev_b32 %s, 4, %s' % (v(t1), v(t1)))
    k.e('v_lshl_add_u32 %s, %s, 7, %s' % (v(t1), v(t0), v(t1)))
    k.e('v_add_u32 %s, s%d, %s' % (v(t1), sub_s, v(t1)))
    if base:
        k.e('v_add_u32 %s, %d, %s' % (v(t1), base, v(t1)))
    for kk in range(4):
        k.e('v_xor_b32 %s, %d, %s' % (v(dst + kk), kk << 5, v(t1)))
        k.e('v_add_u32 %s, 65536, %s' % (v(dst + 4 + kk), v(dst + kk)))

def pat_tr(k, dst, subchunk_s, base, LANE, t0, t1, t2):
    k.e('v_and_b32 %s, 15, %s' % (v(t0), v(LANE)))
    k.e('v_lshrrev_b32 %s, 4, %s' % (v(t1), v(LANE)))
    k.e('v_and_b32 %s, 1, %s' % (v(t1), v(t1)))
    k.e('v_lshlrev_b32 %s, 1, %s' % (v(t1), v(t1)))
    k.e('v_bfe_u32 %s, %s, 1, 1' % (v(t2), v(t0)))
    k.e('v_add_u32 %s, %s, %s' % (v(t1), v(t1), v(t2)))
    k.e('v_add_u32 %s, s%d, %s' % (v(t1), subchunk_s, v(t1)))
    k.e('v_bfe_u32 %s, %s, 3, 1' % (v(t2), v(t0)))
    k.e('v_lshlrev_b32 %s, 2, %s' % (v(t2), v(t2)))
    k.e('v_xor_b32 %s, %s, %s' % (v(t1), v(t1), v(t2)))
    k.e('v_lshlrev_b32 %s, 4, %s' % (v(t1), v(t1)))
    k.e('v_and_b32 %s, 1, %s' % (v(t2), v(t0)))
    k.e('v_lshl_add_u32 %s, %s, 3, %s' % (v(t1), v(t2), v(t1)))
    k.e('v_lshrrev_b32 %s, 2, %s' % (v(t2), v(t0)))
    k.e('v_lshrrev_b32 %s, 5, %s' % (v(t0), v(LANE)))
    k.e('v_lshl_add_u32 %s, %s, 3, %s' % (v(t2), v(t0), v(t2)))
    k.e('v_lshl_add_u32 %s, %s, 7, %s' % (v(dst), v(t2), v(t1)))
    if base:
        k.e('v_add_u32 %s, %d, %s' % (v(dst), base, v(dst)))
    k.e('v_add_u32 %s, 65536, %s' % (v(dst + 1), v(dst)))

def read_frag(k, dstreg, mode, pat, slot, kk):
    sset = slot // 4; off = (slot % 4) * 16384
    if mode == 'd':
        k.e('ds_read_b128 %s, %s offset:%d' % (a(dstreg, 4), v(pat + 4 * sset + kk), off))
        return 1
    else:
        k.e('ds_read_b64_tr_b16 %s, %s offset:%d' % (a(dstreg, 2), v(pat + sset), off + kk * 2048))
        k.e('ds_read_b64_tr_b16 %s, %s offset:%d' % (a(dstreg + 2, 2), v(pat + sset), off + kk * 2048 + 512))
        return 2


def emit_items(k, items):
    for it in items:
        if it[0] == 'e': k.e(it[1])
        elif it[0] == 'w': k.wait_vm(it[1])
        elif it[0] == 'm': k.mark(it[1])
        elif it[0] == 'f': it[1]()
        else: k.vm(it[1], it[2])

SLOT0 = 3
DIST = int(os.environ.get('DIST', '7'))
HALF = int(os.environ.get('HALF', '0'))
def gemm_loop(k, stages, NS, FBUF, sb=0):
    n = len(stages)
    def mfma(st, kk):
        S = stages[st]
        FA, FB = FBUF[st & 1]
        c = '0' if (S['first'] and kk == 0) else v(S['acc'], 16)
        k.e('v_mfma_f32_32x32x16_bf16 %s, %s, %s, %s' % (v(S['acc'], 16), a(FA + 4 * kk, 4), a(FB + 4 * kk, 4), c))
    for st in range(n):
        S = stages[st]
        if S.get('label'): k.label(S['label'])
        k.wait_vm('st%d' % st)
        k.e('s_barrier')
        k.stamp(sb + st)
        for f in S.get('pre', []):
            emit_items(k, f())
        groups = [[], [], [], []]
        if st + DIST >= NS and st + DIST < n:
            groups = stages[st + DIST]['issue'](st + DIST)
        slot = (st + SLOT0) % NS
        FA, FB = FBUF[st & 1]
        for kk in range(4):
            emit_items(k, groups[kk])
            nr = 0
            if not (HALF and kk >= 2):
                nr += read_frag(k, FA + 4 * kk, S['modeA'], S['patA'], slot, kk)
                nr += read_frag(k, FB + 4 * kk, S['modeB'], S['patB'], slot, kk)
            if st >= 1:
                if DIST < 7 and kk == 0: k.e('s_waitcnt lgkmcnt(%d)' % nr)
                mfma(st - 1, kk)
        for f in S.get('extra', []):
            emit_items(k, f())
        if DIST == 7 or st == n - 1 or S.get('lgk0'): k.e('s_waitcnt lgkmcnt(0)')
    for kk in range(4):
        mfma(n - 1, kk)

def poll_tail(k, lab_chk, lab_ok, reload_lines):
    k.e('s_cmp_eq_u32 s96, 0')
    k.e('s_cbranch_scc1 %s' % lab_ok)
    k.e('s_sub_u32 s96, s96, 1')
    k.e('s_sleep 1')
    for l in reload_lines: k.e(l)
    k.e('s_waitcnt vmcnt(0)')
    k.e('s_branch %s' % lab_chk)
    k.label(lab_ok)

def flag_store(k, lab, soff, nl, cond=None):
    L = [('e', 's_cmp_lg_u32 s3, 0'), ('e', 's_cbranch_scc1 %s' % lab)]
    if cond: L += cond + [('e', 's_cbranch_scc1 %s' % lab)]
    L += [('e', 's_mov_b64 exec, %d' % ((1 << nl) - 1)),
          ('e', 'buffer_store_dword v250, v243, s[16:19], %s offen sc1' % soff),
          ('e', 's_mov_b64 exec, -1'), ('e', '%s:' % lab)]
    return L
SE, SDONE = 64, 65
LR, LI = 184, 185
L2R, L2I, L3R, L3I, L4R, L4I = 186, 187, 188, 189, 190, 191
L32R, L32I = 194, 195
CFR, CFI = 234, 235
L128 = 238
ACR, ACI = 40, 56
EV, OD = 72, 80
CR, CI = 88, 97
EW = 110
EB = 200
UCR = 240
XOFF = 6 * 24576
def gen_p1(k, hooks):
    NS = 6; STG = 24576; NST = 8
    TB = 131072
    k.e('s_cmp_ge_u32 s2, 256')
    k.e('s_cbranch_scc1 K_END')
    load_kernargs(k)
    k.e('s_memrealtime s[84:85]')
    k.tl(0)
    k.e('v_and_b32 v1, 63, v0')
    k.e('v_lshrrev_b32 v2, 6, v0')
    k.e('s_mov_b32 s96, %d' % TMO)
    k.e('v_readfirstlane_b32 s3, v2')
    k.e('s_and_b32 s72, s2, 7')
    k.e('s_lshr_b32 s73, s2, 3')
    k.e('s_lshr_b32 s74, s73, 4')
    k.e('s_lshl_b32 s72, s72, 1')
    k.e('s_add_u32 s72, s72, s74')
    k.e('s_and_b32 s73, s73, 15')
    k.e('s_lshl_b32 s74, s72, 7')
    k.e('s_lshl_b32 s75, s73, 5')
    XR0, XR1, GW = 168, 172, 176
    PLRE, PLIM, PLDT = 180, 181, 182
    k.e('s_lshl_b32 s76, s73, 3')
    k.e('s_add_u32 s76, s76, s74')
    k.e('s_lshl_b32 s77, s3, 1')
    k.e('s_add_u32 s76, s76, s77')
    k.e('s_lshl_b32 s77, s76, 10')
    k.e('v_lshlrev_b32 v2, 4, v1')
    k.e('v_and_b32 v3, 31, v1')
    k.e('v_add_u32 v14, s75, v3')
    k.e('v_lshlrev_b32 v248, 3, v14')
    k.e('v_lshlrev_b32 v14, 1, v14')
    VA = 8; VB = 12
    k.e('v_lshrrev_b32 v4, 3, v1')
    k.e('v_lshrrev_b32 v5, 4, v1')
    k.e('v_and_b32 v6, 7, v1')
    k.e('s_lshl_b32 s78, s3, 5')
    k.e('s_add_u32 s78, s78, s74')
    for j in range(4):
        k.e('v_add_u32 v7, %d, v5' % (4 * j))
        k.e('v_and_b32 v7, 7, v7')
        k.e('v_xor_b32 v7, v7, v6')
        k.e('v_lshlrev_b32 v7, 4, v7')
        k.e('v_add_u32 %s, s78, v4' % v(VA + j))
        k.e('v_add_u32 %s, %d, %s' % (v(VA + j), 7 * j, v(VA + j)))
        k.e('v_lshlrev_b32 %s, 10, %s' % (v(VA + j), v(VA + j)))
        k.e('v_add_u32 %s, %s, v7' % (v(VA + j), v(VA + j)))
    k.e('s_and_b32 s79, s3, 1')
    k.e('s_lshl_b32 s79, s79, 4')
    k.e('s_add_u32 s79, s79, s75')
    for j in range(2):
        k.e('v_add_u32 v7, %d, v5' % (4 * j))
        k.e('v_and_b32 v7, 7, v7')
        k.e('v_xor_b32 v7, v7, v6')
        k.e('v_lshlrev_b32 v7, 4, v7')
        k.e('v_add_u32 %s, s79, v4' % v(VB + j))
        k.e('v_add_u32 %s, %d, %s' % (v(VB + j), 7 * j, v(VB + j)))
        k.e('v_lshlrev_b32 %s, 10, %s' % (v(VB + j), v(VB + j)))
        k.e('v_add_u32 %s, %s, v7' % (v(VB + j), v(VB + j)))
    k.e('s_lshl_b32 s80, s3, 12')
    k.e('s_lshl_b32 s81, s3, 11')
    k.e('s_add_u32 s81, s81, 16384')
    k.e('v_lshlrev_b32 v242, 11, v4')
    k.e('v_lshl_add_u32 v242, v6, 4, v242')
    k.e('v_lshrrev_b32 v7, 5, v1')
    k.e('v_lshlrev_b32 v233, 2, v7')
    k.e('v_xor_b32 v233, v233, v6')
    k.e('v_lshlrev_b32 v233, 4, v233')
    k.e('v_lshl_add_u32 v233, v4, 7, v233')
    k.e('s_add_u32 s82, s80, %d' % TB)
    k.e('v_add_u32 v233, s82, v233')
    k.e('v_lshlrev_b32 v232, 6, v7')
    k.e('v_lshl_add_u32 v232, v3, 1, v232')
    k.e('v_lshl_add_u32 v232, v7, 9, v232')
    k.e('v_add_u32 v232, s82, v232')
    k.e('v_xor_b32 v249, 64, v232')
    k.e('v_lshlrev_b32 v243, 10, v1')
    k.e('v_lshlrev_b32 v246, 2, v1')
    k.e('s_mov_b32 s97, s72')
    k.e('s_lshl_b32 s98, s78, 11')
    k.e('s_lshl_b32 s99, s73, 7')
    k.e('s_add_u32 s98, s98, s99')
    k.e('s_add_u32 s98, s98, %d' % WS_HB)
    k.e('s_lshl_b32 s99, s72, 7')
    k.e('s_lshl_b32 s100, s73, 2')
    k.e('s_add_u32 s99, s99, s100')
    k.e('s_add_u32 s99, s99, %d' % WS_FB)
    k.e('s_lshl_b32 s89, s72, 6')
    k.e('s_add_u32 s89, s89, s100')
    k.e('s_add_u32 s89, s89, %d' % WS_FA)
    k.e('s_lshl_b32 s88, s73, 10')
    k.e('s_lshl_b32 s100, s3, 8')
    k.e('s_add_u32 s88, s88, s100')
    k.e('s_add_u32 s88, s88, %d' % WS_FA)
    PA = 16; PB = 28
    k.e('v_lshrrev_b32 v4, 5, v1')
    k.e('v_lshrrev_b32 v5, 1, v3')
    k.e('v_and_b32 v5, 7, v5')
    k.e('v_xor_b32 v5, v5, v4')
    k.e('v_lshlrev_b32 v5, 4, v5')
    k.e('v_lshl_add_u32 v5, v3, 7, v5')
    for kk in range(4):
        k.e('v_xor_b32 %s, %d, v5' % (v(PB + kk), kk << 5))
        k.e('v_add_u32 %s, s80, %s' % (v(PA + kk), v(PB + kk)))
        for st in (1, 2):
            k.e('v_add_u32 %s, %d, %s' % (v(PB + 4 * st + kk), 49152 * st, v(PB + kk)))
            k.e('v_add_u32 %s, %d, %s' % (v(PA + 4 * st + kk), 49152 * st, v(PA + kk)))
    k.e('s_waitcnt lgkmcnt(0)')
    k.stamp(60)
    k.e('s_mov_b32 s54, s89')
    k.e('s_mov_b32 s55, s88')
    srd(k, 4, A_X, 2 << 20)
    k.e('s_cmp_ge_u32 s3, 2')
    k.e('s_cselect_b32 s8, s%d, s%d' % (P(A_BIM), P(A_BRE)))
    k.e('s_cselect_b32 s9, s%d, s%d' % (P(A_BIM) + 1, P(A_BRE) + 1))
    k.e('s_and_b32 s9, s9, 0xffff')
    k.e('s_mov_b32 s10, 0x80000')
    k.e('s_mov_b32 s11, 0x00020000')
    srd(k, 32, GATE, 1024)
    srd(k, 16, WS, WS_SZ)
    srd(k, 12, DBG, 256)
    k.e('s_or_b32 s83, s2, s3')
    k.e('s_cmp_lg_u32 s83, 0')
    k.e('s_cbranch_scc1 P1_NOZ')
    k.e('s_or_b32 s84, s84, 1')
    k.e('v_mov_b32 v6, s84')
    k.e('s_mov_b64 exec, 1')
    k.e('buffer_store_dword v6, off, s[12:15], 0 sc1')
    k.e('s_mov_b64 exec, -1')
    k.label('P1_NOZ')
    k.vm('buffer_load_dwordx4 %s, v2, s[4:7], s77 offen' % v(XR0, 4), 'ln')
    k.vm('buffer_load_dwordx4 %s, v2, s[4:7], s77 offen offset:1024' % v(XR1, 4), 'ln')
    k.vm('buffer_load_dwordx4 %s, v2, s[32:35], 0 offen' % v(GW, 4), 'ln')
    def issue_groups(st):
        slot = (st % NS) * STG
        tg = 'b%d' % st
        g = [[('e', 's_mov_b32 s82, %d' % (st * 128)), ('e', 's_add_u32 m0, s80, %d' % slot), ('e', 's_nop 0')], [], [], []]
        for j in range(4):
            g[j // 2].append(('v', 'buffer_load_dwordx4 %s, s[4:7], s82 offen offset:%d lds' % (v(VA + j), 1024 * j), tg))
        g[2] += [('e', 's_add_u32 m0, s81, %d' % slot), ('e', 's_nop 0')]
        for j in range(2):
            g[2 + j].append(('v', 'buffer_load_dwordx4 %s, s[8:11], s82 offen offset:%d lds' % (v(VB + j), 1024 * j), tg))
        return g
    def issue_stage(st):
        for g in issue_groups(st): emit_items(k, g)
    issue_stage(0)
    issue_stage(1)
    issue_stage(2)
    k.stamp(1)
    k.wait_vm('ln')
    k.stamp(2)
    X = [100, 110]
    G = 120
    def unpack8(dst, src):
        for i in range(4):
            k.e('v_lshlrev_b32 %s, 16, %s' % (v(dst + 2 * i), v(src + i)))
            k.e('v_and_b32 %s, 0xffff0000, %s' % (v(dst + 2 * i + 1), v(src + i)))
    unpack8(X[0], XR0); unpack8(X[1], XR1); unpack8(G, GW)
    SUM = [130, 131]; GS = [132, 133]; TT = 134
    for r in range(2):
        k.e('v_add_f32 %s, %s, %s' % (v(SUM[r]), v(X[r]), v(X[r] + 1)))
        for i in range(2, 8):
            k.e('v_add_f32 %s, %s, %s' % (v(SUM[r]), v(SUM[r]), v(X[r] + i)))
        for i in range(8):
            k.e('v_mul_f32 %s, %s, %s' % (v(TT + i), v(X[r] + i), v(G + i)))
        for i in range(0, 8, 2):
            rbf2(k, TT + i, TT + i + 1, TT + 8)
        k.e('v_add_f32 %s, %s, %s' % (v(GS[r]), v(TT), v(TT + 1)))
        for i in range(2, 8):
            k.e('v_add_f32 %s, %s, %s' % (v(GS[r]), v(GS[r]), v(TT + i)))
    def wave_reduce(regs, sdst):
        for ctl in ('quad_perm:[1,0,3,2] row_mask:0xf bank_mask:0xf', 'quad_perm:[2,3,0,1] row_mask:0xf bank_mask:0xf',
                    'row_half_mirror row_mask:0xf bank_mask:0xf', 'row_mirror row_mask:0xf bank_mask:0xf',
                    'row_bcast:15 row_mask:0xa bank_mask:0xf', 'row_bcast:31 row_mask:0xc bank_mask:0xf'):
            k.nop(2)
            for r in regs:
                k.e('v_add_f32_dpp %s, %s, %s %s' % (v(r), v(r), v(r), ctl))
        k.nop(1)
        for r, sd in zip(regs, sdst):
            k.e('v_readlane_b32 s%d, %s, 63' % (sd, v(r)))
        k.nop(2)
    wave_reduce([SUM[0], SUM[1], GS[0], GS[1]], [84, 85, 86, 87])
    issue_stage(3)
    MEAN = [140, 141]; SQ = [142, 143]
    for r in range(2):
        k.e('v_mov_b32 %s, 0x3b000000' % v(MEAN[r]))
        k.e('v_mul_f32 %s, s%d, %s' % (v(MEAN[r]), 84 + r, v(MEAN[r])))
        k.e('v_sub_f32 %s, %s, %s' % (v(TT), v(X[r]), v(MEAN[r])))
        k.e('v_mul_f32 %s, %s, %s' % (v(SQ[r]), v(TT), v(TT)))
        for i in range(1, 8):
            k.e('v_sub_f32 %s, %s, %s' % (v(TT), v(X[r] + i), v(MEAN[r])))
            k.e('v_fmac_f32 %s, %s, %s' % (v(SQ[r]), v(TT), v(TT)))
    wave_reduce(SQ, [88, 89])
    issue_stage(4)
    HO = [150, 154]
    for r in range(2):
        SD = 144; RC = 145; Q = 146; E_ = 147
        k.e('v_mov_b32 %s, 0x3b000000' % v(SD))
        k.e('v_mul_f32 %s, s%d, %s' % (v(SD), 88 + r, v(SD)))
        rbf(k, SD, TT)
        k.e('v_add_f32 %s, 0x3727c5ac, %s' % (v(SD), v(SD)))
        rbf(k, SD, TT)
        k.e('v_sqrt_f32 %s, %s' % (v(SD), v(SD)))
        k.nop(1)
        rbf(k, SD, TT)
        k.e('v_rcp_f32 %s, %s' % (v(RC), v(SD)))
        rbf(k, MEAN[r], TT)
        for i in range(8):
            k.e('v_sub_f32 %s, %s, %s' % (v(X[r] + i), v(X[r] + i), v(MEAN[r])))
        for i in range(0, 8, 2):
            rbf2(k, X[r] + i, X[r] + i + 1, TT)
        for i in range(8):
            k.e('v_mul_f32 %s, %s, %s' % (v(Q), v(X[r] + i), v(RC)))
            k.e('v_fma_f32 %s, -%s, %s, %s' % (v(E_), v(Q), v(SD), v(X[r] + i)))
            k.e('v_fma_f32 %s, %s, %s, %s' % (v(X[r] + i), v(E_), v(RC), v(Q)))
        for i in range(4):
            k.e('v_cvt_pk_bf16_f32 %s, %s, %s' % (v(HO[r] + i), v(X[r] + 2 * i), v(X[r] + 2 * i + 1)))
        k.e('v_mov_b32 %s, s%d' % (v(GS[r]), 86 + r))
        rbf(k, GS[r], TT)
        k.e('v_mul_f32 %s, 0x%x, %s' % (v(GS[r]), LOG2E | 0x80000000, v(GS[r])))
        k.e('v_exp_f32 %s, %s' % (v(GS[r]), v(GS[r])))
        k.nop(1)
        k.e('v_add_f32 %s, 1.0, %s' % (v(GS[r]), v(GS[r])))
        k.e('v_rcp_f32 %s, %s' % (v(GS[r]), v(GS[r])))
        k.nop(1)
        rbf(k, GS[r], TT)
        if r == 0:
            issue_stage(5)
    k.e('s_add_u32 s83, s77, %d' % WS_H)
    k.vm('buffer_store_dwordx4 %s, v2, s[16:19], s83 offen sc1' % v(HO[0], 4), 'lnst')
    k.vm('buffer_store_dwordx4 %s, v2, s[16:19], s83 offen offset:1024 sc1' % v(HO[1], 4), 'lnst')
    k.e('s_lshr_b32 s83, s76, 3')
    k.e('s_lshl_b32 s83, s83, 7')
    k.e('s_lshl_b32 s84, s3, 3')
    k.e('s_add_u32 s83, s83, s84')
    k.e('s_add_u32 s83, s83, %d' % WS_G)
    k.e('s_mov_b64 exec, 1')
    k.vm('buffer_store_dwordx2 %s, off, s[16:19], s83 sc1' % v(GS[0], 2), 'lnst')
    k.e('s_mov_b64 exec, -1')
    k.e('v_mov_b32 v4, -1'); k.e('v_mov_b32 v5, -1')
    k.e('s_lshl_b32 s95, s72, 12')
    k.e('s_add_u32 s95, s95, %d' % WS_E)
    k.e('s_mov_b32 s%d, s95' % SE)
    k.vm('buffer_store_dwordx2 v[4:5], v248, s[16:19], s95 offen sc1', 'lnst')
    k.e('s_mov_b32 s%d, s3' % SDONE)
    k.e('s_cmp_lg_u32 s3, 0')
    k.e('s_cbranch_scc1 P1_NOGL')
    k.e('buffer_load_dword v250, off, s[12:15], 0 sc1')
    k.label('P1_NOGL')
    k.mark('go')
    srd(k, 20, A_LRE, 1024); srd(k, 24, A_LIM, 1024); srd(k, 28, A_LDT, 1024)
    k.vm('buffer_load_ushort %s, v14, s[20:23], 0 offen' % v(PLRE), 'par')
    k.vm('buffer_load_ushort %s, v14, s[24:27], 0 offen' % v(PLIM), 'par')
    k.vm('buffer_load_ushort %s, v14, s[28:31], 0 offen' % v(PLDT), 'par')
    def par1():
        k.wait_vm('par')
        lam_params(k, PLRE, PLIM, PLDT, LR, LI, 192, 193)
        cmul(k, L2R, L2I, LR, LI, LR, LI)
        cmul(k, L3R, L3I, L2R, L2I, LR, LI)
        cmul(k, L4R, L4I, L2R, L2I, L2R, L2I)
    def par2():
        cmul(k, L32R, L32I, L4R, L4I, L4R, L4I)
        cmul(k, 196, 197, L32R, L32I, L32R, L32I)
        cmul(k, L32R, L32I, 196, 197, 196, 197)
        cmul(k, 236, 237, L32R, L32I, L32R, L32I)
        cmul(k, L128, L128 + 1, 236, 237, 236, 237)
        k.e('v_add_f32 v192, -1.0, %s' % v(LR))
        k.e('v_mul_f32 v193, %s, %s' % (v(PLRE), v(PLRE)))
        k.e('v_fmac_f32 v193, %s, %s' % (v(PLIM), v(PLIM)))
        k.e('v_rcp_f32 v193, v193')
        k.e('v_mul_f32 %s, v192, %s' % (v(CFR), v(PLRE)))
        k.e('v_fmac_f32 %s, %s, %s' % (v(CFR), v(LI), v(PLIM)))
        k.e('v_mul_f32 %s, %s, %s' % (v(CFI), v(LI), v(PLRE)))
        k.e('v_fma_f32 %s, -v192, %s, %s' % (v(CFI), v(PLIM), v(CFI)))
        k.e('v_add_f32 v193, v193, v193')
        k.e('v_mul_f32 %s, %s, v193' % (v(CFR), v(CFR)))
        k.e('v_mul_f32 %s, %s, v193' % (v(CFI), v(CFI)))
    k.stamp(3)
    FB_ = [(72, 88, 104), (120, 136, 152)]
    FH = 244
    FHL = 'buffer_load_dword %s, v246, s[16:19], s55 offen sc1' % v(FH)
    GOL_ = 'buffer_load_dword v250, off, s[12:15], 0 sc1'
    def mfma(st, kk):
        FA, FBR, FBI = FB_[st & 1]
        c = '0' if (st == 0 and kk == 0) else v(ACR, 16)
        k.e('v_mfma_f32_32x32x16_bf16 %s, %s, %s, %s' % (v(ACR, 16), v(FA + 4 * kk, 4), v(FBR + 4 * kk, 4), c))
        c = '0' if (st == 0 and kk == 0) else v(ACI, 16)
        k.e('v_mfma_f32_32x32x16_bf16 %s, %s, %s, %s' % (v(ACI, 16), v(FA + 4 * kk, 4), v(FBI + 4 * kk, 4), c))
    for st in range(NST):
        k.wait_vm('lnst' if st == FHST else 'b%d' % st)
        k.e('s_barrier')
        k.stamp(4 + st)
        if st >= FHST:
            k.e('s_cmp_lg_u32 s%d, 0' % SDONE)
            k.e('s_cbranch_scc1 P1_NOFH%d' % st)
            q = list(k.vmq)
            k.wait_vm('go')
            k.vmq = q
            k.label('P1_GOCHK%d' % st)
            k.e('v_readfirstlane_b32 s84, v250')
            k.e('s_cmp_lg_u32 s84, 0')
            k.e('s_cbranch_scc1 P1_GOOK%d' % st)
            if st == NST - 1:
                poll_tail(k, 'P1_GOCHK%d' % st, 'P1_GOOK%d' % st, [GOL_])
            else:
                k.e(GOL_)
                k.e('s_branch P1_NOFH%d' % st)
                k.label('P1_GOOK%d' % st)
            k.e('s_mov_b64 exec, 0xffff')
            k.e('buffer_store_dword v250, v243, s[16:19], s54 offen sc1')
            k.e('v_mov_b32 v4, %d' % (XOFF + 1024))
            k.e('ds_write_b32 v4, v250')
            k.e('s_mov_b64 exec, -1')
            k.e('s_mov_b32 s%d, 1' % SDONE)
            k.label('P1_NOFH%d' % st)
            k.mark('go')
        if st == 3: hooks['setup']()
        groups = [[], [], [], []]
        if st >= 1 and st + NS - 1 < NST:
            groups = issue_groups(st + NS - 1)
        elif st in hooks['A']:
            groups = []
            for g in hooks['A'][st]: groups += hooks['Apart'](g)
            while len(groups) < 4: groups.append([])
        slot = st % NS
        sset = slot // 2
        off = (slot % 2) * STG
        FA, FBR, FBI = FB_[st & 1]
        for kk in range(4):
            emit_items(k, groups[kk])
            k.e('ds_read_b128 %s, %s offset:%d' % (v(FA + 4 * kk, 4), v(PA + 4 * sset + kk), off))
            k.e('ds_read_b128 %s, %s offset:%d' % (v(FBR + 4 * kk, 4), v(PB + 4 * sset + kk), off + 16384))
            k.e('ds_read_b128 %s, %s offset:%d' % (v(FBI + 4 * kk, 4), v(PB + 4 * sset + kk), off + 16384 + 4096))
            if st >= 1:
                mfma(st - 1, kk)
        if st == 5: par1()
        if st == 6: par2()
        if PFX and st == PFXST:
            srd(k, 20, B_W1, 2048 * 2752)
            k.e('s_lshr_b32 s90, s2, 3')
            k.e('s_lshl_b32 s90, s90, 6')
            k.e('s_lshl_b32 s91, s3, 4')
            k.e('s_add_u32 s90, s90, s91')
            k.e('s_and_b32 s92, s2, 7')
            k.e('s_mul_i32 s92, s92, 22')
            k.e('s_lshr_b32 s92, s92, 3')
            k.e('s_lshl_b32 s92, s92, 7')
            k.e('s_mov_b32 s93, 2752')
            k.e('v_lshrrev_b32 v4, 2, v1')
            k.e('v_add_u32 v4, s90, v4')
            k.e('v_mul_lo_u32 v4, v4, s93')
            k.e('v_and_b32 v5, 3, v1')
            k.e('v_lshl_add_u32 v4, v5, 7, v4')
            k.vm('buffer_load_dword v198, v4, s[20:23], s92 offen', 'pf')
            k.e('v_and_b32 v4, 15, v1')
            k.e('v_add_u32 v4, s90, v4')
            k.e('v_mul_lo_u32 v4, v4, s93')
            k.vm('buffer_load_dword v198, v4, s[20:23], s92 offen offset:512', 'pf')
        k.e('s_waitcnt lgkmcnt(0)')
    for kk in range(4):
        mfma(NST - 1, kk)
    k.vm(FHL, 'fh')
    k.e('v_lshlrev_b32 v247, 3, v3')
    k.e('v_add_u32 v247, %d, v247' % XOFF)
    k.e('s_lshl_b32 s84, s3, 8')
    k.e('v_add_u32 v7, s84, v247')
    hooks['setup2']()
    k.stamp(12)
    for j in range(1, 4):
        for q in range(4):
            r = 4 * q + j
            cfma(k, ACR + r, ACI + r, LR, LI, ACR + r - 1, ACI + r - 1, ACR + r, ACI + r)
    for q in range(4):
        k.e('v_mov_b32 %s, %s' % (v(EV + q), v(ACR + 4 * q + 3)))
        k.e('v_mov_b32 %s, %s' % (v(OD + q), v(ACR + 4 * q + 3)))
        k.e('v_mov_b32 %s, %s' % (v(EV + 4 + q), v(ACI + 4 * q + 3)))
        k.e('v_mov_b32 %s, %s' % (v(OD + 4 + q), v(ACI + 4 * q + 3)))
    k.nop(2)
    for q in range(8):
        k.e('v_permlane32_swap_b32 %s, %s' % (v(EV + q), v(OD + q)))
    k.nop(2)
    pr, pi_ = EV, EV + 4
    for i in range(1, 8):
        er = (EV if i % 2 == 0 else OD) + i // 2
        dr, di = (126, 127) if i == 7 else (CR + i, CI + i)
        cfma(k, dr, di, L4R, L4I, pr, pi_, er, er + 4)
        pr, pi_ = dr, di
    k.e('ds_write_b64 v7, v[126:127]')
    k.e('s_waitcnt lgkmcnt(0)')
    k.e('s_barrier')
    for w in range(4):
        k.e('ds_read_b64 %s, v247 offset:%d' % (v(EW + 2 * w, 2), 256 * w))
    k.e('v_mov_b32 v4, %d' % (XOFF + 1024))
    k.e('ds_read_b32 v250, v4')
    k.e('s_waitcnt lgkmcnt(0)')
    cfma(k, 118, 119, L32R, L32I, EW, EW + 1, EW + 2, EW + 3)
    cfma(k, 120, 121, L32R, L32I, 118, 119, EW + 4, EW + 5)
    cfma(k, 122, 123, L32R, L32I, 120, 121, EW + 6, EW + 7)
    k.vm('buffer_store_dwordx2 v[122:123], v248, s[16:19], s%d offen sc1' % SE, 'est')
    for g in hooks['A'][8]:
        for grp in hooks['Apart'](g): emit_items(k, grp)
    k.stamp(13)
    k.tl(1)
    k.wait_vm('fh')
    k.label('P1_FHCHK')
    k.e('v_cmp_ne_u32 vcc, v250, %s' % v(FH))
    k.e('s_cbranch_vccz P1_FHOK')
    poll_tail(k, 'P1_FHCHK', 'P1_FHOK', [FHL])
    k.e('s_barrier')
    k.stamp(14)
    k.tl(2)

def e_loads(k, sfx):
    L = []
    for c in range(15):
        L.append('s_cmp_le_u32 s97, %d' % c)
        L.append('s_cbranch_scc1 EL%s_%d' % (sfx, k.nlab))
        L.append('s_mov_b32 s84, %d' % (WS_E + c * 4096))
        L.append('buffer_load_dwordx2 %s, v248, s[16:19], s84 offen sc1' % v(EB + 2 * c, 2))
    L.append('EL%s_%d:' % (sfx, k.nlab))
    k.nlab += 1
    return L

def t_eload(k, sfx):
    k.e('s_cmp_lg_u32 s3, 0')
    k.e('s_cbranch_scc1 ELX' + sfx)
    for l in e_loads(k, sfx): k.e(l)
    k.label('ELX' + sfx)
    k.mark('e')

def t_scale(k, r0, r1):
    for r in range(r0, r1):
        k.e('v_mul_f32 v124, %s, %s' % (v(CFI), v(ACR + r)))
        k.e('v_mul_f32 %s, %s, %s' % (v(ACR + r), v(CFR), v(ACR + r)))
        k.e('v_fma_f32 %s, -%s, %s, %s' % (v(ACR + r), v(CFI), v(ACI + r), v(ACR + r)))
        k.e('v_fma_f32 %s, -%s, %s, -v124' % (v(ACI + r), v(CFR), v(ACI + r)))

def t_echeck(k, sfx):
    U = UCR
    k.e('s_cmp_lg_u32 s3, 0')
    k.e('s_cbranch_scc1 ECX' + sfx)
    q = list(k.vmq)
    k.wait_vm('e')
    k.vmq = q
    k.label('ECHK' + sfx)
    k.e('s_mov_b64 s[84:85], 0')
    for c in range(15):
        k.e('s_cmp_le_u32 s97, %d' % c)
        k.e('s_cbranch_scc1 EC2' + sfx)
        k.e('v_cmp_eq_u32 vcc, -1, %s' % v(EB + 2 * c))
        k.e('s_or_b64 s[84:85], s[84:85], vcc')
        k.e('v_cmp_eq_u32 vcc, -1, %s' % v(EB + 2 * c + 1))
        k.e('s_or_b64 s[84:85], s[84:85], vcc')
    k.label('EC2' + sfx)
    k.e('s_cmp_eq_u64 s[84:85], 0')
    k.e('s_cbranch_scc1 EOK' + sfx)
    poll_tail(k, 'ECHK' + sfx, 'EOK' + sfx, e_loads(k, sfx))
    k.e('v_mov_b32 %s, 0' % v(U)); k.e('v_mov_b32 %s, 0' % v(U + 1))
    for c in range(15):
        k.e('s_cmp_le_u32 s97, %d' % c)
        k.e('s_cbranch_scc1 CL' + sfx)
        k.e('v_pk_fma_f32 %s, %s, %s, %s op_sel_hi:[0,1,1]' % (v(EB + 2 * c, 2), v(L128, 2), v(U, 2), v(EB + 2 * c, 2)))
        k.e('v_pk_fma_f32 %s, %s, %s, %s op_sel:[1,1,0] op_sel_hi:[1,0,1] neg_lo:[1,0,0]' % (v(U, 2), v(L128, 2), v(U, 2), v(EB + 2 * c, 2)))
    k.label('CL' + sfx)
    k.e('ds_write_b64 v247, %s' % v(U, 2))
    k.label('ECX' + sfx)
    k.tl(3)

OWR, OWI = 106, 110
def t_uread(k):
    k.e('ds_read_b64 %s, v247' % v(UCR, 2))

def t_carry(k):
    U = UCR
    cfma(k, 118, 119, L32R, L32I, U, U + 1, EW, EW + 1)
    cfma(k, 120, 121, L32R, L32I, 118, 119, EW + 2, EW + 3)
    cfma(k, 122, 123, L32R, L32I, 120, 121, EW + 4, EW + 5)
    k.e('v_mov_b32 %s, %s' % (v(CR), v(U))); k.e('v_mov_b32 %s, %s' % (v(CI), v(U + 1)))
    for w, (a_, b_) in ((1, (118, 119)), (2, (120, 121)), (3, (122, 123))):
        k.e('s_cmp_eq_u32 s3, %d' % w)
        k.e('s_cselect_b64 vcc, -1, 0')
        k.e('v_cndmask_b32 %s, %s, %s, vcc' % (v(CR), v(CR), v(a_)))
        k.e('v_cndmask_b32 %s, %s, %s, vcc' % (v(CI), v(CI), v(b_)))
    for i in range(0, 7):
        er = (EV if i % 2 == 0 else OD) + i // 2
        cfma(k, CR + i + 1, CI + i + 1, L4R, L4I, CR + i, CI + i, er, er + 4)
    k.e('v_cmp_lt_u32 vcc, 31, v1')
    k.nop(1)
    for q in range(4):
        k.e('v_cndmask_b32 %s, %s, %s, vcc' % (v(114 + q), v(CR + 2 * q), v(CR + 2 * q + 1)))
        k.e('v_cndmask_b32 %s, %s, %s, vcc' % (v(118 + q), v(CI + 2 * q), v(CI + 2 * q + 1)))
    for q in range(4):
        cmul(k, OWR + q, OWI + q, CFR, CFI, 114 + q, 118 + q)

def t_hb(k, q):
    LP = [(LR, LI), (L2R, L2I), (L3R, L3I), (L4R, L4I)]
    for j in range(4):
        r = 4 * q + j
        lr, li_ = LP[j]
        k.e('v_fma_f32 %s, %s, %s, %s' % (v(ACR + r), v(lr), v(OWR + q), v(ACR + r)))
        k.e('v_fma_f32 %s, -%s, %s, %s' % (v(ACI + r), v(lr), v(OWI + q), v(ACI + r)))
        k.e('v_fma_f32 %s, -%s, %s, %s' % (v(ACR + r), v(li_), v(OWI + q), v(ACR + r)))
        k.e('v_fma_f32 %s, -%s, %s, %s' % (v(ACI + r), v(li_), v(OWR + q), v(ACI + r)))
        k.e('v_cvt_pk_bf16_f32 %s, %s, %s' % (v(ACR + r), v(ACR + r), v(ACI + r)))
        k.e('ds_write_b16 v232, %s offset:%d' % (v(ACR + r), (8 * q + j) * 128))
        k.e('ds_write_b16_d16_hi v249, %s offset:%d' % (v(ACR + r), (8 * q + j) * 128))

def t_tread(k):
    for n in range(4):
        k.e('ds_read_b128 %s, v233 offset:%d' % (v(72 + 4 * n, 4), 1024 * n))

def t_tstore(k):
    for n in range(4):
        k.e('s_add_u32 s84, s98, %d' % (n * 16384))
        k.vm('buffer_store_dwordx4 %s, v242, s[16:19], s84 offen sc1' % v(72 + 4 * n, 4), 'hb')
    k.tl(4)
def fc1_setup(k):
    k.e('s_and_b32 s72, s2, 7')
    k.e('s_lshr_b32 s73, s2, 3')
    k.e('s_mov_b32 s101, s73')
    k.e('s_mul_i32 s74, s72, 22')
    k.e('s_add_u32 s74, s74, s73')
    k.e('s_and_b32 s75, s74, 7')
    k.e('s_lshr_b32 s74, s74, 3')
    k.e('s_lshl_b32 s100, s75, 7')
    k.e('s_lshl_b32 s76, s74, 2')
    k.e('s_add_u32 s100, s100, s76')
    k.e('s_add_u32 s100, s100, %d' % WS_FU)
    k.e('s_lshl_b32 s75, s75, 6')
    k.e('s_lshl_b32 s74, s74, 6')
    k.e('s_lshr_b32 s76, s3, 1')
    k.e('s_and_b32 s77, s3, 1')
    k.e('v_lshrrev_b32 v2, 5, v1')
    k.e('v_lshlrev_b32 v2, 3, v2')
    k.e('s_lshl_b32 s78, s76, 5')
    k.e('s_add_u32 s78, s78, s74')
    k.e('s_lshl_b32 s79, s78, 1')
    k.e('v_add_u32 v2, s79, v2')
    I3, I4, I7 = 4, 5, 6
    k.e('v_lshrrev_b32 v4, 3, v1'); k.e('v_lshrrev_b32 v5, 4, v1'); k.e('v_and_b32 v6, 7, v1')
    VA, VB = 8, 10
    k.e('s_lshl_b32 s80, s3, 4')
    k.e('s_mov_b32 s81, 2752')
    k.e('s_lshl_b32 s82, s74, 1')
    dma_voff(k, VA, 80, 81, 82, True, I3, I4, I7, 7)
    k.e('s_mov_b32 s81, 1024')
    k.e('s_lshl_b32 s82, s75, 1')
    k.e('s_add_u32 s82, s82, %d' % WS_H)
    dma_voff(k, VB, 80, 81, 82, True, I3, I4, I7, 7)
    k.e('s_lshl_b32 s83, s3, 11')
    srd(k, 4, B_W1, 2048 * 2752)
    k.e('s_cmp_lt_u32 s73, 22')
    k.e('s_cselect_b32 s6, s6, 0')

def fc1_setup2(k):
    PA, PB = 12, 14
    k.e('s_lshl_b32 s86, s76, 2')
    k.e('s_lshl_b32 s87, s77, 2')
    pat_tr(k, PA, 86, 0, 1, 16, 17, 18)
    pat_tr(k, PB, 87, 8192, 1, 16, 17, 18)
    k.e('v_and_b32 v4, 31, v1')
    k.e('s_lshl_b32 s89, s77, 5')
    k.e('s_add_u32 s89, s89, s75')
    k.e('v_add_u32 v4, s89, v4')
    k.e('s_mov_b32 s90, %d' % UP)
    k.e('v_mul_lo_u32 v4, v4, s90')
    k.e('v_add_u32 v199, v4, v2')
    srd(k, 8, B_B1, 2752)
    k.e('s_mov_b32 s93, s78')

def fc1_setup_pf(k):
    k.e('s_mov_b32 s93, 2752')
    k.e('s_cmp_lt_u32 s3, 2')
    k.e('s_cselect_b32 s93, 1024, s93')
    k.e('s_lshl_b32 s92, s93, 9')
    k.e('s_mul_i32 s91, s72, 22')
    k.e('s_lshr_b32 s91, s91, 3')
    k.e('s_lshl_b32 s91, s91, 7')
    k.e('s_cmp_lt_u32 s3, 2')
    k.e('s_cselect_b32 s91, %d, s91' % WS_H)
    k.e('s_cmp_lt_u32 s3, 2')
    k.e('s_cselect_b32 s90, 8, 5')
    k.e('s_and_b32 s89, s3, 1')
    k.e('s_lshl_b32 s89, s89, 3')
    k.e('s_lshl_b32 s88, s73, 4')
    k.e('s_add_u32 s89, s89, s88')
    k.e('v_lshrrev_b32 v4, 3, v1')
    k.e('v_add_u32 v4, s89, v4')
    k.e('v_mul_lo_u32 v4, v4, s93')
    k.e('v_and_b32 v5, 7, v1')
    k.e('v_lshl_add_u32 v230, v5, 7, v4')
    k.e('v_mov_b32 v4, 0x7f000000')
    k.e('v_cmp_gt_u32 vcc, s90, v5')
    k.e('v_cndmask_b32 v230, v4, v230, vcc')
    k.e('s_cmp_lt_u32 s3, 2')
    k.e('s_cselect_b32 s12, s%d, s%d' % (P(WS), P(B_W1)))
    k.e('s_cselect_b32 s13, s%d, s%d' % (P(WS) + 1, P(B_W1) + 1))
    k.e('s_and_b32 s13, s13, 0xffff')
    k.e('s_mov_b32 s14, 0x%x' % (2048 * 2752))
    k.e('s_mov_b32 s15, 0x00020000')
    k.e('s_mov_b32 s93, s78')

def pf_slot():
    if not PF: return []
    return [('v', 'buffer_load_dword v231, v230, s[12:15], s91 offen', 'pf'), ('e', 's_add_u32 s91, s91, s92')]

HBL = 'buffer_load_dword v227, v226, s[16:19], s97 offen sc1'
FUL = 'buffer_load_dword v229, v228, s[16:19], s98 offen sc1'
P3_VC, P3_VH, P3_VU, P3_VW = 200, 202, 204, 206
P3_PA, P3_PB, P3_PT = 180, 188, 196
P3_OUTA = 198

def p3_setup(k, part):
    I3, I4, I7 = 4, 5, 6
    if part == 0:
        k.e('s_and_b32 s72, s2, 7')
        k.e('s_lshr_b32 s73, s2, 3')
        k.e('s_lshr_b32 s74, s73, 3')
        k.e('s_lshl_b32 s72, s72, 2')
        k.e('s_add_u32 s72, s72, s74')
        k.e('s_and_b32 s73, s73, 7')
        k.e('s_lshr_b32 s86, s72, 1')
        k.e('s_lshl_b32 s86, s86, 7')
        k.e('s_add_u32 s97, s86, %d' % WS_FB)
        k.e('v_and_b32 v4, 15, v1')
        k.e('v_lshlrev_b32 v226, 2, v4')
        k.e('v_min_u32 v4, 21, v1')
        k.e('v_lshlrev_b32 v228, 2, v4')
        k.e('s_and_b32 s98, s72, 7')
        k.e('s_lshl_b32 s98, s98, 3')
        k.e('s_add_u32 s98, s98, s73')
        k.e('s_lshl_b32 s98, s98, 7')
        k.e('s_add_u32 s98, s98, %d' % WS_FU)
        k.e('s_lshl_b32 s74, s72, 6')
        k.e('s_lshl_b32 s75, s73, 6')
        k.e('s_lshr_b32 s76, s3, 1')
        k.e('s_and_b32 s77, s3, 1')
        k.e('v_and_b32 v3, 31, v1')
        k.e('s_lshl_b32 s78, s77, 5')
        k.e('s_add_u32 s78, s78, s74')
        k.e('v_add_u32 v3, s78, v3')
        k.e('v_lshrrev_b32 v176, 3, v3')
        k.e('v_lshlrev_b32 v176, 7, v176')
        k.e('v_and_b32 v4, 7, v3')
        k.e('v_lshl_add_u32 v176, v4, 2, v176')
        k.e('v_lshlrev_b32 v177, 1, v3')
        k.e('s_lshl_b32 s79, s76, 5')
        k.e('s_add_u32 s79, s79, s75')
        k.e('v_lshrrev_b32 v4, 5, v1')
        k.e('v_lshlrev_b32 v4, 2, v4')
        k.e('v_add_u32 v4, s79, v4')
        k.e('v_lshlrev_b32 v178, 1, v4')
        k.e('v_lshl_add_u32 v179, v3, 10, v178')
        k.e('v_lshlrev_b32 v%d, 1, v179' % P3_OUTA)
        k.e('v_lshrrev_b32 v4, 3, v1'); k.e('v_lshrrev_b32 v5, 4, v1'); k.e('v_and_b32 v6, 7, v1')
        k.e('s_lshl_b32 s80, s3, 4')
        k.e('s_add_u32 s81, s80, s75')
        k.e('s_add_u32 s82, s80, s74')
    elif part == 1:
        k.e('s_mov_b32 s86, 1024'); k.e('s_mov_b32 s87, 0')
        dma_voff(k, P3_VC, 81, 86, 87, False, I3, I4, I7, 7)
        k.e('s_mov_b32 s86, 2048'); k.e('s_mov_b32 s87, %d' % WS_HB)
        dma_voff(k, P3_VH, 82, 86, 87, False, I3, I4, I7, 7, hb=True)
    elif part == 2:
        k.e('s_mov_b32 s86, %d' % UP); k.e('s_mov_b32 s87, %d' % WS_U)
        dma_voff(k, P3_VU, 81, 86, 87, False, I3, I4, I7, 7)
        k.e('s_mov_b32 s86, 4096'); k.e('s_lshl_b32 s87, s74, 1')
        dma_voff(k, P3_VW, 80, 86, 87, True, I3, I4, I7, 7)
    elif part == 3:
        k.e('s_lshl_b32 s86, s76, 12')
        k.e('s_lshl_b32 s87, s77, 12')
        k.e('s_lshl_b32 s88, s77, 2')
        pat_direct(k, P3_PA, 86, 0, 1, 113, 114)
        pat_direct(k, P3_PB, 87, 8192, 1, 113, 114)
        pat_tr(k, P3_PT, 88, 8192, 1, 113, 114, 115)
    elif part == 4:
        srd(k, 20, A_CRE, 1 << 19); srd(k, 24, A_CIM, 1 << 19); srd(k, 28, B_W2, 1376 * 4096); srd(k, 32, OUT, 4 << 20)

def hb_check(k, sfx):
    k.label('HBCHK' + sfx)
    k.e('v_cmp_ne_u32 vcc, v250, v227')
    k.e('s_cbranch_vccz HBOK' + sfx)
    poll_tail(k, 'HBCHK' + sfx, 'HBOK' + sfx, [HBL])
    k.tl(7)

def g_stages(k):
    NS = 8
    VA, VB, PA, PB = 8, 10, 12, 14
    B1R = 128
    ACC = 16
    def b1_loads():
        return [('v', 'buffer_load_dwordx2 %s, v2, s[8:11], 0 offen offset:%d' % (v(B1R + 2 * q, 2), 16 * q), 'b1') for q in range(4)]
    def parts(g):
        slot = ((g + SLOT0) % NS) * 16384
        tg = 'st%d' % g
        if g < 32:
            srdA, srdB, va, vb = 4, 16, VA, VB
            oa, ob = g * 64 * 2752, g * 65536
        else:
            st = g - 32
            if st < 16:
                srdA = 20 if st % 2 == 0 else 24
                oa, ob = (st // 2) * 128, (st // 2) * 256 + (st % 2) * 64
                va, vb, srdB = P3_VC, P3_VH, 16
            else:
                srdA = 16
                oa, ob = (st - 16) * 128, (st - 16) * 262144
                va, vb, srdB = P3_VU, P3_VW, 28
        A = [[('e', 's_mov_b32 s84, %d' % oa), ('e', 's_add_u32 m0, s83, %d' % slot), ('e', 's_nop 0'),
              ('v', 'buffer_load_dwordx4 %s, s[%d:%d], s84 offen lds' % (v(va), srdA, srdA + 3), tg)],
             [('v', 'buffer_load_dwordx4 %s, s[%d:%d], s84 offen offset:1024 lds' % (v(va + 1), srdA, srdA + 3), tg)]]
        B = [[('e', 's_mov_b32 s85, %d' % ob), ('e', 's_add_u32 m0, s83, %d' % (slot + 8192)), ('e', 's_nop 0'),
              ('v', 'buffer_load_dwordx4 %s, s[%d:%d], s85 offen lds' % (v(vb), srdB, srdB + 3), tg)],
             [('v', 'buffer_load_dwordx4 %s, s[%d:%d], s85 offen offset:1024 lds' % (v(vb + 1), srdB, srdB + 3), tg)]]
        return A, B
    GU = 32 + UC
    def issue(g):
        A, B = parts(g)
        if g >= 48 and g - DIST < GU:
            return [[], [], B[0], B[1]]
        if 32 <= g < 48 and g - DIST < HBC:
            return [A[0], A[1], [], []]
        return A + B
    ACA, ACB = 160, 208
    GR, B2R, XR, DR = 224, 225, 232, 240
    stages = []
    for g in range(70):
        if g < 32:
            stages.append(dict(issue=issue, modeA='t', patA=PA, modeB='t', patB=PB, acc=ACC, first=(g == 0)))
        elif g < 48:
            stages.append(dict(issue=issue, modeA='d', patA=P3_PA, modeB='d', patB=P3_PB, acc=ACA, first=(g == 32)))
        else:
            stages.append(dict(issue=issue, modeA='d', patA=P3_PA, modeB='t', patB=P3_PT, acc=ACB, first=(g == 48)))
    for S in stages: S['pre'] = []; S['extra'] = []
    def F(fn): return lambda: [('f', fn)]
    for g in PF2: stages[g]['extra'].append(pf_slot)
    stages[0]['extra'].append(F(lambda: t_scale(k, 0, 8)))
    stages[1]['extra'].append(F(lambda: t_scale(k, 8, 16)))
    stages[EC]['pre'].append(F(lambda: t_echeck(k, 'F')))
    stages[EC]['lgk0'] = 1
    stages[EC + 1]['pre'].append(F(lambda: t_uread(k)))
    stages[EC + 1]['extra'].append(F(lambda: (k.e('s_waitcnt lgkmcnt(15)'), t_carry(k))))
    stages[EC + 2]['extra'].append(F(lambda: (t_hb(k, 0), t_hb(k, 1))))
    stages[EC + 3]['extra'].append(F(lambda: (t_hb(k, 2), t_hb(k, 3))))
    stages[EC + 4]['pre'].append(F(lambda: t_tread(k)))
    stages[EC + 4]['extra'].append(F(lambda: (k.e('s_waitcnt lgkmcnt(15)'), t_tstore(k))))
    stages[12]['extra'].append(b1_loads)
    stages[HBF - 1]['extra'].append(lambda: [('w', 'hb')])
    stages[HBF]['pre'].append(lambda: flag_store(k, 'F_HBFL', 's99', 1))
    for i in range(5):
        stages[13 + i]['extra'].append(F(lambda i=i: p3_setup(k, i)))
    stages[HBLG]['extra'].append(lambda: [('v', HBL, 'fhb')])
    def hbc():
        hb_check(k, 'F')
        for g in range(32, HBC + DIST):
            A, B = parts(g)
            emit_items(k, B[0] + B[1])
    stages[HBC]['pre'].append(lambda: [('w', 'fhb'), ('f', hbc)])
    stages[32]['label'] = 'G32'
    B1F, T, UO = 64, 80, 96
    def f2u(x): return struct.unpack('<I', struct.pack('<f', x))[0]
    C1 = f2u(0.044715); C2 = f2u(-2.0 * 1.4426950408889634 * 0.7978845608028654)
    def ep(i):
        lab = 'F_EP%d' % i
        k.e('s_cmp_ge_u32 s101, 22')
        k.e('s_cbranch_scc1 %s' % lab)
        if i == 0:
            k.tl(5)
            for j in range(8):
                k.e('v_lshlrev_b32 %s, 16, %s' % (v(B1F + 2 * j), v(B1R + j)))
                k.e('v_and_b32 %s, 0xffff0000, %s' % (v(B1F + 2 * j + 1), v(B1R + j)))
            for r in range(0, 16, 2):
                rbf2(k, ACC + r, ACC + r + 1, T)
            for r in range(16):
                k.e('v_add_f32 %s, %s, %s' % (v(ACC + r), v(ACC + r), v(B1F + r)))
            for r in range(0, 16, 2):
                rbf2(k, ACC + r, ACC + r + 1, T)
        elif i == 1:
            k.e('s_mov_b32 s88, 0x%x' % C1)
            for r in range(16):
                t = T + r
                k.e('v_mul_f32 %s, %s, %s' % (v(t), v(ACC + r), v(ACC + r)))
                k.e('v_mul_f32 %s, %s, %s' % (v(t), v(t), v(ACC + r)))
                k.e('v_fma_f32 %s, %s, s88, %s' % (v(t), v(t), v(ACC + r)))
                k.e('v_mul_f32 %s, 0x%x, %s' % (v(t), C2, v(t)))
                k.e('v_exp_f32 %s, %s' % (v(t), v(t)))
        elif i == 2:
            for r in range(16):
                t = T + r
                k.e('v_add_f32 %s, 1.0, %s' % (v(t), v(t)))
                k.e('v_rcp_f32 %s, %s' % (v(t), v(t)))
            for r in range(16):
                t = T + r
                k.e('v_mul_f32 %s, %s, %s' % (v(ACC + r), v(ACC + r), v(t)))
            for r in range(0, 16, 2):
                k.e('v_cvt_pk_bf16_f32 %s, %s, %s' % (v(UO + r // 2), v(ACC + r), v(ACC + r + 1)))
            k.e('s_cmp_lt_u32 s93, 1376')
            k.e('s_cbranch_scc1 F_ST')
            for j in range(8):
                k.e('v_mov_b32 %s, 0' % v(UO + j))
            k.label('F_ST')
            k.e('s_mov_b32 s90, %d' % WS_U)
            for q in range(4):
                k.e('buffer_store_dwordx2 %s, v199, s[16:19], s90 offen offset:%d sc1' % (v(UO + 2 * q, 2), 16 * q))
            k.tl(6)
        k.label(lab)
        if i == 2: k.mark('ust')
    for i in range(3):
        stages[33 + i]['extra'].append(F(lambda i=i: ep(i)))
    stages[32 + UW - 1]['extra'].append(lambda: [('w', 'ust')])
    stages[32 + UW]['pre'].append(lambda: flag_store(k, 'P3_UFL', 's100', 8, cond=[('e', 's_cmp_ge_u32 s101, 22')]))
    def late_srds():
        srd(k, 4, A_X, 2 << 20); srd(k, 8, A_DSK, 1024); srd(k, 12, B_B2, 4096)
    stages[GU - 2]['extra'].append(lambda: [('e', 's_cmp_lg_u32 s3, 0'), ('e', 's_cbranch_scc1 P3_NOFU'), ('e', FUL), ('e', 'P3_NOFU:'), ('m', 'fu'), ('f', late_srds)])
    def uchk():
        k.e('s_cmp_lg_u32 s3, 0')
        k.e('s_cbranch_scc1 P3_UOK')
        q = list(k.vmq)
        k.wait_vm('fu')
        k.vmq = q
        k.label('P3_UCHK')
        k.e('v_cmp_ne_u32 vcc, v250, v229')
        k.e('s_cbranch_vccz P3_UOK')
        poll_tail(k, 'P3_UCHK', 'P3_UOK', [FUL])
        k.e('s_barrier')
        k.tl(8)
        for g in range(48, GU + DIST):
            A, B = parts(g)
            emit_items(k, A[0] + A[1])
    stages[GU]['pre'].append(F(uchk))
    def ep_loads():
        L = [('e', 's_mov_b32 s79, %d' % WS_G), ('v', 'buffer_load_dword %s, v176, s[16:19], s79 offen' % v(GR), 'ep'),
             ('v', 'buffer_load_ushort %s, v177, s[12:15], 0 offen' % v(B2R), 'ep')]
        for q in range(4):
            L.append(('v', 'buffer_load_dwordx2 %s, v178, s[8:11], 0 offen offset:%d' % (v(DR + 2 * q, 2), 16 * q), 'ep'))
        for q in range(4):
            L.append(('v', 'buffer_load_dwordx2 %s, v179, s[4:7], 0 offen offset:%d' % (v(XR + 2 * q, 2), 16 * q), 'ep'))
        return L
    stages[54]['extra'].append(ep_loads)
    return stages, issue, parts

def g_run(k, stages):
    FBUF = [(0, 16), (32, 48)]
    ACA, ACB = 160, 208
    GR, B2R, XR, DR = 224, 225, 232, 240
    gemm_loop(k, stages, 8, FBUF, sb=64)
    k.tl(9)
    k.nop(13)
    XF, DF, T = 64, 80, 100
    for i in range(8):
        k.e('v_lshlrev_b32 %s, 16, %s' % (v(XF + 2 * i), v(XR + i)))
        k.e('v_and_b32 %s, 0xffff0000, %s' % (v(XF + 2 * i + 1), v(XR + i)))
        k.e('v_lshlrev_b32 %s, 16, %s' % (v(DF + 2 * i), v(DR + i)))
        k.e('v_and_b32 %s, 0xffff0000, %s' % (v(DF + 2 * i + 1), v(DR + i)))
    k.e('v_lshlrev_b32 %s, 16, %s' % (v(B2R), v(B2R)))
    OMG = 101
    k.e('v_sub_f32 %s, 1.0, %s' % (v(OMG), v(GR)))
    rbf(k, OMG, T)
    for r in range(16):
        k.e('v_mul_f32 %s, %s, %s' % (v(XF + r), v(XF + r), v(DF + r)))
    for r in range(0, 16, 2):
        rbf2(k, XF + r, XF + r + 1, T)
        rbf2(k, ACB + r, ACB + r + 1, T)
    for r in range(16):
        k.e('v_add_f32 %s, %s, %s' % (v(ACA + r), v(ACA + r), v(XF + r)))
        k.e('v_add_f32 %s, %s, %s' % (v(ACB + r), v(ACB + r), v(B2R)))
    for r in range(0, 16, 2):
        rbf2(k, ACB + r, ACB + r + 1, T)
    for r in range(16):
        k.e('v_mul_f32 %s, %s, %s' % (v(ACB + r), v(ACB + r), v(OMG)))
        k.e('v_mul_f32 %s, %s, %s' % (v(ACA + r), v(ACA + r), v(GR)))
    for r in range(0, 16, 2):
        rbf2(k, ACB + r, ACB + r + 1, T)
    for r in range(16):
        k.e('v_add_f32 %s, %s, %s' % (v(ACA + r), v(ACA + r), v(ACB + r)))
    for q in range(4):
        k.e('buffer_store_dwordx4 %s, v%d, s[32:35], 0 offen offset:%d' % (v(ACA + 4 * q, 4), P3_OUTA, 32 * q))
    k.stamp(140)
    if DEBUG or TL:
        k.e('s_waitcnt vmcnt(0)')
    k.stamp(141)
    k.tl(10)
    k.flush_dbg()

def r_role(k, issue, parts):
    if RPF:
        srd(k, 12, WS, 2 << 20)
        k.e('s_sub_u32 s74, s73, 22')
        k.e('s_lshl_b32 s74, s74, 8')
        k.e('v_add_u32 v4, s74, v0')
        k.e('v_lshlrev_b32 v5, 7, v4')
        for i in range(7):
            k.e('s_mov_b32 s84, %d' % (WS_H + i * 2560 * 128))
            k.e('buffer_load_dword v231, v5, s[12:15], s84 offen')
    t_eload(k, 'R')
    t_scale(k, 0, 16)
    t_echeck(k, 'R')
    k.e('s_waitcnt lgkmcnt(0)')
    k.e('s_barrier')
    t_uread(k)
    k.e('s_waitcnt lgkmcnt(0)')
    t_carry(k)
    for q in range(4): t_hb(k, q)
    k.e('s_waitcnt lgkmcnt(0)')
    t_tread(k)
    k.e('s_waitcnt lgkmcnt(0)')
    t_tstore(k)
    k.e('s_waitcnt vmcnt(0)')
    k.e('s_barrier')
    emit_items(k, flag_store(k, 'R_HBFL', 's99', 1))
    if PFX:
        srd(k, 20, A_CRE, 1 << 19); srd(k, 24, A_CIM, 1 << 19); srd(k, 28, B_W2, 1376 * 4096)
        k.e('s_sub_u32 s74, s73, 22')
        k.e('s_lshl_b32 s74, s74, 8')
        k.e('v_add_u32 v4, s74, v0')
        k.e('v_lshlrev_b32 v5, 7, v4')
        k.e('buffer_load_dword v231, v5, s[20:23], 0 offen')
        k.e('buffer_load_dword v231, v5, s[24:27], 0 offen')
        k.e('v_add_u32 v6, %d, v5' % (2560 * 128))
        k.e('buffer_load_dword v231, v6, s[20:23], 0 offen')
        k.e('buffer_load_dword v231, v6, s[24:27], 0 offen')
        k.e('v_lshrrev_b32 v5, 2, v4')
        k.e('v_lshlrev_b32 v5, 12, v5')
        k.e('v_and_b32 v6, 3, v4')
        k.e('v_lshl_add_u32 v5, v6, 7, v5')
        k.e('s_lshl_b32 s75, s72, 9')
        k.e('v_add_u32 v5, s75, v5')
        k.e('v_add_u32 v6, %d, v5' % (640 * 4096))
        k.e('v_add_u32 v7, %d, v5' % (1280 * 4096))
        for r_ in (5, 6, 7):
            k.e('buffer_load_dword v231, v%d, s[28:31], 0 offen' % r_)
    k.tl(5)
    for i in range(5): p3_setup(k, i)
    k.e(HBL)
    k.e('s_waitcnt vmcnt(0)')
    k.tl(6)
    hb_check(k, 'R')
    for g in range(32, 32 + DIST):
        if g == HBC + DIST:
            for g2 in range(32, g):
                A, B = parts(g2)
                emit_items(k, B[0] + B[1])
        for grp in issue(g): emit_items(k, grp)
    k.e('s_branch G32')
def gen_fused():
    k = Kern('gated_mix__ssm_conv_s5__mixer_token_mlp__prompt_kernel')
    stages, issue, parts = g_stages(k)
    def setup2():
        fc1_setup2(k)
        if PF: fc1_setup_pf(k)
    hooks = dict(setup=lambda: fc1_setup(k), setup2=setup2, Apart=lambda g: parts(g)[0],
                 A={3: [0, 1], 4: [2], 5: [3, 4], 7: [5, 6], 8: [7]})
    gen_p1(k, hooks)
    k.e('s_cmp_lt_u32 s73, 22')
    k.e('s_cbranch_scc1 F_ROLE')
    q = list(k.vmq)
    r_role(k, issue, parts)
    k.vmq = q
    k.label('F_ROLE')
    for g in range(8):
        B = parts(g)[1]
        emit_items(k, B[0] + B[1])
        if g == EC - 1: t_eload(k, 'F')
        if g in PRO: emit_items(k, pf_slot())
    k.stamp(15)
    g_run(k, stages)
    k.label('K_END')
    k.e('s_endpgm')
    return finish(k, 320, 102)

def main():
    hdr = open('gated_mix__ssm_conv_s5__mixer_token_mlp__prompt.s.ref').read().split('\n')
    top = []
    for l in hdr:
        if l.startswith(';') and '@launch' not in l:
            top.append(l)
        elif not l.startswith(';'):
            break
    top.append('; @launch grid=(256,1,1) block=(256,1,1) lds=148736')
    top.append('.amdgcn_target "amdgcn-amd-amdhsa--gfx950"')
    top.append('.text')
    ks = [gen_fused()]
    body = []
    for b, d in ks:
        body += b
    body.append('.section .rodata,"a"')
    for b, d in ks:
        body += d
    out = '\n'.join(top + body) + '\n'
    path = sys.argv[1]
    open(path, 'w').write(out)
    print('wrote', path, len(out), 'bytes')

if __name__ == '__main__':
    main()
```

```python
import sys, os, struct
DEBUG = int(os.environ.get('DEBUG', '0'))
DBGWG = int(os.environ.get('DBGWG', '0'))
TL = int(os.environ.get('TL', '0'))
PF = int(os.environ.get('PF', '0'))
PFX = int(os.environ.get('PFX', '1'))
PRO = eval(os.environ.get('PRO', '(1,7)'))
PF2 = eval(os.environ.get('PF2', '(1,9)'))

WS_H  = 0
WS_G  = 2 << 20
WS_E  = 12 << 20
WS_FA = 13 << 20
WS_FB = WS_FA + 16384
WS_FU = WS_FA + 32768
WS_HB = 16 << 20
WS_U  = 20 << 20
WS_SZ = 24 << 20
if DEBUG or TL: WS_SZ = 64 << 20
UP = 2816
LOG2E = 0x3fb8aa3b
INV2PI = 0x3e22f983
UC = int(os.environ.get('UC', '12'))
UW = int(os.environ.get('UW', '3'))
FHST = int(os.environ.get('FHST', '3'))
EC = int(os.environ.get('EC', '4'))
HBP = int(os.environ.get('HBP', '1'))
HBF = int(os.environ.get('HBF', '0'))
HBLG = int(os.environ.get('HBLG', '22'))
HBC = int(os.environ.get('HBC', '26'))
RPF = int(os.environ.get('RPF', '1'))
PFXST = int(os.environ.get('PFXST', '5'))
E31 = int(os.environ.get('E31', '1'))
EPS = int(os.environ.get('EPS', '1'))
PPL = int(os.environ.get('PPL', '3'))
PSL = int(os.environ.get('PSL', '4'))
UPF = int(os.environ.get('UPF', '1'))
EPL = int(os.environ.get('EPL', '37'))
TMO = 1 << 13

class Kern:
    def __init__(self, name):
        self.name = name
        self.L = []
        self.vmq = []
        self.nlab = 0
    def e(self, s):
        self.L.append('    ' + s)
    def c(self, s):
        self.L.append('    ; ' + s)
    def label(self, l):
        self.L.append(l + ':')
    def vm(self, s, tag):
        self.e(s); self.vmq.append((tag, 1))
    def mark(self, tag):
        self.vmq.append((tag, 0))
    def wait_vm(self, tag):
        idxs = [i for i, t in enumerate(self.vmq) if t[0] == tag]
        if not idxs:
            return
        idx = idxs[-1]
        n = sum(t[1] for t in self.vmq[idx + 1:])
        self.e('s_waitcnt vmcnt(%d)' % min(n, 63))
        self.vmq = self.vmq[idx + 1:]
    def wait_vm_all(self):
        self.e('s_waitcnt vmcnt(0)'); self.vmq = []
    def stamp(self, i):
        if not DEBUG: return
        self.e('s_memtime s[94:95]')
        self.e('s_waitcnt lgkmcnt(0)')
        self.e('v_writelane_b32 v%d, s94, %d' % (255 - i // 64, i % 64))
    def tl(self, i):
        if not TL: return
        self.e('s_memrealtime s[94:95]')
        self.e('s_waitcnt lgkmcnt(0)')
        self.e('v_writelane_b32 v252, s94, %d' % i)
    def tlc(self, i):
        if not TL: return
        self.e('s_memtime s[94:95]')
        self.e('s_waitcnt lgkmcnt(0)')
        self.e('v_writelane_b32 v252, s94, %d' % i)
    def flush_dbg(self):
        if not (DEBUG or TL): return
        self.nlab += 1
        lab = '%s_DBG%d' % (self.name, self.nlab)
        self.e('s_cmp_lg_u32 s3, 0')
        self.e('s_cbranch_scc1 %s' % lab)
        self.e('v_and_b32 v251, 63, v0')
        self.e('v_lshlrev_b32 v251, 2, v251')
        if TL:
            self.e('s_lshl_b32 s94, s2, 8')
            self.e('s_add_u32 s94, s94, %d' % (32 << 20))
            self.e('buffer_store_dword v252, v251, s[16:19], s94 offen')
        if DEBUG:
            self.e('s_cmp_lg_u32 s2, %d' % DBGWG)
            self.e('s_cbranch_scc1 %s' % lab)
            self.e('s_mov_b32 s94, %d' % (33 << 20))
            self.e('buffer_store_dword v255, v251, s[16:19], s94 offen')
            self.e('buffer_store_dword v254, v251, s[16:19], s94 offen offset:256')
            self.e('buffer_store_dword v253, v251, s[16:19], s94 offen offset:512')
        self.label(lab)
    def nop(self, n):
        while n > 0:
            k = min(n, 16)
            self.e('s_nop %d' % (k - 1)); n -= k
def v(i, n=1):
    return 'v%d' % i if n == 1 else 'v[%d:%d]' % (i, i + n - 1)
def a(i, n=1):
    return 'a%d' % i if n == 1 else 'a[%d:%d]' % (i, i + n - 1)
def s(i, n=1):
    return 's%d' % i if n == 1 else 's[%d:%d]' % (i, i + n - 1)

def P(k): return 36 + 2 * k
A_X, A_LRE, A_LIM, A_BRE, A_BIM, A_CRE, A_CIM, A_LDT, A_DSK, B_X, B_W1, B_B1, B_W2, B_B2, GATE, OUT, DBG, WS = range(18)

def load_kernargs(k):
    k.e('s_load_dwordx16 s[36:51], s[0:1], 0')
    k.e('s_load_dwordx16 s[52:67], s[0:1], 64')
    k.e('s_load_dwordx4 s[68:71], s[0:1], 128')

def srd(k, dst, ptr, nbytes):
    k.e('s_mov_b32 s%d, s%d' % (dst, P(ptr)))
    k.e('s_and_b32 s%d, s%d, 0xffff' % (dst + 1, P(ptr) + 1))
    k.e('s_mov_b32 s%d, 0x%x' % (dst + 2, nbytes))
    k.e('s_mov_b32 s%d, 0x00020000' % (dst + 3))

def cfma(k, dr, di, ar, ai, br, bi, cr, ci):
    k.e('v_fma_f32 %s, %s, %s, %s' % (v(dr), v(ar), v(br), v(cr)))
    k.e('v_fma_f32 %s, %s, %s, %s' % (v(di), v(ar), v(bi), v(ci)))
    k.e('v_fma_f32 %s, -%s, %s, %s' % (v(dr), v(ai), v(bi), v(dr)))
    k.e('v_fma_f32 %s, %s, %s, %s' % (v(di), v(ai), v(br), v(di)))

def cmul(k, dr, di, ar, ai, br, bi):
    k.e('v_mul_f32 %s, %s, %s' % (v(dr), v(ar), v(br)))
    k.e('v_mul_f32 %s, %s, %s' % (v(di), v(ar), v(bi)))
    k.e('v_fma_f32 %s, -%s, %s, %s' % (v(dr), v(ai), v(bi), v(dr)))
    k.e('v_fma_f32 %s, %s, %s, %s' % (v(di), v(ai), v(br), v(di)))

def rbf(k, a, t):
    k.e('v_cvt_pk_bf16_f32 %s, %s, %s' % (v(t), v(a), v(a)))
    k.e('v_lshlrev_b32 %s, 16, %s' % (v(a), v(t)))

def rbf2(k, a, b, t):
    k.e('v_cvt_pk_bf16_f32 %s, %s, %s' % (v(t), v(a), v(b)))
    k.e('v_lshlrev_b32 %s, 16, %s' % (v(a), v(t)))
    k.e('v_and_b32 %s, 0xffff0000, %s' % (v(b), v(t)))

def lam_params(k, lre, lim, ldt, Lr, Li, t0, t1):
    k.e('v_lshlrev_b32 %s, 16, %s' % (v(lre), v(lre)))
    k.e('v_lshlrev_b32 %s, 16, %s' % (v(lim), v(lim)))
    k.e('v_lshlrev_b32 %s, 16, %s' % (v(ldt), v(ldt)))
    k.e('v_mul_f32 %s, 0x%x, %s' % (v(t0), LOG2E, v(ldt)))
    k.e('v_exp_f32 %s, %s' % (v(t0), v(t0)))
    k.nop(1)
    rbf(k, t0, t1)
    k.e('v_mul_f32 %s, %s, %s' % (v(t1), v(t0), v(lre)))
    k.e('v_mul_f32 %s, %s, %s' % (v(t0), v(t0), v(lim)))
    k.e('v_mul_f32 %s, 0x%x, %s' % (v(t1), LOG2E, v(t1)))
    k.e('v_mul_f32 %s, 0x%x, %s' % (v(t0), INV2PI, v(t0)))
    k.e('v_exp_f32 %s, %s' % (v(t1), v(t1)))
    k.e('v_fract_f32 %s, %s' % (v(t0), v(t0)))
    k.e('v_cos_f32 %s, %s' % (v(Lr), v(t0)))
    k.e('v_sin_f32 %s, %s' % (v(Li), v(t0)))
    k.nop(1)
    k.e('v_mul_f32 %s, %s, %s' % (v(Lr), v(Lr), v(t1)))
    k.e('v_mul_f32 %s, %s, %s' % (v(Li), v(Li), v(t1)))

def finish(k, nvgpr, nsgpr=96):
    out = []
    out.append('.globl %s' % k.name)
    out.append('.p2align 8')
    out.append('.type %s,@function' % k.name)
    out.append('%s:' % k.name)
    out += k.L
    desc = []
    desc.append('.p2align 6')
    desc.append('.amdhsa_kernel %s' % k.name)
    desc.append('  .amdhsa_next_free_vgpr %d' % nvgpr)
    desc.append('  .amdhsa_next_free_sgpr %d' % nsgpr)
    desc.append('  .amdhsa_accum_offset 256')
    desc.append('  .amdhsa_group_segment_fixed_size 0')
    desc.append('  .amdhsa_kernarg_size 144')
    desc.append('  .amdhsa_user_sgpr_count 2')
    desc.append('  .amdhsa_user_sgpr_kernarg_segment_ptr 1')
    desc.append('  .amdhsa_system_sgpr_workgroup_id_x 1')
    desc.append('.end_amdhsa_kernel')
    return out, desc

def dma_voff(k, dst, rowbase_s, pitch_s, colbase_s, tr, I3, I4, I7, tmp, hb=False):
    for j in range(2):
        if tr:
            k.e('v_and_b32 %s, 1, %s' % (v(tmp), v(I4)))
            k.e('v_lshlrev_b32 %s, 2, %s' % (v(tmp), v(tmp)))
        else:
            k.e('v_add_u32 %s, %d, %s' % (v(tmp), 4 * j, v(I4)))
            k.e('v_and_b32 %s, 7, %s' % (v(tmp), v(tmp)))
        k.e('v_xor_b32 %s, %s, %s' % (v(tmp), v(tmp), v(I7)))
        if hb:
            k.e('v_and_b32 %s, 4, %s' % (v(dst + j), v(tmp)))
            k.e('v_add_u32 %s, %s, %s' % (v(tmp), v(tmp), v(dst + j)))
        k.e('v_lshlrev_b32 %s, 4, %s' % (v(tmp), v(tmp)))
        k.e('v_add_u32 %s, s%d, %s' % (v(dst + j), rowbase_s, v(I3)))
        if j:
            k.e('v_add_u32 %s, 8, %s' % (v(dst + j), v(dst + j)))
        k.e('v_mul_lo_u32 %s, %s, s%d' % (v(dst + j), v(dst + j), pitch_s))
        k.e('v_add_u32 %s, %s, %s' % (v(dst + j), v(dst + j), v(tmp)))
        k.e('v_add_u32 %s, s%d, %s' % (v(dst + j), colbase_s, v(dst + j)))
        if j:
            k.e('v_subrev_u32 %s, 1024, %s' % (v(dst + j), v(dst + j)))

def pat_direct(k, dst, sub_s, base, LANE, t0, t1):
    k.e('v_and_b32 %s, 31, %s' % (v(t0), v(LANE)))
    k.e('v_lshrrev_b32 %s, 1, %s' % (v(t1), v(t0)))
    k.e('v_and_b32 %s, 7, %s' % (v(t1), v(t1)))
    k.e('v_lshrrev_b32 %s, 5, %s' % (v(dst), v(LANE)))
    k.e('v_xor_b32 %s, %s, %s' % (v(t1), v(t1), v(dst)))
    k.e('v_lshlrev_b32 %s, 4, %s' % (v(t1), v(t1)))
    k.e('v_lshl_add_u32 %s, %s, 7, %s' % (v(t1), v(t0), v(t1)))
    k.e('v_add_u32 %s, s%d, %s' % (v(t1), sub_s, v(t1)))
    if base:
        k.e('v_add_u32 %s, %d, %s' % (v(t1), base, v(t1)))
    for kk in range(4):
        k.e('v_xor_b32 %s, %d, %s' % (v(dst + kk), kk << 5, v(t1)))
        k.e('v_add_u32 %s, 65536, %s' % (v(dst + 4 + kk), v(dst + kk)))

def pat_tr(k, dst, subchunk_s, base, LANE, t0, t1, t2):
    k.e('v_and_b32 %s, 15, %s' % (v(t0), v(LANE)))
    k.e('v_lshrrev_b32 %s, 4, %s' % (v(t1), v(LANE)))
    k.e('v_and_b32 %s, 1, %s' % (v(t1), v(t1)))
    k.e('v_lshlrev_b32 %s, 1, %s' % (v(t1), v(t1)))
    k.e('v_bfe_u32 %s, %s, 1, 1' % (v(t2), v(t0)))
    k.e('v_add_u32 %s, %s, %s' % (v(t1), v(t1), v(t2)))
    k.e('v_add_u32 %s, s%d, %s' % (v(t1), subchunk_s, v(t1)))
    k.e('v_bfe_u32 %s, %s, 3, 1' % (v(t2), v(t0)))
    k.e('v_lshlrev_b32 %s, 2, %s' % (v(t2), v(t2)))
    k.e('v_xor_b32 %s, %s, %s' % (v(t1), v(t1), v(t2)))
    k.e('v_lshlrev_b32 %s, 4, %s' % (v(t1), v(t1)))
    k.e('v_and_b32 %s, 1, %s' % (v(t2), v(t0)))
    k.e('v_lshl_add_u32 %s, %s, 3, %s' % (v(t1), v(t2), v(t1)))
    k.e('v_lshrrev_b32 %s, 2, %s' % (v(t2), v(t0)))
    k.e('v_lshrrev_b32 %s, 5, %s' % (v(t0), v(LANE)))
    k.e('v_lshl_add_u32 %s, %s, 3, %s' % (v(t2), v(t0), v(t2)))
    k.e('v_lshl_add_u32 %s, %s, 7, %s' % (v(dst), v(t2), v(t1)))
    if base:
        k.e('v_add_u32 %s, %d, %s' % (v(dst), base, v(dst)))
    k.e('v_add_u32 %s, 65536, %s' % (v(dst + 1), v(dst)))

def read_frag(k, dstreg, mode, pat, slot, kk):
    sset = slot // 4; off = (slot % 4) * 16384
    if mode == 'd':
        k.e('ds_read_b128 %s, %s offset:%d' % (a(dstreg, 4), v(pat + 4 * sset + kk), off))
        return 1
    else:
        k.e('ds_read_b64_tr_b16 %s, %s offset:%d' % (a(dstreg, 2), v(pat + sset), off + kk * 2048))
        k.e('ds_read_b64_tr_b16 %s, %s offset:%d' % (a(dstreg + 2, 2), v(pat + sset), off + kk * 2048 + 512))
        return 2


def emit_items(k, items):
    for it in items:
        if it[0] == 'e': k.e(it[1])
        elif it[0] == 'w': k.wait_vm(it[1])
        elif it[0] == 'm': k.mark(it[1])
        elif it[0] == 'f': it[1]()
        else: k.vm(it[1], it[2])

def capture(k, fns):
    out = []
    sv = (k.e, k.vm, k.mark, k.wait_vm, k.label)
    k.e = lambda s_: out.append(('e', s_))
    k.vm = lambda s_, t: out.append(('v', s_, t))
    k.mark = lambda t: out.append(('m', t))
    k.wait_vm = lambda t: out.append(('w', t))
    k.label = lambda l: out.append(('e', l + ':'))
    for f in fns: emit_items(k, f())
    del k.e, k.vm, k.mark, k.wait_vm, k.label
    return out

def split_items(items, n):
    ok = [True] * (len(items) + 1)
    pend = set()
    hold = False
    for i, it in enumerate(items):
        if pend or hold: ok[i] = False
        hold = False
        if it[0] in 'ev':
            l = it[1]
            if l.endswith(':'): pend.discard(l[:-1])
            elif l.startswith('s_cbranch') or l.startswith('s_branch'): pend.add(l.split()[1])
            elif l.startswith('s_cmp') or l.startswith('s_nop') or l.split(',')[0].split()[-1] in ('s84', 's85', 'm0', 'exec', 's[84:85]'): hold = True
    res = []; start = 0
    for c in range(1, n):
        tgt = max(start, (len(items) * c + n - 1) // n)
        while tgt < len(items) and not ok[tgt]: tgt += 1
        res.append(items[start:tgt]); start = tgt
    res.append(items[start:])
    return res

SLOT0 = 3
ILV = int(os.environ.get('ILV', '0'))
DIST = int(os.environ.get('DIST', '6'))
HALF = int(os.environ.get('HALF', '0'))
def gemm_loop(k, stages, NS, FBUF, sb=0):
    n = len(stages)
    def mfma(st, kk):
        S = stages[st]
        FA, FB = FBUF[st & 1]
        c = '0' if (S['first'] and kk == 0) else v(S['acc'], 16)
        k.e('v_mfma_f32_32x32x16_bf16 %s, %s, %s, %s' % (v(S['acc'], 16), a(FA + 4 * kk, 4), a(FB + 4 * kk, 4), c))
    for st in range(n):
        S = stages[st]
        if S.get('early'):
            k.e('s_waitcnt lgkmcnt(0)')
            for kk in range(4): mfma(st - 1, kk)
            S['early']()
        if S.get('label'): k.label(S['label'])
        k.wait_vm('st%d' % st)
        k.e('s_barrier')
        k.stamp(sb + st)
        for f in S.get('pre', []):
            emit_items(k, f())
        groups = [[], [], [], []]
        if st + DIST >= NS and st + DIST < n:
            groups = stages[st + DIST]['issue'](st + DIST)
        slot = (st + SLOT0) % NS
        FA, FB = FBUF[st & 1]
        xs = split_items(capture(k, S.get('ilv', [])), 4)
        if not ILV: xs = [[], [], [], xs[0] + xs[1] + xs[2] + xs[3]]
        for kk in range(4):
            emit_items(k, groups[kk])
            nr = 0
            if not (HALF and kk >= 2):
                nr += read_frag(k, FA + 4 * kk, S['modeA'], S['patA'], slot, kk)
                nr += read_frag(k, FB + 4 * kk, S['modeB'], S['patB'], slot, kk)
            if st >= 1 and not S.get('early'):
                if DIST < 7 and kk == 0: k.e('s_waitcnt lgkmcnt(%d)' % nr)
                mfma(st - 1, kk)
            emit_items(k, xs[kk])
        for f in S.get('extra', []):
            emit_items(k, f())
        if DIST == 7 or st == n - 1 or S.get('lgk0'): k.e('s_waitcnt lgkmcnt(0)')
    for kk in range(4):
        mfma(n - 1, kk)

def poll_tail(k, lab_chk, lab_ok, reload_lines):
    k.e('s_cmp_eq_u32 s96, 0')
    k.e('s_cbranch_scc1 %s' % lab_ok)
    k.e('s_sub_u32 s96, s96, 1')
    k.e('s_sleep 1')
    for l in reload_lines: k.e(l)
    k.e('s_waitcnt vmcnt(0)')
    k.e('s_branch %s' % lab_chk)
    k.label(lab_ok)

def flag_store(k, lab, soff, nl, cond=None):
    L = [('e', 's_cmp_lg_u32 s3, 0'), ('e', 's_cbranch_scc1 %s' % lab)]
    if cond: L += cond + [('e', 's_cbranch_scc1 %s' % lab)]
    L += [('e', 's_mov_b64 exec, %d' % ((1 << nl) - 1)),
          ('e', 'buffer_store_dword v250, v243, s[16:19], %s offen sc1' % soff),
          ('e', 's_mov_b64 exec, -1'), ('e', '%s:' % lab)]
    return L
SE, SDONE = 64, 65
LR, LI = 184, 185
L2R, L2I, L3R, L3I, L4R, L4I = 186, 187, 188, 189, 190, 191
L32R, L32I = 194, 195
CFR, CFI = 234, 235
L128 = 238
ACR, ACI = 40, 56
EV, OD = 72, 80
CR, CI = 88, 97
EW = 110
EB = 200
UCR = 240
XOFF = 6 * 24576
def gen_p1(k, hooks):
    NS = 6; STG = 24576; NST = 8
    TB = 131072
    k.e('s_cmp_ge_u32 s2, 256')
    k.e('s_cbranch_scc1 K_END')
    load_kernargs(k)
    k.e('s_memrealtime s[84:85]')
    k.tl(0)
    k.tlc(11)
    k.e('v_and_b32 v1, 63, v0')
    k.e('v_lshrrev_b32 v2, 6, v0')
    k.e('s_mov_b32 s96, %d' % TMO)
    k.e('v_readfirstlane_b32 s3, v2')
    k.e('s_and_b32 s72, s2, 7')
    k.e('s_lshr_b32 s73, s2, 3')
    k.e('s_lshr_b32 s74, s73, 4')
    k.e('s_lshl_b32 s72, s72, 1')
    k.e('s_add_u32 s72, s72, s74')
    k.e('s_and_b32 s73, s73, 15')
    k.e('s_lshl_b32 s74, s72, 7')
    k.e('s_lshl_b32 s75, s73, 5')
    XR0, XR1, GW = 168, 172, 176
    PLRE, PLIM, PLDT = 180, 181, 182
    k.e('s_lshl_b32 s76, s73, 3')
    k.e('s_add_u32 s76, s76, s74')
    k.e('s_lshl_b32 s77, s3, 1')
    k.e('s_add_u32 s76, s76, s77')
    k.e('s_lshl_b32 s77, s76, 10')
    k.e('v_lshlrev_b32 v2, 4, v1')
    k.e('v_and_b32 v3, 31, v1')
    k.e('v_add_u32 v14, s75, v3')
    k.e('v_lshlrev_b32 v248, 3, v14')
    k.e('v_lshlrev_b32 v14, 1, v14')
    VA = 8; VB = 12
    k.e('v_lshrrev_b32 v4, 3, v1')
    k.e('v_lshrrev_b32 v5, 4, v1')
    k.e('v_and_b32 v6, 7, v1')
    k.e('s_lshl_b32 s78, s3, 5')
    k.e('s_add_u32 s78, s78, s74')
    for j in range(4):
        k.e('v_add_u32 v7, %d, v5' % (4 * j))
        k.e('v_and_b32 v7, 7, v7')
        k.e('v_xor_b32 v7, v7, v6')
        k.e('v_lshlrev_b32 v7, 4, v7')
        k.e('v_add_u32 %s, s78, v4' % v(VA + j))
        k.e('v_add_u32 %s, %d, %s' % (v(VA + j), 7 * j, v(VA + j)))
        k.e('v_lshlrev_b32 %s, 10, %s' % (v(VA + j), v(VA + j)))
        k.e('v_add_u32 %s, %s, v7' % (v(VA + j), v(VA + j)))
    k.e('s_and_b32 s79, s3, 1')
    k.e('s_lshl_b32 s79, s79, 4')
    k.e('s_add_u32 s79, s79, s75')
    for j in range(2):
        k.e('v_add_u32 v7, %d, v5' % (4 * j))
        k.e('v_and_b32 v7, 7, v7')
        k.e('v_xor_b32 v7, v7, v6')
        k.e('v_lshlrev_b32 v7, 4, v7')
        k.e('v_add_u32 %s, s79, v4' % v(VB + j))
        k.e('v_add_u32 %s, %d, %s' % (v(VB + j), 7 * j, v(VB + j)))
        k.e('v_lshlrev_b32 %s, 10, %s' % (v(VB + j), v(VB + j)))
        k.e('v_add_u32 %s, %s, v7' % (v(VB + j), v(VB + j)))
    k.e('s_lshl_b32 s80, s3, 12')
    k.e('s_lshl_b32 s81, s3, 11')
    k.e('s_add_u32 s81, s81, 16384')
    k.e('v_lshlrev_b32 v242, 11, v4')
    k.e('v_lshl_add_u32 v242, v6, 4, v242')
    k.e('v_lshrrev_b32 v7, 5, v1')
    k.e('v_lshlrev_b32 v233, 2, v7')
    k.e('v_xor_b32 v233, v233, v6')
    k.e('v_lshlrev_b32 v233, 4, v233')
    k.e('v_lshl_add_u32 v233, v4, 7, v233')
    k.e('s_add_u32 s82, s80, %d' % TB)
    k.e('v_add_u32 v233, s82, v233')
    k.e('v_lshlrev_b32 v232, 6, v7')
    k.e('v_lshl_add_u32 v232, v3, 1, v232')
    k.e('v_lshl_add_u32 v232, v7, 9, v232')
    k.e('v_add_u32 v232, s82, v232')
    k.e('v_xor_b32 v249, 64, v232')
    k.e('v_lshlrev_b32 v243, 10, v1')
    k.e('v_lshlrev_b32 v246, 2, v1')
    k.e('s_mov_b32 s97, s72')
    k.e('s_lshl_b32 s98, s78, 11')
    k.e('s_lshl_b32 s99, s73, 7')
    k.e('s_add_u32 s98, s98, s99')
    k.e('s_add_u32 s98, s98, %d' % WS_HB)
    k.e('s_lshl_b32 s99, s72, 7')
    k.e('s_lshl_b32 s100, s73, 2')
    k.e('s_add_u32 s99, s99, s100')
    k.e('s_add_u32 s99, s99, %d' % WS_FB)
    k.e('s_lshl_b32 s89, s72, 6')
    k.e('s_add_u32 s89, s89, s100')
    k.e('s_add_u32 s89, s89, %d' % WS_FA)
    k.e('s_lshl_b32 s88, s73, 10')
    k.e('s_lshl_b32 s100, s3, 8')
    k.e('s_add_u32 s88, s88, s100')
    k.e('s_add_u32 s88, s88, %d' % WS_FA)
    PA = 16; PB = 28
    k.e('v_lshrrev_b32 v4, 5, v1')
    k.e('v_lshrrev_b32 v5, 1, v3')
    k.e('v_and_b32 v5, 7, v5')
    k.e('v_xor_b32 v5, v5, v4')
    k.e('v_lshlrev_b32 v5, 4, v5')
    k.e('v_lshl_add_u32 v5, v3, 7, v5')
    for kk in range(4):
        k.e('v_xor_b32 %s, %d, v5' % (v(PB + kk), kk << 5))
        k.e('v_add_u32 %s, s80, %s' % (v(PA + kk), v(PB + kk)))
        for st in (1, 2):
            k.e('v_add_u32 %s, %d, %s' % (v(PB + 4 * st + kk), 49152 * st, v(PB + kk)))
            k.e('v_add_u32 %s, %d, %s' % (v(PA + 4 * st + kk), 49152 * st, v(PA + kk)))
    k.e('s_waitcnt lgkmcnt(0)')
    k.stamp(60)
    k.e('s_mov_b32 s54, s89')
    k.e('s_mov_b32 s55, s88')
    srd(k, 4, A_X, 2 << 20)
    k.e('s_cmp_ge_u32 s3, 2')
    k.e('s_cselect_b32 s8, s%d, s%d' % (P(A_BIM), P(A_BRE)))
    k.e('s_cselect_b32 s9, s%d, s%d' % (P(A_BIM) + 1, P(A_BRE) + 1))
    k.e('s_and_b32 s9, s9, 0xffff')
    k.e('s_mov_b32 s10, 0x80000')
    k.e('s_mov_b32 s11, 0x00020000')
    srd(k, 32, GATE, 1024)
    srd(k, 16, WS, WS_SZ)
    srd(k, 12, DBG, 256)
    k.e('s_or_b32 s83, s2, s3')
    k.e('s_cmp_lg_u32 s83, 0')
    k.e('s_cbranch_scc1 P1_NOZ')
    k.e('s_or_b32 s84, s84, 1')
    k.e('v_mov_b32 v6, s84')
    k.e('s_mov_b64 exec, 1')
    k.e('buffer_store_dword v6, off, s[12:15], 0 sc1')
    k.e('s_mov_b64 exec, -1')
    k.label('P1_NOZ')
    k.vm('buffer_load_dwordx4 %s, v2, s[4:7], s77 offen' % v(XR0, 4), 'ln')
    k.vm('buffer_load_dwordx4 %s, v2, s[4:7], s77 offen offset:1024' % v(XR1, 4), 'ln')
    k.vm('buffer_load_dwordx4 %s, v2, s[32:35], 0 offen' % v(GW, 4), 'ln')
    def issue_groups(st):
        slot = (st % NS) * STG
        tg = 'b%d' % st
        g = [[('e', 's_mov_b32 s82, %d' % (st * 128)), ('e', 's_add_u32 m0, s80, %d' % slot), ('e', 's_nop 0')], [], [], []]
        for j in range(4):
            g[j // 2].append(('v', 'buffer_load_dwordx4 %s, s[4:7], s82 offen offset:%d lds' % (v(VA + j), 1024 * j), tg))
        g[2] += [('e', 's_add_u32 m0, s81, %d' % slot), ('e', 's_nop 0')]
        for j in range(2):
            g[2 + j].append(('v', 'buffer_load_dwordx4 %s, s[8:11], s82 offen offset:%d lds' % (v(VB + j), 1024 * j), tg))
        return g
    def issue_stage(st):
        for g in issue_groups(st): emit_items(k, g)
    issue_stage(0)
    issue_stage(1)
    issue_stage(2)
    k.stamp(1)
    k.wait_vm('ln')
    k.stamp(2)
    X = [100, 110]
    G = 120
    def unpack8(dst, src):
        for i in range(4):
            k.e('v_lshlrev_b32 %s, 16, %s' % (v(dst + 2 * i), v(src + i)))
            k.e('v_and_b32 %s, 0xffff0000, %s' % (v(dst + 2 * i + 1), v(src + i)))
    unpack8(X[0], XR0); unpack8(X[1], XR1); unpack8(G, GW)
    SUM = [130, 131]; GS = [132, 133]; TT = 134
    for r in range(2):
        k.e('v_add_f32 %s, %s, %s' % (v(SUM[r]), v(X[r]), v(X[r] + 1)))
        for i in range(2, 8):
            k.e('v_add_f32 %s, %s, %s' % (v(SUM[r]), v(SUM[r]), v(X[r] + i)))
        for i in range(8):
            k.e('v_mul_f32 %s, %s, %s' % (v(TT + i), v(X[r] + i), v(G + i)))
        for i in range(0, 8, 2):
            rbf2(k, TT + i, TT + i + 1, TT + 8)
        k.e('v_add_f32 %s, %s, %s' % (v(GS[r]), v(TT), v(TT + 1)))
        for i in range(2, 8):
            k.e('v_add_f32 %s, %s, %s' % (v(GS[r]), v(GS[r]), v(TT + i)))
    def wave_reduce(regs, sdst):
        for ctl in ('quad_perm:[1,0,3,2] row_mask:0xf bank_mask:0xf', 'quad_perm:[2,3,0,1] row_mask:0xf bank_mask:0xf',
                    'row_half_mirror row_mask:0xf bank_mask:0xf', 'row_mirror row_mask:0xf bank_mask:0xf',
                    'row_bcast:15 row_mask:0xa bank_mask:0xf', 'row_bcast:31 row_mask:0xc bank_mask:0xf'):
            k.nop(2)
            for r in regs:
                k.e('v_add_f32_dpp %s, %s, %s %s' % (v(r), v(r), v(r), ctl))
        k.nop(1)
        for r, sd in zip(regs, sdst):
            k.e('v_readlane_b32 s%d, %s, 63' % (sd, v(r)))
        k.nop(2)
    wave_reduce([SUM[0], SUM[1], GS[0], GS[1]], [84, 85, 86, 87])
    issue_stage(3)
    MEAN = [140, 141]; SQ = [142, 143]
    for r in range(2):
        k.e('v_mov_b32 %s, 0x3b000000' % v(MEAN[r]))
        k.e('v_mul_f32 %s, s%d, %s' % (v(MEAN[r]), 84 + r, v(MEAN[r])))
        k.e('v_sub_f32 %s, %s, %s' % (v(TT), v(X[r]), v(MEAN[r])))
        k.e('v_mul_f32 %s, %s, %s' % (v(SQ[r]), v(TT), v(TT)))
        for i in range(1, 8):
            k.e('v_sub_f32 %s, %s, %s' % (v(TT), v(X[r] + i), v(MEAN[r])))
            k.e('v_fmac_f32 %s, %s, %s' % (v(SQ[r]), v(TT), v(TT)))
    wave_reduce(SQ, [88, 89])
    issue_stage(4)
    HO = [150, 154]
    for r in range(2):
        SD = 144; RC = 145; Q = 146; E_ = 147
        k.e('v_mov_b32 %s, 0x3b000000' % v(SD))
        k.e('v_mul_f32 %s, s%d, %s' % (v(SD), 88 + r, v(SD)))
        rbf(k, SD, TT)
        k.e('v_add_f32 %s, 0x3727c5ac, %s' % (v(SD), v(SD)))
        rbf(k, SD, TT)
        k.e('v_sqrt_f32 %s, %s' % (v(SD), v(SD)))
        k.nop(1)
        rbf(k, SD, TT)
        k.e('v_rcp_f32 %s, %s' % (v(RC), v(SD)))
        rbf(k, MEAN[r], TT)
        for i in range(8):
            k.e('v_sub_f32 %s, %s, %s' % (v(X[r] + i), v(X[r] + i), v(MEAN[r])))
        for i in range(0, 8, 2):
            rbf2(k, X[r] + i, X[r] + i + 1, TT)
        for i in range(8):
            k.e('v_mul_f32 %s, %s, %s' % (v(Q), v(X[r] + i), v(RC)))
            k.e('v_fma_f32 %s, -%s, %s, %s' % (v(E_), v(Q), v(SD), v(X[r] + i)))
            k.e('v_fma_f32 %s, %s, %s, %s' % (v(X[r] + i), v(E_), v(RC), v(Q)))
        for i in range(4):
            k.e('v_cvt_pk_bf16_f32 %s, %s, %s' % (v(HO[r] + i), v(X[r] + 2 * i), v(X[r] + 2 * i + 1)))
        k.e('v_mov_b32 %s, s%d' % (v(GS[r]), 86 + r))
        rbf(k, GS[r], TT)
        k.e('v_mul_f32 %s, 0x%x, %s' % (v(GS[r]), LOG2E | 0x80000000, v(GS[r])))
        k.e('v_exp_f32 %s, %s' % (v(GS[r]), v(GS[r])))
        k.nop(1)
        k.e('v_add_f32 %s, 1.0, %s' % (v(GS[r]), v(GS[r])))
        k.e('v_rcp_f32 %s, %s' % (v(GS[r]), v(GS[r])))
        k.nop(1)
        rbf(k, GS[r], TT)
        if r == 0:
            issue_stage(5)
    k.e('s_add_u32 s83, s77, %d' % WS_H)
    k.vm('buffer_store_dwordx4 %s, v2, s[16:19], s83 offen sc1' % v(HO[0], 4), 'lnst')
    k.vm('buffer_store_dwordx4 %s, v2, s[16:19], s83 offen offset:1024 sc1' % v(HO[1], 4), 'lnst')
    k.e('s_lshr_b32 s83, s76, 3')
    k.e('s_lshl_b32 s83, s83, 7')
    k.e('s_lshl_b32 s84, s3, 3')
    k.e('s_add_u32 s83, s83, s84')
    k.e('s_add_u32 s83, s83, %d' % WS_G)
    k.e('s_mov_b64 exec, 1')
    k.vm('buffer_store_dwordx2 %s, off, s[16:19], s83 sc1' % v(GS[0], 2), 'lnst')
    k.e('s_mov_b64 exec, -1')
    k.e('v_mov_b32 v4, -1'); k.e('v_mov_b32 v5, -1')
    k.e('s_lshl_b32 s95, s72, 12')
    k.e('s_add_u32 s95, s95, %d' % WS_E)
    k.e('s_mov_b32 s%d, s95' % SE)
    k.vm('buffer_store_dwordx2 v[4:5], v248, s[16:19], s95 offen sc1', 'lnst')
    k.e('s_mov_b32 s%d, s3' % SDONE)
    k.e('s_cmp_lg_u32 s3, 0')
    k.e('s_cbranch_scc1 P1_NOGL')
    k.e('buffer_load_dword v250, off, s[12:15], 0 sc1')
    k.label('P1_NOGL')
    k.mark('go')
    srd(k, 20, A_LRE, 1024); srd(k, 24, A_LIM, 1024); srd(k, 28, A_LDT, 1024)
    k.vm('buffer_load_ushort %s, v14, s[20:23], 0 offen' % v(PLRE), 'par')
    k.vm('buffer_load_ushort %s, v14, s[24:27], 0 offen' % v(PLIM), 'par')
    k.vm('buffer_load_ushort %s, v14, s[28:31], 0 offen' % v(PLDT), 'par')
    def par1():
        k.wait_vm('par')
        lam_params(k, PLRE, PLIM, PLDT, LR, LI, 192, 193)
        cmul(k, L2R, L2I, LR, LI, LR, LI)
        cmul(k, L3R, L3I, L2R, L2I, LR, LI)
        cmul(k, L4R, L4I, L2R, L2I, L2R, L2I)
    def par2():
        cmul(k, L32R, L32I, L4R, L4I, L4R, L4I)
        cmul(k, 196, 197, L32R, L32I, L32R, L32I)
        cmul(k, L32R, L32I, 196, 197, 196, 197)
        cmul(k, 236, 237, L32R, L32I, L32R, L32I)
        cmul(k, L128, L128 + 1, 236, 237, 236, 237)
        k.e('v_add_f32 v192, -1.0, %s' % v(LR))
        k.e('v_mul_f32 v193, %s, %s' % (v(PLRE), v(PLRE)))
        k.e('v_fmac_f32 v193, %s, %s' % (v(PLIM), v(PLIM)))
        k.e('v_rcp_f32 v193, v193')
        k.e('v_mul_f32 %s, v192, %s' % (v(CFR), v(PLRE)))
        k.e('v_fmac_f32 %s, %s, %s' % (v(CFR), v(LI), v(PLIM)))
        k.e('v_mul_f32 %s, %s, %s' % (v(CFI), v(LI), v(PLRE)))
        k.e('v_fma_f32 %s, -v192, %s, %s' % (v(CFI), v(PLIM), v(CFI)))
        k.e('v_add_f32 v193, v193, v193')
        k.e('v_mul_f32 %s, %s, v193' % (v(CFR), v(CFR)))
        k.e('v_mul_f32 %s, %s, v193' % (v(CFI), v(CFI)))
    k.stamp(3)
    FB_ = [(72, 88, 104), (120, 136, 152)]
    FH = 244
    FHL = 'buffer_load_dword %s, v246, s[16:19], s55 offen sc1' % v(FH)
    GOL_ = 'buffer_load_dword v250, off, s[12:15], 0 sc1'
    def mfma(st, kk):
        FA, FBR, FBI = FB_[st & 1]
        c = '0' if (st == 0 and kk == 0) else v(ACR, 16)
        k.e('v_mfma_f32_32x32x16_bf16 %s, %s, %s, %s' % (v(ACR, 16), v(FA + 4 * kk, 4), v(FBR + 4 * kk, 4), c))
        c = '0' if (st == 0 and kk == 0) else v(ACI, 16)
        k.e('v_mfma_f32_32x32x16_bf16 %s, %s, %s, %s' % (v(ACI, 16), v(FA + 4 * kk, 4), v(FBI + 4 * kk, 4), c))
    for st in range(NST):
        k.wait_vm('lnst' if st == FHST else 'b%d' % st)
        k.e('s_barrier')
        k.stamp(4 + st)
        if st >= FHST:
            k.e('s_cmp_lg_u32 s%d, 0' % SDONE)
            k.e('s_cbranch_scc1 P1_NOFH%d' % st)
            q = list(k.vmq)
            k.wait_vm('go')
            k.vmq = q
            k.label('P1_GOCHK%d' % st)
            k.e('v_readfirstlane_b32 s84, v250')
            k.e('s_cmp_lg_u32 s84, 0')
            k.e('s_cbranch_scc1 P1_GOOK%d' % st)
            if st == NST - 1:
                poll_tail(k, 'P1_GOCHK%d' % st, 'P1_GOOK%d' % st, [GOL_])
            else:
                k.e(GOL_)
                k.e('s_branch P1_NOFH%d' % st)
                k.label('P1_GOOK%d' % st)
            k.e('s_mov_b64 exec, 0xffff')
            k.e('buffer_store_dword v250, v243, s[16:19], s54 offen sc1')
            k.e('v_mov_b32 v4, %d' % (XOFF + 1024))
            k.e('ds_write_b32 v4, v250')
            k.e('s_mov_b64 exec, -1')
            k.e('s_mov_b32 s%d, 1' % SDONE)
            k.label('P1_NOFH%d' % st)
            k.mark('go')
        if st == 3: hooks['setup']()
        groups = [[], [], [], []]
        if st >= 1 and st + NS - 1 < NST:
            groups = issue_groups(st + NS - 1)
        elif st in hooks['A']:
            groups = []
            for g in hooks['A'][st]: groups += hooks['Apart'](g)
            while len(groups) < 4: groups.append([])
        slot = st % NS
        sset = slot // 2
        off = (slot % 2) * STG
        FA, FBR, FBI = FB_[st & 1]
        for kk in range(4):
            emit_items(k, groups[kk])
            k.e('ds_read_b128 %s, %s offset:%d' % (v(FA + 4 * kk, 4), v(PA + 4 * sset + kk), off))
            k.e('ds_read_b128 %s, %s offset:%d' % (v(FBR + 4 * kk, 4), v(PB + 4 * sset + kk), off + 16384))
            k.e('ds_read_b128 %s, %s offset:%d' % (v(FBI + 4 * kk, 4), v(PB + 4 * sset + kk), off + 16384 + 4096))
            if st >= 1:
                mfma(st - 1, kk)
        if st == 5: par1()
        if st == 6: par2()
        if PFX and st == PFXST:
            srd(k, 20, B_W1, 2048 * 2752)
            k.e('s_lshr_b32 s90, s2, 3')
            k.e('s_lshl_b32 s90, s90, 6')
            k.e('s_lshl_b32 s91, s3, 4')
            k.e('s_add_u32 s90, s90, s91')
            k.e('s_and_b32 s92, s2, 7')
            k.e('s_mul_i32 s92, s92, 22')
            k.e('s_lshr_b32 s92, s92, 3')
            k.e('s_lshl_b32 s92, s92, 7')
            k.e('s_mov_b32 s93, 2752')
            k.e('v_lshrrev_b32 v4, 2, v1')
            k.e('v_add_u32 v4, s90, v4')
            k.e('v_mul_lo_u32 v4, v4, s93')
            k.e('v_and_b32 v5, 3, v1')
            k.e('v_lshl_add_u32 v4, v5, 7, v4')
            k.vm('buffer_load_dword v198, v4, s[20:23], s92 offen', 'pf')
            k.e('v_and_b32 v4, 15, v1')
            k.e('v_add_u32 v4, s90, v4')
            k.e('v_mul_lo_u32 v4, v4, s93')
            k.vm('buffer_load_dword v198, v4, s[20:23], s92 offen offset:512', 'pf')
        k.e('s_waitcnt lgkmcnt(0)')
    for kk in range(4):
        mfma(NST - 1, kk)
    k.vm(FHL, 'fh')
    k.e('v_lshlrev_b32 v247, 3, v3')
    k.e('v_add_u32 v247, %d, v247' % XOFF)
    k.e('s_lshl_b32 s84, s3, 8')
    k.e('v_add_u32 v7, s84, v247')
    hooks['setup2']()
    k.stamp(12)
    for j in range(1, 4):
        for q in range(4):
            r = 4 * q + j
            cfma(k, ACR + r, ACI + r, LR, LI, ACR + r - 1, ACI + r - 1, ACR + r, ACI + r)
    for q in range(4):
        k.e('v_mov_b32 %s, %s' % (v(EV + q), v(ACR + 4 * q + 3)))
        k.e('v_mov_b32 %s, %s' % (v(OD + q), v(ACR + 4 * q + 3)))
        k.e('v_mov_b32 %s, %s' % (v(EV + 4 + q), v(ACI + 4 * q + 3)))
        k.e('v_mov_b32 %s, %s' % (v(OD + 4 + q), v(ACI + 4 * q + 3)))
    k.nop(2)
    for q in range(8):
        k.e('v_permlane32_swap_b32 %s, %s' % (v(EV + q), v(OD + q)))
    k.nop(2)
    pr, pi_ = EV, EV + 4
    for i in range(1, 8):
        er = (EV if i % 2 == 0 else OD) + i // 2
        dr, di = (126, 127) if i == 7 else (CR + i, CI + i)
        cfma(k, dr, di, L4R, L4I, pr, pi_, er, er + 4)
        pr, pi_ = dr, di
    k.e('ds_write_b64 v7, v[126:127]')
    k.e('s_waitcnt lgkmcnt(0)')
    k.e('s_barrier')
    for w in range(4):
        k.e('ds_read_b64 %s, v247 offset:%d' % (v(EW + 2 * w, 2), 256 * w))
    k.e('v_mov_b32 v4, %d' % (XOFF + 1024))
    k.e('ds_read_b32 v250, v4')
    k.e('s_waitcnt lgkmcnt(0)')
    cfma(k, 118, 119, L32R, L32I, EW, EW + 1, EW + 2, EW + 3)
    cfma(k, 120, 121, L32R, L32I, 118, 119, EW + 4, EW + 5)
    cfma(k, 122, 123, L32R, L32I, 120, 121, EW + 6, EW + 7)
    k.vm('buffer_store_dwordx2 v[122:123], v248, s[16:19], s%d offen sc1' % SE, 'est')
    for g in hooks['A'][8]:
        for grp in hooks['Apart'](g): emit_items(k, grp)
    k.stamp(13)
    k.tl(1)
    k.wait_vm('fh')
    k.label('P1_FHCHK')
    k.e('v_cmp_ne_u32 vcc, v250, %s' % v(FH))
    k.e('s_cbranch_vccz P1_FHOK')
    poll_tail(k, 'P1_FHCHK', 'P1_FHOK', [FHL])
    k.e('s_barrier')
    k.stamp(14)
    k.tl(2)

def e_loads(k, sfx):
    L = []
    for c in range(15):
        L.append('s_cmp_le_u32 s97, %d' % c)
        L.append('s_cbranch_scc1 EL%s_%d' % (sfx, k.nlab))
        L.append('s_mov_b32 s84, %d' % (WS_E + c * 4096))
        L.append('buffer_load_dwordx2 %s, v248, s[16:19], s84 offen sc1' % v(EB + 2 * c, 2))
    L.append('EL%s_%d:' % (sfx, k.nlab))
    k.nlab += 1
    return L

def t_eload(k, sfx):
    k.e('s_cmp_lg_u32 s3, 0')
    k.e('s_cbranch_scc1 ELX' + sfx)
    for l in e_loads(k, sfx): k.e(l)
    k.label('ELX' + sfx)
    k.mark('e')

def t_scale(k, r0, r1):
    for r in range(r0, r1):
        k.e('v_mul_f32 v124, %s, %s' % (v(CFI), v(ACR + r)))
        k.e('v_mul_f32 %s, %s, %s' % (v(ACR + r), v(CFR), v(ACR + r)))
        k.e('v_fma_f32 %s, -%s, %s, %s' % (v(ACR + r), v(CFI), v(ACI + r), v(ACR + r)))
        k.e('v_fma_f32 %s, -%s, %s, -v124' % (v(ACI + r), v(CFR), v(ACI + r)))

def t_echeck(k, sfx):
    U = UCR
    k.e('s_cmp_lg_u32 s3, 0')
    k.e('s_cbranch_scc1 ECX' + sfx)
    q = list(k.vmq)
    k.wait_vm('e')
    k.vmq = q
    k.label('ECHK' + sfx)
    k.e('s_mov_b64 s[84:85], 0')
    for c in range(15):
        k.e('s_cmp_le_u32 s97, %d' % c)
        k.e('s_cbranch_scc1 EC2' + sfx)
        k.e('v_cmp_eq_u32 vcc, -1, %s' % v(EB + 2 * c))
        k.e('s_or_b64 s[84:85], s[84:85], vcc')
        k.e('v_cmp_eq_u32 vcc, -1, %s' % v(EB + 2 * c + 1))
        k.e('s_or_b64 s[84:85], s[84:85], vcc')
    k.label('EC2' + sfx)
    k.e('s_cmp_eq_u64 s[84:85], 0')
    k.e('s_cbranch_scc1 EOK' + sfx)
    poll_tail(k, 'ECHK' + sfx, 'EOK' + sfx, e_loads(k, sfx))
    k.e('v_mov_b32 %s, 0' % v(U)); k.e('v_mov_b32 %s, 0' % v(U + 1))
    for c in range(15):
        k.e('s_cmp_le_u32 s97, %d' % c)
        k.e('s_cbranch_scc1 CL' + sfx)
        k.e('v_pk_fma_f32 %s, %s, %s, %s op_sel_hi:[0,1,1]' % (v(EB + 2 * c, 2), v(L128, 2), v(U, 2), v(EB + 2 * c, 2)))
        k.e('v_pk_fma_f32 %s, %s, %s, %s op_sel:[1,1,0] op_sel_hi:[1,0,1] neg_lo:[1,0,0]' % (v(U, 2), v(L128, 2), v(U, 2), v(EB + 2 * c, 2)))
    k.label('CL' + sfx)
    k.e('ds_write_b64 v247, %s' % v(U, 2))
    k.label('ECX' + sfx)
    k.tl(3)

OWR, OWI = 106, 110
def t_uread(k):
    k.e('ds_read_b64 %s, v247' % v(UCR, 2))

def t_carry(k, part):
    U = UCR
    if part == 1: return t_carry1(k)
    cfma(k, 118, 119, L32R, L32I, U, U + 1, EW, EW + 1)
    cfma(k, 120, 121, L32R, L32I, 118, 119, EW + 2, EW + 3)
    cfma(k, 122, 123, L32R, L32I, 120, 121, EW + 4, EW + 5)
    k.e('v_mov_b32 %s, %s' % (v(CR), v(U))); k.e('v_mov_b32 %s, %s' % (v(CI), v(U + 1)))
    for w, (a_, b_) in ((1, (118, 119)), (2, (120, 121)), (3, (122, 123))):
        k.e('s_cmp_eq_u32 s3, %d' % w)
        k.e('s_cselect_b64 vcc, -1, 0')
        k.e('v_cndmask_b32 %s, %s, %s, vcc' % (v(CR), v(CR), v(a_)))
        k.e('v_cndmask_b32 %s, %s, %s, vcc' % (v(CI), v(CI), v(b_)))
    for i in range(0, 3):
        er = (EV if i % 2 == 0 else OD) + i // 2
        cfma(k, CR + i + 1, CI + i + 1, L4R, L4I, CR + i, CI + i, er, er + 4)

def t_carry1(k):
    for i in range(3, 7):
        er = (EV if i % 2 == 0 else OD) + i // 2
        cfma(k, CR + i + 1, CI + i + 1, L4R, L4I, CR + i, CI + i, er, er + 4)
    k.e('v_cmp_lt_u32 vcc, 31, v1')
    k.nop(1)
    for q in range(4):
        k.e('v_cndmask_b32 %s, %s, %s, vcc' % (v(114 + q), v(CR + 2 * q), v(CR + 2 * q + 1)))
        k.e('v_cndmask_b32 %s, %s, %s, vcc' % (v(118 + q), v(CI + 2 * q), v(CI + 2 * q + 1)))
    for q in range(4):
        cmul(k, OWR + q, OWI + q, CFR, CFI, 114 + q, 118 + q)

def t_hb(k, q):
    LP = [(LR, LI), (L2R, L2I), (L3R, L3I), (L4R, L4I)]
    for j in range(4):
        r = 4 * q + j
        lr, li_ = LP[j]
        k.e('v_fma_f32 %s, %s, %s, %s' % (v(ACR + r), v(lr), v(OWR + q), v(ACR + r)))
        k.e('v_fma_f32 %s, -%s, %s, %s' % (v(ACI + r), v(lr), v(OWI + q), v(ACI + r)))
        k.e('v_fma_f32 %s, -%s, %s, %s' % (v(ACR + r), v(li_), v(OWI + q), v(ACR + r)))
        k.e('v_fma_f32 %s, -%s, %s, %s' % (v(ACI + r), v(li_), v(OWR + q), v(ACI + r)))
        k.e('v_cvt_pk_bf16_f32 %s, %s, %s' % (v(ACR + r), v(ACR + r), v(ACI + r)))
        k.e('ds_write_b16 v232, %s offset:%d' % (v(ACR + r), (8 * q + j) * 128))
        k.e('ds_write_b16_d16_hi v249, %s offset:%d' % (v(ACR + r), (8 * q + j) * 128))

def t_tread(k):
    for n in range(4):
        k.e('ds_read_b128 %s, v233 offset:%d' % (v(72 + 4 * n, 4), 1024 * n))

def t_tstore(k):
    for n in range(4):
        k.e('s_add_u32 s84, s98, %d' % (n * 16384))
        k.vm('buffer_store_dwordx4 %s, v242, s[16:19], s84 offen sc1' % v(72 + 4 * n, 4), 'hb')
    k.tl(4)
def fc1_setup(k):
    k.e('s_and_b32 s72, s2, 7')
    k.e('s_lshr_b32 s73, s2, 3')
    k.e('s_mov_b32 s101, s73')
    k.e('s_mul_i32 s74, s72, 22')
    k.e('s_add_u32 s74, s74, s73')
    k.e('s_and_b32 s75, s74, 7')
    k.e('s_lshr_b32 s74, s74, 3')
    k.e('s_lshl_b32 s100, s75, 7')
    k.e('s_lshl_b32 s76, s74, 2')
    k.e('s_add_u32 s100, s100, s76')
    k.e('s_add_u32 s100, s100, %d' % WS_FU)
    k.e('s_lshl_b32 s75, s75, 6')
    k.e('s_lshl_b32 s74, s74, 6')
    k.e('s_lshr_b32 s76, s3, 1')
    k.e('s_and_b32 s77, s3, 1')
    k.e('v_lshrrev_b32 v2, 5, v1')
    k.e('v_lshlrev_b32 v2, 3, v2')
    k.e('s_lshl_b32 s78, s76, 5')
    k.e('s_add_u32 s78, s78, s74')
    k.e('s_lshl_b32 s79, s78, 1')
    k.e('v_add_u32 v2, s79, v2')
    I3, I4, I7 = 4, 5, 6
    k.e('v_lshrrev_b32 v4, 3, v1'); k.e('v_lshrrev_b32 v5, 4, v1'); k.e('v_and_b32 v6, 7, v1')
    VA, VB = 8, 10
    k.e('s_lshl_b32 s80, s3, 4')
    k.e('s_mov_b32 s81, 2752')
    k.e('s_lshl_b32 s82, s74, 1')
    dma_voff(k, VA, 80, 81, 82, True, I3, I4, I7, 7)
    k.e('s_mov_b32 s81, 1024')
    k.e('s_lshl_b32 s82, s75, 1')
    k.e('s_add_u32 s82, s82, %d' % WS_H)
    dma_voff(k, VB, 80, 81, 82, True, I3, I4, I7, 7)
    k.e('s_lshl_b32 s83, s3, 11')
    srd(k, 4, B_W1, 2048 * 2752)
    k.e('s_cmp_lt_u32 s73, 22')
    k.e('s_cselect_b32 s6, s6, 0')

def fc1_setup2(k):
    PA, PB = 12, 14
    k.e('s_lshl_b32 s86, s76, 2')
    k.e('s_lshl_b32 s87, s77, 2')
    pat_tr(k, PA, 86, 0, 1, 16, 17, 18)
    pat_tr(k, PB, 87, 8192, 1, 16, 17, 18)
    k.e('v_and_b32 v4, 31, v1')
    k.e('s_lshl_b32 s89, s77, 5')
    k.e('s_add_u32 s89, s89, s75')
    k.e('v_add_u32 v4, s89, v4')
    k.e('s_mov_b32 s90, %d' % UP)
    k.e('v_mul_lo_u32 v4, v4, s90')
    k.e('v_add_u32 v199, v4, v2')
    srd(k, 8, B_B1, 2752)
    k.e('s_mov_b32 s93, s78')

def fc1_setup_pf(k):
    k.e('s_mov_b32 s93, 2752')
    k.e('s_cmp_lt_u32 s3, 2')
    k.e('s_cselect_b32 s93, 1024, s93')
    k.e('s_lshl_b32 s92, s93, 9')
    k.e('s_mul_i32 s91, s72, 22')
    k.e('s_lshr_b32 s91, s91, 3')
    k.e('s_lshl_b32 s91, s91, 7')
    k.e('s_cmp_lt_u32 s3, 2')
    k.e('s_cselect_b32 s91, %d, s91' % WS_H)
    k.e('s_cmp_lt_u32 s3, 2')
    k.e('s_cselect_b32 s90, 8, 5')
    k.e('s_and_b32 s89, s3, 1')
    k.e('s_lshl_b32 s89, s89, 3')
    k.e('s_lshl_b32 s88, s73, 4')
    k.e('s_add_u32 s89, s89, s88')
    k.e('v_lshrrev_b32 v4, 3, v1')
    k.e('v_add_u32 v4, s89, v4')
    k.e('v_mul_lo_u32 v4, v4, s93')
    k.e('v_and_b32 v5, 7, v1')
    k.e('v_lshl_add_u32 v230, v5, 7, v4')
    k.e('v_mov_b32 v4, 0x7f000000')
    k.e('v_cmp_gt_u32 vcc, s90, v5')
    k.e('v_cndmask_b32 v230, v4, v230, vcc')
    k.e('s_cmp_lt_u32 s3, 2')
    k.e('s_cselect_b32 s12, s%d, s%d' % (P(WS), P(B_W1)))
    k.e('s_cselect_b32 s13, s%d, s%d' % (P(WS) + 1, P(B_W1) + 1))
    k.e('s_and_b32 s13, s13, 0xffff')
    k.e('s_mov_b32 s14, 0x%x' % (2048 * 2752))
    k.e('s_mov_b32 s15, 0x00020000')
    k.e('s_mov_b32 s93, s78')

def pf_slot():
    if not PF: return []
    return [('v', 'buffer_load_dword v231, v230, s[12:15], s91 offen', 'pf'), ('e', 's_add_u32 s91, s91, s92')]

HBL = 'buffer_load_dword v227, v226, s[16:19], s97 offen sc1'
FUL = 'buffer_load_dword v229, v228, s[16:19], s98 offen sc1'
P3_VC, P3_VH, P3_VU, P3_VW = 200, 202, 204, 206
P3_PA, P3_PB, P3_PT = 180, 188, 196
P3_OUTA = 198

def p3_setup(k, part):
    I3, I4, I7 = 4, 5, 6
    if part == 0:
        k.e('s_and_b32 s72, s2, 7')
        k.e('s_lshr_b32 s73, s2, 3')
        k.e('s_lshr_b32 s74, s73, 3')
        k.e('s_lshl_b32 s72, s72, 2')
        k.e('s_add_u32 s72, s72, s74')
        k.e('s_and_b32 s73, s73, 7')
        k.e('s_lshr_b32 s86, s72, 1')
        k.e('s_lshl_b32 s86, s86, 7')
        k.e('s_add_u32 s97, s86, %d' % WS_FB)
        k.e('v_and_b32 v4, 15, v1')
        k.e('v_lshlrev_b32 v226, 2, v4')
        k.e('v_min_u32 v4, 21, v1')
        k.e('v_lshlrev_b32 v228, 2, v4')
        k.e('s_and_b32 s98, s72, 7')
        k.e('s_lshl_b32 s98, s98, 3')
        k.e('s_add_u32 s98, s98, s73')
        k.e('s_lshl_b32 s98, s98, 7')
        k.e('s_add_u32 s98, s98, %d' % WS_FU)
        k.e('s_lshl_b32 s74, s72, 6')
        k.e('s_lshl_b32 s75, s73, 6')
        k.e('s_lshr_b32 s76, s3, 1')
        k.e('s_and_b32 s77, s3, 1')
        k.e('v_and_b32 v3, 31, v1')
        k.e('s_lshl_b32 s78, s77, 5')
        k.e('s_add_u32 s78, s78, s74')
        k.e('v_add_u32 v3, s78, v3')
        k.e('v_lshrrev_b32 v176, 3, v3')
        k.e('v_lshlrev_b32 v176, 7, v176')
        k.e('v_and_b32 v4, 7, v3')
        k.e('v_lshl_add_u32 v176, v4, 2, v176')
        k.e('v_lshlrev_b32 v177, 1, v3')
        k.e('s_lshl_b32 s79, s76, 5')
        k.e('s_add_u32 s79, s79, s75')
        k.e('v_lshrrev_b32 v4, 5, v1')
        k.e('v_lshlrev_b32 v4, 2, v4')
        k.e('v_add_u32 v4, s79, v4')
        k.e('v_lshlrev_b32 v178, 1, v4')
        k.e('v_lshl_add_u32 v179, v3, 10, v178')
        k.e('v_lshlrev_b32 v%d, 1, v179' % P3_OUTA)
        k.e('v_lshrrev_b32 v4, 3, v1'); k.e('v_lshrrev_b32 v5, 4, v1'); k.e('v_and_b32 v6, 7, v1')
        k.e('s_lshl_b32 s80, s3, 4')
        k.e('s_add_u32 s81, s80, s75')
        k.e('s_add_u32 s82, s80, s74')
    elif part == 1:
        k.e('s_mov_b32 s86, 1024'); k.e('s_mov_b32 s87, 0')
        dma_voff(k, P3_VC, 81, 86, 87, False, I3, I4, I7, 7)
        k.e('s_mov_b32 s86, 2048'); k.e('s_mov_b32 s87, %d' % WS_HB)
        dma_voff(k, P3_VH, 82, 86, 87, False, I3, I4, I7, 7, hb=True)
    elif part == 2:
        k.e('s_mov_b32 s86, %d' % UP); k.e('s_mov_b32 s87, %d' % WS_U)
        dma_voff(k, P3_VU, 81, 86, 87, False, I3, I4, I7, 7)
        if UPF:
            k.e('s_lshr_b32 s87, s2, 6')
            k.e('s_lshl_b32 s87, s87, 4')
            k.e('s_add_u32 s87, s87, s75')
            k.e('v_lshrrev_b32 v136, 4, v0')
            k.e('v_add_u32 v136, s87, v136')
            k.e('v_mul_lo_u32 v136, v136, s86')
            k.e('v_and_b32 v7, 15, v0')
            k.e('v_lshl_add_u32 v136, v7, 7, v136')
            k.e('v_add_u32 v136, %d, v136' % (WS_U + 768))
        k.e('s_mov_b32 s86, 4096'); k.e('s_lshl_b32 s87, s74, 1')
        dma_voff(k, P3_VW, 80, 86, 87, True, I3, I4, I7, 7)
    elif part == 3:
        k.e('s_lshl_b32 s86, s76, 12')
        k.e('s_lshl_b32 s87, s77, 12')
        k.e('s_lshl_b32 s88, s77, 2')
        pat_direct(k, P3_PA, 86, 0, 1, 113, 114)
        pat_direct(k, P3_PB, 87, 8192, 1, 113, 114)
        pat_tr(k, P3_PT, 88, 8192, 1, 113, 114, 115)
    elif part == 4:
        srd(k, 20, A_CRE, 1 << 19); srd(k, 24, A_CIM, 1 << 19); srd(k, 28, B_W2, 1376 * 4096); srd(k, 32, OUT, 4 << 20)

def hb_check(k, sfx):
    k.label('HBCHK' + sfx)
    k.e('v_cmp_ne_u32 vcc, v250, v227')
    k.e('s_cbranch_vccz HBOK' + sfx)
    poll_tail(k, 'HBCHK' + sfx, 'HBOK' + sfx, [HBL])
    k.tl(7)

def g_stages(k):
    NS = 8
    VA, VB, PA, PB = 8, 10, 12, 14
    B1R = 128
    ACC = 16
    def b1_loads():
        return [('v', 'buffer_load_dwordx2 %s, v2, s[8:11], 0 offen offset:%d' % (v(B1R + 2 * q, 2), 16 * q), 'b1') for q in range(4)]
    def parts(g):
        slot = ((g + SLOT0) % NS) * 16384
        tg = 'st%d' % g
        if g < 32:
            srdA, srdB, va, vb = 4, 16, VA, VB
            oa, ob = g * 64 * 2752, g * 65536
        else:
            st = g - 32
            if st < 16:
                srdA = 20 if st % 2 == 0 else 24
                oa, ob = (st // 2) * 128, (st // 2) * 256 + (st % 2) * 64
                va, vb, srdB = P3_VC, P3_VH, 16
            else:
                srdA = 16
                oa, ob = (st - 16) * 128, (st - 16) * 262144
                va, vb, srdB = P3_VU, P3_VW, 28
        A = [[('e', 's_mov_b32 s84, %d' % oa), ('e', 's_add_u32 m0, s83, %d' % slot), ('e', 's_nop 0'),
              ('v', 'buffer_load_dwordx4 %s, s[%d:%d], s84 offen lds' % (v(va), srdA, srdA + 3), tg)],
             [('v', 'buffer_load_dwordx4 %s, s[%d:%d], s84 offen offset:1024 lds' % (v(va + 1), srdA, srdA + 3), tg)]]
        B = [[('e', 's_mov_b32 s85, %d' % ob), ('e', 's_add_u32 m0, s83, %d' % (slot + 8192)), ('e', 's_nop 0'),
              ('v', 'buffer_load_dwordx4 %s, s[%d:%d], s85 offen lds' % (v(vb), srdB, srdB + 3), tg)],
             [('v', 'buffer_load_dwordx4 %s, s[%d:%d], s85 offen offset:1024 lds' % (v(vb + 1), srdB, srdB + 3), tg)]]
        return A, B
    GU = 32 + UC
    def issue(g):
        A, B = parts(g)
        if g >= 48 and g - DIST < GU:
            return [[], [], B[0], B[1]]
        if 32 <= g < 48 and g - DIST < HBC:
            return [A[0], A[1], [], []]
        return A + B
    ACA, ACB = 160, 208
    GR, B2R, XR, DR = (224, 225, 112, 120) if EPS else (224, 225, 232, 240)
    stages = []
    for g in range(70):
        if g < 32:
            stages.append(dict(issue=issue, modeA='t', patA=PA, modeB='t', patB=PB, acc=ACC, first=(g == 0)))
        elif g < 48:
            stages.append(dict(issue=issue, modeA='d', patA=P3_PA, modeB='d', patB=P3_PB, acc=ACA, first=(g == 32)))
        else:
            stages.append(dict(issue=issue, modeA='d', patA=P3_PA, modeB='t', patB=P3_PT, acc=ACB, first=(g == 48)))
    for S in stages: S['pre'] = []; S['extra'] = []; S['ilv'] = []
    def F(fn): return lambda: [('f', fn)]
    assert DIST == 6
    stages[0]['ilv'].append(F(lambda: t_scale(k, 0, 6)))
    stages[1]['ilv'].append(F(lambda: t_scale(k, 6, 11)))
    stages[2]['ilv'].append(F(lambda: t_scale(k, 11, 16)))
    stages[EC]['pre'].append(F(lambda: t_echeck(k, 'F')))
    stages[EC]['lgk0'] = 1
    stages[EC + 1]['pre'].append(F(lambda: t_uread(k)))
    stages[EC + 1]['ilv'].append(F(lambda: t_carry(k, 0)))
    stages[EC + 2]['ilv'].append(F(lambda: t_carry(k, 1)))
    for q in range(4):
        stages[EC + 3 + q // HBP]['ilv'].append(F(lambda q=q: t_hb(k, q)))
    GT = EC + 3 + 4 // HBP
    stages[GT]['pre'].append(F(lambda: t_tread(k)))
    stages[GT]['ilv'].append(F(lambda: t_tstore(k)))
    stages[GT + 1]['ilv'].append(b1_loads)
    HBF_ = HBF or GT + 7
    stages[HBF_ - 1]['extra'].append(lambda: [('w', 'hb')])
    stages[HBF_]['pre'].append(lambda: flag_store(k, 'F_HBFL', 's99', 1))
    for i in range(5):
        stages[GT + 2 + i]['ilv'].append(F(lambda i=i: p3_setup(k, i)))
    stages[HBLG]['extra'].append(lambda: [('v', HBL, 'fhb')])
    def hbc():
        hb_check(k, 'F')
        for g in range(32, HBC + DIST):
            A, B = parts(g)
            emit_items(k, B[0] + B[1])
    stages[HBC]['pre'].append(lambda: [('w', 'fhb'), ('f', hbc)])
    stages[32]['label'] = 'G32'
    B1F, T, UO = 64, 80, 96
    def f2u(x): return struct.unpack('<I', struct.pack('<f', x))[0]
    C2f = -2.0 * 1.4426950408889634 * 0.7978845608028654
    def b1_unpack():
        for j in range(8):
            k.e('v_lshlrev_b32 %s, 16, %s' % (v(B1F + 2 * j), v(B1R + j)))
            k.e('v_and_b32 %s, 0xffff0000, %s' % (v(B1F + 2 * j + 1), v(B1R + j)))
        k.e('v_mov_b32 v104, 0x%x' % f2u(0.044715 * C2f))
        k.e('v_mov_b32 v105, 0x%x' % f2u(C2f))
        k.e('v_mov_b32 v106, 1.0')
    stages[29]['ilv'].append(F(b1_unpack))
    def ep():
        lab = 'F_EP'
        if not E31:
            k.e('s_cmp_ge_u32 s101, 22')
            k.e('s_cbranch_scc1 %s' % lab)
        k.tl(5)
        k.nop(16)
        for r in range(0, 16, 2):
            rbf2(k, ACC + r, ACC + r + 1, T + r)
        for r in range(0, 16, 2):
            k.e('v_pk_add_f32 %s, %s, %s' % (v(ACC + r, 2), v(ACC + r, 2), v(B1F + r, 2)))
        for r in range(0, 16, 2):
            rbf2(k, ACC + r, ACC + r + 1, T + r)
        for r in range(0, 16, 2):
            k.e('v_pk_mul_f32 %s, %s, %s' % (v(T + r, 2), v(ACC + r, 2), v(ACC + r, 2)))
        for r in range(0, 16, 2):
            k.e('v_pk_fma_f32 %s, %s, v[104:105], v[104:105] op_sel:[0,0,1] op_sel_hi:[1,0,1]' % (v(T + r, 2), v(T + r, 2)))
        for r in range(0, 16, 2):
            k.e('v_pk_mul_f32 %s, %s, %s' % (v(T + r, 2), v(T + r, 2), v(ACC + r, 2)))
            k.e('v_exp_f32 %s, %s' % (v(T + r), v(T + r)))
            k.e('v_exp_f32 %s, %s' % (v(T + r + 1), v(T + r + 1)))
        for r in range(0, 16, 2):
            k.e('v_pk_add_f32 %s, %s, v[106:107] op_sel_hi:[1,0]' % (v(T + r, 2), v(T + r, 2)))
            k.e('v_rcp_f32 %s, %s' % (v(T + r), v(T + r)))
            k.e('v_rcp_f32 %s, %s' % (v(T + r + 1), v(T + r + 1)))
        k.e('s_mov_b32 s90, %d' % WS_U)
        for r in range(0, 16, 2):
            k.e('v_pk_mul_f32 %s, %s, %s' % (v(ACC + r, 2), v(ACC + r, 2), v(T + r, 2)))
        for r in range(0, 16, 2):
            k.e('v_cvt_pk_bf16_f32 %s, %s, %s' % (v(UO + r // 2), v(ACC + r), v(ACC + r + 1)))
        k.e('s_cmp_lt_u32 s93, 1376')
        k.e('s_cbranch_scc1 F_ST')
        for j in range(8):
            k.e('v_mov_b32 %s, 0' % v(UO + j))
        k.label('F_ST')
        for q in range(4):
            l = 'buffer_store_dwordx2 %s, v199, s[16:19], s90 offen offset:%d sc1' % (v(UO + 2 * q, 2), 16 * q)
            if E31: k.vm(l, 'ust')
            else: k.e(l)
        k.tl(6)
        k.label(lab)
        k.mark('ust')
    if E31: stages[32]['early'] = ep
    else: stages[32]['extra'].append(F(ep))
    stages[32 + UW - 1]['extra'].append(lambda: [('w', 'ust')])
    stages[32 + UW]['pre'].append(lambda: flag_store(k, 'P3_UFL', 's100', 8, cond=[('e', 's_cmp_ge_u32 s101, 22')]))
    def late_srds():
        srd(k, 4, A_X, 2 << 20); srd(k, 8, A_DSK, 1024); srd(k, 12, B_B2, 4096)
    stages[GU - 2]['extra'].append(lambda: [('e', 's_cmp_lg_u32 s3, 0'), ('e', 's_cbranch_scc1 P3_NOFU'), ('e', FUL), ('e', 'P3_NOFU:'), ('m', 'fu')] + ([] if EPS else [('f', late_srds)]))
    def uchk():
        k.e('s_cmp_lg_u32 s3, 0')
        k.e('s_cbranch_scc1 P3_UOK')
        q = list(k.vmq)
        k.wait_vm('fu')
        k.vmq = q
        if not PPL:
            k.label('P3_UCHK')
            k.e('v_cmp_ne_u32 vcc, v250, v229')
            k.e('s_cbranch_vccz P3_UOK')
            poll_tail(k, 'P3_UCHK', 'P3_UOK', [FUL])
        else:
            PR = [229, 230, 231, 138][:PPL]
            k.e('v_cmp_ne_u32 vcc, v250, v229')
            k.e('s_cbranch_vccz P3_UOK')
            for i, r in enumerate(PR):
                if i: k.e('s_sleep %d' % PSL)
                k.e(FUL.replace('v229', 'v%d' % r))
            k.label('P3_UCHK')
            for r in PR:
                k.e('s_waitcnt vmcnt(%d)' % (PPL - 1))
                k.e('v_cmp_ne_u32 vcc, v250, v%d' % r)
                k.e('s_cbranch_vccz P3_UOK')
                k.e(FUL.replace('v229', 'v%d' % r))
            k.e('s_sub_u32 s96, s96, 1')
            k.e('s_cmp_gt_i32 s96, 0')
            k.e('s_cbranch_scc1 P3_UCHK')
            k.label('P3_UOK')
        k.e('s_barrier')
        k.tl(8)
        for g in range(48, GU + DIST):
            A, B = parts(g)
            emit_items(k, A[0] + A[1])
        if UPF: k.vm('buffer_load_dword v137, v136, s[16:19], 0 offen', 'upf')
    stages[GU]['pre'].append(F(uchk))
    def ep_loads():
        L = [('e', 's_mov_b32 s79, %d' % WS_G), ('v', 'buffer_load_dword %s, v176, s[16:19], s79 offen' % v(GR), 'ep'),
             ('v', 'buffer_load_ushort %s, v177, s[12:15], 0 offen' % v(B2R), 'ep')]
        for q in range(4):
            L.append(('v', 'buffer_load_dwordx2 %s, v178, s[8:11], 0 offen offset:%d' % (v(DR + 2 * q, 2), 16 * q), 'ep'))
        for q in range(4):
            L.append(('v', 'buffer_load_dwordx2 %s, v179, s[4:7], 0 offen offset:%d' % (v(XR + 2 * q, 2), 16 * q), 'ep'))
        return L
    if not EPS:
        stages[GU - 1]['ilv'].append(ep_loads)
    else:
        stages[EPL]['extra'].append(lambda: [('f', late_srds)] + ep_loads())
        XF, DF, T2 = 64, 80, 100
        def xd():
            k.wait_vm('ep')
            for i in range(8):
                k.e('v_lshlrev_b32 %s, 16, %s' % (v(XF + 2 * i), v(XR + i)))
                k.e('v_and_b32 %s, 0xffff0000, %s' % (v(XF + 2 * i + 1), v(XR + i)))
                k.e('v_lshlrev_b32 %s, 16, %s' % (v(DF + 2 * i), v(DR + i)))
                k.e('v_and_b32 %s, 0xffff0000, %s' % (v(DF + 2 * i + 1), v(DR + i)))
            k.e('v_lshlrev_b32 v102, 16, %s' % v(B2R))
            k.e('v_sub_f32 v104, 1.0, %s' % v(GR))
            rbf(k, 104, T2)
            for r in range(0, 16, 2):
                k.e('v_pk_mul_f32 %s, %s, %s' % (v(XF + r, 2), v(XF + r, 2), v(DF + r, 2)))
            for r in range(0, 16, 2):
                rbf2(k, XF + r, XF + r + 1, T2)
        stages[GU - 1]['extra'].append(F(xd))
        def apart():
            for r in range(0, 16, 2):
                k.e('v_pk_add_f32 %s, %s, %s' % (v(ACA + r, 2), v(ACA + r, 2), v(XF + r, 2)))
            for r in range(0, 16, 2):
                k.e('v_pk_mul_f32 %s, %s, %s op_sel_hi:[1,0]' % (v(ACA + r, 2), v(ACA + r, 2), v(GR, 2)))
        stages[50]['extra'].append(F(apart))
    return stages, issue, parts

def g_run(k, stages):
    FBUF = [(0, 16), (32, 48)]
    ACA, ACB = 160, 208
    GR, B2R, XR, DR = (224, 225, 112, 120) if EPS else (224, 225, 232, 240)
    gemm_loop(k, stages, 8, FBUF, sb=64)
    k.tl(9)
    k.nop(13)
    XF, DF, T = 64, 80, 100
    if EPS:
        for q in range(4):
            R2 = (ACB + 4 * q, ACB + 4 * q + 2)
            for r in R2: rbf2(k, r, r + 1, T)
            for r in R2: k.e('v_pk_add_f32 %s, %s, v[102:103] op_sel_hi:[1,0]' % (v(r, 2), v(r, 2)))
            for r in R2: rbf2(k, r, r + 1, T)
            for r in R2: k.e('v_pk_mul_f32 %s, %s, v[104:105] op_sel_hi:[1,0]' % (v(r, 2), v(r, 2)))
            for r in R2: rbf2(k, r, r + 1, T)
            for r in R2: k.e('v_pk_add_f32 %s, %s, %s' % (v(r, 2), v(r, 2), v(r - ACB + ACA, 2)))
            k.e('buffer_store_dwordx4 %s, v%d, s[32:35], 0 offen offset:%d' % (v(ACB + 4 * q, 4), P3_OUTA, 32 * q))
    else: old_ep(k)
    k.stamp(140)
    if DEBUG or TL:
        k.e('s_waitcnt vmcnt(0)')
    k.stamp(141)
    k.tl(10)
    k.tlc(12)
    k.flush_dbg()

def old_ep(k):
    ACA, ACB = 160, 208
    GR, B2R, XR, DR = 224, 225, 232, 240
    XF, DF, T = 64, 80, 100
    for i in range(8):
        k.e('v_lshlrev_b32 %s, 16, %s' % (v(XF + 2 * i), v(XR + i)))
        k.e('v_and_b32 %s, 0xffff0000, %s' % (v(XF + 2 * i + 1), v(XR + i)))
        k.e('v_lshlrev_b32 %s, 16, %s' % (v(DF + 2 * i), v(DR + i)))
        k.e('v_and_b32 %s, 0xffff0000, %s' % (v(DF + 2 * i + 1), v(DR + i)))
    k.e('v_lshlrev_b32 %s, 16, %s' % (v(B2R), v(B2R)))
    OMG = 101
    k.e('v_sub_f32 %s, 1.0, %s' % (v(OMG), v(GR)))
    rbf(k, OMG, T)
    for r in range(16):
        k.e('v_mul_f32 %s, %s, %s' % (v(XF + r), v(XF + r), v(DF + r)))
    for r in range(0, 16, 2):
        rbf2(k, XF + r, XF + r + 1, T)
        rbf2(k, ACB + r, ACB + r + 1, T)
    for r in range(16):
        k.e('v_add_f32 %s, %s, %s' % (v(ACA + r), v(ACA + r), v(XF + r)))
        k.e('v_add_f32 %s, %s, %s' % (v(ACB + r), v(ACB + r), v(B2R)))
    for r in range(0, 16, 2):
        rbf2(k, ACB + r, ACB + r + 1, T)
    for r in range(16):
        k.e('v_mul_f32 %s, %s, %s' % (v(ACB + r), v(ACB + r), v(OMG)))
        k.e('v_mul_f32 %s, %s, %s' % (v(ACA + r), v(ACA + r), v(GR)))
    for r in range(0, 16, 2):
        rbf2(k, ACB + r, ACB + r + 1, T)
    for r in range(16):
        k.e('v_add_f32 %s, %s, %s' % (v(ACA + r), v(ACA + r), v(ACB + r)))
    for q in range(4):
        k.e('buffer_store_dwordx4 %s, v%d, s[32:35], 0 offen offset:%d' % (v(ACA + 4 * q, 4), P3_OUTA, 32 * q))

def r_role(k, issue, parts):
    if RPF:
        srd(k, 12, WS, 2 << 20)
        k.e('s_sub_u32 s74, s73, 22')
        k.e('s_lshl_b32 s74, s74, 8')
        k.e('v_add_u32 v4, s74, v0')
        k.e('v_lshlrev_b32 v5, 7, v4')
        for i in range(7):
            k.e('s_mov_b32 s84, %d' % (i * 327680))
            k.e('buffer_load_dword v231, v5, s[12:15], s84 offen')
    t_eload(k, 'R')
    t_scale(k, 0, 16)
    t_echeck(k, 'R')
    k.e('s_waitcnt lgkmcnt(0)')
    k.e('s_barrier')
    t_uread(k)
    k.e('s_waitcnt lgkmcnt(0)')
    t_carry(k, 0); t_carry(k, 1)
    for q in range(4): t_hb(k, q)
    k.e('s_waitcnt lgkmcnt(0)')
    t_tread(k)
    k.e('s_waitcnt lgkmcnt(0)')
    t_tstore(k)
    k.e('s_waitcnt vmcnt(0)')
    k.e('s_barrier')
    emit_items(k, flag_store(k, 'R_HBFL', 's99', 1))
    if PFX:
        srd(k, 20, A_CRE, 1 << 19); srd(k, 24, A_CIM, 1 << 19); srd(k, 28, B_W2, 1376 * 4096)
        k.e('s_sub_u32 s74, s73, 22')
        k.e('s_lshl_b32 s74, s74, 8')
        k.e('v_add_u32 v4, s74, v0')
        k.e('v_lshlrev_b32 v5, 7, v4')
        k.e('buffer_load_dword v231, v5, s[20:23], 0 offen')
        k.e('buffer_load_dword v231, v5, s[24:27], 0 offen')
        k.e('v_add_u32 v6, 327680, v5')
        k.e('buffer_load_dword v231, v6, s[20:23], 0 offen')
        k.e('buffer_load_dword v231, v6, s[24:27], 0 offen')
        k.e('v_lshrrev_b32 v5, 2, v4')
        k.e('v_lshlrev_b32 v5, 12, v5')
        k.e('v_and_b32 v6, 3, v4')
        k.e('v_lshl_add_u32 v5, v6, 7, v5')
        k.e('s_lshl_b32 s75, s72, 9')
        k.e('v_add_u32 v5, s75, v5')
        k.e('v_add_u32 v6, 2621440, v5')
        k.e('v_add_u32 v7, 5242880, v5')
        k.e('buffer_load_dword v231, v5, s[28:31], 0 offen')
        k.e('buffer_load_dword v231, v6, s[28:31], 0 offen')
        k.e('buffer_load_dword v231, v7, s[28:31], 0 offen')
    k.tl(5)
    for i in range(5): p3_setup(k, i)
    k.e(HBL)
    k.e('s_waitcnt vmcnt(0)')
    k.tl(6)
    hb_check(k, 'R')
    for g in range(32, 32 + DIST):
        if g == HBC + DIST:
            for g2 in range(32, g):
                A, B = parts(g2)
                emit_items(k, B[0] + B[1])
        for grp in issue(g): emit_items(k, grp)
    if E31:
        for q in range(4): k.e('buffer_load_dword v231, v226, s[16:19], s97 offen')
    k.e('s_branch G32')
def gen_fused():
    k = Kern('gated_mix__ssm_conv_s5__mixer_token_mlp__prompt_kernel')
    stages, issue, parts = g_stages(k)
    def setup2():
        fc1_setup2(k)
        if PF: fc1_setup_pf(k)
    hooks = dict(setup=lambda: fc1_setup(k), setup2=setup2, Apart=lambda g: parts(g)[0],
                 A={3: [0, 1], 4: [2], 5: [3, 4], 7: [5, 6], 8: [7]})
    gen_p1(k, hooks)
    k.e('s_cmp_lt_u32 s73, 22')
    k.e('s_cbranch_scc1 F_ROLE')
    q = list(k.vmq)
    r_role(k, issue, parts)
    k.vmq = q
    k.label('F_ROLE')
    for g in range(8):
        B = parts(g)[1]
        emit_items(k, B[0] + B[1])
        if g == EC - 1: t_eload(k, 'F')
        if g in PRO: emit_items(k, pf_slot())
    k.stamp(15)
    g_run(k, stages)
    k.label('K_END')
    k.e('s_endpgm')
    return finish(k, 320, 102)

def main():
    hdr = open('gated_mix__ssm_conv_s5__mixer_token_mlp__prompt.s.ref').read().split('\n')
    top = []
    for l in hdr:
        if l.startswith(';') and '@launch' not in l:
            top.append(l)
        elif not l.startswith(';'):
            break
    top.append('; @launch grid=(256,1,1) block=(256,1,1) lds=148736')
    top.append('.amdgcn_target "amdgcn-amd-amdhsa--gfx950"')
    top.append('.text')
    ks = [gen_fused()]
    body = []
    for b, d in ks:
        body += b
    body.append('.section .rodata,"a"')
    for b, d in ks:
        body += d
    out = '\n'.join(top + body) + '\n'
    path = sys.argv[1]
    open(path, 'w').write(out)
    print('wrote', path, len(out), 'bytes')

if __name__ == '__main__':
    main()
```

```python
import sys, os, struct
DEBUG = int(os.environ.get('DEBUG', '0'))
DBGWG = int(os.environ.get('DBGWG', '0'))
TL = int(os.environ.get('TL', '0'))
PF = int(os.environ.get('PF', '0'))
PFX = int(os.environ.get('PFX', '1'))
PRO = eval(os.environ.get('PRO', '(1,7)'))
PF2 = eval(os.environ.get('PF2', '(1,9)'))

WS_H  = 0
WS_G  = 2 << 20
WS_E  = 12 << 20
WS_FA = 13 << 20
WS_FB = WS_FA + 16384
WS_FU = WS_FA + 32768
WS_HB = 16 << 20
WS_U  = 20 << 20
WS_SZ = 24 << 20
if DEBUG or TL: WS_SZ = 64 << 20
UP = 2816
LOG2E = 0x3fb8aa3b
INV2PI = 0x3e22f983
UC = int(os.environ.get('UC', '12'))
UW = int(os.environ.get('UW', '2'))
FHST = int(os.environ.get('FHST', '3'))
EC = int(os.environ.get('EC', '6'))
HBP = int(os.environ.get('HBP', '2'))
HBF = int(os.environ.get('HBF', '0'))
HBLG = int(os.environ.get('HBLG', '26'))
HBC = int(os.environ.get('HBC', '30'))
RPF = int(os.environ.get('RPF', '1'))
PFXST = int(os.environ.get('PFXST', '5'))
E31 = int(os.environ.get('E31', '1'))
EPS = int(os.environ.get('EPS', '1'))
PPL = int(os.environ.get('PPL', '0'))
PSL = int(os.environ.get('PSL', '4'))
UPF = int(os.environ.get('UPF', '0'))
EPL = int(os.environ.get('EPL', '37'))
RB = int(os.environ.get('RB', '0'))
RC = int(os.environ.get('RC', '1'))
TLX = int(os.environ.get('TLX', '0'))
KS = int(os.environ.get('KS', '1'))
UB = int(os.environ.get('UB', '1'))
UT = int(os.environ.get('UT', '1'))
OT = int(os.environ.get('OT', '1'))
XT = int(os.environ.get('XT', '1'))
D7 = int(os.environ.get('D7', '1'))
M48 = int(os.environ.get('M48', '1'))
HPF = int(os.environ.get('HPF', '1'))
WI = int(os.environ.get('WI', '1'))
WPF = int(os.environ.get('WPF', '0'))
CPF = int(os.environ.get('CPF', '0'))
RW = int(os.environ.get('RW', '1'))
TMO = 1 << 13

class Kern:
    def __init__(self, name):
        self.name = name
        self.L = []
        self.vmq = []
        self.nlab = 0
    def e(self, s):
        self.L.append('    ' + s)
    def c(self, s):
        self.L.append('    ; ' + s)
    def label(self, l):
        self.L.append(l + ':')
    def vm(self, s, tag):
        self.e(s); self.vmq.append((tag, 1))
    def mark(self, tag):
        self.vmq.append((tag, 0))
    def wait_vm(self, tag):
        idxs = [i for i, t in enumerate(self.vmq) if t[0] == tag]
        if not idxs:
            return
        idx = idxs[-1]
        n = sum(t[1] for t in self.vmq[idx + 1:])
        self.e('s_waitcnt vmcnt(%d)' % min(n, 63))
        self.vmq = self.vmq[idx + 1:]
    def wait_vm_all(self):
        self.e('s_waitcnt vmcnt(0)'); self.vmq = []
    def stamp(self, i):
        if not DEBUG: return
        self.e('s_memtime s[94:95]')
        self.e('s_waitcnt lgkmcnt(0)')
        self.e('v_writelane_b32 v%d, s94, %d' % (255 - i // 64, i % 64))
    def tl(self, i):
        if not TL: return
        self.e('s_memrealtime s[94:95]')
        self.e('s_waitcnt lgkmcnt(0)')
        self.e('v_writelane_b32 v252, s94, %d' % i)
    def tlc(self, i):
        if not TL: return
        self.e('s_memtime s[94:95]')
        self.e('s_waitcnt lgkmcnt(0)')
        self.e('v_writelane_b32 v252, s94, %d' % i)
    def flush_dbg(self):
        if not (DEBUG or TL): return
        self.nlab += 1
        lab = '%s_DBG%d' % (self.name, self.nlab)
        self.e('s_cmp_lg_u32 s3, 0')
        self.e('s_cbranch_scc1 %s' % lab)
        self.e('v_and_b32 v251, 63, v0')
        self.e('v_lshlrev_b32 v251, 2, v251')
        if TL:
            self.e('s_lshl_b32 s94, s2, 8')
            self.e('s_add_u32 s94, s94, %d' % (32 << 20))
            self.e('buffer_store_dword v252, v251, s[16:19], s94 offen')
        if DEBUG:
            self.e('s_cmp_lg_u32 s2, %d' % DBGWG)
            self.e('s_cbranch_scc1 %s' % lab)
            self.e('s_mov_b32 s94, %d' % (33 << 20))
            self.e('buffer_store_dword v255, v251, s[16:19], s94 offen')
            self.e('buffer_store_dword v254, v251, s[16:19], s94 offen offset:256')
            self.e('buffer_store_dword v253, v251, s[16:19], s94 offen offset:512')
        self.label(lab)
    def nop(self, n):
        while n > 0:
            k = min(n, 16)
            self.e('s_nop %d' % (k - 1)); n -= k
def v(i, n=1):
    return 'v%d' % i if n == 1 else 'v[%d:%d]' % (i, i + n - 1)
def a(i, n=1):
    return 'a%d' % i if n == 1 else 'a[%d:%d]' % (i, i + n - 1)
def s(i, n=1):
    return 's%d' % i if n == 1 else 's[%d:%d]' % (i, i + n - 1)

def P(k): return 36 + 2 * k
A_X, A_LRE, A_LIM, A_BRE, A_BIM, A_CRE, A_CIM, A_LDT, A_DSK, B_X, B_W1, B_B1, B_W2, B_B2, GATE, OUT, DBG, WS = range(18)

def load_kernargs(k):
    k.e('s_load_dwordx16 s[36:51], s[0:1], 0')
    k.e('s_load_dwordx16 s[52:67], s[0:1], 64')
    k.e('s_load_dwordx4 s[68:71], s[0:1], 128')

def srd(k, dst, ptr, nbytes):
    k.e('s_mov_b32 s%d, s%d' % (dst, P(ptr)))
    k.e('s_and_b32 s%d, s%d, 0xffff' % (dst + 1, P(ptr) + 1))
    k.e('s_mov_b32 s%d, 0x%x' % (dst + 2, nbytes))
    k.e('s_mov_b32 s%d, 0x00020000' % (dst + 3))

def cfma(k, dr, di, ar, ai, br, bi, cr, ci):
    k.e('v_fma_f32 %s, %s, %s, %s' % (v(dr), v(ar), v(br), v(cr)))
    k.e('v_fma_f32 %s, %s, %s, %s' % (v(di), v(ar), v(bi), v(ci)))
    k.e('v_fma_f32 %s, -%s, %s, %s' % (v(dr), v(ai), v(bi), v(dr)))
    k.e('v_fma_f32 %s, %s, %s, %s' % (v(di), v(ai), v(br), v(di)))

def cmul(k, dr, di, ar, ai, br, bi):
    k.e('v_mul_f32 %s, %s, %s' % (v(dr), v(ar), v(br)))
    k.e('v_mul_f32 %s, %s, %s' % (v(di), v(ar), v(bi)))
    k.e('v_fma_f32 %s, -%s, %s, %s' % (v(dr), v(ai), v(bi), v(dr)))
    k.e('v_fma_f32 %s, %s, %s, %s' % (v(di), v(ai), v(br), v(di)))

def rbf(k, a, t):
    k.e('v_cvt_pk_bf16_f32 %s, %s, %s' % (v(t), v(a), v(a)))
    k.e('v_lshlrev_b32 %s, 16, %s' % (v(a), v(t)))

def rbf2(k, a, b, t):
    k.e('v_cvt_pk_bf16_f32 %s, %s, %s' % (v(t), v(a), v(b)))
    k.e('v_lshlrev_b32 %s, 16, %s' % (v(a), v(t)))
    k.e('v_and_b32 %s, 0xffff0000, %s' % (v(b), v(t)))

def lam_params(k, lre, lim, ldt, Lr, Li, t0, t1):
    k.e('v_lshlrev_b32 %s, 16, %s' % (v(lre), v(lre)))
    k.e('v_lshlrev_b32 %s, 16, %s' % (v(lim), v(lim)))
    k.e('v_lshlrev_b32 %s, 16, %s' % (v(ldt), v(ldt)))
    k.e('v_mul_f32 %s, 0x%x, %s' % (v(t0), LOG2E, v(ldt)))
    k.e('v_exp_f32 %s, %s' % (v(t0), v(t0)))
    k.nop(1)
    rbf(k, t0, t1)
    k.e('v_mul_f32 %s, %s, %s' % (v(t1), v(t0), v(lre)))
    k.e('v_mul_f32 %s, %s, %s' % (v(t0), v(t0), v(lim)))
    k.e('v_mul_f32 %s, 0x%x, %s' % (v(t1), LOG2E, v(t1)))
    k.e('v_mul_f32 %s, 0x%x, %s' % (v(t0), INV2PI, v(t0)))
    k.e('v_exp_f32 %s, %s' % (v(t1), v(t1)))
    k.e('v_fract_f32 %s, %s' % (v(t0), v(t0)))
    k.e('v_cos_f32 %s, %s' % (v(Lr), v(t0)))
    k.e('v_sin_f32 %s, %s' % (v(Li), v(t0)))
    k.nop(1)
    k.e('v_mul_f32 %s, %s, %s' % (v(Lr), v(Lr), v(t1)))
    k.e('v_mul_f32 %s, %s, %s' % (v(Li), v(Li), v(t1)))

def finish(k, nvgpr, nsgpr=96):
    out = []
    out.append('.globl %s' % k.name)
    out.append('.p2align 8')
    out.append('.type %s,@function' % k.name)
    out.append('%s:' % k.name)
    out += k.L
    desc = []
    desc.append('.p2align 6')
    desc.append('.amdhsa_kernel %s' % k.name)
    desc.append('  .amdhsa_next_free_vgpr %d' % nvgpr)
    desc.append('  .amdhsa_next_free_sgpr %d' % nsgpr)
    desc.append('  .amdhsa_accum_offset 256')
    desc.append('  .amdhsa_group_segment_fixed_size 0')
    desc.append('  .amdhsa_kernarg_size 144')
    desc.append('  .amdhsa_user_sgpr_count 2')
    desc.append('  .amdhsa_user_sgpr_kernarg_segment_ptr 1')
    desc.append('  .amdhsa_system_sgpr_workgroup_id_x 1')
    desc.append('.end_amdhsa_kernel')
    return out, desc

def dma_voff(k, dst, rowbase_s, pitch_s, colbase_s, tr, I3, I4, I7, tmp, hb=False):
    for j in range(2):
        if tr:
            k.e('v_and_b32 %s, 1, %s' % (v(tmp), v(I4)))
            k.e('v_lshlrev_b32 %s, 2, %s' % (v(tmp), v(tmp)))
        else:
            k.e('v_add_u32 %s, %d, %s' % (v(tmp), 4 * j, v(I4)))
            k.e('v_and_b32 %s, 7, %s' % (v(tmp), v(tmp)))
        k.e('v_xor_b32 %s, %s, %s' % (v(tmp), v(tmp), v(I7)))
        if hb:
            k.e('v_and_b32 %s, 4, %s' % (v(dst + j), v(tmp)))
            k.e('v_add_u32 %s, %s, %s' % (v(tmp), v(tmp), v(dst + j)))
        k.e('v_lshlrev_b32 %s, 4, %s' % (v(tmp), v(tmp)))
        k.e('v_add_u32 %s, s%d, %s' % (v(dst + j), rowbase_s, v(I3)))
        if j:
            k.e('v_add_u32 %s, 8, %s' % (v(dst + j), v(dst + j)))
        k.e('v_mul_lo_u32 %s, %s, s%d' % (v(dst + j), v(dst + j), pitch_s))
        k.e('v_add_u32 %s, %s, %s' % (v(dst + j), v(dst + j), v(tmp)))
        k.e('v_add_u32 %s, s%d, %s' % (v(dst + j), colbase_s, v(dst + j)))
        if j:
            k.e('v_subrev_u32 %s, 1024, %s' % (v(dst + j), v(dst + j)))

def pat_direct(k, dst, sub_s, base, LANE, t0, t1):
    k.e('v_and_b32 %s, 31, %s' % (v(t0), v(LANE)))
    k.e('v_lshrrev_b32 %s, 1, %s' % (v(t1), v(t0)))
    k.e('v_and_b32 %s, 7, %s' % (v(t1), v(t1)))
    k.e('v_lshrrev_b32 %s, 5, %s' % (v(dst), v(LANE)))
    k.e('v_xor_b32 %s, %s, %s' % (v(t1), v(t1), v(dst)))
    k.e('v_lshlrev_b32 %s, 4, %s' % (v(t1), v(t1)))
    k.e('v_lshl_add_u32 %s, %s, 7, %s' % (v(t1), v(t0), v(t1)))
    k.e('v_add_u32 %s, s%d, %s' % (v(t1), sub_s, v(t1)))
    if base:
        k.e('v_add_u32 %s, %d, %s' % (v(t1), base, v(t1)))
    for kk in range(4):
        k.e('v_xor_b32 %s, %d, %s' % (v(dst + kk), kk << 5, v(t1)))
        k.e('v_add_u32 %s, 65536, %s' % (v(dst + 4 + kk), v(dst + kk)))

def pat_tr(k, dst, subchunk_s, base, LANE, t0, t1, t2):
    k.e('v_and_b32 %s, 15, %s' % (v(t0), v(LANE)))
    k.e('v_lshrrev_b32 %s, 4, %s' % (v(t1), v(LANE)))
    k.e('v_and_b32 %s, 1, %s' % (v(t1), v(t1)))
    k.e('v_lshlrev_b32 %s, 1, %s' % (v(t1), v(t1)))
    k.e('v_bfe_u32 %s, %s, 1, 1' % (v(t2), v(t0)))
    k.e('v_add_u32 %s, %s, %s' % (v(t1), v(t1), v(t2)))
    k.e('v_add_u32 %s, s%d, %s' % (v(t1), subchunk_s, v(t1)))
    k.e('v_bfe_u32 %s, %s, 3, 1' % (v(t2), v(t0)))
    k.e('v_lshlrev_b32 %s, 2, %s' % (v(t2), v(t2)))
    k.e('v_xor_b32 %s, %s, %s' % (v(t1), v(t1), v(t2)))
    k.e('v_lshlrev_b32 %s, 4, %s' % (v(t1), v(t1)))
    k.e('v_and_b32 %s, 1, %s' % (v(t2), v(t0)))
    k.e('v_lshl_add_u32 %s, %s, 3, %s' % (v(t1), v(t2), v(t1)))
    k.e('v_lshrrev_b32 %s, 2, %s' % (v(t2), v(t0)))
    k.e('v_lshrrev_b32 %s, 5, %s' % (v(t0), v(LANE)))
    k.e('v_lshl_add_u32 %s, %s, 3, %s' % (v(t2), v(t0), v(t2)))
    k.e('v_lshl_add_u32 %s, %s, 7, %s' % (v(dst), v(t2), v(t1)))
    if base:
        k.e('v_add_u32 %s, %d, %s' % (v(dst), base, v(dst)))
    k.e('v_add_u32 %s, 65536, %s' % (v(dst + 1), v(dst)))

def read_frag(k, dstreg, mode, pat, slot, kk):
    sset = slot // 4; off = (slot % 4) * 16384
    if mode == 'd':
        k.e('ds_read_b128 %s, %s offset:%d' % (a(dstreg, 4), v(pat + 4 * sset + kk), off))
        return 1
    else:
        k.e('ds_read_b64_tr_b16 %s, %s offset:%d' % (a(dstreg, 2), v(pat + sset), off + kk * 2048))
        k.e('ds_read_b64_tr_b16 %s, %s offset:%d' % (a(dstreg + 2, 2), v(pat + sset), off + kk * 2048 + 512))
        return 2


def emit_items(k, items):
    for it in items:
        if it[0] == 'e': k.e(it[1])
        elif it[0] == 'w': k.wait_vm(it[1])
        elif it[0] == 'm': k.mark(it[1])
        elif it[0] == 'f': it[1]()
        else: k.vm(it[1], it[2])

def capture(k, fns):
    out = []
    sv = (k.e, k.vm, k.mark, k.wait_vm, k.label)
    k.e = lambda s_: out.append(('e', s_))
    k.vm = lambda s_, t: out.append(('v', s_, t))
    k.mark = lambda t: out.append(('m', t))
    k.wait_vm = lambda t: out.append(('w', t))
    k.label = lambda l: out.append(('e', l + ':'))
    for f in fns: emit_items(k, f())
    del k.e, k.vm, k.mark, k.wait_vm, k.label
    return out

def split_items(items, n):
    ok = [True] * (len(items) + 1)
    pend = set()
    hold = False
    for i, it in enumerate(items):
        if pend or hold: ok[i] = False
        hold = False
        if it[0] in 'ev':
            l = it[1]
            if l.endswith(':'): pend.discard(l[:-1])
            elif l.startswith('s_cbranch') or l.startswith('s_branch'): pend.add(l.split()[1])
            elif l.startswith('s_cmp') or l.startswith('s_nop') or l.split(',')[0].split()[-1] in ('s84', 's85', 'm0', 'exec', 's[84:85]'): hold = True
    res = []; start = 0
    for c in range(1, n):
        tgt = max(start, (len(items) * c + n - 1) // n)
        while tgt < len(items) and not ok[tgt]: tgt += 1
        res.append(items[start:tgt]); start = tgt
    res.append(items[start:])
    return res

SLOT0 = 3
ILV = int(os.environ.get('ILV', '0'))
DIST = int(os.environ.get('DIST', '6'))
HALF = int(os.environ.get('HALF', '0'))
def gemm_loop(k, stages, NS, FBUF, sb=0):
    n = len(stages)
    def mfma(st, kk):
        S = stages[st]
        FA, FB = FBUF[st & 1]
        if S.get('ks'):
            m, n = ((0, 1), (1, 0), (1, 1), (0, 0))[kk]
            d = v(S['acc'], 16) if kk == 3 else a(64 + 16 * kk, 16)
            k.e('v_mfma_f32_32x32x16_bf16 %s, %s, %s, %s' % (d, a(FA + 4 * m, 4), a(FA + 8 + 4 * n, 4), '0' if S['first'] else d))
            return
        c = '0' if (S['first'] and kk == 0) else v(S['acc'], 16)
        k.e('v_mfma_f32_32x32x16_bf16 %s, %s, %s, %s' % (v(S['acc'], 16), a(FA + 4 * kk, 4), a(FB + 4 * kk, 4), c))
    for st in range(n):
        S = stages[st]
        if S.get('early'):
            k.e('s_waitcnt lgkmcnt(0)')
            for kk in range(4):
                mfma(st - 1, kk)
                if S.get('early_ilv'): S['early_ilv'](kk)
            S['early']()
        if S.get('label'): k.label(S['label'])
        k.wait_vm('st%d' % st)
        if not S.get('ks') or S.get('bar'): k.e('s_barrier')
        k.stamp(sb + st)
        for f in S.get('pre', []):
            emit_items(k, f())
        groups = [[], [], [], []]
        if st + DIST >= NS and st + DIST < n:
            groups = stages[st + DIST]['issue'](st + DIST)
            if S.get('noissue'): groups = [[], [], [], []]
            if st >= 1 and stages[st - 1].get('noissue'):
                g0 = stages[st - 1 + DIST]['issue'](st - 1 + DIST)
                groups = [g0[0] + g0[1], g0[2] + g0[3], groups[0] + groups[1], groups[2] + groups[3]]
        if D7 and S.get('ks') and st + DIST < 32:
            groups = [[], [], [], []]
            if 1 <= st < 25:
                g7 = stages[st + 7]['issue'](st + 7)
                groups = [[], g7[0], g7[1] + g7[2], g7[3]]
        slot = (st + SLOT0) % NS
        FA, FB = FBUF[st & 1]
        xs = split_items(capture(k, S.get('ilv', [])), 4)
        if not ILV: xs = [[], [], [], xs[0] + xs[1] + xs[2] + xs[3]]
        for kk in range(4):
            emit_items(k, groups[kk])
            nr = 0
            if S.get('ks'):
                nr += read_frag(k, FA + 4 * kk, 't', (12, 32, 14, 34)[kk], slot, 0)
            elif not (HALF and kk >= 2):
                nr += read_frag(k, FA + 4 * kk, S['modeA'], S['patA'], slot, kk)
                nr += read_frag(k, FB + 4 * kk, S['modeB'], S['patB'], slot, kk)
            if st >= 1 and not S.get('early'):
                if DIST < 7 and kk == 0: k.e('s_waitcnt lgkmcnt(%d)' % nr)
                mfma(st - 1, kk)
            emit_items(k, xs[kk])
        for f in S.get('extra', []):
            emit_items(k, f())
        if DIST == 7 or st == n - 1 or S.get('lgk0'): k.e('s_waitcnt lgkmcnt(0)')
    for kk in range(4):
        mfma(n - 1, kk)

def poll_tail(k, lab_chk, lab_ok, reload_lines):
    k.e('s_cmp_eq_u32 s96, 0')
    k.e('s_cbranch_scc1 %s' % lab_ok)
    k.e('s_sub_u32 s96, s96, 1')
    k.e('s_sleep 1')
    for l in reload_lines: k.e(l)
    k.e('s_waitcnt vmcnt(0)')
    k.e('s_branch %s' % lab_chk)
    k.label(lab_ok)

def flag_store(k, lab, soff, nl, cond=None):
    L = [('e', 's_cmp_lg_u32 s3, 0'), ('e', 's_cbranch_scc1 %s' % lab)]
    if cond: L += cond + [('e', 's_cbranch_scc1 %s' % lab)]
    L += [('e', 's_mov_b64 exec, %d' % ((1 << nl) - 1)),
          ('e', 'buffer_store_dword v250, v243, s[16:19], %s offen sc1' % soff),
          ('e', 's_mov_b64 exec, -1'), ('e', '%s:' % lab)]
    return L
SE, SDONE = 64, 65
LR, LI = 184, 185
L2R, L2I, L3R, L3I, L4R, L4I = 186, 187, 188, 189, 190, 191
L32R, L32I = 194, 195
CFR, CFI = 234, 235
L128 = 238
ACR, ACI = 40, 56
EV, OD = 72, 80
CR, CI = 88, 97
EW = 110
EB = 200
UCR = 240
XOFF = 6 * 24576
def gen_p1(k, hooks):
    NS = 6; STG = 24576; NST = 8
    TB = 131072
    k.e('s_cmp_ge_u32 s2, 256')
    k.e('s_cbranch_scc1 K_END')
    load_kernargs(k)
    k.e('s_memrealtime s[84:85]')
    k.tl(0)
    k.tlc(11)
    k.e('v_and_b32 v1, 63, v0')
    k.e('v_lshrrev_b32 v2, 6, v0')
    k.e('s_mov_b32 s96, %d' % TMO)
    k.e('v_readfirstlane_b32 s3, v2')
    k.e('s_and_b32 s72, s2, 7')
    k.e('s_lshr_b32 s73, s2, 3')
    if M48:
        k.e('s_lshr_b32 s74, s73, 3')
        k.e('s_and_b32 s73, s73, 7')
        k.e('s_and_b32 s75, s72, 1')
        k.e('s_lshl_b32 s75, s75, 3')
        k.e('s_add_u32 s73, s73, s75')
        k.e('s_lshr_b32 s72, s72, 1')
        k.e('s_lshl_b32 s72, s72, 2')
        k.e('s_add_u32 s72, s72, s74')
    else:
        k.e('s_lshr_b32 s74, s73, 4')
        k.e('s_lshl_b32 s72, s72, 1')
        k.e('s_add_u32 s72, s72, s74')
        k.e('s_and_b32 s73, s73, 15')
    k.e('s_lshl_b32 s74, s72, 7')
    k.e('s_lshl_b32 s75, s73, 5')
    XR0, XR1, GW = 168, 172, 176
    PLRE, PLIM, PLDT = 180, 181, 182
    k.e('s_lshl_b32 s76, s73, 3')
    k.e('s_add_u32 s76, s76, s74')
    k.e('s_lshl_b32 s77, s3, 1')
    k.e('s_add_u32 s76, s76, s77')
    k.e('s_lshl_b32 s77, s76, 10')
    k.e('v_lshlrev_b32 v2, 4, v1')
    k.e('v_and_b32 v3, 31, v1')
    k.e('v_add_u32 v14, s75, v3')
    k.e('v_lshlrev_b32 v248, 3, v14')
    k.e('v_lshlrev_b32 v14, 1, v14')
    VA = 8; VB = 12
    k.e('v_lshrrev_b32 v4, 3, v1')
    k.e('v_lshrrev_b32 v5, 4, v1')
    k.e('v_and_b32 v6, 7, v1')
    k.e('s_lshl_b32 s78, s3, 5')
    k.e('s_add_u32 s78, s78, s74')
    for j in range(4):
        k.e('v_add_u32 v7, %d, v5' % (4 * j))
        k.e('v_and_b32 v7, 7, v7')
        k.e('v_xor_b32 v7, v7, v6')
        k.e('v_lshlrev_b32 v7, 4, v7')
        k.e('v_add_u32 %s, s78, v4' % v(VA + j))
        k.e('v_add_u32 %s, %d, %s' % (v(VA + j), 7 * j, v(VA + j)))
        k.e('v_lshlrev_b32 %s, 10, %s' % (v(VA + j), v(VA + j)))
        k.e('v_add_u32 %s, %s, v7' % (v(VA + j), v(VA + j)))
    k.e('s_and_b32 s79, s3, 1')
    k.e('s_lshl_b32 s79, s79, 4')
    k.e('s_add_u32 s79, s79, s75')
    for j in range(2):
        k.e('v_add_u32 v7, %d, v5' % (4 * j))
        k.e('v_and_b32 v7, 7, v7')
        k.e('v_xor_b32 v7, v7, v6')
        k.e('v_lshlrev_b32 v7, 4, v7')
        k.e('v_add_u32 %s, s79, v4' % v(VB + j))
        k.e('v_add_u32 %s, %d, %s' % (v(VB + j), 7 * j, v(VB + j)))
        k.e('v_lshlrev_b32 %s, 10, %s' % (v(VB + j), v(VB + j)))
        k.e('v_add_u32 %s, %s, v7' % (v(VB + j), v(VB + j)))
    k.e('s_lshl_b32 s80, s3, 12')
    k.e('s_lshl_b32 s81, s3, 11')
    k.e('s_add_u32 s81, s81, 16384')
    k.e('v_lshlrev_b32 v242, 11, v4')
    k.e('v_lshl_add_u32 v242, v6, 4, v242')
    k.e('v_lshrrev_b32 v7, 5, v1')
    k.e('v_lshlrev_b32 v233, 2, v7')
    k.e('v_xor_b32 v233, v233, v6')
    k.e('v_lshlrev_b32 v233, 4, v233')
    k.e('v_lshl_add_u32 v233, v4, 7, v233')
    k.e('s_add_u32 s82, s80, %d' % TB)
    k.e('v_add_u32 v233, s82, v233')
    k.e('v_lshlrev_b32 v232, 6, v7')
    k.e('v_lshl_add_u32 v232, v3, 1, v232')
    k.e('v_lshl_add_u32 v232, v7, 9, v232')
    k.e('v_add_u32 v232, s82, v232')
    k.e('v_xor_b32 v249, 64, v232')
    k.e('v_lshlrev_b32 v243, 10, v1')
    k.e('v_lshlrev_b32 v246, 2, v1')
    k.e('s_mov_b32 s97, s72')
    k.e('s_lshl_b32 s98, s78, 11')
    k.e('s_lshl_b32 s99, s73, 7')
    k.e('s_add_u32 s98, s98, s99')
    k.e('s_add_u32 s98, s98, %d' % WS_HB)
    k.e('s_lshl_b32 s99, s72, 7')
    k.e('s_lshl_b32 s100, s73, 2')
    k.e('s_add_u32 s99, s99, s100')
    k.e('s_add_u32 s99, s99, %d' % WS_FB)
    k.e('s_lshl_b32 s89, s72, 6')
    k.e('s_add_u32 s89, s89, s100')
    k.e('s_add_u32 s89, s89, %d' % WS_FA)
    k.e('s_lshl_b32 s88, s73, 10')
    k.e('s_lshl_b32 s100, s3, 8')
    k.e('s_add_u32 s88, s88, s100')
    k.e('s_add_u32 s88, s88, %d' % WS_FA)
    PA = 16; PB = 28
    k.e('v_lshrrev_b32 v4, 5, v1')
    k.e('v_lshrrev_b32 v5, 1, v3')
    k.e('v_and_b32 v5, 7, v5')
    k.e('v_xor_b32 v5, v5, v4')
    k.e('v_lshlrev_b32 v5, 4, v5')
    k.e('v_lshl_add_u32 v5, v3, 7, v5')
    for kk in range(4):
        k.e('v_xor_b32 %s, %d, v5' % (v(PB + kk), kk << 5))
        k.e('v_add_u32 %s, s80, %s' % (v(PA + kk), v(PB + kk)))
        for st in (1, 2):
            k.e('v_add_u32 %s, %d, %s' % (v(PB + 4 * st + kk), 49152 * st, v(PB + kk)))
            k.e('v_add_u32 %s, %d, %s' % (v(PA + 4 * st + kk), 49152 * st, v(PA + kk)))
    k.e('s_waitcnt lgkmcnt(0)')
    k.stamp(60)
    k.e('s_mov_b32 s54, s89')
    k.e('s_mov_b32 s55, s88')
    srd(k, 4, A_X, 2 << 20)
    k.e('s_cmp_ge_u32 s3, 2')
    k.e('s_cselect_b32 s8, s%d, s%d' % (P(A_BIM), P(A_BRE)))
    k.e('s_cselect_b32 s9, s%d, s%d' % (P(A_BIM) + 1, P(A_BRE) + 1))
    k.e('s_and_b32 s9, s9, 0xffff')
    k.e('s_mov_b32 s10, 0x80000')
    k.e('s_mov_b32 s11, 0x00020000')
    srd(k, 32, GATE, 1024)
    srd(k, 16, WS, WS_SZ)
    srd(k, 12, DBG, 256)
    k.e('s_or_b32 s83, s2, s3')
    k.e('s_cmp_lg_u32 s83, 0')
    k.e('s_cbranch_scc1 P1_NOZ')
    k.e('s_or_b32 s84, s84, 1')
    k.e('v_mov_b32 v6, s84')
    k.e('s_mov_b64 exec, 1')
    k.e('buffer_store_dword v6, off, s[12:15], 0 sc1')
    k.e('s_mov_b64 exec, -1')
    k.label('P1_NOZ')
    k.vm('buffer_load_dwordx4 %s, v2, s[4:7], s77 offen' % v(XR0, 4), 'ln')
    k.vm('buffer_load_dwordx4 %s, v2, s[4:7], s77 offen offset:1024' % v(XR1, 4), 'ln')
    k.vm('buffer_load_dwordx4 %s, v2, s[32:35], 0 offen' % v(GW, 4), 'ln')
    def issue_groups(st):
        slot = (st % NS) * STG
        tg = 'b%d' % st
        g = [[('e', 's_mov_b32 s82, %d' % (st * 128)), ('e', 's_add_u32 m0, s80, %d' % slot), ('e', 's_nop 0')], [], [], []]
        for j in range(4):
            g[j // 2].append(('v', 'buffer_load_dwordx4 %s, s[4:7], s82 offen offset:%d lds' % (v(VA + j), 1024 * j), tg))
        g[2] += [('e', 's_add_u32 m0, s81, %d' % slot), ('e', 's_nop 0')]
        for j in range(2):
            g[2 + j].append(('v', 'buffer_load_dwordx4 %s, s[8:11], s82 offen offset:%d lds' % (v(VB + j), 1024 * j), tg))
        return g
    def issue_stage(st):
        for g in issue_groups(st): emit_items(k, g)
    issue_stage(0)
    issue_stage(1)
    issue_stage(2)
    k.stamp(1)
    k.wait_vm('ln')
    k.stamp(2)
    X = [100, 110]
    G = 120
    def unpack8(dst, src):
        for i in range(4):
            k.e('v_lshlrev_b32 %s, 16, %s' % (v(dst + 2 * i), v(src + i)))
            k.e('v_and_b32 %s, 0xffff0000, %s' % (v(dst + 2 * i + 1), v(src + i)))
    unpack8(X[0], XR0); unpack8(X[1], XR1); unpack8(G, GW)
    SUM = [130, 131]; GS = [132, 133]; TT = 134
    for r in range(2):
        k.e('v_add_f32 %s, %s, %s' % (v(SUM[r]), v(X[r]), v(X[r] + 1)))
        for i in range(2, 8):
            k.e('v_add_f32 %s, %s, %s' % (v(SUM[r]), v(SUM[r]), v(X[r] + i)))
        for i in range(8):
            k.e('v_mul_f32 %s, %s, %s' % (v(TT + i), v(X[r] + i), v(G + i)))
        for i in range(0, 8, 2):
            rbf2(k, TT + i, TT + i + 1, TT + 8)
        k.e('v_add_f32 %s, %s, %s' % (v(GS[r]), v(TT), v(TT + 1)))
        for i in range(2, 8):
            k.e('v_add_f32 %s, %s, %s' % (v(GS[r]), v(GS[r]), v(TT + i)))
    def wave_reduce(regs, sdst):
        for ctl in ('quad_perm:[1,0,3,2] row_mask:0xf bank_mask:0xf', 'quad_perm:[2,3,0,1] row_mask:0xf bank_mask:0xf',
                    'row_half_mirror row_mask:0xf bank_mask:0xf', 'row_mirror row_mask:0xf bank_mask:0xf',
                    'row_bcast:15 row_mask:0xa bank_mask:0xf', 'row_bcast:31 row_mask:0xc bank_mask:0xf'):
            k.nop(2)
            for r in regs:
                k.e('v_add_f32_dpp %s, %s, %s %s' % (v(r), v(r), v(r), ctl))
        k.nop(1)
        for r, sd in zip(regs, sdst):
            k.e('v_readlane_b32 s%d, %s, 63' % (sd, v(r)))
        k.nop(2)
    wave_reduce([SUM[0], SUM[1], GS[0], GS[1]], [84, 85, 86, 87])
    issue_stage(3)
    MEAN = [140, 141]; SQ = [142, 143]
    for r in range(2):
        k.e('v_mov_b32 %s, 0x3b000000' % v(MEAN[r]))
        k.e('v_mul_f32 %s, s%d, %s' % (v(MEAN[r]), 84 + r, v(MEAN[r])))
        k.e('v_sub_f32 %s, %s, %s' % (v(TT), v(X[r]), v(MEAN[r])))
        k.e('v_mul_f32 %s, %s, %s' % (v(SQ[r]), v(TT), v(TT)))
        for i in range(1, 8):
            k.e('v_sub_f32 %s, %s, %s' % (v(TT), v(X[r] + i), v(MEAN[r])))
            k.e('v_fmac_f32 %s, %s, %s' % (v(SQ[r]), v(TT), v(TT)))
    wave_reduce(SQ, [88, 89])
    issue_stage(4)
    HO = [150, 154]
    for r in range(2):
        SD = 144; RC = 145; Q = 146; E_ = 147
        k.e('v_mov_b32 %s, 0x3b000000' % v(SD))
        k.e('v_mul_f32 %s, s%d, %s' % (v(SD), 88 + r, v(SD)))
        rbf(k, SD, TT)
        k.e('v_add_f32 %s, 0x3727c5ac, %s' % (v(SD), v(SD)))
        rbf(k, SD, TT)
        k.e('v_sqrt_f32 %s, %s' % (v(SD), v(SD)))
        k.nop(1)
        rbf(k, SD, TT)
        k.e('v_rcp_f32 %s, %s' % (v(RC), v(SD)))
        rbf(k, MEAN[r], TT)
        for i in range(8):
            k.e('v_sub_f32 %s, %s, %s' % (v(X[r] + i), v(X[r] + i), v(MEAN[r])))
        for i in range(0, 8, 2):
            rbf2(k, X[r] + i, X[r] + i + 1, TT)
        for i in range(8):
            k.e('v_mul_f32 %s, %s, %s' % (v(Q), v(X[r] + i), v(RC)))
            k.e('v_fma_f32 %s, -%s, %s, %s' % (v(E_), v(Q), v(SD), v(X[r] + i)))
            k.e('v_fma_f32 %s, %s, %s, %s' % (v(X[r] + i), v(E_), v(RC), v(Q)))
        for i in range(4):
            k.e('v_cvt_pk_bf16_f32 %s, %s, %s' % (v(HO[r] + i), v(X[r] + 2 * i), v(X[r] + 2 * i + 1)))
        k.e('v_mov_b32 %s, s%d' % (v(GS[r]), 86 + r))
        rbf(k, GS[r], TT)
        k.e('v_mul_f32 %s, 0x%x, %s' % (v(GS[r]), LOG2E | 0x80000000, v(GS[r])))
        k.e('v_exp_f32 %s, %s' % (v(GS[r]), v(GS[r])))
        k.nop(1)
        k.e('v_add_f32 %s, 1.0, %s' % (v(GS[r]), v(GS[r])))
        k.e('v_rcp_f32 %s, %s' % (v(GS[r]), v(GS[r])))
        k.nop(1)
        rbf(k, GS[r], TT)
        if r == 0:
            issue_stage(5)
    k.e('s_add_u32 s83, s77, %d' % WS_H)
    k.vm('buffer_store_dwordx4 %s, v2, s[16:19], s83 offen sc1' % v(HO[0], 4), 'lnst')
    k.vm('buffer_store_dwordx4 %s, v2, s[16:19], s83 offen offset:1024 sc1' % v(HO[1], 4), 'lnst')
    k.e('s_lshr_b32 s83, s76, 3')
    k.e('s_lshl_b32 s83, s83, 7')
    k.e('s_lshl_b32 s84, s3, 3')
    k.e('s_add_u32 s83, s83, s84')
    k.e('s_add_u32 s83, s83, %d' % WS_G)
    k.e('s_mov_b64 exec, 1')
    k.vm('buffer_store_dwordx2 %s, off, s[16:19], s83 sc1' % v(GS[0], 2), 'lnst')
    k.e('s_mov_b64 exec, -1')
    k.e('v_mov_b32 v4, -1'); k.e('v_mov_b32 v5, -1')
    k.e('s_lshl_b32 s95, s72, 12')
    k.e('s_add_u32 s95, s95, %d' % WS_E)
    k.e('s_mov_b32 s%d, s95' % SE)
    k.vm('buffer_store_dwordx2 v[4:5], v248, s[16:19], s95 offen sc1', 'lnst')
    k.e('s_mov_b32 s%d, s3' % SDONE)
    k.e('s_cmp_lg_u32 s3, 0')
    k.e('s_cbranch_scc1 P1_NOGL')
    k.e('buffer_load_dword v250, off, s[12:15], 0 sc1')
    k.label('P1_NOGL')
    k.mark('go')
    srd(k, 20, A_LRE, 1024); srd(k, 24, A_LIM, 1024); srd(k, 28, A_LDT, 1024)
    k.vm('buffer_load_ushort %s, v14, s[20:23], 0 offen' % v(PLRE), 'par')
    k.vm('buffer_load_ushort %s, v14, s[24:27], 0 offen' % v(PLIM), 'par')
    k.vm('buffer_load_ushort %s, v14, s[28:31], 0 offen' % v(PLDT), 'par')
    def par1():
        k.wait_vm('par')
        lam_params(k, PLRE, PLIM, PLDT, LR, LI, 192, 193)
        cmul(k, L2R, L2I, LR, LI, LR, LI)
        cmul(k, L3R, L3I, L2R, L2I, LR, LI)
        cmul(k, L4R, L4I, L2R, L2I, L2R, L2I)
    def par2():
        cmul(k, L32R, L32I, L4R, L4I, L4R, L4I)
        cmul(k, 196, 197, L32R, L32I, L32R, L32I)
        cmul(k, L32R, L32I, 196, 197, 196, 197)
        cmul(k, 236, 237, L32R, L32I, L32R, L32I)
        cmul(k, L128, L128 + 1, 236, 237, 236, 237)
        k.e('v_add_f32 v192, -1.0, %s' % v(LR))
        k.e('v_mul_f32 v193, %s, %s' % (v(PLRE), v(PLRE)))
        k.e('v_fmac_f32 v193, %s, %s' % (v(PLIM), v(PLIM)))
        k.e('v_rcp_f32 v193, v193')
        k.e('v_mul_f32 %s, v192, %s' % (v(CFR), v(PLRE)))
        k.e('v_fmac_f32 %s, %s, %s' % (v(CFR), v(LI), v(PLIM)))
        k.e('v_mul_f32 %s, %s, %s' % (v(CFI), v(LI), v(PLRE)))
        k.e('v_fma_f32 %s, -v192, %s, %s' % (v(CFI), v(PLIM), v(CFI)))
        k.e('v_add_f32 v193, v193, v193')
        k.e('v_mul_f32 %s, %s, v193' % (v(CFR), v(CFR)))
        k.e('v_mul_f32 %s, %s, v193' % (v(CFI), v(CFI)))
    k.stamp(3)
    FB_ = [(72, 88, 104), (120, 136, 152)]
    FH = 244
    FHL = 'buffer_load_dword %s, v246, s[16:19], s55 offen sc1' % v(FH)
    GOL_ = 'buffer_load_dword v250, off, s[12:15], 0 sc1'
    def mfma(st, kk):
        FA, FBR, FBI = FB_[st & 1]
        c = '0' if (st == 0 and kk == 0) else v(ACR, 16)
        k.e('v_mfma_f32_32x32x16_bf16 %s, %s, %s, %s' % (v(ACR, 16), v(FA + 4 * kk, 4), v(FBR + 4 * kk, 4), c))
        c = '0' if (st == 0 and kk == 0) else v(ACI, 16)
        k.e('v_mfma_f32_32x32x16_bf16 %s, %s, %s, %s' % (v(ACI, 16), v(FA + 4 * kk, 4), v(FBI + 4 * kk, 4), c))
    for st in range(NST):
        k.wait_vm('lnst' if st == FHST else 'b%d' % st)
        k.e('s_barrier')
        k.stamp(4 + st)
        if st >= FHST:
            k.e('s_cmp_lg_u32 s%d, 0' % SDONE)
            k.e('s_cbranch_scc1 P1_NOFH%d' % st)
            q = list(k.vmq)
            k.wait_vm('go')
            k.vmq = q
            k.label('P1_GOCHK%d' % st)
            k.e('v_readfirstlane_b32 s84, v250')
            k.e('s_cmp_lg_u32 s84, 0')
            k.e('s_cbranch_scc1 P1_GOOK%d' % st)
            if st == NST - 1:
                poll_tail(k, 'P1_GOCHK%d' % st, 'P1_GOOK%d' % st, [GOL_])
            else:
                k.e(GOL_)
                k.e('s_branch P1_NOFH%d' % st)
                k.label('P1_GOOK%d' % st)
            k.e('s_mov_b64 exec, 0xffff')
            k.e('buffer_store_dword v250, v243, s[16:19], s54 offen sc1')
            k.e('v_mov_b32 v4, %d' % (XOFF + 1024))
            k.e('ds_write_b32 v4, v250')
            k.e('s_mov_b64 exec, -1')
            k.e('s_mov_b32 s%d, 1' % SDONE)
            k.label('P1_NOFH%d' % st)
            k.mark('go')
        if st == 3: hooks['setup']()
        groups = [[], [], [], []]
        if st >= 1 and st + NS - 1 < NST:
            groups = issue_groups(st + NS - 1)
        elif st in hooks['A']:
            groups = []
            for g in hooks['A'][st]: groups += hooks['Apart'](g)
            while len(groups) < 4: groups.append([])
        slot = st % NS
        sset = slot // 2
        off = (slot % 2) * STG
        FA, FBR, FBI = FB_[st & 1]
        for kk in range(4):
            emit_items(k, groups[kk])
            k.e('ds_read_b128 %s, %s offset:%d' % (v(FA + 4 * kk, 4), v(PA + 4 * sset + kk), off))
            k.e('ds_read_b128 %s, %s offset:%d' % (v(FBR + 4 * kk, 4), v(PB + 4 * sset + kk), off + 16384))
            k.e('ds_read_b128 %s, %s offset:%d' % (v(FBI + 4 * kk, 4), v(PB + 4 * sset + kk), off + 16384 + 4096))
            if st >= 1:
                mfma(st - 1, kk)
        if st == 5: par1()
        if st == 6: par2()
        if PFX and st == PFXST:
            srd(k, 20, B_W1, 2048 * 2752)
            k.e('s_lshr_b32 s90, s2, 3')
            k.e('s_lshl_b32 s90, s90, 6')
            k.e('s_lshl_b32 s91, s3, 4')
            k.e('s_add_u32 s90, s90, s91')
            k.e('s_and_b32 s92, s2, 7')
            k.e('s_mul_i32 s92, s92, 22')
            k.e('s_lshr_b32 s92, s92, 3')
            k.e('s_lshl_b32 s92, s92, 7')
            k.e('s_mov_b32 s93, 2752')
            k.e('v_lshrrev_b32 v4, 2, v1')
            k.e('v_add_u32 v4, s90, v4')
            k.e('v_mul_lo_u32 v4, v4, s93')
            k.e('v_and_b32 v5, 3, v1')
            k.e('v_lshl_add_u32 v4, v5, 7, v4')
            k.vm('buffer_load_dword v198, v4, s[20:23], s92 offen', 'pf')
            k.e('v_and_b32 v4, 15, v1')
            k.e('v_add_u32 v4, s90, v4')
            k.e('v_mul_lo_u32 v4, v4, s93')
            k.vm('buffer_load_dword v198, v4, s[20:23], s92 offen offset:512', 'pf')
        k.e('s_waitcnt lgkmcnt(0)')
    for kk in range(4):
        mfma(NST - 1, kk)
    k.vm(FHL, 'fh')
    k.e('v_lshlrev_b32 v247, 3, v3')
    k.e('v_add_u32 v247, %d, v247' % XOFF)
    k.e('s_lshl_b32 s84, s3, 8')
    k.e('v_add_u32 v7, s84, v247')
    hooks['setup2']()
    k.stamp(12)
    for j in range(1, 4):
        for q in range(4):
            r = 4 * q + j
            cfma(k, ACR + r, ACI + r, LR, LI, ACR + r - 1, ACI + r - 1, ACR + r, ACI + r)
    for q in range(4):
        k.e('v_mov_b32 %s, %s' % (v(EV + q), v(ACR + 4 * q + 3)))
        k.e('v_mov_b32 %s, %s' % (v(OD + q), v(ACR + 4 * q + 3)))
        k.e('v_mov_b32 %s, %s' % (v(EV + 4 + q), v(ACI + 4 * q + 3)))
        k.e('v_mov_b32 %s, %s' % (v(OD + 4 + q), v(ACI + 4 * q + 3)))
    k.nop(2)
    for q in range(8):
        k.e('v_permlane32_swap_b32 %s, %s' % (v(EV + q), v(OD + q)))
    k.nop(2)
    pr, pi_ = EV, EV + 4
    for i in range(1, 8):
        er = (EV if i % 2 == 0 else OD) + i // 2
        dr, di = (126, 127) if i == 7 else (CR + i, CI + i)
        cfma(k, dr, di, L4R, L4I, pr, pi_, er, er + 4)
        pr, pi_ = dr, di
    k.e('ds_write_b64 v7, v[126:127]')
    k.e('s_waitcnt lgkmcnt(0)')
    k.e('s_barrier')
    for w in range(4):
        k.e('ds_read_b64 %s, v247 offset:%d' % (v(EW + 2 * w, 2), 256 * w))
    k.e('v_mov_b32 v4, %d' % (XOFF + 1024))
    k.e('ds_read_b32 v250, v4')
    k.e('s_waitcnt lgkmcnt(0)')
    cfma(k, 118, 119, L32R, L32I, EW, EW + 1, EW + 2, EW + 3)
    cfma(k, 120, 121, L32R, L32I, 118, 119, EW + 4, EW + 5)
    cfma(k, 122, 123, L32R, L32I, 120, 121, EW + 6, EW + 7)
    k.vm('buffer_store_dwordx2 v[122:123], v248, s[16:19], s%d offen sc1' % SE, 'est')
    for g in hooks['A'][8]:
        for grp in hooks['Apart'](g): emit_items(k, grp)
    k.stamp(13)
    k.tl(1)
    k.wait_vm('fh')
    k.label('P1_FHCHK')
    k.e('v_cmp_ne_u32 vcc, v250, %s' % v(FH))
    k.e('s_cbranch_vccz P1_FHOK')
    poll_tail(k, 'P1_FHCHK', 'P1_FHOK', [FHL])
    k.e('s_barrier')
    k.stamp(14)
    k.tl(2)

def e_loads(k, sfx):
    L = []
    for c in range(15):
        L.append('s_cmp_le_u32 s97, %d' % c)
        L.append('s_cbranch_scc1 EL%s_%d' % (sfx, k.nlab))
        L.append('s_mov_b32 s84, %d' % (WS_E + c * 4096))
        L.append('buffer_load_dwordx2 %s, v248, s[16:19], s84 offen sc1' % v(EB + 2 * c, 2))
    L.append('EL%s_%d:' % (sfx, k.nlab))
    k.nlab += 1
    return L

def t_eload(k, sfx):
    k.e('s_cmp_lg_u32 s3, 0')
    k.e('s_cbranch_scc1 ELX' + sfx)
    for l in e_loads(k, sfx): k.e(l)
    k.label('ELX' + sfx)
    k.mark('e')

def t_scale(k, r0, r1):
    for r in range(r0, r1):
        k.e('v_mul_f32 v124, %s, %s' % (v(CFI), v(ACR + r)))
        k.e('v_mul_f32 %s, %s, %s' % (v(ACR + r), v(CFR), v(ACR + r)))
        k.e('v_fma_f32 %s, -%s, %s, %s' % (v(ACR + r), v(CFI), v(ACI + r), v(ACR + r)))
        k.e('v_fma_f32 %s, -%s, %s, -v124' % (v(ACI + r), v(CFR), v(ACI + r)))

def t_echeck(k, sfx):
    U = UCR
    k.e('s_cmp_lg_u32 s3, 0')
    k.e('s_cbranch_scc1 ECX' + sfx)
    q = list(k.vmq)
    k.wait_vm('e')
    k.vmq = q
    k.label('ECHK' + sfx)
    k.e('s_mov_b64 s[84:85], 0')
    for c in range(15):
        k.e('s_cmp_le_u32 s97, %d' % c)
        k.e('s_cbranch_scc1 EC2' + sfx)
        k.e('v_cmp_eq_u32 vcc, -1, %s' % v(EB + 2 * c))
        k.e('s_or_b64 s[84:85], s[84:85], vcc')
        k.e('v_cmp_eq_u32 vcc, -1, %s' % v(EB + 2 * c + 1))
        k.e('s_or_b64 s[84:85], s[84:85], vcc')
    k.label('EC2' + sfx)
    k.e('s_cmp_eq_u64 s[84:85], 0')
    k.e('s_cbranch_scc1 EOK' + sfx)
    poll_tail(k, 'ECHK' + sfx, 'EOK' + sfx, e_loads(k, sfx))
    k.e('v_mov_b32 %s, 0' % v(U)); k.e('v_mov_b32 %s, 0' % v(U + 1))
    for c in range(15):
        k.e('s_cmp_le_u32 s97, %d' % c)
        k.e('s_cbranch_scc1 CL' + sfx)
        k.e('v_pk_fma_f32 %s, %s, %s, %s op_sel_hi:[0,1,1]' % (v(EB + 2 * c, 2), v(L128, 2), v(U, 2), v(EB + 2 * c, 2)))
        k.e('v_pk_fma_f32 %s, %s, %s, %s op_sel:[1,1,0] op_sel_hi:[1,0,1] neg_lo:[1,0,0]' % (v(U, 2), v(L128, 2), v(U, 2), v(EB + 2 * c, 2)))
    k.label('CL' + sfx)
    k.e('ds_write_b64 v247, %s' % v(U, 2))
    k.label('ECX' + sfx)
    k.tl(3)

OWR, OWI = 106, 110
def t_uread(k):
    k.e('ds_read_b64 %s, v247' % v(UCR, 2))

def t_carry(k, part):
    U = UCR
    if part == 1: return t_carry1(k)
    cfma(k, 118, 119, L32R, L32I, U, U + 1, EW, EW + 1)
    cfma(k, 120, 121, L32R, L32I, 118, 119, EW + 2, EW + 3)
    cfma(k, 122, 123, L32R, L32I, 120, 121, EW + 4, EW + 5)
    k.e('v_mov_b32 %s, %s' % (v(CR), v(U))); k.e('v_mov_b32 %s, %s' % (v(CI), v(U + 1)))
    for w, (a_, b_) in ((1, (118, 119)), (2, (120, 121)), (3, (122, 123))):
        k.e('s_cmp_eq_u32 s3, %d' % w)
        k.e('s_cselect_b64 vcc, -1, 0')
        k.e('v_cndmask_b32 %s, %s, %s, vcc' % (v(CR), v(CR), v(a_)))
        k.e('v_cndmask_b32 %s, %s, %s, vcc' % (v(CI), v(CI), v(b_)))
    for i in range(0, 3):
        er = (EV if i % 2 == 0 else OD) + i // 2
        cfma(k, CR + i + 1, CI + i + 1, L4R, L4I, CR + i, CI + i, er, er + 4)

def t_carry1(k):
    for i in range(3, 7):
        er = (EV if i % 2 == 0 else OD) + i // 2
        cfma(k, CR + i + 1, CI + i + 1, L4R, L4I, CR + i, CI + i, er, er + 4)
    k.e('v_cmp_lt_u32 vcc, 31, v1')
    k.nop(1)
    for q in range(4):
        k.e('v_cndmask_b32 %s, %s, %s, vcc' % (v(114 + q), v(CR + 2 * q), v(CR + 2 * q + 1)))
        k.e('v_cndmask_b32 %s, %s, %s, vcc' % (v(118 + q), v(CI + 2 * q), v(CI + 2 * q + 1)))
    for q in range(4):
        cmul(k, OWR + q, OWI + q, CFR, CFI, 114 + q, 118 + q)

def t_hb(k, q):
    LP = [(LR, LI), (L2R, L2I), (L3R, L3I), (L4R, L4I)]
    for j in range(4):
        r = 4 * q + j
        lr, li_ = LP[j]
        k.e('v_fma_f32 %s, %s, %s, %s' % (v(ACR + r), v(lr), v(OWR + q), v(ACR + r)))
        k.e('v_fma_f32 %s, -%s, %s, %s' % (v(ACI + r), v(lr), v(OWI + q), v(ACI + r)))
        k.e('v_fma_f32 %s, -%s, %s, %s' % (v(ACR + r), v(li_), v(OWI + q), v(ACR + r)))
        k.e('v_fma_f32 %s, -%s, %s, %s' % (v(ACI + r), v(li_), v(OWR + q), v(ACI + r)))
        k.e('v_cvt_pk_bf16_f32 %s, %s, %s' % (v(ACR + r), v(ACR + r), v(ACI + r)))
        k.e('ds_write_b16 v232, %s offset:%d' % (v(ACR + r), (8 * q + j) * 128))
        k.e('ds_write_b16_d16_hi v249, %s offset:%d' % (v(ACR + r), (8 * q + j) * 128))

def t_tread(k):
    for n in range(4):
        k.e('ds_read_b128 %s, v233 offset:%d' % (v(72 + 4 * n, 4), 1024 * n))

def t_tstore(k):
    for n in range(4):
        k.e('s_add_u32 s84, s98, %d' % (n * 16384))
        k.vm('buffer_store_dwordx4 %s, v242, s[16:19], s84 offen sc1' % v(72 + 4 * n, 4), 'hb')
    k.tl(4)
def fc1_setup(k):
    k.e('s_and_b32 s72, s2, 7')
    k.e('s_lshr_b32 s73, s2, 3')
    k.e('s_mov_b32 s101, s73')
    k.e('s_mul_i32 s74, s72, 22')
    k.e('s_add_u32 s74, s74, s73')
    k.e('s_and_b32 s75, s74, 7')
    k.e('s_lshr_b32 s74, s74, 3')
    k.e('s_lshl_b32 s100, s75, 7')
    k.e('s_lshl_b32 s76, s74, 2')
    k.e('s_add_u32 s100, s100, s76')
    k.e('s_add_u32 s100, s100, %d' % WS_FU)
    k.e('s_lshl_b32 s75, s75, 6')
    k.e('s_lshl_b32 s74, s74, 6')
    k.e('s_lshr_b32 s76, s3, 1')
    k.e('s_and_b32 s77, s3, 1')
    k.e('v_lshrrev_b32 v2, 5, v1')
    k.e('v_lshlrev_b32 v2, 3, v2')
    k.e('s_lshl_b32 s78, s76, 5')
    k.e('s_add_u32 s78, s78, s74')
    k.e('s_lshl_b32 s79, s78, 1')
    k.e('v_add_u32 v2, s79, v2')
    I3, I4, I7 = 4, 5, 6
    k.e('v_lshrrev_b32 v4, 3, v1'); k.e('v_lshrrev_b32 v5, 4, v1'); k.e('v_and_b32 v6, 7, v1')
    VA, VB = 8, 10
    k.e('s_lshl_b32 s80, s3, 4')
    k.e('s_mov_b32 s81, 2752')
    k.e('s_lshl_b32 s82, s74, 1')
    dma_voff(k, VA, 80, 81, 82, True, I3, I4, I7, 7)
    k.e('s_mov_b32 s81, 1024')
    k.e('s_lshl_b32 s82, s75, 1')
    k.e('s_add_u32 s82, s82, %d' % WS_H)
    dma_voff(k, VB, 80, 81, 82, True, I3, I4, I7, 7)
    k.e('s_lshl_b32 s83, s3, 11')
    srd(k, 4, B_W1, 2048 * 2752)
    k.e('s_cmp_lt_u32 s73, 22')
    k.e('s_cselect_b32 s6, s6, 0')

def fc1_setup2(k):
    PA, PB = 12, 14
    k.e('s_lshl_b32 s86, s76, 2')
    k.e('s_lshl_b32 s87, s77, 2')
    pat_tr(k, PA, 86, 0, 1, 16, 17, 18)
    pat_tr(k, PB, 87, 8192, 1, 16, 17, 18)
    if KS:
        for i in range(4):
            k.e('v_add_u32 v%d, s83, v%d' % (12 + i, 12 + i))
            k.e('v_xor_b32 v%d, 64, v%d' % (32 + i, 12 + i))
    k.e('v_and_b32 v4, 31, v1')
    k.e('s_lshl_b32 s89, s77, 5')
    k.e('s_add_u32 s89, s89, s75')
    k.e('v_add_u32 v4, s89, v4')
    k.e('s_mov_b32 s90, %d' % UP)
    k.e('v_mul_lo_u32 v4, v4, s90')
    k.e('v_add_u32 v199, v4, v2')
    if UT:
        k.e('v_lshrrev_b32 v4, 2, v1')
        k.e('v_add_u32 v4, s89, v4')
        k.e('v_mul_lo_u32 v4, v4, s90')
        k.e('v_and_b32 v5, 3, v1')
        k.e('v_lshl_add_u32 v4, v5, 4, v4')
        k.e('v_add_u32 v199, s79, v4')
    srd(k, 8, B_B1, 2752)
    k.e('s_mov_b32 s93, s78')

def fc1_setup_pf(k):
    k.e('s_mov_b32 s93, 2752')
    k.e('s_cmp_lt_u32 s3, 2')
    k.e('s_cselect_b32 s93, 1024, s93')
    k.e('s_lshl_b32 s92, s93, 9')
    k.e('s_mul_i32 s91, s72, 22')
    k.e('s_lshr_b32 s91, s91, 3')
    k.e('s_lshl_b32 s91, s91, 7')
    k.e('s_cmp_lt_u32 s3, 2')
    k.e('s_cselect_b32 s91, %d, s91' % WS_H)
    k.e('s_cmp_lt_u32 s3, 2')
    k.e('s_cselect_b32 s90, 8, 5')
    k.e('s_and_b32 s89, s3, 1')
    k.e('s_lshl_b32 s89, s89, 3')
    k.e('s_lshl_b32 s88, s73, 4')
    k.e('s_add_u32 s89, s89, s88')
    k.e('v_lshrrev_b32 v4, 3, v1')
    k.e('v_add_u32 v4, s89, v4')
    k.e('v_mul_lo_u32 v4, v4, s93')
    k.e('v_and_b32 v5, 7, v1')
    k.e('v_lshl_add_u32 v230, v5, 7, v4')
    k.e('v_mov_b32 v4, 0x7f000000')
    k.e('v_cmp_gt_u32 vcc, s90, v5')
    k.e('v_cndmask_b32 v230, v4, v230, vcc')
    k.e('s_cmp_lt_u32 s3, 2')
    k.e('s_cselect_b32 s12, s%d, s%d' % (P(WS), P(B_W1)))
    k.e('s_cselect_b32 s13, s%d, s%d' % (P(WS) + 1, P(B_W1) + 1))
    k.e('s_and_b32 s13, s13, 0xffff')
    k.e('s_mov_b32 s14, 0x%x' % (2048 * 2752))
    k.e('s_mov_b32 s15, 0x00020000')
    k.e('s_mov_b32 s93, s78')

def pf_slot():
    if not PF: return []
    return [('v', 'buffer_load_dword v231, v230, s[12:15], s91 offen', 'pf'), ('e', 's_add_u32 s91, s91, s92')]

HBL = 'buffer_load_dword v227, v226, s[16:19], s97 offen sc1'
FUL = 'buffer_load_dword v229, v228, s[16:19], s98 offen sc1'
P3_VC, P3_VH, P3_VU, P3_VW = 200, 202, 204, 206
P3_PA, P3_PB, P3_PT = 180, 188, 196
P3_OUTA = 198

def p3_setup(k, part):
    I3, I4, I7 = 4, 5, 6
    if part == 0:
        k.e('s_and_b32 s72, s2, 7')
        k.e('s_lshr_b32 s73, s2, 3')
        k.e('s_lshr_b32 s74, s73, 3')
        k.e('s_lshl_b32 s72, s72, 2')
        k.e('s_add_u32 s72, s72, s74')
        k.e('s_and_b32 s73, s73, 7')
        k.e('s_lshr_b32 s86, s72, 1')
        k.e('s_lshl_b32 s86, s86, 7')
        k.e('s_add_u32 s97, s86, %d' % WS_FB)
        k.e('v_and_b32 v4, 15, v1')
        k.e('v_lshlrev_b32 v226, 2, v4')
        k.e('v_min_u32 v4, 21, v1')
        k.e('v_lshlrev_b32 v228, 2, v4')
        k.e('s_and_b32 s98, s72, 7')
        k.e('s_lshl_b32 s98, s98, 3')
        k.e('s_add_u32 s98, s98, s73')
        k.e('s_lshl_b32 s98, s98, 7')
        k.e('s_add_u32 s98, s98, %d' % WS_FU)
        k.e('s_lshl_b32 s74, s72, 6')
        k.e('s_lshl_b32 s75, s73, 6')
        k.e('s_lshr_b32 s76, s3, 1')
        k.e('s_and_b32 s77, s3, 1')
        k.e('v_and_b32 v3, 31, v1')
        k.e('s_lshl_b32 s78, s77, 5')
        k.e('s_add_u32 s78, s78, s74')
        k.e('v_add_u32 v3, s78, v3')
        k.e('v_lshrrev_b32 v176, 3, v3')
        k.e('v_lshlrev_b32 v176, 7, v176')
        k.e('v_and_b32 v4, 7, v3')
        k.e('v_lshl_add_u32 v176, v4, 2, v176')
        k.e('v_lshlrev_b32 v177, 1, v3')
        k.e('s_lshl_b32 s79, s76, 5')
        k.e('s_add_u32 s79, s79, s75')
        k.e('v_lshrrev_b32 v4, 5, v1')
        k.e('v_lshlrev_b32 v4, 2, v4')
        k.e('v_add_u32 v4, s79, v4')
        k.e('v_lshlrev_b32 v178, 1, v4')
        k.e('v_lshl_add_u32 v179, v3, 10, v178')
        k.e('v_lshlrev_b32 v%d, 1, v179' % P3_OUTA)
        if XT:
            k.e('v_lshrrev_b32 v4, 2, v1')
            k.e('v_add_u32 v4, s78, v4')
            k.e('v_lshlrev_b32 v4, 10, v4')
            k.e('v_and_b32 v5, 3, v1')
            k.e('v_lshl_add_u32 v4, v5, 4, v4')
            k.e('s_lshl_b32 s80, s79, 1')
            k.e('v_add_u32 v179, s80, v4')
        k.e('v_lshrrev_b32 v4, 3, v1'); k.e('v_lshrrev_b32 v5, 4, v1'); k.e('v_and_b32 v6, 7, v1')
        if OT:
            k.e('v_add_u32 v7, s78, v4')
            k.e('v_lshlrev_b32 v7, 11, v7')
            k.e('v_lshl_add_u32 v7, v6, 4, v7')
            k.e('s_lshl_b32 s80, s79, 2')
            k.e('v_add_u32 v%d, s80, v7' % P3_OUTA)
        k.e('s_lshl_b32 s80, s3, 4')
        k.e('s_add_u32 s81, s80, s75')
        k.e('s_add_u32 s82, s80, s74')
    elif part == 1:
        k.e('s_mov_b32 s86, 1024'); k.e('s_mov_b32 s87, 0')
        dma_voff(k, P3_VC, 81, 86, 87, False, I3, I4, I7, 7)
        k.e('s_mov_b32 s86, 2048'); k.e('s_mov_b32 s87, %d' % WS_HB)
        dma_voff(k, P3_VH, 82, 86, 87, False, I3, I4, I7, 7, hb=True)
        if HPF:
            k.e('s_and_b32 s86, s73, 3')
            k.e('s_lshl_b32 s86, s86, 4')
            k.e('s_add_u32 s86, s86, s74')
            k.e('s_lshl_b32 s86, s86, 11')
            k.e('s_add_u32 s86, s86, s87')
            k.e('v_lshlrev_b32 v230, 7, v0')
            k.e('v_add_u32 v230, s86, v230')
    elif part == 2:
        k.e('s_mov_b32 s86, %d' % UP); k.e('s_mov_b32 s87, %d' % WS_U)
        dma_voff(k, P3_VU, 81, 86, 87, False, I3, I4, I7, 7)
        if UPF:
            k.e('s_lshr_b32 s87, s2, 6')
            k.e('s_lshl_b32 s87, s87, 4')
            k.e('s_add_u32 s87, s87, s75')
            k.e('v_lshrrev_b32 v136, 4, v0')
            k.e('v_add_u32 v136, s87, v136')
            k.e('v_mul_lo_u32 v136, v136, s86')
            k.e('v_and_b32 v7, 15, v0')
            k.e('v_lshl_add_u32 v136, v7, 7, v136')
            k.e('v_add_u32 v136, %d, v136' % (WS_U + 768))
        k.e('s_mov_b32 s86, 4096'); k.e('s_lshl_b32 s87, s74, 1')
        dma_voff(k, P3_VW, 80, 86, 87, True, I3, I4, I7, 7)
    elif part == 3:
        k.e('s_lshl_b32 s86, s76, 12')
        k.e('s_lshl_b32 s87, s77, 12')
        k.e('s_lshl_b32 s88, s77, 2')
        pat_direct(k, P3_PA, 86, 0, 1, 113, 114)
        pat_direct(k, P3_PB, 87, 8192, 1, 113, 114)
        pat_tr(k, P3_PT, 88, 8192, 1, 113, 114, 115)
    elif part == 4:
        srd(k, 20, A_CRE, 1 << 19); srd(k, 24, A_CIM, 1 << 19); srd(k, 28, B_W2, 1376 * 4096); srd(k, 32, OUT, 4 << 20)

def hb_check(k, sfx):
    k.label('HBCHK' + sfx)
    k.e('v_cmp_ne_u32 vcc, v250, v227')
    k.e('s_cbranch_vccz HBOK' + sfx)
    poll_tail(k, 'HBCHK' + sfx, 'HBOK' + sfx, [HBL])
    k.tl(7)

def g_stages(k):
    NS = 8
    VA, VB, PA, PB = 8, 10, 12, 14
    B1R = 128
    ACC = 16
    def b1_loads():
        return [('v', 'buffer_load_dwordx2 %s, v2, s[8:11], 0 offen offset:%d' % (v(B1R + 2 * q, 2), 16 * q), 'b1') for q in range(4)]
    def parts(g):
        slot = ((g + SLOT0) % NS) * 16384
        tg = 'st%d' % g
        if g < 32:
            srdA, srdB, va, vb = 4, 16, VA, VB
            oa, ob = g * 64 * 2752, g * 65536
        else:
            st = g - 32
            if st < 16:
                srdA = 20 if st % 2 == 0 else 24
                oa, ob = (st // 2) * 128, (st // 2) * 256 + (st % 2) * 64
                va, vb, srdB = P3_VC, P3_VH, 16
            else:
                srdA = 16
                oa, ob = (st - 16) * 128, (st - 16) * 262144
                va, vb, srdB = P3_VU, P3_VW, 28
        A = [[('e', 's_mov_b32 s84, %d' % oa), ('e', 's_add_u32 m0, s83, %d' % slot), ('e', 's_nop 0'),
              ('v', 'buffer_load_dwordx4 %s, s[%d:%d], s84 offen lds' % (v(va), srdA, srdA + 3), tg)],
             [('v', 'buffer_load_dwordx4 %s, s[%d:%d], s84 offen offset:1024 lds' % (v(va + 1), srdA, srdA + 3), tg)]]
        B = [[('e', 's_mov_b32 s85, %d' % ob), ('e', 's_add_u32 m0, s83, %d' % (slot + 8192)), ('e', 's_nop 0'),
              ('v', 'buffer_load_dwordx4 %s, s[%d:%d], s85 offen lds' % (v(vb), srdB, srdB + 3), tg)],
             [('v', 'buffer_load_dwordx4 %s, s[%d:%d], s85 offen offset:1024 lds' % (v(vb + 1), srdB, srdB + 3), tg)]]
        return A, B
    GU = 32 + UC
    def issue(g):
        A, B = parts(g)
        if g >= 48 and g - DIST < GU:
            return [[], [], B[0], B[1]]
        if 32 <= g < 48 and g - DIST < HBC:
            return [A[0], A[1], [], []]
        return A + B
    ACA, ACB = 160, 208
    GR, B2R, XR, DR = (224, 225, 112, 120) if EPS else (224, 225, 232, 240)
    stages = []
    for g in range(70):
        if g < 32:
            stages.append(dict(issue=issue, modeA='t', patA=PA, modeB='t', patB=PB, acc=ACC, first=(g == 0), ks=KS))
        elif g < 48:
            stages.append(dict(issue=issue, modeA='d', patA=P3_PA, modeB='d', patB=P3_PB, acc=ACA, first=(g == 32)))
        else:
            stages.append(dict(issue=issue, modeA='d', patA=P3_PA, modeB='t', patB=P3_PT, acc=ACB, first=(g == 48)))
    for S in stages: S['pre'] = []; S['extra'] = []; S['ilv'] = []
    def F(fn): return lambda: [('f', fn)]
    assert DIST == 6
    stages[0]['ilv'].append(F(lambda: t_scale(k, 0, 6)))
    stages[1]['ilv'].append(F(lambda: t_scale(k, 6, 11)))
    stages[2]['ilv'].append(F(lambda: t_scale(k, 11, 16)))
    stages[EC]['pre'].append(F(lambda: t_echeck(k, 'F')))
    stages[EC]['lgk0'] = 1
    EU = EC + UB
    stages[EU]['bar'] = 1
    stages[EU]['pre'].append(F(lambda: t_uread(k)))
    stages[EU]['ilv'].append(F(lambda: t_carry(k, 0)))
    stages[EU + 1]['ilv'].append(F(lambda: t_carry(k, 1)))
    for q in range(4):
        stages[EU + 2 + q // HBP]['ilv'].append(F(lambda q=q: t_hb(k, q)))
    GT = EU + 2 + 4 // HBP
    stages[GT]['pre'].append(F(lambda: t_tread(k)))
    stages[GT]['ilv'].append(F(lambda: t_tstore(k)))
    stages[GT + 1]['ilv'].append(b1_loads)
    HBF_ = HBF or GT + 7
    stages[HBF_ - 1]['extra'].append(lambda: [('w', 'hb')])
    stages[HBF_]['pre'].append(lambda: flag_store(k, 'F_HBFL', 's99', 1))
    stages[HBF_]['bar'] = 1
    for i in range(5):
        stages[GT + 2 + i]['ilv'].append(F(lambda i=i: p3_setup(k, i)))
    stages[HBLG]['extra'].append(lambda: [('v', HBL, 'fhb')])
    def hbc():
        hb_check(k, 'F')
        for g in range(32, HBC + DIST):
            A, B = parts(g)
            emit_items(k, B[0] + B[1])
    if TLX: stages[HBC]['pre'].append(F(lambda: k.tl(1)))
    stages[HBC]['pre'].append(lambda: [('w', 'fhb'), ('f', hbc)])
    stages[32]['label'] = 'G32'
    B1F, T, UO = 64, 80, 96
    def f2u(x): return struct.unpack('<I', struct.pack('<f', x))[0]
    C2f = -2.0 * 1.4426950408889634 * 0.7978845608028654
    def b1_unpack():
        for j in range(8):
            k.e('v_lshlrev_b32 %s, 16, %s' % (v(B1F + 2 * j), v(B1R + j)))
            k.e('v_and_b32 %s, 0xffff0000, %s' % (v(B1F + 2 * j + 1), v(B1R + j)))
        k.e('v_mov_b32 v104, 0x%x' % f2u(0.044715 * C2f))
        k.e('v_mov_b32 v105, 0x%x' % f2u(C2f))
        k.e('v_mov_b32 v106, 1.0')
    stages[29]['ilv'].append(F(b1_unpack))
    def ep():
        lab = 'F_EP'
        if not E31:
            k.e('s_cmp_ge_u32 s101, 22')
            k.e('s_cbranch_scc1 %s' % lab)
        k.tl(5)
        if KS:
            if E31:
                k.stamp(142)
                red_write()
                k.stamp(143)
                k.e('s_barrier')
                k.stamp(144)
                red_read()
            else: k.e('s_waitcnt lgkmcnt(8)')
            for i_, P_ in enumerate(RP):
                if E31: k.e('s_waitcnt lgkmcnt(%d)' % (8 - 4 * i_))
                for r in range(0, 16, 2):
                    k.e('v_pk_add_f32 %s, %s, %s' % (v(ACC + r, 2), v(ACC + r, 2), v(P_ + r, 2)))
        else: k.nop(16)
        for r in range(0, 16, 2):
            rbf2(k, ACC + r, ACC + r + 1, T + r)
        for r in range(0, 16, 2):
            k.e('v_pk_add_f32 %s, %s, %s' % (v(ACC + r, 2), v(ACC + r, 2), v(B1F + r, 2)))
        for r in range(0, 16, 2):
            rbf2(k, ACC + r, ACC + r + 1, T + r)
        for r in range(0, 16, 2):
            k.e('v_pk_mul_f32 %s, %s, %s' % (v(T + r, 2), v(ACC + r, 2), v(ACC + r, 2)))
        for r in range(0, 16, 2):
            k.e('v_pk_fma_f32 %s, %s, v[104:105], v[104:105] op_sel:[0,0,1] op_sel_hi:[1,0,1]' % (v(T + r, 2), v(T + r, 2)))
        for r in range(0, 16, 2):
            k.e('v_pk_mul_f32 %s, %s, %s' % (v(T + r, 2), v(T + r, 2), v(ACC + r, 2)))
            k.e('v_exp_f32 %s, %s' % (v(T + r), v(T + r)))
            k.e('v_exp_f32 %s, %s' % (v(T + r + 1), v(T + r + 1)))
        for r in range(0, 16, 2):
            k.e('v_pk_add_f32 %s, %s, v[106:107] op_sel_hi:[1,0]' % (v(T + r, 2), v(T + r, 2)))
            k.e('v_rcp_f32 %s, %s' % (v(T + r), v(T + r)))
            k.e('v_rcp_f32 %s, %s' % (v(T + r + 1), v(T + r + 1)))
        k.e('s_mov_b32 s90, %d' % WS_U)
        for r in range(0, 16, 2):
            k.e('v_pk_mul_f32 %s, %s, %s' % (v(ACC + r, 2), v(ACC + r, 2), v(T + r, 2)))
        for r in range(0, 16, 2):
            k.e('v_cvt_pk_bf16_f32 %s, %s, %s' % (v(UO + r // 2), v(ACC + r), v(ACC + r + 1)))
        k.e('s_cmp_lt_u32 s93, 1376')
        k.e('s_cbranch_scc1 F_ST')
        for j in range(8):
            k.e('v_mov_b32 %s, 0' % v(UO + j))
        k.label('F_ST')
        if UT:
            for q in range(4): k.e('ds_write_b64 v157, %s offset:%d' % (v(UO + 2 * q, 2), 16 * q))
            k.e('s_mov_b32 s91, %d' % (WS_U + 16 * UP))
            k.e('s_waitcnt lgkmcnt(0)')
            k.e('ds_read_b128 %s, v158' % v(T, 4))
            k.e('ds_read_b128 %s, v158 offset:1280' % v(T + 4, 4))
            k.e('s_waitcnt lgkmcnt(1)')
            st_ = (lambda l: k.vm(l, 'ust')) if E31 else k.e
            st_('buffer_store_dwordx4 %s, v199, s[16:19], s90 offen sc1' % v(T, 4))
            k.e('s_waitcnt lgkmcnt(0)')
            st_('buffer_store_dwordx4 %s, v199, s[16:19], s91 offen sc1' % v(T + 4, 4))
        for q in range(0 if UT else 4):
            l = 'buffer_store_dwordx2 %s, v199, s[16:19], s90 offen offset:%d sc1' % (v(UO + 2 * q, 2), 16 * q)
            if E31: k.vm(l, 'ust')
            else: k.e(l)
        k.tl(6)
        k.stamp(145)
        k.label(lab)
        k.mark('ust')
    RP = (136, 112, 80)
    S30, S31 = ((30 + SLOT0) % NS) * 16384, ((31 + SLOT0) % NS) * 16384
    QO = (0, 1024, 8192, 9216)
    def red_addr():
        k.e('v_lshlrev_b32 v152, 4, v1')
        k.e('s_lshl_b32 s86, s3, 12')
        k.e('s_add_u32 s86, s86, 131072')
        k.e('v_add_u32 v153, s86, v152')
        k.e('v_add_u32 v152, s83, v152')
        k.e('v_xor_b32 v154, 2048, v152')
        k.e('v_xor_b32 v155, 4096, v152')
        k.e('v_xor_b32 v156, 12288, v153')
        if UT:
            k.e('s_xor_b32 s86, s86, 12288')
            k.e('v_and_b32 v157, 31, v1')
            k.e('v_mul_u32_u24 v157, 80, v157')
            k.e('v_lshrrev_b32 v158, 5, v1')
            k.e('v_lshl_add_u32 v157, v158, 3, v157')
            k.e('v_add_u32 v157, s86, v157')
            k.e('v_lshrrev_b32 v158, 2, v1')
            k.e('v_mul_u32_u24 v158, 80, v158')
            k.e('v_and_b32 v159, 3, v1')
            k.e('v_lshl_add_u32 v158, v159, 4, v158')
            k.e('v_add_u32 v158, s86, v158')
        if WPF:
            k.e('s_lshl_b32 s86, s101, 8')
            k.e('v_add_u32 v231, s86, v0')
            k.e('v_lshrrev_b32 v159, 2, v231')
            k.e('v_lshlrev_b32 v159, 12, v159')
            k.e('v_and_b32 v231, 3, v231')
            k.e('v_lshl_add_u32 v159, v231, 7, v159')
            k.e('s_and_b32 s86, s2, 7')
            k.e('s_lshl_b32 s86, s86, 9')
            k.e('v_add_u32 v159, s86, v159')
    HPL = 'buffer_load_dword v231, v230, s[16:19], 0 offen'
    def early_ilv(kk):
        if kk == 0 and HPF: k.vm(HPL, 'hpf')
        if kk == 0 and WPF: k.vm('buffer_load_dword v231, v159, s[28:31], 0 offen', 'hpf')
        if kk == 2 and WI:
            k.nop(4)
            for q in range(4): k.e('ds_write_b128 v152, %s offset:%d' % (a(64 + 4 * q, 4), S30 + QO[q]))
    if KS and E31: stages[32]['early_ilv'] = early_ilv
    def red_write():
        if not WI:
            k.nop(16)
            for q in range(4): k.e('ds_write_b128 v152, %s offset:%d' % (a(64 + 4 * q, 4), S30 + QO[q]))
        for q in range(4): k.e('ds_write_b128 v152, %s offset:%d' % (a(80 + 4 * q, 4), S31 + QO[q]))
        for q in range(4): k.e('ds_write_b128 v153, %s offset:%d' % (a(96 + 4 * q, 4), 1024 * q))
        k.e('s_waitcnt lgkmcnt(0)')
    def red_read():
        if not E31:
            k.e('s_cmp_ge_u32 s101, 22')
            k.e('s_cbranch_scc1 F_RR')
        for q in range(4): k.e('ds_read_b128 %s, v154 offset:%d' % (v(RP[0] + 4 * q, 4), S30 + QO[q]))
        for q in range(4): k.e('ds_read_b128 %s, v155 offset:%d' % (v(RP[1] + 4 * q, 4), S31 + QO[q]))
        for q in range(4): k.e('ds_read_b128 %s, v156 offset:%d' % (v(RP[2] + 4 * q, 4), 1024 * q))
        k.label('F_RR')
    if KS:
        assert not UPF
    else:
        assert not UT
    if KS:
        stages[30]['ilv'].append(F(red_addr))
        if not E31:
            stages[32]['early'] = red_write
            stages[32]['pre'].append(F(red_read))
            stages[32]['noissue'] = 1
    if E31: stages[32]['early'] = ep
    else: stages[32]['extra'].append(F(ep))
    def ust_wait():
        k.e('s_cmp_ge_u32 s101, 22')
        k.e('s_cbranch_scc1 F_UW')
        q = list(k.vmq)
        k.wait_vm('ust')
        k.vmq = q
        k.label('F_UW')
    if RW: stages[32 + UW - 1]['extra'].append(F(ust_wait))
    else: stages[32 + UW - 1]['extra'].append(lambda: [('w', 'ust')])
    stages[32 + UW]['pre'].append(lambda: flag_store(k, 'P3_UFL', 's100', 8, cond=[('e', 's_cmp_ge_u32 s101, 22')]))
    def late_srds():
        srd(k, 4, A_X, 2 << 20); srd(k, 8, A_DSK, 1024); srd(k, 12, B_B2, 4096)
    stages[GU - 2]['extra'].append(lambda: [('e', 's_cmp_lg_u32 s3, 0'), ('e', 's_cbranch_scc1 P3_NOFU'), ('e', FUL), ('e', 'P3_NOFU:'), ('m', 'fu')] + ([] if EPS else [('f', late_srds)]))
    def uchk():
        k.e('s_cmp_lg_u32 s3, 0')
        k.e('s_cbranch_scc1 P3_UOK')
        q = list(k.vmq)
        k.wait_vm('fu')
        k.vmq = q
        if not PPL:
            k.label('P3_UCHK')
            k.e('v_cmp_ne_u32 vcc, v250, v229')
            k.e('s_cbranch_vccz P3_UOK')
            poll_tail(k, 'P3_UCHK', 'P3_UOK', [FUL])
        else:
            PR = [229, 230, 231, 138][:PPL]
            k.e('v_cmp_ne_u32 vcc, v250, v229')
            k.e('s_cbranch_vccz P3_UOK')
            for i, r in enumerate(PR):
                if i: k.e('s_sleep %d' % PSL)
                k.e(FUL.replace('v229', 'v%d' % r))
            k.label('P3_UCHK')
            for r in PR:
                k.e('s_waitcnt vmcnt(%d)' % (PPL - 1))
                k.e('v_cmp_ne_u32 vcc, v250, v%d' % r)
                k.e('s_cbranch_vccz P3_UOK')
                k.e(FUL.replace('v229', 'v%d' % r))
            k.e('s_sub_u32 s96, s96, 1')
            k.e('s_cmp_gt_i32 s96, 0')
            k.e('s_cbranch_scc1 P3_UCHK')
            k.label('P3_UOK')
        k.e('s_barrier')
        k.tl(8)
        for g in range(48, GU + DIST):
            A, B = parts(g)
            emit_items(k, A[0] + A[1])
        if UPF: k.vm('buffer_load_dword v137, v136, s[16:19], 0 offen', 'upf')
    stages[GU]['pre'].append(F(uchk))
    def ep_loads():
        L = [('e', 's_mov_b32 s79, %d' % WS_G), ('v', 'buffer_load_dword %s, v176, s[16:19], s79 offen' % v(GR), 'ep'),
             ('v', 'buffer_load_ushort %s, v177, s[12:15], 0 offen' % v(B2R), 'ep')]
        for q in range(4):
            L.append(('v', 'buffer_load_dwordx2 %s, v178, s[8:11], 0 offen offset:%d' % (v(DR + 2 * q, 2), 16 * q), 'ep'))
        if XT:
            L += [('e', 's_lshl_b32 s86, s3, 12'), ('e', 's_add_u32 m0, s86, 131072'), ('e', 's_mov_b32 s86, 15360'),
                  ('v', 'buffer_load_dwordx4 v179, s[4:7], 0 offen lds', 'ep'),
                  ('v', 'buffer_load_dwordx4 v179, s[4:7], s86 offen offset:1024 lds', 'ep')]
        for q in range(0 if XT else 4):
            L.append(('v', 'buffer_load_dwordx2 %s, v179, s[4:7], 0 offen offset:%d' % (v(XR + 2 * q, 2), 16 * q), 'ep'))
        return L
    if not EPS:
        stages[GU - 1]['ilv'].append(ep_loads)
    else:
        stages[EPL]['extra'].append(lambda: [('f', late_srds)] + ep_loads())
        XF, DF, T2 = 64, 80, 100
        def xd():
            if XT:
                k.e('s_lshl_b32 s86, s3, 12')
                k.e('s_add_u32 s86, s86, 131072')
                k.e('v_and_b32 v100, 31, v1')
                k.e('v_lshrrev_b32 v101, 5, v1')
                k.e('v_lshlrev_b32 v101, 3, v101')
                k.e('v_lshl_add_u32 v100, v100, 6, v101')
                k.e('v_add_u32 v100, s86, v100')
            k.wait_vm('ep')
            if XT:
                for q in range(4): k.e('ds_read_b64 %s, v100 offset:%d' % (v(XR + 2 * q, 2), 16 * q))
            for i in range(8):
                k.e('v_lshlrev_b32 %s, 16, %s' % (v(DF + 2 * i), v(DR + i)))
                k.e('v_and_b32 %s, 0xffff0000, %s' % (v(DF + 2 * i + 1), v(DR + i)))
            if XT: k.e('s_waitcnt lgkmcnt(0)')
            for i in range(8):
                k.e('v_lshlrev_b32 %s, 16, %s' % (v(XF + 2 * i), v(XR + i)))
                k.e('v_and_b32 %s, 0xffff0000, %s' % (v(XF + 2 * i + 1), v(XR + i)))
            k.e('v_lshlrev_b32 v102, 16, %s' % v(B2R))
            k.e('v_sub_f32 v104, 1.0, %s' % v(GR))
            rbf(k, 104, T2)
            for r in range(0, 16, 2):
                k.e('v_pk_mul_f32 %s, %s, %s' % (v(XF + r, 2), v(XF + r, 2), v(DF + r, 2)))
            for r in range(0, 16, 2):
                rbf2(k, XF + r, XF + r + 1, T2)
        stages[GU - 1]['extra'].append(F(xd))
        def apart():
            for r in range(0, 16, 2):
                k.e('v_pk_add_f32 %s, %s, %s' % (v(ACA + r, 2), v(ACA + r, 2), v(XF + r, 2)))
            for r in range(0, 16, 2):
                k.e('v_pk_mul_f32 %s, %s, %s op_sel_hi:[1,0]' % (v(ACA + r, 2), v(ACA + r, 2), v(GR, 2)))
        stages[50]['extra'].append(F(apart))
        def oaddr():
            k.e('s_lshl_b32 s86, s3, 12')
            k.e('s_add_u32 s86, s86, 131072')
            k.e('v_lshrrev_b32 v140, 5, v1')
            k.e('v_and_b32 v141, 7, v1')
            k.e('v_xor_b32 v140, v140, v141')
            k.e('v_lshlrev_b32 v140, 4, v140')
            k.e('v_and_b32 v136, 31, v1')
            k.e('v_lshl_add_u32 v136, v136, 7, v140')
            k.e('v_add_u32 v136, s86, v136')
            for q in range(1, 4): k.e('v_xor_b32 v%d, %d, v136' % (136 + q, q << 5))
            k.e('v_lshrrev_b32 v140, 3, v1')
            k.e('v_xor_b32 v141, v140, v141')
            k.e('v_lshlrev_b32 v141, 4, v141')
            k.e('v_lshl_add_u32 v140, v140, 7, v141')
            k.e('v_add_u32 v140, s86, v140')
            for j in range(1, 4): k.e('s_mov_b32 s%d, %d' % (86 + j, 16384 * j))
        if OT: stages[51]['extra'].append(F(oaddr))
    return stages, issue, parts

def g_run(k, stages):
    FBUF = [(0, 16), (32, 48)]
    ACA, ACB = 160, 208
    GR, B2R, XR, DR = (224, 225, 112, 120) if EPS else (224, 225, 232, 240)
    gemm_loop(k, stages, 8, FBUF, sb=64)
    k.tl(9)
    k.nop(13)
    XF, DF, T = 64, 80, 100
    if EPS:
        for q in range(4):
            R2 = (ACB + 4 * q, ACB + 4 * q + 2)
            for r in R2: rbf2(k, r, r + 1, T)
            for r in R2: k.e('v_pk_add_f32 %s, %s, v[102:103] op_sel_hi:[1,0]' % (v(r, 2), v(r, 2)))
            for r in R2: rbf2(k, r, r + 1, T)
            for r in R2: k.e('v_pk_mul_f32 %s, %s, v[104:105] op_sel_hi:[1,0]' % (v(r, 2), v(r, 2)))
            for r in R2: rbf2(k, r, r + 1, T)
            for r in R2: k.e('v_pk_add_f32 %s, %s, %s' % (v(r, 2), v(r, 2), v(r - ACB + ACA, 2)))
            if OT: k.e('ds_write_b128 v%d, %s' % (136 + q, v(ACB + 4 * q, 4)))
            else: k.e('buffer_store_dwordx4 %s, v%d, s[32:35], 0 offen offset:%d' % (v(ACB + 4 * q, 4), P3_OUTA, 32 * q))
        if OT:
            k.e('s_waitcnt lgkmcnt(0)')
            for j in range(4): k.e('ds_read_b128 %s, v140 offset:%d' % (v(ACB + 4 * j, 4), 1024 * j))
            for j in range(4):
                k.e('s_waitcnt lgkmcnt(%d)' % (3 - j))
                k.e('buffer_store_dwordx4 %s, v%d, s[32:35], %s offen' % (v(ACB + 4 * j, 4), P3_OUTA, 's%d' % (86 + j) if j else '0'))
    else: old_ep(k)
    k.stamp(140)
    if DEBUG or TL:
        k.e('s_waitcnt vmcnt(0)')
    k.stamp(141)
    k.tl(10)
    k.tlc(12)
    k.flush_dbg()

def old_ep(k):
    ACA, ACB = 160, 208
    GR, B2R, XR, DR = 224, 225, 232, 240
    XF, DF, T = 64, 80, 100
    for i in range(8):
        k.e('v_lshlrev_b32 %s, 16, %s' % (v(XF + 2 * i), v(XR + i)))
        k.e('v_and_b32 %s, 0xffff0000, %s' % (v(XF + 2 * i + 1), v(XR + i)))
        k.e('v_lshlrev_b32 %s, 16, %s' % (v(DF + 2 * i), v(DR + i)))
        k.e('v_and_b32 %s, 0xffff0000, %s' % (v(DF + 2 * i + 1), v(DR + i)))
    k.e('v_lshlrev_b32 %s, 16, %s' % (v(B2R), v(B2R)))
    OMG = 101
    k.e('v_sub_f32 %s, 1.0, %s' % (v(OMG), v(GR)))
    rbf(k, OMG, T)
    for r in range(16):
        k.e('v_mul_f32 %s, %s, %s' % (v(XF + r), v(XF + r), v(DF + r)))
    for r in range(0, 16, 2):
        rbf2(k, XF + r, XF + r + 1, T)
        rbf2(k, ACB + r, ACB + r + 1, T)
    for r in range(16):
        k.e('v_add_f32 %s, %s, %s' % (v(ACA + r), v(ACA + r), v(XF + r)))
        k.e('v_add_f32 %s, %s, %s' % (v(ACB + r), v(ACB + r), v(B2R)))
    for r in range(0, 16, 2):
        rbf2(k, ACB + r, ACB + r + 1, T)
    for r in range(16):
        k.e('v_mul_f32 %s, %s, %s' % (v(ACB + r), v(ACB + r), v(OMG)))
        k.e('v_mul_f32 %s, %s, %s' % (v(ACA + r), v(ACA + r), v(GR)))
    for r in range(0, 16, 2):
        rbf2(k, ACB + r, ACB + r + 1, T)
    for r in range(16):
        k.e('v_add_f32 %s, %s, %s' % (v(ACA + r), v(ACA + r), v(ACB + r)))
    for q in range(4):
        k.e('buffer_store_dwordx4 %s, v%d, s[32:35], 0 offen offset:%d' % (v(ACA + 4 * q, 4), P3_OUTA, 32 * q))

def r_role(k, issue, parts):
    if RPF:
        srd(k, 12, WS, 2 << 20)
        k.e('s_sub_u32 s74, s73, 22')
        if not RC:
            k.e('s_lshl_b32 s74, s74, 8')
            k.e('v_add_u32 v4, s74, v0')
            k.e('v_lshlrev_b32 v5, 7, v4')
            for i in range(7):
                k.e('s_mov_b32 s84, %d' % (i * 327680))
                k.e('buffer_load_dword v231, v5, s[12:15], s84 offen')
        else:
            k.e('s_cmp_eq_u32 s3, 0')
            k.e('s_cbranch_scc1 R_NOPF')
            k.e('s_mul_i32 s74, s74, 192')
            k.e('s_sub_u32 s74, s74, 64')
            k.e('v_add_u32 v4, s74, v0')
            k.e('v_lshlrev_b32 v5, 7, v4')
            for i in range(9):
                k.e('s_mov_b32 s84, %d' % (i * 1920 * 128))
                k.e('buffer_load_dword v231, v5, s[12:15], s84 offen')
            k.label('R_NOPF')
    t_eload(k, 'R')
    t_scale(k, 0, 16)
    t_echeck(k, 'R')
    k.e('s_waitcnt lgkmcnt(0)')
    k.e('s_barrier')
    t_uread(k)
    k.e('s_waitcnt lgkmcnt(0)')
    t_carry(k, 0); t_carry(k, 1)
    for q in range(4): t_hb(k, q)
    k.e('s_waitcnt lgkmcnt(0)')
    t_tread(k)
    k.e('s_waitcnt lgkmcnt(0)')
    t_tstore(k)
    if not RB:
        k.e('s_waitcnt vmcnt(0)')
        k.e('s_barrier')
        emit_items(k, flag_store(k, 'R_HBFL', 's99', 1))
    if PFX:
        srd(k, 20, A_CRE, 1 << 19); srd(k, 24, A_CIM, 1 << 19); srd(k, 28, B_W2, 1376 * 4096)
        k.e('s_sub_u32 s74, s73, 22')
        k.e('s_lshl_b32 s74, s74, 8')
        k.e('v_add_u32 v4, s74, v0')
        k.e('v_lshlrev_b32 v5, 7, v4')
        k.e('buffer_load_dword v231, v5, s[20:23], 0 offen')
        k.e('buffer_load_dword v231, v5, s[24:27], 0 offen')
        k.e('v_add_u32 v6, 327680, v5')
        k.e('buffer_load_dword v231, v6, s[20:23], 0 offen')
        k.e('buffer_load_dword v231, v6, s[24:27], 0 offen')
    if PFX and not WPF:
        k.e('v_lshrrev_b32 v5, 2, v4')
        k.e('v_lshlrev_b32 v5, 12, v5')
        k.e('v_and_b32 v6, 3, v4')
        k.e('v_lshl_add_u32 v5, v6, 7, v5')
        k.e('s_lshl_b32 s75, s72, 9')
        k.e('v_add_u32 v5, s75, v5')
        k.e('v_add_u32 v6, 2621440, v5')
        k.e('v_add_u32 v7, 5242880, v5')
        if RW:
            for i in range(3): k.e('v_mov_b32 v%d, v%d' % (152 + i, 5 + i))
        else:
            k.e('buffer_load_dword v231, v5, s[28:31], 0 offen')
            k.e('buffer_load_dword v231, v6, s[28:31], 0 offen')
            k.e('buffer_load_dword v231, v7, s[28:31], 0 offen')
    if RB:
        k.e('s_waitcnt vmcnt(%d)' % (7 if PFX else 0))
        k.e('s_barrier')
        emit_items(k, flag_store(k, 'R_HBFL', 's99', 1))
    k.tl(5)
    for i in range(5): p3_setup(k, i)
    k.e(HBL)
    k.e('s_waitcnt vmcnt(0)')
    k.tl(6)
    hb_check(k, 'R')
    for g in range(32, 32 + DIST):
        if g == HBC + DIST:
            for g2 in range(32, g):
                A, B = parts(g2)
                emit_items(k, B[0] + B[1])
        for grp in issue(g): emit_items(k, grp)
    if RW:
        assert E31 and UT and HPF and not WPF and PFX
        if RW == 2: k.e('buffer_load_dword v231, v230, s[16:19], 0 offen')
        for i in range(3): k.e('buffer_load_dword v231, v%d, s[28:31], 0 offen' % (152 + i))
    elif E31:
        if HPF: k.e('buffer_load_dword v231, v230, s[16:19], 0 offen')
        for q in range((2 if UT else 4) + WPF): k.e('buffer_load_dword v231, v226, s[16:19], s97 offen')
    k.e('s_branch G32')
def gen_fused():
    k = Kern('gated_mix__ssm_conv_s5__mixer_token_mlp__prompt_kernel')
    stages, issue, parts = g_stages(k)
    def setup2():
        fc1_setup2(k)
        if PF: fc1_setup_pf(k)
    hooks = dict(setup=lambda: fc1_setup(k), setup2=setup2, Apart=lambda g: parts(g)[0],
                 A={3: [0, 1], 4: [2], 5: [3, 4], 7: [5, 6], 8: [7]})
    gen_p1(k, hooks)
    k.e('s_cmp_lt_u32 s73, 22')
    k.e('s_cbranch_scc1 F_ROLE')
    q = list(k.vmq)
    r_role(k, issue, parts)
    k.vmq = q
    k.label('F_ROLE')
    for g in range(8):
        B = parts(g)[1]
        emit_items(k, B[0] + B[1])
        if g == EC - 1: t_eload(k, 'F')
        if g in PRO: emit_items(k, pf_slot())
    k.stamp(15)
    g_run(k, stages)
    k.label('K_END')
    k.e('s_endpgm')
    return finish(k, 368 if KS else 320, 102)

def main():
    hdr = open('gated_mix__ssm_conv_s5__mixer_token_mlp__prompt.s.ref').read().split('\n')
    top = []
    for l in hdr:
        if l.startswith(';') and '@launch' not in l:
            top.append(l)
        elif not l.startswith(';'):
            break
    top.append('; @launch grid=(256,1,1) block=(256,1,1) lds=148736')
    top.append('.amdgcn_target "amdgcn-amd-amdhsa--gfx950"')
    top.append('.text')
    ks = [gen_fused()]
    body = []
    for b, d in ks:
        body += b
    body.append('.section .rodata,"a"')
    for b, d in ks:
        body += d
    out = '\n'.join(top + body) + '\n'
    path = sys.argv[1]
    open(path, 'w').write(out)
    print('wrote', path, len(out), 'bytes')

if __name__ == '__main__':
    main()
```

```python
import sys, os, struct
DEBUG = int(os.environ.get('DEBUG', '0'))
DBGWG = int(os.environ.get('DBGWG', '0'))
TL = int(os.environ.get('TL', '0'))
PF = int(os.environ.get('PF', '0'))
PFX = int(os.environ.get('PFX', '1'))
PRO = eval(os.environ.get('PRO', '(1,7)'))
PF2 = eval(os.environ.get('PF2', '(1,9)'))

WS_H  = 0
WS_G  = 2 << 20
WS_E  = 12 << 20
WS_FA = 13 << 20
WS_FB = WS_FA + 16384
WS_FU = WS_FA + 32768
WS_HB = 16 << 20
WS_U  = 20 << 20
WS_SZ = 24 << 20
if DEBUG or TL: WS_SZ = 64 << 20
UP = 2816
LOG2E = 0x3fb8aa3b
INV2PI = 0x3e22f983
UC = int(os.environ.get('UC', '12'))
UW = int(os.environ.get('UW', '2'))
FHST = int(os.environ.get('FHST', '3'))
EC = int(os.environ.get('EC', '6'))
HBP = int(os.environ.get('HBP', '2'))
HBF = int(os.environ.get('HBF', '0'))
HBLG = int(os.environ.get('HBLG', '26'))
HBC = int(os.environ.get('HBC', '30'))
RPF = int(os.environ.get('RPF', '1'))
PFXST = int(os.environ.get('PFXST', '5'))
E31 = int(os.environ.get('E31', '1'))
EPS = int(os.environ.get('EPS', '1'))
PPL = int(os.environ.get('PPL', '0'))
PSL = int(os.environ.get('PSL', '4'))
UPF = int(os.environ.get('UPF', '0'))
EPL = int(os.environ.get('EPL', '37'))
RB = int(os.environ.get('RB', '0'))
RC = int(os.environ.get('RC', '1'))
TLX = int(os.environ.get('TLX', '0'))
KS = int(os.environ.get('KS', '1'))
UB = int(os.environ.get('UB', '1'))
UT = int(os.environ.get('UT', '1'))
OT = int(os.environ.get('OT', '1'))
XT = int(os.environ.get('XT', '1'))
D7 = int(os.environ.get('D7', '1'))
M48 = int(os.environ.get('M48', '1'))
HPF = int(os.environ.get('HPF', '1'))
WI = int(os.environ.get('WI', '1'))
WPF = int(os.environ.get('WPF', '0'))
CPF = int(os.environ.get('CPF', '0'))
RW = int(os.environ.get('RW', '0'))
LNST = int(os.environ.get('LNST', '0'))
PF0 = int(os.environ.get('PF0', '0'))
OPOL = os.environ.get('OPOL', ' sc0 sc1')
K2 = int(os.environ.get('K2', '0'))
PARE = int(os.environ.get('PARE', '0'))
PFY = int(os.environ.get('PFY', '0'))
TMO = 1 << 13

class Kern:
    def __init__(self, name):
        self.name = name
        self.L = []
        self.vmq = []
        self.nlab = 0
    def e(self, s):
        self.L.append('    ' + s)
    def c(self, s):
        self.L.append('    ; ' + s)
    def label(self, l):
        self.L.append(l + ':')
    def vm(self, s, tag):
        self.e(s); self.vmq.append((tag, 1))
    def mark(self, tag):
        self.vmq.append((tag, 0))
    def wait_vm(self, tag):
        idxs = [i for i, t in enumerate(self.vmq) if t[0] == tag]
        if not idxs:
            return
        idx = idxs[-1]
        n = sum(t[1] for t in self.vmq[idx + 1:])
        self.e('s_waitcnt vmcnt(%d)' % min(n, 63))
        self.vmq = self.vmq[idx + 1:]
    def wait_vm_all(self):
        self.e('s_waitcnt vmcnt(0)'); self.vmq = []
    def stamp(self, i):
        if not DEBUG: return
        self.e('s_memtime s[94:95]')
        self.e('s_waitcnt lgkmcnt(0)')
        self.e('v_writelane_b32 v%d, s94, %d' % (255 - i // 64, i % 64))
    def tl(self, i):
        if not TL: return
        self.e('s_memrealtime s[94:95]')
        self.e('s_waitcnt lgkmcnt(0)')
        self.e('v_writelane_b32 v252, s94, %d' % i)
    def tlc(self, i):
        if not TL: return
        self.e('s_memtime s[94:95]')
        self.e('s_waitcnt lgkmcnt(0)')
        self.e('v_writelane_b32 v252, s94, %d' % i)
    def flush_dbg(self):
        if not (DEBUG or TL): return
        self.nlab += 1
        lab = '%s_DBG%d' % (self.name, self.nlab)
        self.e('s_cmp_lg_u32 s3, 0')
        self.e('s_cbranch_scc1 %s' % lab)
        self.e('v_and_b32 v251, 63, v0')
        self.e('v_lshlrev_b32 v251, 2, v251')
        if TL:
            self.e('s_lshl_b32 s94, s2, 8')
            self.e('s_add_u32 s94, s94, %d' % (32 << 20))
            self.e('buffer_store_dword v252, v251, s[16:19], s94 offen')
        if DEBUG:
            self.e('s_cmp_lg_u32 s2, %d' % DBGWG)
            self.e('s_cbranch_scc1 %s' % lab)
            self.e('s_mov_b32 s94, %d' % (33 << 20))
            self.e('buffer_store_dword v255, v251, s[16:19], s94 offen')
            self.e('buffer_store_dword v254, v251, s[16:19], s94 offen offset:256')
            self.e('buffer_store_dword v253, v251, s[16:19], s94 offen offset:512')
        self.label(lab)
    def nop(self, n):
        while n > 0:
            k = min(n, 16)
            self.e('s_nop %d' % (k - 1)); n -= k
def v(i, n=1):
    return 'v%d' % i if n == 1 else 'v[%d:%d]' % (i, i + n - 1)
def a(i, n=1):
    return 'a%d' % i if n == 1 else 'a[%d:%d]' % (i, i + n - 1)
def s(i, n=1):
    return 's%d' % i if n == 1 else 's[%d:%d]' % (i, i + n - 1)

def P(k): return 36 + 2 * k
A_X, A_LRE, A_LIM, A_BRE, A_BIM, A_CRE, A_CIM, A_LDT, A_DSK, B_X, B_W1, B_B1, B_W2, B_B2, GATE, OUT, DBG, WS = range(18)

def load_kernargs(k):
    k.e('s_load_dwordx16 s[36:51], s[0:1], 0')
    k.e('s_load_dwordx16 s[52:67], s[0:1], 64')
    k.e('s_load_dwordx4 s[68:71], s[0:1], 128')

def srd(k, dst, ptr, nbytes):
    k.e('s_mov_b32 s%d, s%d' % (dst, P(ptr)))
    k.e('s_and_b32 s%d, s%d, 0xffff' % (dst + 1, P(ptr) + 1))
    k.e('s_mov_b32 s%d, 0x%x' % (dst + 2, nbytes))
    k.e('s_mov_b32 s%d, 0x00020000' % (dst + 3))

def cfma(k, dr, di, ar, ai, br, bi, cr, ci):
    k.e('v_fma_f32 %s, %s, %s, %s' % (v(dr), v(ar), v(br), v(cr)))
    k.e('v_fma_f32 %s, %s, %s, %s' % (v(di), v(ar), v(bi), v(ci)))
    k.e('v_fma_f32 %s, -%s, %s, %s' % (v(dr), v(ai), v(bi), v(dr)))
    k.e('v_fma_f32 %s, %s, %s, %s' % (v(di), v(ai), v(br), v(di)))

def cmul(k, dr, di, ar, ai, br, bi):
    k.e('v_mul_f32 %s, %s, %s' % (v(dr), v(ar), v(br)))
    k.e('v_mul_f32 %s, %s, %s' % (v(di), v(ar), v(bi)))
    k.e('v_fma_f32 %s, -%s, %s, %s' % (v(dr), v(ai), v(bi), v(dr)))
    k.e('v_fma_f32 %s, %s, %s, %s' % (v(di), v(ai), v(br), v(di)))

def rbf(k, a, t):
    k.e('v_cvt_pk_bf16_f32 %s, %s, %s' % (v(t), v(a), v(a)))
    k.e('v_lshlrev_b32 %s, 16, %s' % (v(a), v(t)))

def rbf2(k, a, b, t):
    k.e('v_cvt_pk_bf16_f32 %s, %s, %s' % (v(t), v(a), v(b)))
    k.e('v_lshlrev_b32 %s, 16, %s' % (v(a), v(t)))
    k.e('v_and_b32 %s, 0xffff0000, %s' % (v(b), v(t)))

def lam_params(k, lre, lim, ldt, Lr, Li, t0, t1):
    k.e('v_lshlrev_b32 %s, 16, %s' % (v(lre), v(lre)))
    k.e('v_lshlrev_b32 %s, 16, %s' % (v(lim), v(lim)))
    k.e('v_lshlrev_b32 %s, 16, %s' % (v(ldt), v(ldt)))
    k.e('v_mul_f32 %s, 0x%x, %s' % (v(t0), LOG2E, v(ldt)))
    k.e('v_exp_f32 %s, %s' % (v(t0), v(t0)))
    k.nop(1)
    rbf(k, t0, t1)
    k.e('v_mul_f32 %s, %s, %s' % (v(t1), v(t0), v(lre)))
    k.e('v_mul_f32 %s, %s, %s' % (v(t0), v(t0), v(lim)))
    k.e('v_mul_f32 %s, 0x%x, %s' % (v(t1), LOG2E, v(t1)))
    k.e('v_mul_f32 %s, 0x%x, %s' % (v(t0), INV2PI, v(t0)))
    k.e('v_exp_f32 %s, %s' % (v(t1), v(t1)))
    k.e('v_fract_f32 %s, %s' % (v(t0), v(t0)))
    k.e('v_cos_f32 %s, %s' % (v(Lr), v(t0)))
    k.e('v_sin_f32 %s, %s' % (v(Li), v(t0)))
    k.nop(1)
    k.e('v_mul_f32 %s, %s, %s' % (v(Lr), v(Lr), v(t1)))
    k.e('v_mul_f32 %s, %s, %s' % (v(Li), v(Li), v(t1)))

def finish(k, nvgpr, nsgpr=96):
    out = []
    out.append('.globl %s' % k.name)
    out.append('.p2align 8')
    out.append('.type %s,@function' % k.name)
    out.append('%s:' % k.name)
    out += k.L
    desc = []
    desc.append('.p2align 6')
    desc.append('.amdhsa_kernel %s' % k.name)
    desc.append('  .amdhsa_next_free_vgpr %d' % nvgpr)
    desc.append('  .amdhsa_next_free_sgpr %d' % nsgpr)
    desc.append('  .amdhsa_accum_offset 256')
    desc.append('  .amdhsa_group_segment_fixed_size 0')
    desc.append('  .amdhsa_kernarg_size 144')
    desc.append('  .amdhsa_user_sgpr_count 2')
    desc.append('  .amdhsa_user_sgpr_kernarg_segment_ptr 1')
    desc.append('  .amdhsa_system_sgpr_workgroup_id_x 1')
    desc.append('.end_amdhsa_kernel')
    return out, desc

def dma_voff(k, dst, rowbase_s, pitch_s, colbase_s, tr, I3, I4, I7, tmp, hb=False):
    for j in range(2):
        if tr:
            k.e('v_and_b32 %s, 1, %s' % (v(tmp), v(I4)))
            k.e('v_lshlrev_b32 %s, 2, %s' % (v(tmp), v(tmp)))
        else:
            k.e('v_add_u32 %s, %d, %s' % (v(tmp), 4 * j, v(I4)))
            k.e('v_and_b32 %s, 7, %s' % (v(tmp), v(tmp)))
        k.e('v_xor_b32 %s, %s, %s' % (v(tmp), v(tmp), v(I7)))
        if hb:
            k.e('v_and_b32 %s, 4, %s' % (v(dst + j), v(tmp)))
            k.e('v_add_u32 %s, %s, %s' % (v(tmp), v(tmp), v(dst + j)))
        k.e('v_lshlrev_b32 %s, 4, %s' % (v(tmp), v(tmp)))
        k.e('v_add_u32 %s, s%d, %s' % (v(dst + j), rowbase_s, v(I3)))
        if j:
            k.e('v_add_u32 %s, 8, %s' % (v(dst + j), v(dst + j)))
        k.e('v_mul_lo_u32 %s, %s, s%d' % (v(dst + j), v(dst + j), pitch_s))
        k.e('v_add_u32 %s, %s, %s' % (v(dst + j), v(dst + j), v(tmp)))
        k.e('v_add_u32 %s, s%d, %s' % (v(dst + j), colbase_s, v(dst + j)))
        if j:
            k.e('v_subrev_u32 %s, 1024, %s' % (v(dst + j), v(dst + j)))

def pat_direct(k, dst, sub_s, base, LANE, t0, t1):
    k.e('v_and_b32 %s, 31, %s' % (v(t0), v(LANE)))
    k.e('v_lshrrev_b32 %s, 1, %s' % (v(t1), v(t0)))
    k.e('v_and_b32 %s, 7, %s' % (v(t1), v(t1)))
    k.e('v_lshrrev_b32 %s, 5, %s' % (v(dst), v(LANE)))
    k.e('v_xor_b32 %s, %s, %s' % (v(t1), v(t1), v(dst)))
    k.e('v_lshlrev_b32 %s, 4, %s' % (v(t1), v(t1)))
    k.e('v_lshl_add_u32 %s, %s, 7, %s' % (v(t1), v(t0), v(t1)))
    k.e('v_add_u32 %s, s%d, %s' % (v(t1), sub_s, v(t1)))
    if base:
        k.e('v_add_u32 %s, %d, %s' % (v(t1), base, v(t1)))
    for kk in range(4):
        k.e('v_xor_b32 %s, %d, %s' % (v(dst + kk), kk << 5, v(t1)))
        k.e('v_add_u32 %s, 65536, %s' % (v(dst + 4 + kk), v(dst + kk)))

def pat_tr(k, dst, subchunk_s, base, LANE, t0, t1, t2):
    k.e('v_and_b32 %s, 15, %s' % (v(t0), v(LANE)))
    k.e('v_lshrrev_b32 %s, 4, %s' % (v(t1), v(LANE)))
    k.e('v_and_b32 %s, 1, %s' % (v(t1), v(t1)))
    k.e('v_lshlrev_b32 %s, 1, %s' % (v(t1), v(t1)))
    k.e('v_bfe_u32 %s, %s, 1, 1' % (v(t2), v(t0)))
    k.e('v_add_u32 %s, %s, %s' % (v(t1), v(t1), v(t2)))
    k.e('v_add_u32 %s, s%d, %s' % (v(t1), subchunk_s, v(t1)))
    k.e('v_bfe_u32 %s, %s, 3, 1' % (v(t2), v(t0)))
    k.e('v_lshlrev_b32 %s, 2, %s' % (v(t2), v(t2)))
    k.e('v_xor_b32 %s, %s, %s' % (v(t1), v(t1), v(t2)))
    k.e('v_lshlrev_b32 %s, 4, %s' % (v(t1), v(t1)))
    k.e('v_and_b32 %s, 1, %s' % (v(t2), v(t0)))
    k.e('v_lshl_add_u32 %s, %s, 3, %s' % (v(t1), v(t2), v(t1)))
    k.e('v_lshrrev_b32 %s, 2, %s' % (v(t2), v(t0)))
    k.e('v_lshrrev_b32 %s, 5, %s' % (v(t0), v(LANE)))
    k.e('v_lshl_add_u32 %s, %s, 3, %s' % (v(t2), v(t0), v(t2)))
    k.e('v_lshl_add_u32 %s, %s, 7, %s' % (v(dst), v(t2), v(t1)))
    if base:
        k.e('v_add_u32 %s, %d, %s' % (v(dst), base, v(dst)))
    k.e('v_add_u32 %s, 65536, %s' % (v(dst + 1), v(dst)))

def read_frag(k, dstreg, mode, pat, slot, kk):
    sset = slot // 4; off = (slot % 4) * 16384
    if mode == 'd':
        k.e('ds_read_b128 %s, %s offset:%d' % (a(dstreg, 4), v(pat + 4 * sset + kk), off))
        return 1
    else:
        k.e('ds_read_b64_tr_b16 %s, %s offset:%d' % (a(dstreg, 2), v(pat + sset), off + kk * 2048))
        k.e('ds_read_b64_tr_b16 %s, %s offset:%d' % (a(dstreg + 2, 2), v(pat + sset), off + kk * 2048 + 512))
        return 2


def emit_items(k, items):
    for it in items:
        if it[0] == 'e': k.e(it[1])
        elif it[0] == 'w': k.wait_vm(it[1])
        elif it[0] == 'm': k.mark(it[1])
        elif it[0] == 'f': it[1]()
        else: k.vm(it[1], it[2])

def capture(k, fns):
    out = []
    sv = (k.e, k.vm, k.mark, k.wait_vm, k.label)
    k.e = lambda s_: out.append(('e', s_))
    k.vm = lambda s_, t: out.append(('v', s_, t))
    k.mark = lambda t: out.append(('m', t))
    k.wait_vm = lambda t: out.append(('w', t))
    k.label = lambda l: out.append(('e', l + ':'))
    for f in fns: emit_items(k, f())
    del k.e, k.vm, k.mark, k.wait_vm, k.label
    return out

def split_items(items, n):
    ok = [True] * (len(items) + 1)
    pend = set()
    hold = False
    for i, it in enumerate(items):
        if pend or hold: ok[i] = False
        hold = False
        if it[0] in 'ev':
            l = it[1]
            if l.endswith(':'): pend.discard(l[:-1])
            elif l.startswith('s_cbranch') or l.startswith('s_branch'): pend.add(l.split()[1])
            elif l.startswith('s_cmp') or l.startswith('s_nop') or l.split(',')[0].split()[-1] in ('s84', 's85', 'm0', 'exec', 's[84:85]'): hold = True
    res = []; start = 0
    for c in range(1, n):
        tgt = max(start, (len(items) * c + n - 1) // n)
        while tgt < len(items) and not ok[tgt]: tgt += 1
        res.append(items[start:tgt]); start = tgt
    res.append(items[start:])
    return res

SLOT0 = 3
ILV = int(os.environ.get('ILV', '0'))
DIST = int(os.environ.get('DIST', '6'))
HALF = int(os.environ.get('HALF', '0'))
def gemm_loop(k, stages, NS, FBUF, sb=0):
    n = len(stages)
    def mfma(st, kk):
        S = stages[st]
        FA, FB = FBUF[st & 1]
        if S.get('ks'):
            m, n = ((0, 1), (1, 0), (1, 1), (0, 0))[kk]
            d = v(S['acc'], 16) if kk == 3 else a(64 + 16 * kk, 16)
            k.e('v_mfma_f32_32x32x16_bf16 %s, %s, %s, %s' % (d, a(FA + 4 * m, 4), a(FA + 8 + 4 * n, 4), '0' if S['first'] else d))
            return
        if S.get('k2'):
            j, own = kk & 1, kk >> 1
            d = v(S['acc'], 16) if own else a(64, 16)
            k.e('v_mfma_f32_32x32x16_bf16 %s, %s, %s, %s' % (d, a(FA + (0 if own else 8) + 4 * j, 4), a(FB + 4 * j, 4), '0' if (S['first'] and j == 0) else d))
            return
        c = '0' if (S['first'] and kk == 0) else v(S['acc'], 16)
        k.e('v_mfma_f32_32x32x16_bf16 %s, %s, %s, %s' % (v(S['acc'], 16), a(FA + 4 * kk, 4), a(FB + 4 * kk, 4), c))
    for st in range(n):
        S = stages[st]
        if S.get('early'):
            k.e('s_waitcnt lgkmcnt(0)')
            for kk in range(4):
                mfma(st - 1, kk)
                if S.get('early_ilv'): S['early_ilv'](kk)
            S['early']()
        if S.get('label'): k.label(S['label'])
        k.wait_vm('st%d' % st)
        if not S.get('ks') or S.get('bar'): k.e('s_barrier')
        k.stamp(sb + st)
        for f in S.get('pre', []):
            emit_items(k, f())
        groups = [[], [], [], []]
        if st + DIST >= NS and st + DIST < n:
            groups = stages[st + DIST]['issue'](st + DIST)
            if S.get('noissue'): groups = [[], [], [], []]
            if st >= 1 and stages[st - 1].get('noissue'):
                g0 = stages[st - 1 + DIST]['issue'](st - 1 + DIST)
                groups = [g0[0] + g0[1], g0[2] + g0[3], groups[0] + groups[1], groups[2] + groups[3]]
        if D7 and S.get('ks') and st + DIST < 32:
            groups = [[], [], [], []]
            if 1 <= st < 25:
                g7 = stages[st + 7]['issue'](st + 7)
                groups = [[], g7[0], g7[1] + g7[2], g7[3]]
        slot = (st + SLOT0) % NS
        FA, FB = FBUF[st & 1]
        xs = split_items(capture(k, S.get('ilv', [])), 4)
        if not ILV: xs = [[], [], [], xs[0] + xs[1] + xs[2] + xs[3]]
        for kk in range(4):
            emit_items(k, groups[kk])
            nr = 0
            if S.get('ks'):
                nr += read_frag(k, FA + 4 * kk, 't', (12, 32, 14, 34)[kk], slot, 0)
            elif S.get('k2'):
                sset, off = slot // 4, (slot % 4) * 16384
                j, own = kk & 1, kk >> 1
                k.e('ds_read_b128 %s, v%d offset:%d' % (a(FA + (0 if own else 8) + 4 * j, 4), (144 if own else 148) + 2 * sset + j, off))
                nr += 1
                if not own: nr += read_frag(k, FB + 4 * j, 't', S['patB'], slot, j)
            elif not (HALF and kk >= 2):
                nr += read_frag(k, FA + 4 * kk, S['modeA'], S['patA'], slot, kk)
                nr += read_frag(k, FB + 4 * kk, S['modeB'], S['patB'], slot, kk)
            if st >= 1 and not S.get('early'):
                if DIST < 7 and kk == 0: k.e('s_waitcnt lgkmcnt(%d)' % nr)
                mfma(st - 1, kk)
            emit_items(k, xs[kk])
        for f in S.get('extra', []):
            emit_items(k, f())
        if DIST == 7 or st == n - 1 or S.get('lgk0'): k.e('s_waitcnt lgkmcnt(0)')
    for kk in range(4):
        mfma(n - 1, kk)
        if stages[n - 1].get('last_ilv'): stages[n - 1]['last_ilv'](kk)

def poll_tail(k, lab_chk, lab_ok, reload_lines):
    k.e('s_cmp_eq_u32 s96, 0')
    k.e('s_cbranch_scc1 %s' % lab_ok)
    k.e('s_sub_u32 s96, s96, 1')
    k.e('s_sleep 1')
    for l in reload_lines: k.e(l)
    k.e('s_waitcnt vmcnt(0)')
    k.e('s_branch %s' % lab_chk)
    k.label(lab_ok)

def flag_store(k, lab, soff, nl, cond=None):
    L = [('e', 's_cmp_lg_u32 s3, 0'), ('e', 's_cbranch_scc1 %s' % lab)]
    if cond: L += cond + [('e', 's_cbranch_scc1 %s' % lab)]
    L += [('e', 's_mov_b64 exec, %d' % ((1 << nl) - 1)),
          ('e', 'buffer_store_dword v250, v243, s[16:19], %s offen sc1' % soff),
          ('e', 's_mov_b64 exec, -1'), ('e', '%s:' % lab)]
    return L
SE, SDONE = 64, 65
LR, LI = 184, 185
L2R, L2I, L3R, L3I, L4R, L4I = 186, 187, 188, 189, 190, 191
L32R, L32I = 194, 195
CFR, CFI = 234, 235
L128 = 238
ACR, ACI = 40, 56
EV, OD = 72, 80
CR, CI = 88, 97
EW = 110
EB = 200
UCR = 240
XOFF = 6 * 24576
def gen_p1(k, hooks):
    NS = 6; STG = 24576; NST = 8
    TB = 131072
    k.e('s_cmp_ge_u32 s2, 256')
    k.e('s_cbranch_scc1 K_END')
    load_kernargs(k)
    k.e('s_memrealtime s[84:85]')
    k.tl(0)
    k.tlc(11)
    k.e('v_and_b32 v1, 63, v0')
    k.e('v_lshrrev_b32 v2, 6, v0')
    k.e('s_mov_b32 s96, %d' % TMO)
    k.e('v_readfirstlane_b32 s3, v2')
    k.e('s_and_b32 s72, s2, 7')
    k.e('s_lshr_b32 s73, s2, 3')
    if M48:
        k.e('s_lshr_b32 s74, s73, 3')
        k.e('s_and_b32 s73, s73, 7')
        k.e('s_and_b32 s75, s72, 1')
        k.e('s_lshl_b32 s75, s75, 3')
        k.e('s_add_u32 s73, s73, s75')
        k.e('s_lshr_b32 s72, s72, 1')
        k.e('s_lshl_b32 s72, s72, 2')
        k.e('s_add_u32 s72, s72, s74')
    else:
        k.e('s_lshr_b32 s74, s73, 4')
        k.e('s_lshl_b32 s72, s72, 1')
        k.e('s_add_u32 s72, s72, s74')
        k.e('s_and_b32 s73, s73, 15')
    k.e('s_lshl_b32 s74, s72, 7')
    k.e('s_lshl_b32 s75, s73, 5')
    XR0, XR1, GW = 168, 172, 176
    PLRE, PLIM, PLDT = 180, 181, 182
    k.e('s_lshl_b32 s76, s73, 3')
    k.e('s_add_u32 s76, s76, s74')
    k.e('s_lshl_b32 s77, s3, 1')
    k.e('s_add_u32 s76, s76, s77')
    k.e('s_lshl_b32 s77, s76, 10')
    k.e('v_lshlrev_b32 v2, 4, v1')
    k.e('v_and_b32 v3, 31, v1')
    k.e('v_add_u32 v14, s75, v3')
    k.e('v_lshlrev_b32 v248, 3, v14')
    k.e('v_lshlrev_b32 v14, 1, v14')
    VA = 8; VB = 12
    k.e('v_lshrrev_b32 v4, 3, v1')
    k.e('v_lshrrev_b32 v5, 4, v1')
    k.e('v_and_b32 v6, 7, v1')
    k.e('s_lshl_b32 s78, s3, 5')
    k.e('s_add_u32 s78, s78, s74')
    for j in range(4):
        k.e('v_add_u32 v7, %d, v5' % (4 * j))
        k.e('v_and_b32 v7, 7, v7')
        k.e('v_xor_b32 v7, v7, v6')
        k.e('v_lshlrev_b32 v7, 4, v7')
        k.e('v_add_u32 %s, s78, v4' % v(VA + j))
        k.e('v_add_u32 %s, %d, %s' % (v(VA + j), 7 * j, v(VA + j)))
        k.e('v_lshlrev_b32 %s, 10, %s' % (v(VA + j), v(VA + j)))
        k.e('v_add_u32 %s, %s, v7' % (v(VA + j), v(VA + j)))
    k.e('s_and_b32 s79, s3, 1')
    k.e('s_lshl_b32 s79, s79, 4')
    k.e('s_add_u32 s79, s79, s75')
    for j in range(2):
        k.e('v_add_u32 v7, %d, v5' % (4 * j))
        k.e('v_and_b32 v7, 7, v7')
        k.e('v_xor_b32 v7, v7, v6')
        k.e('v_lshlrev_b32 v7, 4, v7')
        k.e('v_add_u32 %s, s79, v4' % v(VB + j))
        k.e('v_add_u32 %s, %d, %s' % (v(VB + j), 7 * j, v(VB + j)))
        k.e('v_lshlrev_b32 %s, 10, %s' % (v(VB + j), v(VB + j)))
        k.e('v_add_u32 %s, %s, v7' % (v(VB + j), v(VB + j)))
    k.e('s_lshl_b32 s80, s3, 12')
    k.e('s_lshl_b32 s81, s3, 11')
    k.e('s_add_u32 s81, s81, 16384')
    k.e('v_lshlrev_b32 v242, 11, v4')
    k.e('v_lshl_add_u32 v242, v6, 4, v242')
    k.e('v_lshrrev_b32 v7, 5, v1')
    k.e('v_lshlrev_b32 v233, 2, v7')
    k.e('v_xor_b32 v233, v233, v6')
    k.e('v_lshlrev_b32 v233, 4, v233')
    k.e('v_lshl_add_u32 v233, v4, 7, v233')
    k.e('s_add_u32 s82, s80, %d' % TB)
    k.e('v_add_u32 v233, s82, v233')
    k.e('v_lshlrev_b32 v232, 6, v7')
    k.e('v_lshl_add_u32 v232, v3, 1, v232')
    k.e('v_lshl_add_u32 v232, v7, 9, v232')
    k.e('v_add_u32 v232, s82, v232')
    k.e('v_xor_b32 v249, 64, v232')
    k.e('v_lshlrev_b32 v243, 10, v1')
    k.e('v_lshlrev_b32 v246, 2, v1')
    k.e('s_mov_b32 s97, s72')
    k.e('s_lshl_b32 s98, s78, 11')
    k.e('s_lshl_b32 s99, s73, 7')
    k.e('s_add_u32 s98, s98, s99')
    k.e('s_add_u32 s98, s98, %d' % WS_HB)
    k.e('s_lshl_b32 s99, s72, 7')
    k.e('s_lshl_b32 s100, s73, 2')
    k.e('s_add_u32 s99, s99, s100')
    k.e('s_add_u32 s99, s99, %d' % WS_FB)
    k.e('s_lshl_b32 s89, s72, 6')
    k.e('s_add_u32 s89, s89, s100')
    k.e('s_add_u32 s89, s89, %d' % WS_FA)
    k.e('s_lshl_b32 s88, s73, 10')
    k.e('s_lshl_b32 s100, s3, 8')
    k.e('s_add_u32 s88, s88, s100')
    k.e('s_add_u32 s88, s88, %d' % WS_FA)
    PA = 16; PB = 28
    k.e('v_lshrrev_b32 v4, 5, v1')
    k.e('v_lshrrev_b32 v5, 1, v3')
    k.e('v_and_b32 v5, 7, v5')
    k.e('v_xor_b32 v5, v5, v4')
    k.e('v_lshlrev_b32 v5, 4, v5')
    k.e('v_lshl_add_u32 v5, v3, 7, v5')
    for kk in range(4):
        k.e('v_xor_b32 %s, %d, v5' % (v(PB + kk), kk << 5))
        k.e('v_add_u32 %s, s80, %s' % (v(PA + kk), v(PB + kk)))
        for st in (1, 2):
            k.e('v_add_u32 %s, %d, %s' % (v(PB + 4 * st + kk), 49152 * st, v(PB + kk)))
            k.e('v_add_u32 %s, %d, %s' % (v(PA + 4 * st + kk), 49152 * st, v(PA + kk)))
    if PF0:
        assert M48
        k.e('s_lshr_b32 s90, s2, 3')
        k.e('s_bfe_u32 s91, s2, 0x20001')
        k.e('s_lshl_b32 s91, s91, 5')
        k.e('s_add_u32 s91, s91, s90')
        k.e('s_lshl_b32 s91, s91, 1')
        k.e('s_lshr_b32 s92, s3, 1')
        k.e('s_add_u32 s91, s91, s92')
        k.e('s_and_b32 s92, s2, 1')
        k.e('s_lshl_b32 s92, s92, 5')
        k.e('s_add_u32 s92, s92, s90')
        k.e('s_bitcmp1_b32 s3, 0')
        k.e('s_cselect_b32 s91, s92, s91')
        k.e('s_lshl_b32 s91, s91, 13')
        k.e('v_lshlrev_b32 v197, 7, v1')
    k.e('s_waitcnt lgkmcnt(0)')
    k.stamp(60)
    k.e('s_mov_b32 s54, s89')
    k.e('s_mov_b32 s55, s88')
    srd(k, 4, A_X, 2 << 20)
    k.e('s_cmp_ge_u32 s3, 2')
    k.e('s_cselect_b32 s8, s%d, s%d' % (P(A_BIM), P(A_BRE)))
    k.e('s_cselect_b32 s9, s%d, s%d' % (P(A_BIM) + 1, P(A_BRE) + 1))
    k.e('s_and_b32 s9, s9, 0xffff')
    k.e('s_mov_b32 s10, 0x80000')
    k.e('s_mov_b32 s11, 0x00020000')
    srd(k, 32, GATE, 1024)
    srd(k, 16, WS, WS_SZ)
    srd(k, 12, DBG, 256)
    k.e('s_or_b32 s83, s2, s3')
    k.e('s_cmp_lg_u32 s83, 0')
    k.e('s_cbranch_scc1 P1_NOZ')
    k.e('s_or_b32 s84, s84, 1')
    k.e('v_mov_b32 v6, s84')
    k.e('s_mov_b64 exec, 1')
    k.e('buffer_store_dword v6, off, s[12:15], 0 sc1')
    k.e('s_mov_b64 exec, -1')
    k.label('P1_NOZ')
    def pf0():
        k.e('s_bitcmp1_b32 s3, 0')
        k.e('s_cbranch_scc1 P1_PFB')
        k.e('buffer_load_dword v198, v197, s[4:7], s91 offen')
        k.e('s_branch P1_PFE')
        k.label('P1_PFB')
        k.vm('buffer_load_dword v198, v197, s[8:11], s91 offen', 'pf0')
        k.label('P1_PFE')
    if PF0 == 2: pf0()
    k.vm('buffer_load_dwordx4 %s, v2, s[4:7], s77 offen' % v(XR0, 4), 'ln')
    k.vm('buffer_load_dwordx4 %s, v2, s[4:7], s77 offen offset:1024' % v(XR1, 4), 'ln')
    k.vm('buffer_load_dwordx4 %s, v2, s[32:35], 0 offen' % v(GW, 4), 'ln')
    def par_loads():
        srd(k, 20, A_LRE, 1024); srd(k, 24, A_LIM, 1024); srd(k, 28, A_LDT, 1024)
        k.vm('buffer_load_ushort %s, v14, s[20:23], 0 offen' % v(PLRE), 'par')
        k.vm('buffer_load_ushort %s, v14, s[24:27], 0 offen' % v(PLIM), 'par')
        k.vm('buffer_load_ushort %s, v14, s[28:31], 0 offen' % v(PLDT), 'par')
    if PARE: par_loads()
    def issue_groups(st):
        slot = (st % NS) * STG
        tg = 'b%d' % st
        g = [[('e', 's_mov_b32 s82, %d' % (st * 128)), ('e', 's_add_u32 m0, s80, %d' % slot), ('e', 's_nop 0')], [], [], []]
        for j in range(4):
            g[j // 2].append(('v', 'buffer_load_dwordx4 %s, s[4:7], s82 offen offset:%d lds' % (v(VA + j), 1024 * j), tg))
        g[2] += [('e', 's_add_u32 m0, s81, %d' % slot), ('e', 's_nop 0')]
        for j in range(2):
            g[2 + j].append(('v', 'buffer_load_dwordx4 %s, s[8:11], s82 offen offset:%d lds' % (v(VB + j), 1024 * j), tg))
        return g
    def issue_stage(st):
        for g in issue_groups(st): emit_items(k, g)
    if PF0 == 1: pf0()
    issue_stage(0)
    if PF0 == 3: pf0()
    issue_stage(1)
    issue_stage(2)
    def par1():
        k.wait_vm('par')
        lam_params(k, PLRE, PLIM, PLDT, LR, LI, 192, 193)
        cmul(k, L2R, L2I, LR, LI, LR, LI)
        cmul(k, L3R, L3I, L2R, L2I, LR, LI)
        cmul(k, L4R, L4I, L2R, L2I, L2R, L2I)
    def par2():
        cmul(k, L32R, L32I, L4R, L4I, L4R, L4I)
        cmul(k, 196, 197, L32R, L32I, L32R, L32I)
        cmul(k, L32R, L32I, 196, 197, 196, 197)
        cmul(k, 236, 237, L32R, L32I, L32R, L32I)
        cmul(k, L128, L128 + 1, 236, 237, 236, 237)
        k.e('v_add_f32 v192, -1.0, %s' % v(LR))
        k.e('v_mul_f32 v193, %s, %s' % (v(PLRE), v(PLRE)))
        k.e('v_fmac_f32 v193, %s, %s' % (v(PLIM), v(PLIM)))
        k.e('v_rcp_f32 v193, v193')
        k.e('v_mul_f32 %s, v192, %s' % (v(CFR), v(PLRE)))
        k.e('v_fmac_f32 %s, %s, %s' % (v(CFR), v(LI), v(PLIM)))
        k.e('v_mul_f32 %s, %s, %s' % (v(CFI), v(LI), v(PLRE)))
        k.e('v_fma_f32 %s, -v192, %s, %s' % (v(CFI), v(PLIM), v(CFI)))
        k.e('v_add_f32 v193, v193, v193')
        k.e('v_mul_f32 %s, %s, v193' % (v(CFR), v(CFR)))
        k.e('v_mul_f32 %s, %s, v193' % (v(CFI), v(CFI)))
    if LNST:
        for st_ in (3, 4, 5): issue_stage(st_)
    def ln_part():
        k.stamp(1)
        k.wait_vm('ln')
        k.stamp(2)
        X = [200, 210] if LNST else [100, 110]
        G = 120
        def unpack8(dst, src):
            for i in range(4):
                k.e('v_lshlrev_b32 %s, 16, %s' % (v(dst + 2 * i), v(src + i)))
                k.e('v_and_b32 %s, 0xffff0000, %s' % (v(dst + 2 * i + 1), v(src + i)))
        unpack8(X[0], XR0); unpack8(X[1], XR1); unpack8(G, GW)
        SUM = [130, 131]; GS = [132, 133]; TT = 134
        for r in range(2):
            k.e('v_add_f32 %s, %s, %s' % (v(SUM[r]), v(X[r]), v(X[r] + 1)))
            for i in range(2, 8):
                k.e('v_add_f32 %s, %s, %s' % (v(SUM[r]), v(SUM[r]), v(X[r] + i)))
            for i in range(8):
                k.e('v_mul_f32 %s, %s, %s' % (v(TT + i), v(X[r] + i), v(G + i)))
            for i in range(0, 8, 2):
                rbf2(k, TT + i, TT + i + 1, TT + 8)
            k.e('v_add_f32 %s, %s, %s' % (v(GS[r]), v(TT), v(TT + 1)))
            for i in range(2, 8):
                k.e('v_add_f32 %s, %s, %s' % (v(GS[r]), v(GS[r]), v(TT + i)))
        def wave_reduce(regs, sdst):
            for ctl in ('quad_perm:[1,0,3,2] row_mask:0xf bank_mask:0xf', 'quad_perm:[2,3,0,1] row_mask:0xf bank_mask:0xf',
                        'row_half_mirror row_mask:0xf bank_mask:0xf', 'row_mirror row_mask:0xf bank_mask:0xf',
                        'row_bcast:15 row_mask:0xa bank_mask:0xf', 'row_bcast:31 row_mask:0xc bank_mask:0xf'):
                k.nop(2)
                for r in regs:
                    k.e('v_add_f32_dpp %s, %s, %s %s' % (v(r), v(r), v(r), ctl))
            k.nop(1)
            for r, sd in zip(regs, sdst):
                k.e('v_readlane_b32 s%d, %s, 63' % (sd, v(r)))
            k.nop(2)
        wave_reduce([SUM[0], SUM[1], GS[0], GS[1]], [84, 85, 86, 87])
        if PARE == 1: par1()
        if not LNST: issue_stage(3)
        if PARE == 2: par1()
        MEAN = [140, 141]; SQ = [142, 143]
        for r in range(2):
            k.e('v_mov_b32 %s, 0x3b000000' % v(MEAN[r]))
            k.e('v_mul_f32 %s, s%d, %s' % (v(MEAN[r]), 84 + r, v(MEAN[r])))
            k.e('v_sub_f32 %s, %s, %s' % (v(TT), v(X[r]), v(MEAN[r])))
            k.e('v_mul_f32 %s, %s, %s' % (v(SQ[r]), v(TT), v(TT)))
            for i in range(1, 8):
                k.e('v_sub_f32 %s, %s, %s' % (v(TT), v(X[r] + i), v(MEAN[r])))
                k.e('v_fmac_f32 %s, %s, %s' % (v(SQ[r]), v(TT), v(TT)))
        wave_reduce(SQ, [88, 89])
        if PARE == 1: par2()
        if not LNST: issue_stage(4)
        if PARE == 2: par2()
        HO = [150, 154]
        for r in range(2):
            SD = 144; RC = 145; Q = 146; E_ = 147
            k.e('v_mov_b32 %s, 0x3b000000' % v(SD))
            k.e('v_mul_f32 %s, s%d, %s' % (v(SD), 88 + r, v(SD)))
            rbf(k, SD, TT)
            k.e('v_add_f32 %s, 0x3727c5ac, %s' % (v(SD), v(SD)))
            rbf(k, SD, TT)
            k.e('v_sqrt_f32 %s, %s' % (v(SD), v(SD)))
            k.nop(1)
            rbf(k, SD, TT)
            k.e('v_rcp_f32 %s, %s' % (v(RC), v(SD)))
            rbf(k, MEAN[r], TT)
            for i in range(8):
                k.e('v_sub_f32 %s, %s, %s' % (v(X[r] + i), v(X[r] + i), v(MEAN[r])))
            for i in range(0, 8, 2):
                rbf2(k, X[r] + i, X[r] + i + 1, TT)
            for i in range(8):
                k.e('v_mul_f32 %s, %s, %s' % (v(Q), v(X[r] + i), v(RC)))
                k.e('v_fma_f32 %s, -%s, %s, %s' % (v(E_), v(Q), v(SD), v(X[r] + i)))
                k.e('v_fma_f32 %s, %s, %s, %s' % (v(X[r] + i), v(E_), v(RC), v(Q)))
            for i in range(4):
                k.e('v_cvt_pk_bf16_f32 %s, %s, %s' % (v(HO[r] + i), v(X[r] + 2 * i), v(X[r] + 2 * i + 1)))
            k.e('v_mov_b32 %s, s%d' % (v(GS[r]), 86 + r))
            rbf(k, GS[r], TT)
            k.e('v_mul_f32 %s, 0x%x, %s' % (v(GS[r]), LOG2E | 0x80000000, v(GS[r])))
            k.e('v_exp_f32 %s, %s' % (v(GS[r]), v(GS[r])))
            k.nop(1)
            k.e('v_add_f32 %s, 1.0, %s' % (v(GS[r]), v(GS[r])))
            k.e('v_rcp_f32 %s, %s' % (v(GS[r]), v(GS[r])))
            k.nop(1)
            rbf(k, GS[r], TT)
            if r == 0 and not LNST:
                issue_stage(5)
        k.e('s_add_u32 s83, s77, %d' % WS_H)
        k.vm('buffer_store_dwordx4 %s, v2, s[16:19], s83 offen sc1' % v(HO[0], 4), 'lnst')
        k.vm('buffer_store_dwordx4 %s, v2, s[16:19], s83 offen offset:1024 sc1' % v(HO[1], 4), 'lnst')
        k.e('s_lshr_b32 s83, s76, 3')
        k.e('s_lshl_b32 s83, s83, 7')
        k.e('s_lshl_b32 s84, s3, 3')
        k.e('s_add_u32 s83, s83, s84')
        k.e('s_add_u32 s83, s83, %d' % WS_G)
        k.e('s_mov_b64 exec, 1')
        k.vm('buffer_store_dwordx2 %s, off, s[16:19], s83 sc1' % v(GS[0], 2), 'lnst')
        k.e('s_mov_b64 exec, -1')
        k.e('v_mov_b32 v4, -1'); k.e('v_mov_b32 v5, -1')
        k.e('s_lshl_b32 s95, s72, 12')
        k.e('s_add_u32 s95, s95, %d' % WS_E)
        k.e('s_mov_b32 s%d, s95' % SE)
        k.vm('buffer_store_dwordx2 v[4:5], v248, s[16:19], s95 offen sc1', 'lnst')
        k.e('s_mov_b32 s%d, s3' % SDONE)
        k.e('s_cmp_lg_u32 s3, 0')
        k.e('s_cbranch_scc1 P1_NOGL')
        k.e('buffer_load_dword v250, off, s[12:15], 0 sc1')
        k.label('P1_NOGL')
        k.mark('go')
        if not PARE: par_loads()
    if not LNST: ln_part()
    k.stamp(3)
    FB_ = [(72, 88, 104), (120, 136, 152)]
    FH = 244
    FHL = 'buffer_load_dword %s, v246, s[16:19], s55 offen sc1' % v(FH)
    GOL_ = 'buffer_load_dword v250, off, s[12:15], 0 sc1'
    def mfma(st, kk):
        FA, FBR, FBI = FB_[st & 1]
        c = '0' if (st == 0 and kk == 0) else v(ACR, 16)
        k.e('v_mfma_f32_32x32x16_bf16 %s, %s, %s, %s' % (v(ACR, 16), v(FA + 4 * kk, 4), v(FBR + 4 * kk, 4), c))
        c = '0' if (st == 0 and kk == 0) else v(ACI, 16)
        k.e('v_mfma_f32_32x32x16_bf16 %s, %s, %s, %s' % (v(ACI, 16), v(FA + 4 * kk, 4), v(FBI + 4 * kk, 4), c))
    for st in range(NST):
        if LNST and st == LNST: ln_part()
        if st == FHST: k.wait_vm('lnst')
        k.wait_vm('b%d' % st)
        k.e('s_barrier')
        k.stamp(4 + st)
        if st >= FHST:
            k.e('s_cmp_lg_u32 s%d, 0' % SDONE)
            k.e('s_cbranch_scc1 P1_NOFH%d' % st)
            q = list(k.vmq)
            k.wait_vm('go')
            k.vmq = q
            k.label('P1_GOCHK%d' % st)
            k.e('v_readfirstlane_b32 s84, v250')
            k.e('s_cmp_lg_u32 s84, 0')
            k.e('s_cbranch_scc1 P1_GOOK%d' % st)
            if st == NST - 1:
                poll_tail(k, 'P1_GOCHK%d' % st, 'P1_GOOK%d' % st, [GOL_])
            else:
                k.e(GOL_)
                k.e('s_branch P1_NOFH%d' % st)
                k.label('P1_GOOK%d' % st)
            k.e('s_mov_b64 exec, 0xffff')
            k.e('buffer_store_dword v250, v243, s[16:19], s54 offen sc1')
            k.e('v_mov_b32 v4, %d' % (XOFF + 1024))
            k.e('ds_write_b32 v4, v250')
            k.e('s_mov_b64 exec, -1')
            k.e('s_mov_b32 s%d, 1' % SDONE)
            k.label('P1_NOFH%d' % st)
            k.mark('go')
        if st == 3: hooks['setup']()
        groups = [[], [], [], []]
        if st >= 1 and st + NS - 1 < NST:
            groups = issue_groups(st + NS - 1)
        elif st in hooks['A']:
            groups = []
            for g in hooks['A'][st]: groups += hooks['Apart'](g)
            while len(groups) < 4: groups.append([])
        slot = st % NS
        sset = slot // 2
        off = (slot % 2) * STG
        FA, FBR, FBI = FB_[st & 1]
        for kk in range(4):
            emit_items(k, groups[kk])
            k.e('ds_read_b128 %s, %s offset:%d' % (v(FA + 4 * kk, 4), v(PA + 4 * sset + kk), off))
            k.e('ds_read_b128 %s, %s offset:%d' % (v(FBR + 4 * kk, 4), v(PB + 4 * sset + kk), off + 16384))
            k.e('ds_read_b128 %s, %s offset:%d' % (v(FBI + 4 * kk, 4), v(PB + 4 * sset + kk), off + 16384 + 4096))
            if st >= 1:
                mfma(st - 1, kk)
        if st == 5 and not PARE: par1()
        if st == 6 and not PARE: par2()
        if PFY and st == PFXST:
            srd(k, 20, B_W1, 2048 * 2752)
            k.e('s_lshr_b32 s90, s2, 3')
            k.e('s_mul_i32 s90, s90, 48')
            k.e('s_mul_i32 s91, s3, 12')
            k.e('s_add_u32 s90, s90, s91')
            k.e('s_add_u32 s90, s90, 512')
            k.e('s_and_b32 s92, s2, 7')
            k.e('s_mul_i32 s92, s92, 22')
            k.e('s_lshr_b32 s92, s92, 3')
            k.e('s_lshl_b32 s92, s92, 7')
            k.e('s_mov_b32 s91, 2752')
            k.e('v_mul_u32_u24 v4, 52, v1')
            k.e('v_lshrrev_b32 v4, 8, v4')
            k.e('v_mul_u32_u24 v5, 5, v4')
            k.e('v_sub_u32 v5, v1, v5')
            k.e('v_add_u32 v4, s90, v4')
            k.e('v_mul_lo_u32 v4, v4, s91')
            k.e('v_lshl_add_u32 v4, v5, 7, v4')
            k.e('v_add_u32 v198, s92, v4')
            if PFY > 1:
                k.e('s_cmp_lt_u32 s101, 22')
                k.e('s_cbranch_scc1 P1_NOPFY')
                k.e('buffer_load_dword v231, v198, s[20:23], 0 offen')
                k.label('P1_NOPFY')
            else: k.vm('buffer_load_dword v231, v198, s[20:23], 0 offen', 'pf')
        elif PFX and st == PFXST:
            srd(k, 20, B_W1, 2048 * 2752)
            k.e('s_lshr_b32 s90, s2, 3')
            k.e('s_lshl_b32 s90, s90, 6')
            k.e('s_lshl_b32 s91, s3, 4')
            k.e('s_add_u32 s90, s90, s91')
            k.e('s_and_b32 s92, s2, 7')
            k.e('s_mul_i32 s92, s92, 22')
            k.e('s_lshr_b32 s92, s92, 3')
            k.e('s_lshl_b32 s92, s92, 7')
            k.e('s_mov_b32 s93, 2752')
            k.e('v_lshrrev_b32 v4, 2, v1')
            k.e('v_add_u32 v4, s90, v4')
            k.e('v_mul_lo_u32 v4, v4, s93')
            k.e('v_and_b32 v5, 3, v1')
            k.e('v_lshl_add_u32 v4, v5, 7, v4')
            k.vm('buffer_load_dword v198, v4, s[20:23], s92 offen', 'pf')
            k.e('v_and_b32 v4, 15, v1')
            k.e('v_add_u32 v4, s90, v4')
            k.e('v_mul_lo_u32 v4, v4, s93')
            k.vm('buffer_load_dword v198, v4, s[20:23], s92 offen offset:512', 'pf')
        k.e('s_waitcnt lgkmcnt(0)')
    for kk in range(4):
        mfma(NST - 1, kk)
    k.vm(FHL, 'fh')
    k.e('v_lshlrev_b32 v247, 3, v3')
    k.e('v_add_u32 v247, %d, v247' % XOFF)
    k.e('s_lshl_b32 s84, s3, 8')
    k.e('v_add_u32 v7, s84, v247')
    hooks['setup2']()
    k.stamp(12)
    for j in range(1, 4):
        for q in range(4):
            r = 4 * q + j
            cfma(k, ACR + r, ACI + r, LR, LI, ACR + r - 1, ACI + r - 1, ACR + r, ACI + r)
    for q in range(4):
        k.e('v_mov_b32 %s, %s' % (v(EV + q), v(ACR + 4 * q + 3)))
        k.e('v_mov_b32 %s, %s' % (v(OD + q), v(ACR + 4 * q + 3)))
        k.e('v_mov_b32 %s, %s' % (v(EV + 4 + q), v(ACI + 4 * q + 3)))
        k.e('v_mov_b32 %s, %s' % (v(OD + 4 + q), v(ACI + 4 * q + 3)))
    k.nop(2)
    for q in range(8):
        k.e('v_permlane32_swap_b32 %s, %s' % (v(EV + q), v(OD + q)))
    k.nop(2)
    pr, pi_ = EV, EV + 4
    for i in range(1, 8):
        er = (EV if i % 2 == 0 else OD) + i // 2
        dr, di = (126, 127) if i == 7 else (CR + i, CI + i)
        cfma(k, dr, di, L4R, L4I, pr, pi_, er, er + 4)
        pr, pi_ = dr, di
    k.e('ds_write_b64 v7, v[126:127]')
    k.e('s_waitcnt lgkmcnt(0)')
    k.e('s_barrier')
    for w in range(4):
        k.e('ds_read_b64 %s, v247 offset:%d' % (v(EW + 2 * w, 2), 256 * w))
    k.e('v_mov_b32 v4, %d' % (XOFF + 1024))
    k.e('ds_read_b32 v250, v4')
    k.e('s_waitcnt lgkmcnt(0)')
    cfma(k, 118, 119, L32R, L32I, EW, EW + 1, EW + 2, EW + 3)
    cfma(k, 120, 121, L32R, L32I, 118, 119, EW + 4, EW + 5)
    cfma(k, 122, 123, L32R, L32I, 120, 121, EW + 6, EW + 7)
    k.vm('buffer_store_dwordx2 v[122:123], v248, s[16:19], s%d offen sc1' % SE, 'est')
    for g in hooks['A'][8]:
        for grp in hooks['Apart'](g): emit_items(k, grp)
    if PFY == 2: k.vm('buffer_load_dword v231, v198, s[4:7], 0 offen', 'pf')
    k.stamp(13)
    k.tl(1)
    k.wait_vm('fh')
    k.label('P1_FHCHK')
    k.e('v_cmp_ne_u32 vcc, v250, %s' % v(FH))
    k.e('s_cbranch_vccz P1_FHOK')
    poll_tail(k, 'P1_FHCHK', 'P1_FHOK', [FHL])
    k.e('s_barrier')
    k.stamp(14)
    k.tl(2)

def e_loads(k, sfx):
    L = []
    for c in range(15):
        L.append('s_cmp_le_u32 s97, %d' % c)
        L.append('s_cbranch_scc1 EL%s_%d' % (sfx, k.nlab))
        L.append('s_mov_b32 s84, %d' % (WS_E + c * 4096))
        L.append('buffer_load_dwordx2 %s, v248, s[16:19], s84 offen sc1' % v(EB + 2 * c, 2))
    L.append('EL%s_%d:' % (sfx, k.nlab))
    k.nlab += 1
    return L

def t_eload(k, sfx):
    k.e('s_cmp_lg_u32 s3, 0')
    k.e('s_cbranch_scc1 ELX' + sfx)
    for l in e_loads(k, sfx): k.e(l)
    k.label('ELX' + sfx)
    k.mark('e')

def t_scale(k, r0, r1):
    for r in range(r0, r1):
        k.e('v_mul_f32 v124, %s, %s' % (v(CFI), v(ACR + r)))
        k.e('v_mul_f32 %s, %s, %s' % (v(ACR + r), v(CFR), v(ACR + r)))
        k.e('v_fma_f32 %s, -%s, %s, %s' % (v(ACR + r), v(CFI), v(ACI + r), v(ACR + r)))
        k.e('v_fma_f32 %s, -%s, %s, -v124' % (v(ACI + r), v(CFR), v(ACI + r)))

def t_echeck(k, sfx):
    U = UCR
    k.e('s_cmp_lg_u32 s3, 0')
    k.e('s_cbranch_scc1 ECX' + sfx)
    q = list(k.vmq)
    k.wait_vm('e')
    k.vmq = q
    k.label('ECHK' + sfx)
    k.e('s_mov_b64 s[84:85], 0')
    for c in range(15):
        k.e('s_cmp_le_u32 s97, %d' % c)
        k.e('s_cbranch_scc1 EC2' + sfx)
        k.e('v_cmp_eq_u32 vcc, -1, %s' % v(EB + 2 * c))
        k.e('s_or_b64 s[84:85], s[84:85], vcc')
        k.e('v_cmp_eq_u32 vcc, -1, %s' % v(EB + 2 * c + 1))
        k.e('s_or_b64 s[84:85], s[84:85], vcc')
    k.label('EC2' + sfx)
    k.e('s_cmp_eq_u64 s[84:85], 0')
    k.e('s_cbranch_scc1 EOK' + sfx)
    poll_tail(k, 'ECHK' + sfx, 'EOK' + sfx, e_loads(k, sfx))
    k.e('v_mov_b32 %s, 0' % v(U)); k.e('v_mov_b32 %s, 0' % v(U + 1))
    for c in range(15):
        k.e('s_cmp_le_u32 s97, %d' % c)
        k.e('s_cbranch_scc1 CL' + sfx)
        k.e('v_pk_fma_f32 %s, %s, %s, %s op_sel_hi:[0,1,1]' % (v(EB + 2 * c, 2), v(L128, 2), v(U, 2), v(EB + 2 * c, 2)))
        k.e('v_pk_fma_f32 %s, %s, %s, %s op_sel:[1,1,0] op_sel_hi:[1,0,1] neg_lo:[1,0,0]' % (v(U, 2), v(L128, 2), v(U, 2), v(EB + 2 * c, 2)))
    k.label('CL' + sfx)
    k.e('ds_write_b64 v247, %s' % v(U, 2))
    k.label('ECX' + sfx)
    k.tl(3)

OWR, OWI = 106, 110
def t_uread(k):
    k.e('ds_read_b64 %s, v247' % v(UCR, 2))

def t_carry(k, part):
    U = UCR
    if part == 1: return t_carry1(k)
    cfma(k, 118, 119, L32R, L32I, U, U + 1, EW, EW + 1)
    cfma(k, 120, 121, L32R, L32I, 118, 119, EW + 2, EW + 3)
    cfma(k, 122, 123, L32R, L32I, 120, 121, EW + 4, EW + 5)
    k.e('v_mov_b32 %s, %s' % (v(CR), v(U))); k.e('v_mov_b32 %s, %s' % (v(CI), v(U + 1)))
    for w, (a_, b_) in ((1, (118, 119)), (2, (120, 121)), (3, (122, 123))):
        k.e('s_cmp_eq_u32 s3, %d' % w)
        k.e('s_cselect_b64 vcc, -1, 0')
        k.e('v_cndmask_b32 %s, %s, %s, vcc' % (v(CR), v(CR), v(a_)))
        k.e('v_cndmask_b32 %s, %s, %s, vcc' % (v(CI), v(CI), v(b_)))
    for i in range(0, 3):
        er = (EV if i % 2 == 0 else OD) + i // 2
        cfma(k, CR + i + 1, CI + i + 1, L4R, L4I, CR + i, CI + i, er, er + 4)

def t_carry1(k):
    for i in range(3, 7):
        er = (EV if i % 2 == 0 else OD) + i // 2
        cfma(k, CR + i + 1, CI + i + 1, L4R, L4I, CR + i, CI + i, er, er + 4)
    k.e('v_cmp_lt_u32 vcc, 31, v1')
    k.nop(1)
    for q in range(4):
        k.e('v_cndmask_b32 %s, %s, %s, vcc' % (v(114 + q), v(CR + 2 * q), v(CR + 2 * q + 1)))
        k.e('v_cndmask_b32 %s, %s, %s, vcc' % (v(118 + q), v(CI + 2 * q), v(CI + 2 * q + 1)))
    for q in range(4):
        cmul(k, OWR + q, OWI + q, CFR, CFI, 114 + q, 118 + q)

def t_hb(k, q):
    LP = [(LR, LI), (L2R, L2I), (L3R, L3I), (L4R, L4I)]
    for j in range(4):
        r = 4 * q + j
        lr, li_ = LP[j]
        k.e('v_fma_f32 %s, %s, %s, %s' % (v(ACR + r), v(lr), v(OWR + q), v(ACR + r)))
        k.e('v_fma_f32 %s, -%s, %s, %s' % (v(ACI + r), v(lr), v(OWI + q), v(ACI + r)))
        k.e('v_fma_f32 %s, -%s, %s, %s' % (v(ACR + r), v(li_), v(OWI + q), v(ACR + r)))
        k.e('v_fma_f32 %s, -%s, %s, %s' % (v(ACI + r), v(li_), v(OWR + q), v(ACI + r)))
        k.e('v_cvt_pk_bf16_f32 %s, %s, %s' % (v(ACR + r), v(ACR + r), v(ACI + r)))
        k.e('ds_write_b16 v232, %s offset:%d' % (v(ACR + r), (8 * q + j) * 128))
        k.e('ds_write_b16_d16_hi v249, %s offset:%d' % (v(ACR + r), (8 * q + j) * 128))

def t_tread(k):
    for n in range(4):
        k.e('ds_read_b128 %s, v233 offset:%d' % (v(72 + 4 * n, 4), 1024 * n))

def t_tstore(k):
    for n in range(4):
        k.e('s_add_u32 s84, s98, %d' % (n * 16384))
        k.vm('buffer_store_dwordx4 %s, v242, s[16:19], s84 offen sc1' % v(72 + 4 * n, 4), 'hb')
    k.tl(4)
def fc1_setup(k):
    k.e('s_and_b32 s72, s2, 7')
    k.e('s_lshr_b32 s73, s2, 3')
    k.e('s_mov_b32 s101, s73')
    k.e('s_mul_i32 s74, s72, 22')
    k.e('s_add_u32 s74, s74, s73')
    k.e('s_and_b32 s75, s74, 7')
    k.e('s_lshr_b32 s74, s74, 3')
    k.e('s_lshl_b32 s100, s75, 7')
    k.e('s_lshl_b32 s76, s74, 2')
    k.e('s_add_u32 s100, s100, s76')
    k.e('s_add_u32 s100, s100, %d' % WS_FU)
    k.e('s_lshl_b32 s75, s75, 6')
    k.e('s_lshl_b32 s74, s74, 6')
    k.e('s_lshr_b32 s76, s3, 1')
    k.e('s_and_b32 s77, s3, 1')
    k.e('v_lshrrev_b32 v2, 5, v1')
    k.e('v_lshlrev_b32 v2, 3, v2')
    k.e('s_lshl_b32 s78, s76, 5')
    k.e('s_add_u32 s78, s78, s74')
    k.e('s_lshl_b32 s79, s78, 1')
    k.e('v_add_u32 v2, s79, v2')
    I3, I4, I7 = 4, 5, 6
    k.e('v_lshrrev_b32 v4, 3, v1'); k.e('v_lshrrev_b32 v5, 4, v1'); k.e('v_and_b32 v6, 7, v1')
    VA, VB = 8, 10
    k.e('s_lshl_b32 s80, s3, 4')
    k.e('s_mov_b32 s81, 2752')
    k.e('s_lshl_b32 s82, s74, 1')
    dma_voff(k, VA, 80, 81, 82, True, I3, I4, I7, 7)
    k.e('s_mov_b32 s81, 1024')
    k.e('s_lshl_b32 s82, s75, 1')
    k.e('s_add_u32 s82, s82, %d' % WS_H)
    dma_voff(k, VB, 80, 81, 82, True, I3, I4, I7, 7)
    k.e('s_lshl_b32 s83, s3, 11')
    srd(k, 4, B_W1, 2048 * 2752)
    k.e('s_cmp_lt_u32 s73, 22')
    k.e('s_cselect_b32 s6, s6, 0')

def fc1_setup2(k):
    PA, PB = 12, 14
    k.e('s_lshl_b32 s86, s76, 2')
    k.e('s_lshl_b32 s87, s77, 2')
    pat_tr(k, PA, 86, 0, 1, 16, 17, 18)
    pat_tr(k, PB, 87, 8192, 1, 16, 17, 18)
    if KS:
        for i in range(4):
            k.e('v_add_u32 v%d, s83, v%d' % (12 + i, 12 + i))
            k.e('v_xor_b32 v%d, 64, v%d' % (32 + i, 12 + i))
    k.e('v_and_b32 v4, 31, v1')
    k.e('s_lshl_b32 s89, s77, 5')
    k.e('s_add_u32 s89, s89, s75')
    k.e('v_add_u32 v4, s89, v4')
    k.e('s_mov_b32 s90, %d' % UP)
    k.e('v_mul_lo_u32 v4, v4, s90')
    k.e('v_add_u32 v199, v4, v2')
    if UT:
        k.e('v_lshrrev_b32 v4, 2, v1')
        k.e('v_add_u32 v4, s89, v4')
        k.e('v_mul_lo_u32 v4, v4, s90')
        k.e('v_and_b32 v5, 3, v1')
        k.e('v_lshl_add_u32 v4, v5, 4, v4')
        k.e('v_add_u32 v199, s79, v4')
    srd(k, 8, B_B1, 2752)
    k.e('s_mov_b32 s93, s78')

def fc1_setup_pf(k):
    k.e('s_mov_b32 s93, 2752')
    k.e('s_cmp_lt_u32 s3, 2')
    k.e('s_cselect_b32 s93, 1024, s93')
    k.e('s_lshl_b32 s92, s93, 9')
    k.e('s_mul_i32 s91, s72, 22')
    k.e('s_lshr_b32 s91, s91, 3')
    k.e('s_lshl_b32 s91, s91, 7')
    k.e('s_cmp_lt_u32 s3, 2')
    k.e('s_cselect_b32 s91, %d, s91' % WS_H)
    k.e('s_cmp_lt_u32 s3, 2')
    k.e('s_cselect_b32 s90, 8, 5')
    k.e('s_and_b32 s89, s3, 1')
    k.e('s_lshl_b32 s89, s89, 3')
    k.e('s_lshl_b32 s88, s73, 4')
    k.e('s_add_u32 s89, s89, s88')
    k.e('v_lshrrev_b32 v4, 3, v1')
    k.e('v_add_u32 v4, s89, v4')
    k.e('v_mul_lo_u32 v4, v4, s93')
    k.e('v_and_b32 v5, 7, v1')
    k.e('v_lshl_add_u32 v230, v5, 7, v4')
    k.e('v_mov_b32 v4, 0x7f000000')
    k.e('v_cmp_gt_u32 vcc, s90, v5')
    k.e('v_cndmask_b32 v230, v4, v230, vcc')
    k.e('s_cmp_lt_u32 s3, 2')
    k.e('s_cselect_b32 s12, s%d, s%d' % (P(WS), P(B_W1)))
    k.e('s_cselect_b32 s13, s%d, s%d' % (P(WS) + 1, P(B_W1) + 1))
    k.e('s_and_b32 s13, s13, 0xffff')
    k.e('s_mov_b32 s14, 0x%x' % (2048 * 2752))
    k.e('s_mov_b32 s15, 0x00020000')
    k.e('s_mov_b32 s93, s78')

def pf_slot():
    if not PF: return []
    return [('v', 'buffer_load_dword v231, v230, s[12:15], s91 offen', 'pf'), ('e', 's_add_u32 s91, s91, s92')]

HBL = 'buffer_load_dword v227, v226, s[16:19], s97 offen sc1'
FUL = 'buffer_load_dword v229, v228, s[16:19], s98 offen sc1'
P3_VC, P3_VH, P3_VU, P3_VW = 200, 202, 204, 206
P3_PA, P3_PB, P3_PT = 180, 188, 196
P3_OUTA = 198

def p3_setup(k, part):
    I3, I4, I7 = 4, 5, 6
    if part == 0:
        k.e('s_and_b32 s72, s2, 7')
        k.e('s_lshr_b32 s73, s2, 3')
        k.e('s_lshr_b32 s74, s73, 3')
        k.e('s_lshl_b32 s72, s72, 2')
        k.e('s_add_u32 s72, s72, s74')
        k.e('s_and_b32 s73, s73, 7')
        k.e('s_lshr_b32 s86, s72, 1')
        k.e('s_lshl_b32 s86, s86, 7')
        k.e('s_add_u32 s97, s86, %d' % WS_FB)
        k.e('v_and_b32 v4, 15, v1')
        k.e('v_lshlrev_b32 v226, 2, v4')
        k.e('v_min_u32 v4, 21, v1')
        k.e('v_lshlrev_b32 v228, 2, v4')
        k.e('s_and_b32 s98, s72, 7')
        k.e('s_lshl_b32 s98, s98, 3')
        k.e('s_add_u32 s98, s98, s73')
        k.e('s_lshl_b32 s98, s98, 7')
        k.e('s_add_u32 s98, s98, %d' % WS_FU)
        k.e('s_lshl_b32 s74, s72, 6')
        k.e('s_lshl_b32 s75, s73, 6')
        k.e('s_lshr_b32 s76, s3, 1')
        k.e('s_and_b32 s77, s3, 1')
        k.e('v_and_b32 v3, 31, v1')
        k.e('s_lshl_b32 s78, s77, 5')
        k.e('s_add_u32 s78, s78, s74')
        k.e('v_add_u32 v3, s78, v3')
        k.e('v_lshrrev_b32 v176, 3, v3')
        k.e('v_lshlrev_b32 v176, 7, v176')
        k.e('v_and_b32 v4, 7, v3')
        k.e('v_lshl_add_u32 v176, v4, 2, v176')
        k.e('v_lshlrev_b32 v177, 1, v3')
        k.e('s_lshl_b32 s79, s76, 5')
        k.e('s_add_u32 s79, s79, s75')
        k.e('v_lshrrev_b32 v4, 5, v1')
        k.e('v_lshlrev_b32 v4, 2, v4')
        k.e('v_add_u32 v4, s79, v4')
        k.e('v_lshlrev_b32 v178, 1, v4')
        k.e('v_lshl_add_u32 v179, v3, 10, v178')
        k.e('v_lshlrev_b32 v%d, 1, v179' % P3_OUTA)
        if XT:
            k.e('v_lshrrev_b32 v4, 2, v1')
            k.e('v_add_u32 v4, s78, v4')
            k.e('v_lshlrev_b32 v4, 10, v4')
            k.e('v_and_b32 v5, 3, v1')
            k.e('v_lshl_add_u32 v4, v5, 4, v4')
            k.e('s_lshl_b32 s80, s79, 1')
            k.e('v_add_u32 v179, s80, v4')
        k.e('v_lshrrev_b32 v4, 3, v1'); k.e('v_lshrrev_b32 v5, 4, v1'); k.e('v_and_b32 v6, 7, v1')
        if OT:
            k.e('v_add_u32 v7, s78, v4')
            k.e('v_lshlrev_b32 v7, 11, v7')
            k.e('v_lshl_add_u32 v7, v6, 4, v7')
            k.e('s_lshl_b32 s80, s79, 2')
            k.e('v_add_u32 v%d, s80, v7' % P3_OUTA)
        k.e('s_lshl_b32 s80, s3, 4')
        k.e('s_add_u32 s81, s80, s75')
        k.e('s_add_u32 s82, s80, s74')
    elif part == 1:
        k.e('s_mov_b32 s86, 1024'); k.e('s_mov_b32 s87, 0')
        dma_voff(k, P3_VC, 81, 86, 87, False, I3, I4, I7, 7)
        k.e('s_mov_b32 s86, 2048'); k.e('s_mov_b32 s87, %d' % WS_HB)
        dma_voff(k, P3_VH, 82, 86, 87, False, I3, I4, I7, 7, hb=True)
        if HPF:
            k.e('s_and_b32 s86, s73, 3')
            k.e('s_lshl_b32 s86, s86, 4')
            k.e('s_add_u32 s86, s86, s74')
            k.e('s_lshl_b32 s86, s86, 11')
            k.e('s_add_u32 s86, s86, s87')
            k.e('v_lshlrev_b32 v230, 7, v0')
            k.e('v_add_u32 v230, s86, v230')
    elif part == 2:
        k.e('s_mov_b32 s86, %d' % UP); k.e('s_mov_b32 s87, %d' % WS_U)
        dma_voff(k, P3_VU, 81, 86, 87, False, I3, I4, I7, 7)
        if UPF:
            k.e('s_lshr_b32 s87, s2, 6')
            k.e('s_lshl_b32 s87, s87, 4')
            k.e('s_add_u32 s87, s87, s75')
            k.e('v_lshrrev_b32 v136, 4, v0')
            k.e('v_add_u32 v136, s87, v136')
            k.e('v_mul_lo_u32 v136, v136, s86')
            k.e('v_and_b32 v7, 15, v0')
            k.e('v_lshl_add_u32 v136, v7, 7, v136')
            k.e('v_add_u32 v136, %d, v136' % (WS_U + 768))
        k.e('s_mov_b32 s86, 4096'); k.e('s_lshl_b32 s87, s74, 1')
        dma_voff(k, P3_VW, 80, 86, 87, True, I3, I4, I7, 7)
    elif part == 3:
        k.e('s_lshl_b32 s86, s76, 12')
        k.e('s_lshl_b32 s87, s77, 12')
        k.e('s_lshl_b32 s88, s77, 2')
        pat_direct(k, P3_PA, 86, 0, 1, 113, 114)
        pat_direct(k, P3_PB, 87, 8192, 1, 113, 114)
        pat_tr(k, P3_PT, 88, 8192, 1, 113, 114, 115)
        if K2:
            for i in range(2): k.e('v_add_u32 v%d, s86, v%d' % (P3_PT + i, P3_PT + i))
    elif part == 4:
        srd(k, 20, A_CRE, 1 << 19); srd(k, 24, A_CIM, 1 << 19); srd(k, 28, B_W2, 1376 * 4096); srd(k, 32, OUT, 4 << 20)

def hb_check(k, sfx):
    k.label('HBCHK' + sfx)
    k.e('v_cmp_ne_u32 vcc, v250, v227')
    k.e('s_cbranch_vccz HBOK' + sfx)
    poll_tail(k, 'HBCHK' + sfx, 'HBOK' + sfx, [HBL])
    k.tl(7)

def g_stages(k):
    NS = 8
    VA, VB, PA, PB = 8, 10, 12, 14
    B1R = 128
    ACC = 16
    def b1_loads():
        return [('v', 'buffer_load_dwordx2 %s, v2, s[8:11], 0 offen offset:%d' % (v(B1R + 2 * q, 2), 16 * q), 'b1') for q in range(4)]
    def parts(g):
        slot = ((g + SLOT0) % NS) * 16384
        tg = 'st%d' % g
        if g < 32:
            srdA, srdB, va, vb = 4, 16, VA, VB
            oa, ob = g * 64 * 2752, g * 65536
        else:
            st = g - 32
            if st < 16:
                srdA = 20 if st % 2 == 0 else 24
                oa, ob = (st // 2) * 128, (st // 2) * 256 + (st % 2) * 64
                va, vb, srdB = P3_VC, P3_VH, 16
            else:
                srdA = 16
                oa, ob = (st - 16) * 128, (st - 16) * 262144
                va, vb, srdB = P3_VU, P3_VW, 28
        A = [[('e', 's_mov_b32 s84, %d' % oa), ('e', 's_add_u32 m0, s83, %d' % slot), ('e', 's_nop 0'),
              ('v', 'buffer_load_dwordx4 %s, s[%d:%d], s84 offen lds' % (v(va), srdA, srdA + 3), tg)],
             [('v', 'buffer_load_dwordx4 %s, s[%d:%d], s84 offen offset:1024 lds' % (v(va + 1), srdA, srdA + 3), tg)]]
        B = [[('e', 's_mov_b32 s85, %d' % ob), ('e', 's_add_u32 m0, s83, %d' % (slot + 8192)), ('e', 's_nop 0'),
              ('v', 'buffer_load_dwordx4 %s, s[%d:%d], s85 offen lds' % (v(vb), srdB, srdB + 3), tg)],
             [('v', 'buffer_load_dwordx4 %s, s[%d:%d], s85 offen offset:1024 lds' % (v(vb + 1), srdB, srdB + 3), tg)]]
        return A, B
    GU = 32 + UC
    def issue(g):
        A, B = parts(g)
        if g >= 48 and g - DIST < GU:
            return [[], [], B[0], B[1]]
        if 32 <= g < 48 and g - DIST < HBC:
            return [A[0], A[1], [], []]
        return A + B
    ACA, ACB = 160, 208
    GR, B2R, XR, DR = (224, 225, 112, 120) if EPS else (224, 225, 232, 240)
    stages = []
    for g in range(70):
        if g < 32:
            stages.append(dict(issue=issue, modeA='t', patA=PA, modeB='t', patB=PB, acc=ACC, first=(g == 0), ks=KS))
        elif g < 48:
            stages.append(dict(issue=issue, modeA='d', patA=P3_PA, modeB='d', patB=P3_PB, acc=ACA, first=(g == 32)))
        else:
            stages.append(dict(issue=issue, modeA='d', patA=P3_PA, modeB='t', patB=P3_PT, acc=ACB, first=(g == 48), k2=K2))
    for S in stages: S['pre'] = []; S['extra'] = []; S['ilv'] = []
    def F(fn): return lambda: [('f', fn)]
    assert DIST == 6
    stages[0]['ilv'].append(F(lambda: t_scale(k, 0, 6)))
    stages[1]['ilv'].append(F(lambda: t_scale(k, 6, 11)))
    stages[2]['ilv'].append(F(lambda: t_scale(k, 11, 16)))
    stages[EC]['pre'].append(F(lambda: t_echeck(k, 'F')))
    stages[EC]['lgk0'] = 1
    EU = EC + UB
    stages[EU]['bar'] = 1
    stages[EU]['pre'].append(F(lambda: t_uread(k)))
    stages[EU]['ilv'].append(F(lambda: t_carry(k, 0)))
    stages[EU + 1]['ilv'].append(F(lambda: t_carry(k, 1)))
    for q in range(4):
        stages[EU + 2 + q // HBP]['ilv'].append(F(lambda q=q: t_hb(k, q)))
    GT = EU + 2 + 4 // HBP
    stages[GT]['pre'].append(F(lambda: t_tread(k)))
    stages[GT]['ilv'].append(F(lambda: t_tstore(k)))
    stages[GT + 1]['ilv'].append(b1_loads)
    HBF_ = HBF or GT + 7
    stages[HBF_ - 1]['extra'].append(lambda: [('w', 'hb')])
    stages[HBF_]['pre'].append(lambda: flag_store(k, 'F_HBFL', 's99', 1))
    stages[HBF_]['bar'] = 1
    for i in range(5):
        stages[GT + 2 + i]['ilv'].append(F(lambda i=i: p3_setup(k, i)))
    stages[HBLG]['extra'].append(lambda: [('v', HBL, 'fhb')])
    def hbc():
        hb_check(k, 'F')
        for g in range(32, HBC + DIST):
            A, B = parts(g)
            emit_items(k, B[0] + B[1])
    if TLX: stages[HBC]['pre'].append(F(lambda: k.tl(1)))
    stages[HBC]['pre'].append(lambda: [('w', 'fhb'), ('f', hbc)])
    stages[32]['label'] = 'G32'
    B1F, T, UO = 64, 80, 96
    def f2u(x): return struct.unpack('<I', struct.pack('<f', x))[0]
    C2f = -2.0 * 1.4426950408889634 * 0.7978845608028654
    def b1_unpack():
        for j in range(8):
            k.e('v_lshlrev_b32 %s, 16, %s' % (v(B1F + 2 * j), v(B1R + j)))
            k.e('v_and_b32 %s, 0xffff0000, %s' % (v(B1F + 2 * j + 1), v(B1R + j)))
        k.e('v_mov_b32 v104, 0x%x' % f2u(0.044715 * C2f))
        k.e('v_mov_b32 v105, 0x%x' % f2u(C2f))
        k.e('v_mov_b32 v106, 1.0')
    stages[29]['ilv'].append(F(b1_unpack))
    def ep():
        lab = 'F_EP'
        if not E31:
            k.e('s_cmp_ge_u32 s101, 22')
            k.e('s_cbranch_scc1 %s' % lab)
        k.tl(5)
        if KS:
            if E31:
                k.stamp(142)
                red_write()
                k.stamp(143)
                k.e('s_barrier')
                k.stamp(144)
                red_read()
            else: k.e('s_waitcnt lgkmcnt(8)')
            for i_, P_ in enumerate(RP):
                if E31: k.e('s_waitcnt lgkmcnt(%d)' % (8 - 4 * i_))
                for r in range(0, 16, 2):
                    k.e('v_pk_add_f32 %s, %s, %s' % (v(ACC + r, 2), v(ACC + r, 2), v(P_ + r, 2)))
        else: k.nop(16)
        for r in range(0, 16, 2):
            rbf2(k, ACC + r, ACC + r + 1, T + r)
        for r in range(0, 16, 2):
            k.e('v_pk_add_f32 %s, %s, %s' % (v(ACC + r, 2), v(ACC + r, 2), v(B1F + r, 2)))
        for r in range(0, 16, 2):
            rbf2(k, ACC + r, ACC + r + 1, T + r)
        for r in range(0, 16, 2):
            k.e('v_pk_mul_f32 %s, %s, %s' % (v(T + r, 2), v(ACC + r, 2), v(ACC + r, 2)))
        for r in range(0, 16, 2):
            k.e('v_pk_fma_f32 %s, %s, v[104:105], v[104:105] op_sel:[0,0,1] op_sel_hi:[1,0,1]' % (v(T + r, 2), v(T + r, 2)))
        for r in range(0, 16, 2):
            k.e('v_pk_mul_f32 %s, %s, %s' % (v(T + r, 2), v(T + r, 2), v(ACC + r, 2)))
            k.e('v_exp_f32 %s, %s' % (v(T + r), v(T + r)))
            k.e('v_exp_f32 %s, %s' % (v(T + r + 1), v(T + r + 1)))
        for r in range(0, 16, 2):
            k.e('v_pk_add_f32 %s, %s, v[106:107] op_sel_hi:[1,0]' % (v(T + r, 2), v(T + r, 2)))
            k.e('v_rcp_f32 %s, %s' % (v(T + r), v(T + r)))
            k.e('v_rcp_f32 %s, %s' % (v(T + r + 1), v(T + r + 1)))
        k.e('s_mov_b32 s90, %d' % WS_U)
        for r in range(0, 16, 2):
            k.e('v_pk_mul_f32 %s, %s, %s' % (v(ACC + r, 2), v(ACC + r, 2), v(T + r, 2)))
        for r in range(0, 16, 2):
            k.e('v_cvt_pk_bf16_f32 %s, %s, %s' % (v(UO + r // 2), v(ACC + r), v(ACC + r + 1)))
        k.e('s_cmp_lt_u32 s93, 1376')
        k.e('s_cbranch_scc1 F_ST')
        for j in range(8):
            k.e('v_mov_b32 %s, 0' % v(UO + j))
        k.label('F_ST')
        if UT:
            for q in range(4): k.e('ds_write_b64 v157, %s offset:%d' % (v(UO + 2 * q, 2), 16 * q))
            k.e('s_mov_b32 s91, %d' % (WS_U + 16 * UP))
            k.e('s_waitcnt lgkmcnt(0)')
            k.e('ds_read_b128 %s, v158' % v(T, 4))
            k.e('ds_read_b128 %s, v158 offset:1280' % v(T + 4, 4))
            k.e('s_waitcnt lgkmcnt(1)')
            st_ = (lambda l: k.vm(l, 'ust')) if E31 else k.e
            st_('buffer_store_dwordx4 %s, v199, s[16:19], s90 offen sc1' % v(T, 4))
            k.e('s_waitcnt lgkmcnt(0)')
            st_('buffer_store_dwordx4 %s, v199, s[16:19], s91 offen sc1' % v(T + 4, 4))
        for q in range(0 if UT else 4):
            l = 'buffer_store_dwordx2 %s, v199, s[16:19], s90 offen offset:%d sc1' % (v(UO + 2 * q, 2), 16 * q)
            if E31: k.vm(l, 'ust')
            else: k.e(l)
        k.tl(6)
        k.stamp(145)
        k.label(lab)
        k.mark('ust')
    RP = (136, 112, 80)
    S30, S31 = ((30 + SLOT0) % NS) * 16384, ((31 + SLOT0) % NS) * 16384
    QO = (0, 1024, 8192, 9216)
    def red_addr():
        k.e('v_lshlrev_b32 v152, 4, v1')
        k.e('s_lshl_b32 s86, s3, 12')
        k.e('s_add_u32 s86, s86, 131072')
        k.e('v_add_u32 v153, s86, v152')
        k.e('v_add_u32 v152, s83, v152')
        k.e('v_xor_b32 v154, 2048, v152')
        k.e('v_xor_b32 v155, 4096, v152')
        k.e('v_xor_b32 v156, 12288, v153')
        if UT:
            k.e('s_xor_b32 s86, s86, 12288')
            k.e('v_and_b32 v157, 31, v1')
            k.e('v_mul_u32_u24 v157, 80, v157')
            k.e('v_lshrrev_b32 v158, 5, v1')
            k.e('v_lshl_add_u32 v157, v158, 3, v157')
            k.e('v_add_u32 v157, s86, v157')
            k.e('v_lshrrev_b32 v158, 2, v1')
            k.e('v_mul_u32_u24 v158, 80, v158')
            k.e('v_and_b32 v159, 3, v1')
            k.e('v_lshl_add_u32 v158, v159, 4, v158')
            k.e('v_add_u32 v158, s86, v158')
        if WPF:
            k.e('s_lshl_b32 s86, s101, 8')
            k.e('v_add_u32 v231, s86, v0')
            k.e('v_lshrrev_b32 v159, 2, v231')
            k.e('v_lshlrev_b32 v159, 12, v159')
            k.e('v_and_b32 v231, 3, v231')
            k.e('v_lshl_add_u32 v159, v231, 7, v159')
            k.e('s_and_b32 s86, s2, 7')
            k.e('s_lshl_b32 s86, s86, 9')
            k.e('v_add_u32 v159, s86, v159')
    HPL = 'buffer_load_dword v231, v230, s[16:19], 0 offen'
    def early_ilv(kk):
        if kk == 0 and HPF: k.vm(HPL, 'hpf')
        if kk == 0 and WPF: k.vm('buffer_load_dword v231, v159, s[28:31], 0 offen', 'hpf')
        if kk == 2 and WI:
            k.nop(4)
            for q in range(4): k.e('ds_write_b128 v152, %s offset:%d' % (a(64 + 4 * q, 4), S30 + QO[q]))
    if KS and E31: stages[32]['early_ilv'] = early_ilv
    def red_write():
        if not WI:
            k.nop(16)
            for q in range(4): k.e('ds_write_b128 v152, %s offset:%d' % (a(64 + 4 * q, 4), S30 + QO[q]))
        for q in range(4): k.e('ds_write_b128 v152, %s offset:%d' % (a(80 + 4 * q, 4), S31 + QO[q]))
        for q in range(4): k.e('ds_write_b128 v153, %s offset:%d' % (a(96 + 4 * q, 4), 1024 * q))
        k.e('s_waitcnt lgkmcnt(0)')
    def red_read():
        if not E31:
            k.e('s_cmp_ge_u32 s101, 22')
            k.e('s_cbranch_scc1 F_RR')
        for q in range(4): k.e('ds_read_b128 %s, v154 offset:%d' % (v(RP[0] + 4 * q, 4), S30 + QO[q]))
        for q in range(4): k.e('ds_read_b128 %s, v155 offset:%d' % (v(RP[1] + 4 * q, 4), S31 + QO[q]))
        for q in range(4): k.e('ds_read_b128 %s, v156 offset:%d' % (v(RP[2] + 4 * q, 4), 1024 * q))
        k.label('F_RR')
    if KS:
        assert not UPF
    else:
        assert not UT
    if KS:
        stages[30]['ilv'].append(F(red_addr))
        if not E31:
            stages[32]['early'] = red_write
            stages[32]['pre'].append(F(red_read))
            stages[32]['noissue'] = 1
    if E31: stages[32]['early'] = ep
    else: stages[32]['extra'].append(F(ep))
    def ust_wait():
        k.e('s_cmp_ge_u32 s101, 22')
        k.e('s_cbranch_scc1 F_UW')
        q = list(k.vmq)
        k.wait_vm('ust')
        k.vmq = q
        k.label('F_UW')
    if RW: stages[32 + UW - 1]['extra'].append(F(ust_wait))
    else: stages[32 + UW - 1]['extra'].append(lambda: [('w', 'ust')])
    stages[32 + UW]['pre'].append(lambda: flag_store(k, 'P3_UFL', 's100', 8, cond=[('e', 's_cmp_ge_u32 s101, 22')]))
    def late_srds():
        srd(k, 4, A_X, 2 << 20); srd(k, 8, A_DSK, 1024); srd(k, 12, B_B2, 4096)
    stages[GU - 2]['extra'].append(lambda: [('e', 's_cmp_lg_u32 s3, 0'), ('e', 's_cbranch_scc1 P3_NOFU'), ('e', FUL), ('e', 'P3_NOFU:'), ('m', 'fu')] + ([] if EPS else [('f', late_srds)]))
    def uchk():
        k.e('s_cmp_lg_u32 s3, 0')
        k.e('s_cbranch_scc1 P3_UOK')
        q = list(k.vmq)
        k.wait_vm('fu')
        k.vmq = q
        if not PPL:
            k.label('P3_UCHK')
            k.e('v_cmp_ne_u32 vcc, v250, v229')
            k.e('s_cbranch_vccz P3_UOK')
            poll_tail(k, 'P3_UCHK', 'P3_UOK', [FUL])
        else:
            PR = [229, 230, 231, 138][:PPL]
            k.e('v_cmp_ne_u32 vcc, v250, v229')
            k.e('s_cbranch_vccz P3_UOK')
            for i, r in enumerate(PR):
                if i: k.e('s_sleep %d' % PSL)
                k.e(FUL.replace('v229', 'v%d' % r))
            k.label('P3_UCHK')
            for r in PR:
                k.e('s_waitcnt vmcnt(%d)' % (PPL - 1))
                k.e('v_cmp_ne_u32 vcc, v250, v%d' % r)
                k.e('s_cbranch_vccz P3_UOK')
                k.e(FUL.replace('v229', 'v%d' % r))
            k.e('s_sub_u32 s96, s96, 1')
            k.e('s_cmp_gt_i32 s96, 0')
            k.e('s_cbranch_scc1 P3_UCHK')
            k.label('P3_UOK')
        k.e('s_barrier')
        k.tl(8)
        for g in range(48, GU + DIST):
            A, B = parts(g)
            emit_items(k, A[0] + A[1])
        if UPF: k.vm('buffer_load_dword v137, v136, s[16:19], 0 offen', 'upf')
    stages[GU]['pre'].append(F(uchk))
    def ep_loads():
        L = [('e', 's_mov_b32 s79, %d' % WS_G), ('v', 'buffer_load_dword %s, v176, s[16:19], s79 offen' % v(GR), 'ep'),
             ('v', 'buffer_load_ushort %s, v177, s[12:15], 0 offen' % v(B2R), 'ep')]
        for q in range(4):
            L.append(('v', 'buffer_load_dwordx2 %s, v178, s[8:11], 0 offen offset:%d' % (v(DR + 2 * q, 2), 16 * q), 'ep'))
        if XT:
            L += [('e', 's_lshl_b32 s86, s3, 12'), ('e', 's_add_u32 m0, s86, 131072'), ('e', 's_mov_b32 s86, 15360'),
                  ('v', 'buffer_load_dwordx4 v179, s[4:7], 0 offen lds', 'ep'),
                  ('v', 'buffer_load_dwordx4 v179, s[4:7], s86 offen offset:1024 lds', 'ep')]
        for q in range(0 if XT else 4):
            L.append(('v', 'buffer_load_dwordx2 %s, v179, s[4:7], 0 offen offset:%d' % (v(XR + 2 * q, 2), 16 * q), 'ep'))
        return L
    if not EPS:
        stages[GU - 1]['ilv'].append(ep_loads)
    else:
        stages[EPL]['extra'].append(lambda: [('f', late_srds)] + ep_loads())
        XF, DF, T2 = 64, 80, 100
        def xd():
            if XT:
                k.e('s_lshl_b32 s86, s3, 12')
                k.e('s_add_u32 s86, s86, 131072')
                k.e('v_and_b32 v100, 31, v1')
                k.e('v_lshrrev_b32 v101, 5, v1')
                k.e('v_lshlrev_b32 v101, 3, v101')
                k.e('v_lshl_add_u32 v100, v100, 6, v101')
                k.e('v_add_u32 v100, s86, v100')
            k.wait_vm('ep')
            if XT:
                for q in range(4): k.e('ds_read_b64 %s, v100 offset:%d' % (v(XR + 2 * q, 2), 16 * q))
            for i in range(8):
                k.e('v_lshlrev_b32 %s, 16, %s' % (v(DF + 2 * i), v(DR + i)))
                k.e('v_and_b32 %s, 0xffff0000, %s' % (v(DF + 2 * i + 1), v(DR + i)))
            if XT: k.e('s_waitcnt lgkmcnt(0)')
            for i in range(8):
                k.e('v_lshlrev_b32 %s, 16, %s' % (v(XF + 2 * i), v(XR + i)))
                k.e('v_and_b32 %s, 0xffff0000, %s' % (v(XF + 2 * i + 1), v(XR + i)))
            k.e('v_lshlrev_b32 v102, 16, %s' % v(B2R))
            k.e('v_sub_f32 v104, 1.0, %s' % v(GR))
            rbf(k, 104, T2)
            for r in range(0, 16, 2):
                k.e('v_pk_mul_f32 %s, %s, %s' % (v(XF + r, 2), v(XF + r, 2), v(DF + r, 2)))
            for r in range(0, 16, 2):
                rbf2(k, XF + r, XF + r + 1, T2)
        stages[GU - 1]['extra'].append(F(xd))
        def apart():
            for r in range(0, 16, 2):
                k.e('v_pk_add_f32 %s, %s, %s' % (v(ACA + r, 2), v(ACA + r, 2), v(XF + r, 2)))
            for r in range(0, 16, 2):
                k.e('v_pk_mul_f32 %s, %s, %s op_sel_hi:[1,0]' % (v(ACA + r, 2), v(ACA + r, 2), v(GR, 2)))
        stages[50]['extra'].append(F(apart))
        def oaddr():
            k.e('s_lshl_b32 s86, s3, 12')
            k.e('s_add_u32 s86, s86, 131072')
            k.e('v_lshrrev_b32 v140, 5, v1')
            k.e('v_and_b32 v141, 7, v1')
            k.e('v_xor_b32 v140, v140, v141')
            k.e('v_lshlrev_b32 v140, 4, v140')
            k.e('v_and_b32 v136, 31, v1')
            k.e('v_lshl_add_u32 v136, v136, 7, v140')
            k.e('v_add_u32 v136, s86, v136')
            for q in range(1, 4): k.e('v_xor_b32 v%d, %d, v136' % (136 + q, q << 5))
            k.e('v_lshrrev_b32 v140, 3, v1')
            k.e('v_xor_b32 v141, v140, v141')
            k.e('v_lshlrev_b32 v141, 4, v141')
            k.e('v_lshl_add_u32 v140, v140, 7, v141')
            k.e('v_add_u32 v140, s86, v140')
            for j in range(1, 4): k.e('s_mov_b32 s%d, %d' % (86 + j, 16384 * j))
        if OT: stages[51]['extra'].append(F(oaddr))
        S66 = ((66 + SLOT0) % NS) * 16384
        def k2addr():
            k.e('s_lshr_b32 s86, s3, 1')
            k.e('s_lshl_b32 s86, s86, 6')
            for st_ in range(2):
                for j in range(2):
                    k.e('v_xor_b32 v%d, s86, v%d' % (144 + 2 * st_ + j, P3_PA + 4 * st_ + j))
                    k.e('v_xor_b32 v%d, 4096, v%d' % (148 + 2 * st_ + j, 144 + 2 * st_ + j))
            k.e('s_lshl_b32 s86, s3, 12')
            k.e('s_add_u32 s86, s86, %d' % S66)
            k.e('v_lshlrev_b32 v142, 4, v1')
            k.e('v_add_u32 v142, s86, v142')
            k.e('v_xor_b32 v143, 8192, v142')
        def last_ilv(kk):
            if kk == 3:
                k.nop(4)
                for q in range(4): k.e('ds_write_b128 v142, %s offset:%d' % (a(64 + 4 * q, 4), 1024 * q))
                k.e('s_waitcnt lgkmcnt(0)')
                k.e('s_barrier')
                for q in range(4): k.e('ds_read_b128 %s, v143 offset:%d' % (v(80 + 4 * q, 4), 1024 * q))
        if K2:
            stages[46]['extra'].append(F(k2addr))
            stages[69]['last_ilv'] = last_ilv
    return stages, issue, parts

def g_run(k, stages):
    FBUF = [(0, 16), (32, 48)]
    ACA, ACB = 160, 208
    GR, B2R, XR, DR = (224, 225, 112, 120) if EPS else (224, 225, 232, 240)
    gemm_loop(k, stages, 8, FBUF, sb=64)
    k.tl(9)
    if not K2: k.nop(13)
    XF, DF, T = 64, 80, 100
    if EPS:
        for q in range(4):
            R2 = (ACB + 4 * q, ACB + 4 * q + 2)
            if K2:
                k.e('s_waitcnt lgkmcnt(3)' if OT else 's_waitcnt lgkmcnt(%d)' % (3 - q))
                for r in R2: k.e('v_pk_add_f32 %s, %s, %s' % (v(r, 2), v(r, 2), v(r - ACB + 80, 2)))
            for r in R2: rbf2(k, r, r + 1, T)
            for r in R2: k.e('v_pk_add_f32 %s, %s, v[102:103] op_sel_hi:[1,0]' % (v(r, 2), v(r, 2)))
            for r in R2: rbf2(k, r, r + 1, T)
            for r in R2: k.e('v_pk_mul_f32 %s, %s, v[104:105] op_sel_hi:[1,0]' % (v(r, 2), v(r, 2)))
            for r in R2: rbf2(k, r, r + 1, T)
            for r in R2: k.e('v_pk_add_f32 %s, %s, %s' % (v(r, 2), v(r, 2), v(r - ACB + ACA, 2)))
            if OT: k.e('ds_write_b128 v%d, %s' % (136 + q, v(ACB + 4 * q, 4)))
            else: k.e('buffer_store_dwordx4 %s, v%d, s[32:35], 0 offen offset:%d' % (v(ACB + 4 * q, 4), P3_OUTA, 32 * q))
        if OT:
            k.e('s_waitcnt lgkmcnt(0)')
            for j in range(4): k.e('ds_read_b128 %s, v140 offset:%d' % (v(ACB + 4 * j, 4), 1024 * j))
            for j in range(4):
                k.e('s_waitcnt lgkmcnt(%d)' % (3 - j))
                k.e('buffer_store_dwordx4 %s, v%d, s[32:35], %s offen%s' % (v(ACB + 4 * j, 4), P3_OUTA, 's%d' % (86 + j) if j else '0', OPOL))
    else: old_ep(k)
    k.stamp(140)
    if DEBUG or TL:
        k.e('s_waitcnt vmcnt(0)')
    k.stamp(141)
    k.tl(10)
    k.tlc(12)
    k.flush_dbg()

def old_ep(k):
    ACA, ACB = 160, 208
    GR, B2R, XR, DR = 224, 225, 232, 240
    XF, DF, T = 64, 80, 100
    for i in range(8):
        k.e('v_lshlrev_b32 %s, 16, %s' % (v(XF + 2 * i), v(XR + i)))
        k.e('v_and_b32 %s, 0xffff0000, %s' % (v(XF + 2 * i + 1), v(XR + i)))
        k.e('v_lshlrev_b32 %s, 16, %s' % (v(DF + 2 * i), v(DR + i)))
        k.e('v_and_b32 %s, 0xffff0000, %s' % (v(DF + 2 * i + 1), v(DR + i)))
    k.e('v_lshlrev_b32 %s, 16, %s' % (v(B2R), v(B2R)))
    OMG = 101
    k.e('v_sub_f32 %s, 1.0, %s' % (v(OMG), v(GR)))
    rbf(k, OMG, T)
    for r in range(16):
        k.e('v_mul_f32 %s, %s, %s' % (v(XF + r), v(XF + r), v(DF + r)))
    for r in range(0, 16, 2):
        rbf2(k, XF + r, XF + r + 1, T)
        rbf2(k, ACB + r, ACB + r + 1, T)
    for r in range(16):
        k.e('v_add_f32 %s, %s, %s' % (v(ACA + r), v(ACA + r), v(XF + r)))
        k.e('v_add_f32 %s, %s, %s' % (v(ACB + r), v(ACB + r), v(B2R)))
    for r in range(0, 16, 2):
        rbf2(k, ACB + r, ACB + r + 1, T)
    for r in range(16):
        k.e('v_mul_f32 %s, %s, %s' % (v(ACB + r), v(ACB + r), v(OMG)))
        k.e('v_mul_f32 %s, %s, %s' % (v(ACA + r), v(ACA + r), v(GR)))
    for r in range(0, 16, 2):
        rbf2(k, ACB + r, ACB + r + 1, T)
    for r in range(16):
        k.e('v_add_f32 %s, %s, %s' % (v(ACA + r), v(ACA + r), v(ACB + r)))
    for q in range(4):
        k.e('buffer_store_dwordx4 %s, v%d, s[32:35], 0 offen offset:%d' % (v(ACA + 4 * q, 4), P3_OUTA, 32 * q))

def r_role(k, issue, parts):
    if RPF:
        srd(k, 12, WS, 2 << 20)
        k.e('s_sub_u32 s74, s73, 22')
        if not RC:
            k.e('s_lshl_b32 s74, s74, 8')
            k.e('v_add_u32 v4, s74, v0')
            k.e('v_lshlrev_b32 v5, 7, v4')
            for i in range(7):
                k.e('s_mov_b32 s84, %d' % (i * 327680))
                k.e('buffer_load_dword v231, v5, s[12:15], s84 offen')
        else:
            k.e('s_cmp_eq_u32 s3, 0')
            k.e('s_cbranch_scc1 R_NOPF')
            k.e('s_mul_i32 s74, s74, 192')
            k.e('s_sub_u32 s74, s74, 64')
            k.e('v_add_u32 v4, s74, v0')
            k.e('v_lshlrev_b32 v5, 7, v4')
            for i in range(9):
                k.e('s_mov_b32 s84, %d' % (i * 1920 * 128))
                k.e('buffer_load_dword v231, v5, s[12:15], s84 offen')
            k.label('R_NOPF')
    t_eload(k, 'R')
    t_scale(k, 0, 16)
    t_echeck(k, 'R')
    k.e('s_waitcnt lgkmcnt(0)')
    k.e('s_barrier')
    t_uread(k)
    k.e('s_waitcnt lgkmcnt(0)')
    t_carry(k, 0); t_carry(k, 1)
    for q in range(4): t_hb(k, q)
    k.e('s_waitcnt lgkmcnt(0)')
    t_tread(k)
    k.e('s_waitcnt lgkmcnt(0)')
    t_tstore(k)
    if not RB:
        k.e('s_waitcnt vmcnt(0)')
        k.e('s_barrier')
        emit_items(k, flag_store(k, 'R_HBFL', 's99', 1))
    if PFX:
        srd(k, 20, A_CRE, 1 << 19); srd(k, 24, A_CIM, 1 << 19); srd(k, 28, B_W2, 1376 * 4096)
        k.e('s_sub_u32 s74, s73, 22')
        k.e('s_lshl_b32 s74, s74, 8')
        k.e('v_add_u32 v4, s74, v0')
        k.e('v_lshlrev_b32 v5, 7, v4')
        k.e('buffer_load_dword v231, v5, s[20:23], 0 offen')
        k.e('buffer_load_dword v231, v5, s[24:27], 0 offen')
        k.e('v_add_u32 v6, 327680, v5')
        k.e('buffer_load_dword v231, v6, s[20:23], 0 offen')
        k.e('buffer_load_dword v231, v6, s[24:27], 0 offen')
    if PFX and not WPF:
        k.e('v_lshrrev_b32 v5, 2, v4')
        k.e('v_lshlrev_b32 v5, 12, v5')
        k.e('v_and_b32 v6, 3, v4')
        k.e('v_lshl_add_u32 v5, v6, 7, v5')
        k.e('s_lshl_b32 s75, s72, 9')
        k.e('v_add_u32 v5, s75, v5')
        k.e('v_add_u32 v6, 2621440, v5')
        k.e('v_add_u32 v7, 5242880, v5')
        if RW:
            for i in range(3): k.e('v_mov_b32 v%d, v%d' % (152 + i, 5 + i))
        else:
            k.e('buffer_load_dword v231, v5, s[28:31], 0 offen')
            k.e('buffer_load_dword v231, v6, s[28:31], 0 offen')
            k.e('buffer_load_dword v231, v7, s[28:31], 0 offen')
    if RB:
        k.e('s_waitcnt vmcnt(%d)' % (7 if PFX else 0))
        k.e('s_barrier')
        emit_items(k, flag_store(k, 'R_HBFL', 's99', 1))
    k.tl(5)
    for i in range(5): p3_setup(k, i)
    k.e(HBL)
    k.e('s_waitcnt vmcnt(0)')
    k.tl(6)
    hb_check(k, 'R')
    for g in range(32, 32 + DIST):
        if g == HBC + DIST:
            for g2 in range(32, g):
                A, B = parts(g2)
                emit_items(k, B[0] + B[1])
        for grp in issue(g): emit_items(k, grp)
    if RW:
        assert E31 and UT and HPF and not WPF and PFX
        if RW == 2: k.e('buffer_load_dword v231, v230, s[16:19], 0 offen')
        for i in range(3): k.e('buffer_load_dword v231, v%d, s[28:31], 0 offen' % (152 + i))
    elif E31:
        if HPF: k.e('buffer_load_dword v231, v230, s[16:19], 0 offen')
        for q in range((2 if UT else 4) + WPF): k.e('buffer_load_dword v231, v226, s[16:19], s97 offen')
    k.e('s_branch G32')
def gen_fused():
    k = Kern('gated_mix__ssm_conv_s5__mixer_token_mlp__prompt_kernel')
    stages, issue, parts = g_stages(k)
    def setup2():
        fc1_setup2(k)
        if PF: fc1_setup_pf(k)
    hooks = dict(setup=lambda: fc1_setup(k), setup2=setup2, Apart=lambda g: parts(g)[0],
                 A={3: [0, 1], 4: [2], 5: [3, 4], 7: [5, 6], 8: [7]})
    gen_p1(k, hooks)
    k.e('s_cmp_lt_u32 s73, 22')
    k.e('s_cbranch_scc1 F_ROLE')
    q = list(k.vmq)
    r_role(k, issue, parts)
    k.vmq = q
    k.label('F_ROLE')
    for g in range(8):
        B = parts(g)[1]
        emit_items(k, B[0] + B[1])
        if g == EC - 1: t_eload(k, 'F')
        if g in PRO: emit_items(k, pf_slot())
        if (PFY == 3 and g == 7) or PFY - 4 == g: k.vm('buffer_load_dword v231, v198, s[4:7], 0 offen', 'pf')
    k.stamp(15)
    g_run(k, stages)
    k.label('K_END')
    k.e('s_endpgm')
    return finish(k, 368 if KS else 320, 102)

def main():
    hdr = open('gated_mix__ssm_conv_s5__mixer_token_mlp__prompt.s.ref').read().split('\n')
    top = []
    for l in hdr:
        if l.startswith(';') and '@launch' not in l:
            top.append(l)
        elif not l.startswith(';'):
            break
    top.append('; @launch grid=(256,1,1) block=(256,1,1) lds=148736')
    top.append('.amdgcn_target "amdgcn-amd-amdhsa--gfx950"')
    top.append('.text')
    ks = [gen_fused()]
    body = []
    for b, d in ks:
        body += b
    body.append('.section .rodata,"a"')
    for b, d in ks:
        body += d
    out = '\n'.join(top + body) + '\n'
    path = sys.argv[1]
    open(path, 'w').write(out)
    print('wrote', path, len(out), 'bytes')

if __name__ == '__main__':
    main()
```

```python
import sys, os, struct
DEBUG = int(os.environ.get('DEBUG', '0'))
DBGWG = int(os.environ.get('DBGWG', '0'))
TL = int(os.environ.get('TL', '0'))
PF = int(os.environ.get('PF', '0'))
PFX = int(os.environ.get('PFX', '1'))
PRO = eval(os.environ.get('PRO', '(1,7)'))
PF2 = eval(os.environ.get('PF2', '(1,9)'))

WS_H  = 0
WS_G  = 2 << 20
WS_E  = 12 << 20
WS_FA = 13 << 20
WS_FB = WS_FA + 16384
WS_FU = WS_FA + 32768
WS_HB = 16 << 20
WS_U  = 20 << 20
WS_SZ = 24 << 20
if DEBUG or TL: WS_SZ = 64 << 20
UP = 2816
LOG2E = 0x3fb8aa3b
INV2PI = 0x3e22f983
UC = int(os.environ.get('UC', '12'))
UW = int(os.environ.get('UW', '2'))
FHST = int(os.environ.get('FHST', '3'))
EC = int(os.environ.get('EC', '6'))
HBP = int(os.environ.get('HBP', '2'))
HBF = int(os.environ.get('HBF', '0'))
HBLG = int(os.environ.get('HBLG', '26'))
HBC = int(os.environ.get('HBC', '30'))
RPF = int(os.environ.get('RPF', '1'))
PFXST = int(os.environ.get('PFXST', '5'))
PFX2 = int(os.environ.get('PFX2', str(PFXST)))
PM = int(os.environ.get('PM', '0'))
E31 = int(os.environ.get('E31', '1'))
EPS = int(os.environ.get('EPS', '1'))
PPL = int(os.environ.get('PPL', '0'))
PSL = int(os.environ.get('PSL', '4'))
UPF = int(os.environ.get('UPF', '0'))
EPL = int(os.environ.get('EPL', '37'))
RB = int(os.environ.get('RB', '0'))
RC = int(os.environ.get('RC', '1'))
TLX = int(os.environ.get('TLX', '0'))
KS = int(os.environ.get('KS', '1'))
UB = int(os.environ.get('UB', '1'))
UT = int(os.environ.get('UT', '1'))
OT = int(os.environ.get('OT', '1'))
XT = int(os.environ.get('XT', '1'))
D7 = int(os.environ.get('D7', '1'))
M48 = int(os.environ.get('M48', '1'))
HPF = int(os.environ.get('HPF', '1'))
WI = int(os.environ.get('WI', '1'))
WPF = int(os.environ.get('WPF', '0'))
CPF = int(os.environ.get('CPF', '0'))
RW = int(os.environ.get('RW', '0'))
LNST = int(os.environ.get('LNST', '0'))
PF0 = int(os.environ.get('PF0', '0'))
OPOL = os.environ.get('OPOL', ' sc0 sc1')
FM = int(os.environ.get('FM', '0'))
K2 = int(os.environ.get('K2', '0'))
PARE = int(os.environ.get('PARE', '0'))
PFY = int(os.environ.get('PFY', '0'))
TMO = 1 << 13

class Kern:
    def __init__(self, name):
        self.name = name
        self.L = []
        self.vmq = []
        self.nlab = 0
    def e(self, s):
        self.L.append('    ' + s)
    def c(self, s):
        self.L.append('    ; ' + s)
    def label(self, l):
        self.L.append(l + ':')
    def vm(self, s, tag):
        self.e(s); self.vmq.append((tag, 1))
    def mark(self, tag):
        self.vmq.append((tag, 0))
    def wait_vm(self, tag):
        idxs = [i for i, t in enumerate(self.vmq) if t[0] == tag]
        if not idxs:
            return
        idx = idxs[-1]
        n = sum(t[1] for t in self.vmq[idx + 1:])
        self.e('s_waitcnt vmcnt(%d)' % min(n, 63))
        self.vmq = self.vmq[idx + 1:]
    def wait_vm_all(self):
        self.e('s_waitcnt vmcnt(0)'); self.vmq = []
    def stamp(self, i):
        if not DEBUG: return
        self.e('s_memtime s[94:95]')
        self.e('s_waitcnt lgkmcnt(0)')
        self.e('v_writelane_b32 v%d, s94, %d' % (255 - i // 64, i % 64))
    def tl(self, i):
        if not TL: return
        self.e('s_memrealtime s[94:95]')
        self.e('s_waitcnt lgkmcnt(0)')
        self.e('v_writelane_b32 v252, s94, %d' % i)
    def tlc(self, i):
        if not TL: return
        self.e('s_memtime s[94:95]')
        self.e('s_waitcnt lgkmcnt(0)')
        self.e('v_writelane_b32 v252, s94, %d' % i)
    def flush_dbg(self):
        if not (DEBUG or TL): return
        self.nlab += 1
        lab = '%s_DBG%d' % (self.name, self.nlab)
        self.e('s_cmp_lg_u32 s3, 0')
        self.e('s_cbranch_scc1 %s' % lab)
        self.e('v_and_b32 v251, 63, v0')
        self.e('v_lshlrev_b32 v251, 2, v251')
        if TL:
            self.e('s_lshl_b32 s94, s2, 8')
            self.e('s_add_u32 s94, s94, %d' % (32 << 20))
            self.e('buffer_store_dword v252, v251, s[16:19], s94 offen')
        if DEBUG:
            self.e('s_cmp_lg_u32 s2, %d' % DBGWG)
            self.e('s_cbranch_scc1 %s' % lab)
            self.e('s_mov_b32 s94, %d' % (33 << 20))
            self.e('buffer_store_dword v255, v251, s[16:19], s94 offen')
            self.e('buffer_store_dword v254, v251, s[16:19], s94 offen offset:256')
            self.e('buffer_store_dword v253, v251, s[16:19], s94 offen offset:512')
        self.label(lab)
    def nop(self, n):
        while n > 0:
            k = min(n, 16)
            self.e('s_nop %d' % (k - 1)); n -= k
def v(i, n=1):
    return 'v%d' % i if n == 1 else 'v[%d:%d]' % (i, i + n - 1)
def a(i, n=1):
    return 'a%d' % i if n == 1 else 'a[%d:%d]' % (i, i + n - 1)
def s(i, n=1):
    return 's%d' % i if n == 1 else 's[%d:%d]' % (i, i + n - 1)

def P(k): return 36 + 2 * k
A_X, A_LRE, A_LIM, A_BRE, A_BIM, A_CRE, A_CIM, A_LDT, A_DSK, B_X, B_W1, B_B1, B_W2, B_B2, GATE, OUT, DBG, WS = range(18)

def load_kernargs(k):
    k.e('s_load_dwordx16 s[36:51], s[0:1], 0')
    k.e('s_load_dwordx16 s[52:67], s[0:1], 64')
    k.e('s_load_dwordx4 s[68:71], s[0:1], 128')

def srd(k, dst, ptr, nbytes):
    k.e('s_mov_b32 s%d, s%d' % (dst, P(ptr)))
    k.e('s_and_b32 s%d, s%d, 0xffff' % (dst + 1, P(ptr) + 1))
    k.e('s_mov_b32 s%d, 0x%x' % (dst + 2, nbytes))
    k.e('s_mov_b32 s%d, 0x00020000' % (dst + 3))

def cfma(k, dr, di, ar, ai, br, bi, cr, ci):
    k.e('v_fma_f32 %s, %s, %s, %s' % (v(dr), v(ar), v(br), v(cr)))
    k.e('v_fma_f32 %s, %s, %s, %s' % (v(di), v(ar), v(bi), v(ci)))
    k.e('v_fma_f32 %s, -%s, %s, %s' % (v(dr), v(ai), v(bi), v(dr)))
    k.e('v_fma_f32 %s, %s, %s, %s' % (v(di), v(ai), v(br), v(di)))

def cmul(k, dr, di, ar, ai, br, bi):
    k.e('v_mul_f32 %s, %s, %s' % (v(dr), v(ar), v(br)))
    k.e('v_mul_f32 %s, %s, %s' % (v(di), v(ar), v(bi)))
    k.e('v_fma_f32 %s, -%s, %s, %s' % (v(dr), v(ai), v(bi), v(dr)))
    k.e('v_fma_f32 %s, %s, %s, %s' % (v(di), v(ai), v(br), v(di)))

def rbf(k, a, t):
    k.e('v_cvt_pk_bf16_f32 %s, %s, %s' % (v(t), v(a), v(a)))
    k.e('v_lshlrev_b32 %s, 16, %s' % (v(a), v(t)))

def rbf2(k, a, b, t):
    k.e('v_cvt_pk_bf16_f32 %s, %s, %s' % (v(t), v(a), v(b)))
    k.e('v_lshlrev_b32 %s, 16, %s' % (v(a), v(t)))
    k.e('v_and_b32 %s, 0xffff0000, %s' % (v(b), v(t)))

def lam_params(k, lre, lim, ldt, Lr, Li, t0, t1):
    k.e('v_lshlrev_b32 %s, 16, %s' % (v(lre), v(lre)))
    k.e('v_lshlrev_b32 %s, 16, %s' % (v(lim), v(lim)))
    k.e('v_lshlrev_b32 %s, 16, %s' % (v(ldt), v(ldt)))
    k.e('v_mul_f32 %s, 0x%x, %s' % (v(t0), LOG2E, v(ldt)))
    k.e('v_exp_f32 %s, %s' % (v(t0), v(t0)))
    k.nop(1)
    rbf(k, t0, t1)
    k.e('v_mul_f32 %s, %s, %s' % (v(t1), v(t0), v(lre)))
    k.e('v_mul_f32 %s, %s, %s' % (v(t0), v(t0), v(lim)))
    k.e('v_mul_f32 %s, 0x%x, %s' % (v(t1), LOG2E, v(t1)))
    k.e('v_mul_f32 %s, 0x%x, %s' % (v(t0), INV2PI, v(t0)))
    k.e('v_exp_f32 %s, %s' % (v(t1), v(t1)))
    k.e('v_fract_f32 %s, %s' % (v(t0), v(t0)))
    k.e('v_cos_f32 %s, %s' % (v(Lr), v(t0)))
    k.e('v_sin_f32 %s, %s' % (v(Li), v(t0)))
    k.nop(1)
    k.e('v_mul_f32 %s, %s, %s' % (v(Lr), v(Lr), v(t1)))
    k.e('v_mul_f32 %s, %s, %s' % (v(Li), v(Li), v(t1)))

def finish(k, nvgpr, nsgpr=96):
    out = []
    out.append('.globl %s' % k.name)
    out.append('.p2align 8')
    out.append('.type %s,@function' % k.name)
    out.append('%s:' % k.name)
    out += k.L
    desc = []
    desc.append('.p2align 6')
    desc.append('.amdhsa_kernel %s' % k.name)
    desc.append('  .amdhsa_next_free_vgpr %d' % nvgpr)
    desc.append('  .amdhsa_next_free_sgpr %d' % nsgpr)
    desc.append('  .amdhsa_accum_offset 256')
    desc.append('  .amdhsa_group_segment_fixed_size 0')
    desc.append('  .amdhsa_kernarg_size 144')
    desc.append('  .amdhsa_user_sgpr_count 2')
    desc.append('  .amdhsa_user_sgpr_kernarg_segment_ptr 1')
    desc.append('  .amdhsa_system_sgpr_workgroup_id_x 1')
    desc.append('.end_amdhsa_kernel')
    return out, desc

def dma_voff(k, dst, rowbase_s, pitch_s, colbase_s, tr, I3, I4, I7, tmp, hb=False):
    for j in range(2):
        if tr:
            k.e('v_and_b32 %s, 1, %s' % (v(tmp), v(I4)))
            k.e('v_lshlrev_b32 %s, 2, %s' % (v(tmp), v(tmp)))
        else:
            k.e('v_add_u32 %s, %d, %s' % (v(tmp), 4 * j, v(I4)))
            k.e('v_and_b32 %s, 7, %s' % (v(tmp), v(tmp)))
        k.e('v_xor_b32 %s, %s, %s' % (v(tmp), v(tmp), v(I7)))
        if hb:
            k.e('v_and_b32 %s, 4, %s' % (v(dst + j), v(tmp)))
            k.e('v_add_u32 %s, %s, %s' % (v(tmp), v(tmp), v(dst + j)))
        k.e('v_lshlrev_b32 %s, 4, %s' % (v(tmp), v(tmp)))
        k.e('v_add_u32 %s, s%d, %s' % (v(dst + j), rowbase_s, v(I3)))
        if j:
            k.e('v_add_u32 %s, 8, %s' % (v(dst + j), v(dst + j)))
        k.e('v_mul_lo_u32 %s, %s, s%d' % (v(dst + j), v(dst + j), pitch_s))
        k.e('v_add_u32 %s, %s, %s' % (v(dst + j), v(dst + j), v(tmp)))
        k.e('v_add_u32 %s, s%d, %s' % (v(dst + j), colbase_s, v(dst + j)))
        if j:
            k.e('v_subrev_u32 %s, 1024, %s' % (v(dst + j), v(dst + j)))

def pat_direct(k, dst, sub_s, base, LANE, t0, t1):
    k.e('v_and_b32 %s, 31, %s' % (v(t0), v(LANE)))
    k.e('v_lshrrev_b32 %s, 1, %s' % (v(t1), v(t0)))
    k.e('v_and_b32 %s, 7, %s' % (v(t1), v(t1)))
    k.e('v_lshrrev_b32 %s, 5, %s' % (v(dst), v(LANE)))
    k.e('v_xor_b32 %s, %s, %s' % (v(t1), v(t1), v(dst)))
    k.e('v_lshlrev_b32 %s, 4, %s' % (v(t1), v(t1)))
    k.e('v_lshl_add_u32 %s, %s, 7, %s' % (v(t1), v(t0), v(t1)))
    k.e('v_add_u32 %s, s%d, %s' % (v(t1), sub_s, v(t1)))
    if base:
        k.e('v_add_u32 %s, %d, %s' % (v(t1), base, v(t1)))
    for kk in range(4):
        k.e('v_xor_b32 %s, %d, %s' % (v(dst + kk), kk << 5, v(t1)))
        k.e('v_add_u32 %s, 65536, %s' % (v(dst + 4 + kk), v(dst + kk)))

def pat_tr(k, dst, subchunk_s, base, LANE, t0, t1, t2):
    k.e('v_and_b32 %s, 15, %s' % (v(t0), v(LANE)))
    k.e('v_lshrrev_b32 %s, 4, %s' % (v(t1), v(LANE)))
    k.e('v_and_b32 %s, 1, %s' % (v(t1), v(t1)))
    k.e('v_lshlrev_b32 %s, 1, %s' % (v(t1), v(t1)))
    k.e('v_bfe_u32 %s, %s, 1, 1' % (v(t2), v(t0)))
    k.e('v_add_u32 %s, %s, %s' % (v(t1), v(t1), v(t2)))
    k.e('v_add_u32 %s, s%d, %s' % (v(t1), subchunk_s, v(t1)))
    k.e('v_bfe_u32 %s, %s, 3, 1' % (v(t2), v(t0)))
    k.e('v_lshlrev_b32 %s, 2, %s' % (v(t2), v(t2)))
    k.e('v_xor_b32 %s, %s, %s' % (v(t1), v(t1), v(t2)))
    k.e('v_lshlrev_b32 %s, 4, %s' % (v(t1), v(t1)))
    k.e('v_and_b32 %s, 1, %s' % (v(t2), v(t0)))
    k.e('v_lshl_add_u32 %s, %s, 3, %s' % (v(t1), v(t2), v(t1)))
    k.e('v_lshrrev_b32 %s, 2, %s' % (v(t2), v(t0)))
    k.e('v_lshrrev_b32 %s, 5, %s' % (v(t0), v(LANE)))
    k.e('v_lshl_add_u32 %s, %s, 3, %s' % (v(t2), v(t0), v(t2)))
    k.e('v_lshl_add_u32 %s, %s, 7, %s' % (v(dst), v(t2), v(t1)))
    if base:
        k.e('v_add_u32 %s, %d, %s' % (v(dst), base, v(dst)))
    k.e('v_add_u32 %s, 65536, %s' % (v(dst + 1), v(dst)))

def read_frag(k, dstreg, mode, pat, slot, kk):
    sset = slot // 4; off = (slot % 4) * 16384
    if mode == 'd':
        k.e('ds_read_b128 %s, %s offset:%d' % (a(dstreg, 4), v(pat + 4 * sset + kk), off))
        return 1
    else:
        k.e('ds_read_b64_tr_b16 %s, %s offset:%d' % (a(dstreg, 2), v(pat + sset), off + kk * 2048))
        k.e('ds_read_b64_tr_b16 %s, %s offset:%d' % (a(dstreg + 2, 2), v(pat + sset), off + kk * 2048 + 512))
        return 2


def emit_items(k, items):
    for it in items:
        if it[0] == 'e': k.e(it[1])
        elif it[0] == 'w': k.wait_vm(it[1])
        elif it[0] == 'm': k.mark(it[1])
        elif it[0] == 'f': it[1]()
        else: k.vm(it[1], it[2])

def capture(k, fns):
    out = []
    sv = (k.e, k.vm, k.mark, k.wait_vm, k.label)
    k.e = lambda s_: out.append(('e', s_))
    k.vm = lambda s_, t: out.append(('v', s_, t))
    k.mark = lambda t: out.append(('m', t))
    k.wait_vm = lambda t: out.append(('w', t))
    k.label = lambda l: out.append(('e', l + ':'))
    for f in fns: emit_items(k, f())
    del k.e, k.vm, k.mark, k.wait_vm, k.label
    return out

def split_items(items, n):
    ok = [True] * (len(items) + 1)
    pend = set()
    hold = False
    for i, it in enumerate(items):
        if pend or hold: ok[i] = False
        hold = False
        if it[0] in 'ev':
            l = it[1]
            if l.endswith(':'): pend.discard(l[:-1])
            elif l.startswith('s_cbranch') or l.startswith('s_branch'): pend.add(l.split()[1])
            elif l.startswith('s_cmp') or l.startswith('s_nop') or l.split(',')[0].split()[-1] in ('s84', 's85', 'm0', 'exec', 's[84:85]'): hold = True
    res = []; start = 0
    for c in range(1, n):
        tgt = max(start, (len(items) * c + n - 1) // n)
        while tgt < len(items) and not ok[tgt]: tgt += 1
        res.append(items[start:tgt]); start = tgt
    res.append(items[start:])
    return res

SLOT0 = 3
ILV = int(os.environ.get('ILV', '0'))
DIST = int(os.environ.get('DIST', '6'))
HALF = int(os.environ.get('HALF', '0'))
def gemm_loop(k, stages, NS, FBUF, sb=0):
    n = len(stages)
    def mfma(st, kk):
        S = stages[st]
        FA, FB = FBUF[st & 1]
        if S.get('ks'):
            m, n = ((0, 1), (1, 0), (1, 1), (0, 0))[kk]
            d = v(S['acc'], 16) if kk == 3 else a(64 + 16 * kk, 16)
            k.e('v_mfma_f32_32x32x16_bf16 %s, %s, %s, %s' % (d, a(FA + 4 * m, 4), a(FA + 8 + 4 * n, 4), '0' if S['first'] else d))
            return
        if S.get('k2'):
            j, own = kk & 1, kk >> 1
            d = v(S['acc'], 16) if own else a(64, 16)
            k.e('v_mfma_f32_32x32x16_bf16 %s, %s, %s, %s' % (d, a(FA + (0 if own else 8) + 4 * j, 4), a(FB + 4 * j, 4), '0' if (S['first'] and j == 0) else d))
            return
        c = '0' if (S['first'] and kk == 0) else v(S['acc'], 16)
        k.e('v_mfma_f32_32x32x16_bf16 %s, %s, %s, %s' % (v(S['acc'], 16), a(FA + 4 * kk, 4), a(FB + 4 * kk, 4), c))
    for st in range(n):
        S = stages[st]
        if S.get('early'):
            k.e('s_waitcnt lgkmcnt(0)')
            for kk in range(4):
                mfma(st - 1, kk)
                if S.get('early_ilv'): S['early_ilv'](kk)
            S['early']()
        if S.get('label'): k.label(S['label'])
        k.wait_vm('st%d' % st)
        if not S.get('ks') or S.get('bar'): k.e('s_barrier')
        k.stamp(sb + st)
        for f in S.get('pre', []):
            emit_items(k, f())
        groups = [[], [], [], []]
        if st + DIST >= NS and st + DIST < n:
            groups = stages[st + DIST]['issue'](st + DIST)
            if S.get('noissue'): groups = [[], [], [], []]
            if st >= 1 and stages[st - 1].get('noissue'):
                g0 = stages[st - 1 + DIST]['issue'](st - 1 + DIST)
                groups = [g0[0] + g0[1], g0[2] + g0[3], groups[0] + groups[1], groups[2] + groups[3]]
        if D7 and S.get('ks') and st + DIST < 32:
            groups = [[], [], [], []]
            if 1 <= st < 25:
                g7 = stages[st + 7]['issue'](st + 7)
                groups = [[], g7[0], g7[1] + g7[2], g7[3]]
        slot = (st + SLOT0) % NS
        FA, FB = FBUF[st & 1]
        xs = split_items(capture(k, S.get('ilv', [])), 4)
        if not ILV: xs = [[], [], [], xs[0] + xs[1] + xs[2] + xs[3]]
        for kk in range(4):
            emit_items(k, groups[kk])
            nr = 0
            if S.get('ks'):
                nr += read_frag(k, FA + 4 * kk, 't', (12, 32, 14, 34)[kk], slot, 0)
            elif S.get('k2'):
                sset, off = slot // 4, (slot % 4) * 16384
                j, own = kk & 1, kk >> 1
                k.e('ds_read_b128 %s, v%d offset:%d' % (a(FA + (0 if own else 8) + 4 * j, 4), (144 if own else 148) + 2 * sset + j, off))
                nr += 1
                if not own: nr += read_frag(k, FB + 4 * j, 't', S['patB'], slot, j)
            elif not (HALF and kk >= 2):
                nr += read_frag(k, FA + 4 * kk, S['modeA'], S['patA'], slot, kk)
                nr += read_frag(k, FB + 4 * kk, S['modeB'], S['patB'], slot, kk)
            if st >= 1 and not S.get('early'):
                if DIST < 7 and kk == 0: k.e('s_waitcnt lgkmcnt(%d)' % nr)
                mfma(st - 1, kk)
            emit_items(k, xs[kk])
        for f in S.get('extra', []):
            emit_items(k, f())
        if DIST == 7 or st == n - 1 or S.get('lgk0'): k.e('s_waitcnt lgkmcnt(0)')
    for kk in range(4):
        mfma(n - 1, kk)
        if stages[n - 1].get('last_ilv'): stages[n - 1]['last_ilv'](kk)

def poll_tail(k, lab_chk, lab_ok, reload_lines):
    k.e('s_cmp_eq_u32 s96, 0')
    k.e('s_cbranch_scc1 %s' % lab_ok)
    k.e('s_sub_u32 s96, s96, 1')
    k.e('s_sleep 1')
    for l in reload_lines: k.e(l)
    k.e('s_waitcnt vmcnt(0)')
    k.e('s_branch %s' % lab_chk)
    k.label(lab_ok)

def flag_store(k, lab, soff, nl, cond=None):
    L = [('e', 's_cmp_lg_u32 s3, 0'), ('e', 's_cbranch_scc1 %s' % lab)]
    if cond: L += cond + [('e', 's_cbranch_scc1 %s' % lab)]
    L += [('e', 's_mov_b64 exec, %d' % ((1 << nl) - 1)),
          ('e', 'buffer_store_dword v250, v243, s[16:19], %s offen sc1' % soff),
          ('e', 's_mov_b64 exec, -1'), ('e', '%s:' % lab)]
    return L
SE, SDONE = 64, 65
LR, LI = 184, 185
L2R, L2I, L3R, L3I, L4R, L4I = 186, 187, 188, 189, 190, 191
L32R, L32I = 194, 195
CFR, CFI = 234, 235
L128 = 238
ACR, ACI = 40, 56
EV, OD = 72, 80
CR, CI = 88, 97
EW = 110
EB = 200
UCR = 240
XOFF = 6 * 24576
def gen_p1(k, hooks):
    NS = 6; STG = 24576; NST = 8
    TB = 131072
    k.e('s_cmp_ge_u32 s2, 256')
    k.e('s_cbranch_scc1 K_END')
    load_kernargs(k)
    k.e('s_memrealtime s[84:85]')
    k.tl(0)
    k.tlc(11)
    k.e('v_and_b32 v1, 63, v0')
    k.e('v_lshrrev_b32 v2, 6, v0')
    k.e('s_mov_b32 s96, %d' % TMO)
    k.e('v_readfirstlane_b32 s3, v2')
    k.e('s_and_b32 s72, s2, 7')
    k.e('s_lshr_b32 s73, s2, 3')
    if M48:
        k.e('s_lshr_b32 s74, s73, 3')
        k.e('s_and_b32 s73, s73, 7')
        k.e('s_and_b32 s75, s72, 1')
        k.e('s_lshl_b32 s75, s75, 3')
        k.e('s_add_u32 s73, s73, s75')
        k.e('s_lshr_b32 s72, s72, 1')
        k.e('s_lshl_b32 s72, s72, 2')
        k.e('s_add_u32 s72, s72, s74')
    else:
        k.e('s_lshr_b32 s74, s73, 4')
        k.e('s_lshl_b32 s72, s72, 1')
        k.e('s_add_u32 s72, s72, s74')
        k.e('s_and_b32 s73, s73, 15')
    k.e('s_lshl_b32 s74, s72, 7')
    k.e('s_lshl_b32 s75, s73, 5')
    XR0, XR1, GW = 168, 172, 176
    PLRE, PLIM, PLDT = 180, 181, 182
    k.e('s_lshl_b32 s76, s73, 3')
    k.e('s_add_u32 s76, s76, s74')
    k.e('s_lshl_b32 s77, s3, 1')
    k.e('s_add_u32 s76, s76, s77')
    k.e('s_lshl_b32 s77, s76, 10')
    k.e('v_lshlrev_b32 v2, 4, v1')
    k.e('v_and_b32 v3, 31, v1')
    k.e('v_add_u32 v14, s75, v3')
    k.e('v_lshlrev_b32 v248, 3, v14')
    k.e('v_lshlrev_b32 v14, 1, v14')
    VA = 8; VB = 12
    k.e('v_lshrrev_b32 v4, 3, v1')
    k.e('v_lshrrev_b32 v5, 4, v1')
    k.e('v_and_b32 v6, 7, v1')
    k.e('s_lshl_b32 s78, s3, 5')
    k.e('s_add_u32 s78, s78, s74')
    for j in range(4):
        k.e('v_add_u32 v7, %d, v5' % (4 * j))
        k.e('v_and_b32 v7, 7, v7')
        k.e('v_xor_b32 v7, v7, v6')
        k.e('v_lshlrev_b32 v7, 4, v7')
        k.e('v_add_u32 %s, s78, v4' % v(VA + j))
        k.e('v_add_u32 %s, %d, %s' % (v(VA + j), 7 * j, v(VA + j)))
        k.e('v_lshlrev_b32 %s, 10, %s' % (v(VA + j), v(VA + j)))
        k.e('v_add_u32 %s, %s, v7' % (v(VA + j), v(VA + j)))
    k.e('s_and_b32 s79, s3, 1')
    k.e('s_lshl_b32 s79, s79, 4')
    k.e('s_add_u32 s79, s79, s75')
    for j in range(2):
        k.e('v_add_u32 v7, %d, v5' % (4 * j))
        k.e('v_and_b32 v7, 7, v7')
        k.e('v_xor_b32 v7, v7, v6')
        k.e('v_lshlrev_b32 v7, 4, v7')
        k.e('v_add_u32 %s, s79, v4' % v(VB + j))
        k.e('v_add_u32 %s, %d, %s' % (v(VB + j), 7 * j, v(VB + j)))
        k.e('v_lshlrev_b32 %s, 10, %s' % (v(VB + j), v(VB + j)))
        k.e('v_add_u32 %s, %s, v7' % (v(VB + j), v(VB + j)))
    k.e('s_lshl_b32 s80, s3, 12')
    k.e('s_lshl_b32 s81, s3, 11')
    k.e('s_add_u32 s81, s81, 16384')
    k.e('v_lshlrev_b32 v242, 11, v4')
    k.e('v_lshl_add_u32 v242, v6, 4, v242')
    k.e('v_lshrrev_b32 v7, 5, v1')
    k.e('v_lshlrev_b32 v233, 2, v7')
    k.e('v_xor_b32 v233, v233, v6')
    k.e('v_lshlrev_b32 v233, 4, v233')
    k.e('v_lshl_add_u32 v233, v4, 7, v233')
    k.e('s_add_u32 s82, s80, %d' % TB)
    k.e('v_add_u32 v233, s82, v233')
    k.e('v_lshlrev_b32 v232, 6, v7')
    k.e('v_lshl_add_u32 v232, v3, 1, v232')
    k.e('v_lshl_add_u32 v232, v7, 9, v232')
    k.e('v_add_u32 v232, s82, v232')
    k.e('v_xor_b32 v249, 64, v232')
    k.e('v_lshlrev_b32 v243, 10, v1')
    k.e('v_lshlrev_b32 v246, 2, v1')
    k.e('s_mov_b32 s97, s72')
    k.e('s_lshl_b32 s98, s78, 11')
    k.e('s_lshl_b32 s99, s73, 7')
    k.e('s_add_u32 s98, s98, s99')
    k.e('s_add_u32 s98, s98, %d' % WS_HB)
    k.e('s_lshl_b32 s99, s72, 7')
    k.e('s_lshl_b32 s100, s73, 2')
    k.e('s_add_u32 s99, s99, s100')
    k.e('s_add_u32 s99, s99, %d' % WS_FB)
    k.e('s_lshl_b32 s89, s72, 6')
    k.e('s_add_u32 s89, s89, s100')
    k.e('s_add_u32 s89, s89, %d' % WS_FA)
    k.e('s_lshl_b32 s88, s73, 10')
    k.e('s_lshl_b32 s100, s3, 8')
    k.e('s_add_u32 s88, s88, s100')
    k.e('s_add_u32 s88, s88, %d' % WS_FA)
    PA = 16; PB = 28
    k.e('v_lshrrev_b32 v4, 5, v1')
    k.e('v_lshrrev_b32 v5, 1, v3')
    k.e('v_and_b32 v5, 7, v5')
    k.e('v_xor_b32 v5, v5, v4')
    k.e('v_lshlrev_b32 v5, 4, v5')
    k.e('v_lshl_add_u32 v5, v3, 7, v5')
    for kk in range(4):
        k.e('v_xor_b32 %s, %d, v5' % (v(PB + kk), kk << 5))
        k.e('v_add_u32 %s, s80, %s' % (v(PA + kk), v(PB + kk)))
        for st in (1, 2):
            k.e('v_add_u32 %s, %d, %s' % (v(PB + 4 * st + kk), 49152 * st, v(PB + kk)))
            k.e('v_add_u32 %s, %d, %s' % (v(PA + 4 * st + kk), 49152 * st, v(PA + kk)))
    if PF0:
        assert M48
        k.e('s_lshr_b32 s90, s2, 3')
        k.e('s_bfe_u32 s91, s2, 0x20001')
        k.e('s_lshl_b32 s91, s91, 5')
        k.e('s_add_u32 s91, s91, s90')
        k.e('s_lshl_b32 s91, s91, 1')
        k.e('s_lshr_b32 s92, s3, 1')
        k.e('s_add_u32 s91, s91, s92')
        k.e('s_and_b32 s92, s2, 1')
        k.e('s_lshl_b32 s92, s92, 5')
        k.e('s_add_u32 s92, s92, s90')
        k.e('s_bitcmp1_b32 s3, 0')
        k.e('s_cselect_b32 s91, s92, s91')
        k.e('s_lshl_b32 s91, s91, 13')
        k.e('v_lshlrev_b32 v197, 7, v1')
    k.e('s_waitcnt lgkmcnt(0)')
    k.stamp(60)
    k.e('s_mov_b32 s54, s89')
    k.e('s_mov_b32 s55, s88')
    srd(k, 4, A_X, 2 << 20)
    k.e('s_cmp_ge_u32 s3, 2')
    k.e('s_cselect_b32 s8, s%d, s%d' % (P(A_BIM), P(A_BRE)))
    k.e('s_cselect_b32 s9, s%d, s%d' % (P(A_BIM) + 1, P(A_BRE) + 1))
    k.e('s_and_b32 s9, s9, 0xffff')
    k.e('s_mov_b32 s10, 0x80000')
    k.e('s_mov_b32 s11, 0x00020000')
    srd(k, 32, GATE, 1024)
    srd(k, 16, WS, WS_SZ)
    srd(k, 12, DBG, 256)
    k.e('s_or_b32 s83, s2, s3')
    k.e('s_cmp_lg_u32 s83, 0')
    k.e('s_cbranch_scc1 P1_NOZ')
    k.e('s_or_b32 s84, s84, 1')
    k.e('v_mov_b32 v6, s84')
    k.e('s_mov_b64 exec, 1')
    k.e('buffer_store_dword v6, off, s[12:15], 0 sc1')
    k.e('s_mov_b64 exec, -1')
    k.label('P1_NOZ')
    def pf0():
        k.e('s_bitcmp1_b32 s3, 0')
        k.e('s_cbranch_scc1 P1_PFB')
        k.e('buffer_load_dword v198, v197, s[4:7], s91 offen')
        k.e('s_branch P1_PFE')
        k.label('P1_PFB')
        k.vm('buffer_load_dword v198, v197, s[8:11], s91 offen', 'pf0')
        k.label('P1_PFE')
    if PF0 == 2: pf0()
    k.vm('buffer_load_dwordx4 %s, v2, s[4:7], s77 offen' % v(XR0, 4), 'ln')
    k.vm('buffer_load_dwordx4 %s, v2, s[4:7], s77 offen offset:1024' % v(XR1, 4), 'ln')
    k.vm('buffer_load_dwordx4 %s, v2, s[32:35], 0 offen' % v(GW, 4), 'ln')
    def par_loads():
        srd(k, 20, A_LRE, 1024); srd(k, 24, A_LIM, 1024); srd(k, 28, A_LDT, 1024)
        k.vm('buffer_load_ushort %s, v14, s[20:23], 0 offen' % v(PLRE), 'par')
        k.vm('buffer_load_ushort %s, v14, s[24:27], 0 offen' % v(PLIM), 'par')
        k.vm('buffer_load_ushort %s, v14, s[28:31], 0 offen' % v(PLDT), 'par')
    if PARE: par_loads()
    def issue_groups(st):
        slot = (st % NS) * STG
        tg = 'b%d' % st
        g = [[('e', 's_mov_b32 s82, %d' % (st * 128)), ('e', 's_add_u32 m0, s80, %d' % slot), ('e', 's_nop 0')], [], [], []]
        for j in range(4):
            g[j // 2].append(('v', 'buffer_load_dwordx4 %s, s[4:7], s82 offen offset:%d lds' % (v(VA + j), 1024 * j), tg))
        g[2] += [('e', 's_add_u32 m0, s81, %d' % slot), ('e', 's_nop 0')]
        for j in range(2):
            g[2 + j].append(('v', 'buffer_load_dwordx4 %s, s[8:11], s82 offen offset:%d lds' % (v(VB + j), 1024 * j), tg))
        return g
    def issue_stage(st):
        for g in issue_groups(st): emit_items(k, g)
    if PF0 == 1: pf0()
    issue_stage(0)
    if PF0 == 3: pf0()
    issue_stage(1)
    issue_stage(2)
    def par1():
        k.wait_vm('par')
        lam_params(k, PLRE, PLIM, PLDT, LR, LI, 192, 193)
        cmul(k, L2R, L2I, LR, LI, LR, LI)
        cmul(k, L3R, L3I, L2R, L2I, LR, LI)
        cmul(k, L4R, L4I, L2R, L2I, L2R, L2I)
    def par2():
        cmul(k, L32R, L32I, L4R, L4I, L4R, L4I)
        cmul(k, 196, 197, L32R, L32I, L32R, L32I)
        cmul(k, L32R, L32I, 196, 197, 196, 197)
        cmul(k, 236, 237, L32R, L32I, L32R, L32I)
        cmul(k, L128, L128 + 1, 236, 237, 236, 237)
        k.e('v_add_f32 v192, -1.0, %s' % v(LR))
        k.e('v_mul_f32 v193, %s, %s' % (v(PLRE), v(PLRE)))
        k.e('v_fmac_f32 v193, %s, %s' % (v(PLIM), v(PLIM)))
        k.e('v_rcp_f32 v193, v193')
        k.e('v_mul_f32 %s, v192, %s' % (v(CFR), v(PLRE)))
        k.e('v_fmac_f32 %s, %s, %s' % (v(CFR), v(LI), v(PLIM)))
        k.e('v_mul_f32 %s, %s, %s' % (v(CFI), v(LI), v(PLRE)))
        k.e('v_fma_f32 %s, -v192, %s, %s' % (v(CFI), v(PLIM), v(CFI)))
        k.e('v_add_f32 v193, v193, v193')
        k.e('v_mul_f32 %s, %s, v193' % (v(CFR), v(CFR)))
        k.e('v_mul_f32 %s, %s, v193' % (v(CFI), v(CFI)))
    if LNST:
        for st_ in (3, 4, 5): issue_stage(st_)
    def ln_part():
        k.stamp(1)
        k.wait_vm('ln')
        k.stamp(2)
        X = [200, 210] if LNST else [100, 110]
        G = 120
        def unpack8(dst, src):
            for i in range(4):
                k.e('v_lshlrev_b32 %s, 16, %s' % (v(dst + 2 * i), v(src + i)))
                k.e('v_and_b32 %s, 0xffff0000, %s' % (v(dst + 2 * i + 1), v(src + i)))
        unpack8(X[0], XR0); unpack8(X[1], XR1); unpack8(G, GW)
        SUM = [130, 131]; GS = [132, 133]; TT = 134
        for r in range(2):
            k.e('v_add_f32 %s, %s, %s' % (v(SUM[r]), v(X[r]), v(X[r] + 1)))
            for i in range(2, 8):
                k.e('v_add_f32 %s, %s, %s' % (v(SUM[r]), v(SUM[r]), v(X[r] + i)))
            for i in range(8):
                k.e('v_mul_f32 %s, %s, %s' % (v(TT + i), v(X[r] + i), v(G + i)))
            for i in range(0, 8, 2):
                rbf2(k, TT + i, TT + i + 1, TT + 8)
            k.e('v_add_f32 %s, %s, %s' % (v(GS[r]), v(TT), v(TT + 1)))
            for i in range(2, 8):
                k.e('v_add_f32 %s, %s, %s' % (v(GS[r]), v(GS[r]), v(TT + i)))
        def wave_reduce(regs, sdst):
            for ctl in ('quad_perm:[1,0,3,2] row_mask:0xf bank_mask:0xf', 'quad_perm:[2,3,0,1] row_mask:0xf bank_mask:0xf',
                        'row_half_mirror row_mask:0xf bank_mask:0xf', 'row_mirror row_mask:0xf bank_mask:0xf',
                        'row_bcast:15 row_mask:0xa bank_mask:0xf', 'row_bcast:31 row_mask:0xc bank_mask:0xf'):
                k.nop(2)
                for r in regs:
                    k.e('v_add_f32_dpp %s, %s, %s %s' % (v(r), v(r), v(r), ctl))
            k.nop(1)
            for r, sd in zip(regs, sdst):
                k.e('v_readlane_b32 s%d, %s, 63' % (sd, v(r)))
            k.nop(2)
        wave_reduce([SUM[0], SUM[1], GS[0], GS[1]], [84, 85, 86, 87])
        if PARE == 1: par1()
        if not LNST: issue_stage(3)
        if PARE == 2: par1()
        MEAN = [140, 141]; SQ = [142, 143]
        for r in range(2):
            k.e('v_mov_b32 %s, 0x3b000000' % v(MEAN[r]))
            k.e('v_mul_f32 %s, s%d, %s' % (v(MEAN[r]), 84 + r, v(MEAN[r])))
            k.e('v_sub_f32 %s, %s, %s' % (v(TT), v(X[r]), v(MEAN[r])))
            k.e('v_mul_f32 %s, %s, %s' % (v(SQ[r]), v(TT), v(TT)))
            for i in range(1, 8):
                k.e('v_sub_f32 %s, %s, %s' % (v(TT), v(X[r] + i), v(MEAN[r])))
                k.e('v_fmac_f32 %s, %s, %s' % (v(SQ[r]), v(TT), v(TT)))
        wave_reduce(SQ, [88, 89])
        if PARE == 1: par2()
        if not LNST: issue_stage(4)
        if PARE == 2: par2()
        HO = [150, 154]
        for r in range(2):
            SD = 144; RC = 145; Q = 146; E_ = 147
            k.e('v_mov_b32 %s, 0x3b000000' % v(SD))
            k.e('v_mul_f32 %s, s%d, %s' % (v(SD), 88 + r, v(SD)))
            rbf(k, SD, TT)
            k.e('v_add_f32 %s, 0x3727c5ac, %s' % (v(SD), v(SD)))
            rbf(k, SD, TT)
            k.e('v_sqrt_f32 %s, %s' % (v(SD), v(SD)))
            k.nop(1)
            rbf(k, SD, TT)
            k.e('v_rcp_f32 %s, %s' % (v(RC), v(SD)))
            rbf(k, MEAN[r], TT)
            for i in range(8):
                k.e('v_sub_f32 %s, %s, %s' % (v(X[r] + i), v(X[r] + i), v(MEAN[r])))
            for i in range(0, 8, 2):
                rbf2(k, X[r] + i, X[r] + i + 1, TT)
            for i in range(8):
                k.e('v_mul_f32 %s, %s, %s' % (v(Q), v(X[r] + i), v(RC)))
                k.e('v_fma_f32 %s, -%s, %s, %s' % (v(E_), v(Q), v(SD), v(X[r] + i)))
                k.e('v_fma_f32 %s, %s, %s, %s' % (v(X[r] + i), v(E_), v(RC), v(Q)))
            for i in range(4):
                k.e('v_cvt_pk_bf16_f32 %s, %s, %s' % (v(HO[r] + i), v(X[r] + 2 * i), v(X[r] + 2 * i + 1)))
            k.e('v_mov_b32 %s, s%d' % (v(GS[r]), 86 + r))
            rbf(k, GS[r], TT)
            k.e('v_mul_f32 %s, 0x%x, %s' % (v(GS[r]), LOG2E | 0x80000000, v(GS[r])))
            k.e('v_exp_f32 %s, %s' % (v(GS[r]), v(GS[r])))
            k.nop(1)
            k.e('v_add_f32 %s, 1.0, %s' % (v(GS[r]), v(GS[r])))
            k.e('v_rcp_f32 %s, %s' % (v(GS[r]), v(GS[r])))
            k.nop(1)
            rbf(k, GS[r], TT)
            if r == 0 and not LNST:
                issue_stage(5)
        k.e('s_add_u32 s83, s77, %d' % WS_H)
        k.vm('buffer_store_dwordx4 %s, v2, s[16:19], s83 offen sc1' % v(HO[0], 4), 'lnst')
        k.vm('buffer_store_dwordx4 %s, v2, s[16:19], s83 offen offset:1024 sc1' % v(HO[1], 4), 'lnst')
        k.e('s_lshr_b32 s83, s76, 3')
        k.e('s_lshl_b32 s83, s83, 7')
        k.e('s_lshl_b32 s84, s3, 3')
        k.e('s_add_u32 s83, s83, s84')
        k.e('s_add_u32 s83, s83, %d' % WS_G)
        k.e('s_mov_b64 exec, 1')
        k.vm('buffer_store_dwordx2 %s, off, s[16:19], s83 sc1' % v(GS[0], 2), 'lnst')
        k.e('s_mov_b64 exec, -1')
        k.e('v_mov_b32 v4, -1'); k.e('v_mov_b32 v5, -1')
        k.e('s_lshl_b32 s95, s72, 12')
        k.e('s_add_u32 s95, s95, %d' % WS_E)
        k.e('s_mov_b32 s%d, s95' % SE)
        k.vm('buffer_store_dwordx2 v[4:5], v248, s[16:19], s95 offen sc1', 'lnst')
        k.e('s_mov_b32 s%d, s3' % SDONE)
        k.e('s_cmp_lg_u32 s3, 0')
        k.e('s_cbranch_scc1 P1_NOGL')
        k.e('buffer_load_dword v250, off, s[12:15], 0 sc1')
        k.label('P1_NOGL')
        k.mark('go')
        if not PARE: par_loads()
    if not LNST: ln_part()
    k.stamp(3)
    FB_ = [(72, 88, 104), (120, 136, 152)]
    FH = 244
    FHL = 'buffer_load_dword %s, v246, s[16:19], s55 offen sc1' % v(FH)
    GOL_ = 'buffer_load_dword v250, off, s[12:15], 0 sc1'
    def mfma(st, kk):
        FA, FBR, FBI = FB_[st & 1]
        c = '0' if (st == 0 and kk == 0) else v(ACR, 16)
        k.e('v_mfma_f32_32x32x16_bf16 %s, %s, %s, %s' % (v(ACR, 16), v(FA + 4 * kk, 4), v(FBR + 4 * kk, 4), c))
        c = '0' if (st == 0 and kk == 0) else v(ACI, 16)
        k.e('v_mfma_f32_32x32x16_bf16 %s, %s, %s, %s' % (v(ACI, 16), v(FA + 4 * kk, 4), v(FBI + 4 * kk, 4), c))
    for st in range(NST):
        if LNST and st == LNST: ln_part()
        if st == FHST: k.wait_vm('lnst')
        k.wait_vm('b%d' % st)
        k.e('s_barrier')
        k.stamp(4 + st)
        if st >= FHST:
            k.e('s_cmp_lg_u32 s%d, 0' % SDONE)
            k.e('s_cbranch_scc1 P1_NOFH%d' % st)
            q = list(k.vmq)
            k.wait_vm('go')
            k.vmq = q
            k.label('P1_GOCHK%d' % st)
            k.e('v_readfirstlane_b32 s84, v250')
            k.e('s_cmp_lg_u32 s84, 0')
            k.e('s_cbranch_scc1 P1_GOOK%d' % st)
            if st == NST - 1:
                poll_tail(k, 'P1_GOCHK%d' % st, 'P1_GOOK%d' % st, [GOL_])
            else:
                k.e(GOL_)
                k.e('s_branch P1_NOFH%d' % st)
                k.label('P1_GOOK%d' % st)
            k.e('s_mov_b64 exec, 0xffff')
            k.e('buffer_store_dword v250, v243, s[16:19], s54 offen sc1')
            k.e('v_mov_b32 v4, %d' % (XOFF + 1024))
            k.e('ds_write_b32 v4, v250')
            k.e('s_mov_b64 exec, -1')
            k.e('s_mov_b32 s%d, 1' % SDONE)
            k.label('P1_NOFH%d' % st)
            k.mark('go')
        if st == 3: hooks['setup']()
        groups = [[], [], [], []]
        if st >= 1 and st + NS - 1 < NST:
            groups = issue_groups(st + NS - 1)
        elif st in hooks['A']:
            groups = []
            for g in hooks['A'][st]: groups += hooks['Apart'](g)
            while len(groups) < 4: groups.append([])
        slot = st % NS
        sset = slot // 2
        off = (slot % 2) * STG
        FA, FBR, FBI = FB_[st & 1]
        for kk in range(4):
            emit_items(k, groups[kk])
            k.e('ds_read_b128 %s, %s offset:%d' % (v(FA + 4 * kk, 4), v(PA + 4 * sset + kk), off))
            k.e('ds_read_b128 %s, %s offset:%d' % (v(FBR + 4 * kk, 4), v(PB + 4 * sset + kk), off + 16384))
            k.e('ds_read_b128 %s, %s offset:%d' % (v(FBI + 4 * kk, 4), v(PB + 4 * sset + kk), off + 16384 + 4096))
            if st >= 1:
                mfma(st - 1, kk)
        if st == 5 and not PARE: par1()
        if st == 6 and not PARE: par2()
        if PFY and st == PFXST:
            srd(k, 20, B_W1, 2048 * 2752)
            k.e('s_lshr_b32 s90, s2, 3')
            k.e('s_mul_i32 s90, s90, 48')
            k.e('s_mul_i32 s91, s3, 12')
            k.e('s_add_u32 s90, s90, s91')
            k.e('s_add_u32 s90, s90, 512')
            k.e('s_and_b32 s92, s2, 7')
            k.e('s_mul_i32 s92, s92, 22')
            k.e('s_lshr_b32 s92, s92, 3')
            k.e('s_lshl_b32 s92, s92, 7')
            k.e('s_mov_b32 s91, 2752')
            k.e('v_mul_u32_u24 v4, 52, v1')
            k.e('v_lshrrev_b32 v4, 8, v4')
            k.e('v_mul_u32_u24 v5, 5, v4')
            k.e('v_sub_u32 v5, v1, v5')
            k.e('v_add_u32 v4, s90, v4')
            k.e('v_mul_lo_u32 v4, v4, s91')
            k.e('v_lshl_add_u32 v4, v5, 7, v4')
            k.e('v_add_u32 v198, s92, v4')
            if PFY > 1:
                k.e('s_cmp_lt_u32 s101, 22')
                k.e('s_cbranch_scc1 P1_NOPFY')
                k.e('buffer_load_dword v231, v198, s[20:23], 0 offen')
                k.label('P1_NOPFY')
            else: k.vm('buffer_load_dword v231, v198, s[20:23], 0 offen', 'pf')
        elif PFX and st in (PFXST, PFX2):
            srd(k, 20, B_W1, 2048 * 2752)
            k.e('s_lshr_b32 s90, s2, 3')
            k.e('s_lshl_b32 s90, s90, 6')
            k.e('s_lshl_b32 s91, s3, 4')
            k.e('s_add_u32 s90, s90, s91')
            k.e('s_and_b32 s92, s2, 7')
            if FM: k.e('s_lshr_b32 s92, s92, 1')
            k.e('s_mul_i32 s92, s92, 22')
            k.e('s_lshr_b32 s92, s92, %d' % (2 if FM else 3))
            k.e('s_lshl_b32 s92, s92, 7')
            k.e('s_mov_b32 s93, 2752')
            k.e('v_lshrrev_b32 v4, 2, v1')
            k.e('v_add_u32 v4, s90, v4')
            k.e('v_mul_lo_u32 v4, v4, s93')
            k.e('v_and_b32 v5, 3, v1')
            k.e('v_lshl_add_u32 v4, v5, 7, v4')
            if st == PFXST: k.vm('buffer_load_dword v198, v4, s[20:23], s92 offen', 'pf')
            if FM:
                k.e('v_lshlrev_b32 v5, 7, v5')
                k.e('v_sub_u32 v4, v4, v5')
                k.e('v_min_u32 v5, 0xfc, v5')
                k.e('v_add_u32 v4, v4, v5')
            else:
                k.e('v_and_b32 v4, 15, v1')
                k.e('v_add_u32 v4, s90, v4')
                k.e('v_mul_lo_u32 v4, v4, s93')
            if st == PFX2: k.vm('buffer_load_dword v198, v4, s[20:23], s92 offen offset:512', 'pf')
        k.e('s_waitcnt lgkmcnt(0)')
    for kk in range(4):
        mfma(NST - 1, kk)
    k.vm(FHL, 'fh')
    k.e('v_lshlrev_b32 v247, 3, v3')
    k.e('v_add_u32 v247, %d, v247' % XOFF)
    k.e('s_lshl_b32 s84, s3, 8')
    k.e('v_add_u32 v7, s84, v247')
    hooks['setup2']()
    k.stamp(12)
    for j in range(1, 4):
        for q in range(4):
            r = 4 * q + j
            cfma(k, ACR + r, ACI + r, LR, LI, ACR + r - 1, ACI + r - 1, ACR + r, ACI + r)
    for q in range(4):
        k.e('v_mov_b32 %s, %s' % (v(EV + q), v(ACR + 4 * q + 3)))
        k.e('v_mov_b32 %s, %s' % (v(OD + q), v(ACR + 4 * q + 3)))
        k.e('v_mov_b32 %s, %s' % (v(EV + 4 + q), v(ACI + 4 * q + 3)))
        k.e('v_mov_b32 %s, %s' % (v(OD + 4 + q), v(ACI + 4 * q + 3)))
    k.nop(2)
    for q in range(8):
        k.e('v_permlane32_swap_b32 %s, %s' % (v(EV + q), v(OD + q)))
    k.nop(2)
    pr, pi_ = EV, EV + 4
    for i in range(1, 8):
        er = (EV if i % 2 == 0 else OD) + i // 2
        dr, di = (126, 127) if i == 7 else (CR + i, CI + i)
        cfma(k, dr, di, L4R, L4I, pr, pi_, er, er + 4)
        pr, pi_ = dr, di
    k.e('ds_write_b64 v7, v[126:127]')
    k.e('s_waitcnt lgkmcnt(0)')
    k.e('s_barrier')
    for w in range(4):
        k.e('ds_read_b64 %s, v247 offset:%d' % (v(EW + 2 * w, 2), 256 * w))
    k.e('v_mov_b32 v4, %d' % (XOFF + 1024))
    k.e('ds_read_b32 v250, v4')
    k.e('s_waitcnt lgkmcnt(0)')
    cfma(k, 118, 119, L32R, L32I, EW, EW + 1, EW + 2, EW + 3)
    cfma(k, 120, 121, L32R, L32I, 118, 119, EW + 4, EW + 5)
    cfma(k, 122, 123, L32R, L32I, 120, 121, EW + 6, EW + 7)
    k.vm('buffer_store_dwordx2 v[122:123], v248, s[16:19], s%d offen sc1' % SE, 'est')
    for g in hooks['A'][8]:
        for grp in hooks['Apart'](g): emit_items(k, grp)
    if PFY == 2: k.vm('buffer_load_dword v231, v198, s[4:7], 0 offen', 'pf')
    k.stamp(13)
    k.tl(1)
    k.wait_vm('fh')
    k.label('P1_FHCHK')
    k.e('v_cmp_ne_u32 vcc, v250, %s' % v(FH))
    k.e('s_cbranch_vccz P1_FHOK')
    poll_tail(k, 'P1_FHCHK', 'P1_FHOK', [FHL])
    k.e('s_barrier')
    k.stamp(14)
    k.tl(2)

def e_loads(k, sfx):
    L = []
    for c in range(15):
        L.append('s_cmp_le_u32 s97, %d' % c)
        L.append('s_cbranch_scc1 EL%s_%d' % (sfx, k.nlab))
        L.append('s_mov_b32 s84, %d' % (WS_E + c * 4096))
        L.append('buffer_load_dwordx2 %s, v248, s[16:19], s84 offen sc1' % v(EB + 2 * c, 2))
    L.append('EL%s_%d:' % (sfx, k.nlab))
    k.nlab += 1
    return L

def t_eload(k, sfx):
    k.e('s_cmp_lg_u32 s3, 0')
    k.e('s_cbranch_scc1 ELX' + sfx)
    for l in e_loads(k, sfx): k.e(l)
    k.label('ELX' + sfx)
    k.mark('e')

def t_scale(k, r0, r1):
    for r in range(r0, r1):
        k.e('v_mul_f32 v124, %s, %s' % (v(CFI), v(ACR + r)))
        k.e('v_mul_f32 %s, %s, %s' % (v(ACR + r), v(CFR), v(ACR + r)))
        k.e('v_fma_f32 %s, -%s, %s, %s' % (v(ACR + r), v(CFI), v(ACI + r), v(ACR + r)))
        k.e('v_fma_f32 %s, -%s, %s, -v124' % (v(ACI + r), v(CFR), v(ACI + r)))

def t_echeck(k, sfx):
    U = UCR
    k.e('s_cmp_lg_u32 s3, 0')
    k.e('s_cbranch_scc1 ECX' + sfx)
    q = list(k.vmq)
    k.wait_vm('e')
    k.vmq = q
    k.label('ECHK' + sfx)
    k.e('s_mov_b64 s[84:85], 0')
    for c in range(15):
        k.e('s_cmp_le_u32 s97, %d' % c)
        k.e('s_cbranch_scc1 EC2' + sfx)
        k.e('v_cmp_eq_u32 vcc, -1, %s' % v(EB + 2 * c))
        k.e('s_or_b64 s[84:85], s[84:85], vcc')
        k.e('v_cmp_eq_u32 vcc, -1, %s' % v(EB + 2 * c + 1))
        k.e('s_or_b64 s[84:85], s[84:85], vcc')
    k.label('EC2' + sfx)
    k.e('s_cmp_eq_u64 s[84:85], 0')
    k.e('s_cbranch_scc1 EOK' + sfx)
    poll_tail(k, 'ECHK' + sfx, 'EOK' + sfx, e_loads(k, sfx))
    k.e('v_mov_b32 %s, 0' % v(U)); k.e('v_mov_b32 %s, 0' % v(U + 1))
    for c in range(15):
        k.e('s_cmp_le_u32 s97, %d' % c)
        k.e('s_cbranch_scc1 CL' + sfx)
        k.e('v_pk_fma_f32 %s, %s, %s, %s op_sel_hi:[0,1,1]' % (v(EB + 2 * c, 2), v(L128, 2), v(U, 2), v(EB + 2 * c, 2)))
        k.e('v_pk_fma_f32 %s, %s, %s, %s op_sel:[1,1,0] op_sel_hi:[1,0,1] neg_lo:[1,0,0]' % (v(U, 2), v(L128, 2), v(U, 2), v(EB + 2 * c, 2)))
    k.label('CL' + sfx)
    k.e('ds_write_b64 v247, %s' % v(U, 2))
    k.label('ECX' + sfx)
    k.tl(3)

OWR, OWI = 106, 110
def t_uread(k):
    k.e('ds_read_b64 %s, v247' % v(UCR, 2))

def t_carry(k, part):
    U = UCR
    if part == 1: return t_carry1(k)
    cfma(k, 118, 119, L32R, L32I, U, U + 1, EW, EW + 1)
    cfma(k, 120, 121, L32R, L32I, 118, 119, EW + 2, EW + 3)
    cfma(k, 122, 123, L32R, L32I, 120, 121, EW + 4, EW + 5)
    k.e('v_mov_b32 %s, %s' % (v(CR), v(U))); k.e('v_mov_b32 %s, %s' % (v(CI), v(U + 1)))
    for w, (a_, b_) in ((1, (118, 119)), (2, (120, 121)), (3, (122, 123))):
        k.e('s_cmp_eq_u32 s3, %d' % w)
        k.e('s_cselect_b64 vcc, -1, 0')
        k.e('v_cndmask_b32 %s, %s, %s, vcc' % (v(CR), v(CR), v(a_)))
        k.e('v_cndmask_b32 %s, %s, %s, vcc' % (v(CI), v(CI), v(b_)))
    for i in range(0, 3):
        er = (EV if i % 2 == 0 else OD) + i // 2
        cfma(k, CR + i + 1, CI + i + 1, L4R, L4I, CR + i, CI + i, er, er + 4)

def t_carry1(k):
    for i in range(3, 7):
        er = (EV if i % 2 == 0 else OD) + i // 2
        cfma(k, CR + i + 1, CI + i + 1, L4R, L4I, CR + i, CI + i, er, er + 4)
    k.e('v_cmp_lt_u32 vcc, 31, v1')
    k.nop(1)
    for q in range(4):
        k.e('v_cndmask_b32 %s, %s, %s, vcc' % (v(114 + q), v(CR + 2 * q), v(CR + 2 * q + 1)))
        k.e('v_cndmask_b32 %s, %s, %s, vcc' % (v(118 + q), v(CI + 2 * q), v(CI + 2 * q + 1)))
    for q in range(4):
        cmul(k, OWR + q, OWI + q, CFR, CFI, 114 + q, 118 + q)

def t_hb(k, q):
    LP = [(LR, LI), (L2R, L2I), (L3R, L3I), (L4R, L4I)]
    for j in range(4):
        r = 4 * q + j
        lr, li_ = LP[j]
        k.e('v_fma_f32 %s, %s, %s, %s' % (v(ACR + r), v(lr), v(OWR + q), v(ACR + r)))
        k.e('v_fma_f32 %s, -%s, %s, %s' % (v(ACI + r), v(lr), v(OWI + q), v(ACI + r)))
        k.e('v_fma_f32 %s, -%s, %s, %s' % (v(ACR + r), v(li_), v(OWI + q), v(ACR + r)))
        k.e('v_fma_f32 %s, -%s, %s, %s' % (v(ACI + r), v(li_), v(OWR + q), v(ACI + r)))
        k.e('v_cvt_pk_bf16_f32 %s, %s, %s' % (v(ACR + r), v(ACR + r), v(ACI + r)))
        k.e('ds_write_b16 v232, %s offset:%d' % (v(ACR + r), (8 * q + j) * 128))
        k.e('ds_write_b16_d16_hi v249, %s offset:%d' % (v(ACR + r), (8 * q + j) * 128))

def t_tread(k):
    for n in range(4):
        k.e('ds_read_b128 %s, v233 offset:%d' % (v(72 + 4 * n, 4), 1024 * n))

def t_tstore(k):
    for n in range(4):
        k.e('s_add_u32 s84, s98, %d' % (n * 16384))
        k.vm('buffer_store_dwordx4 %s, v242, s[16:19], s84 offen sc1' % v(72 + 4 * n, 4), 'hb')
    k.tl(4)
def fc1_setup(k):
    k.e('s_and_b32 s72, s2, 7')
    k.e('s_lshr_b32 s73, s2, 3')
    k.e('s_mov_b32 s101, s73')
    if FM:
        k.e('s_lshr_b32 s74, s72, 1')
        k.e('s_mul_i32 s74, s74, 22')
        k.e('s_add_u32 s74, s74, s73')
        k.e('s_and_b32 s75, s74, 3')
        k.e('s_and_b32 s76, s72, 1')
        k.e('s_lshl_b32 s76, s76, 2')
        k.e('s_add_u32 s75, s75, s76')
        k.e('s_lshr_b32 s74, s74, 2')
    else:
        k.e('s_mul_i32 s74, s72, 22')
        k.e('s_add_u32 s74, s74, s73')
        k.e('s_and_b32 s75, s74, 7')
        k.e('s_lshr_b32 s74, s74, 3')
    k.e('s_lshl_b32 s100, s75, 7')
    k.e('s_lshl_b32 s76, s74, 2')
    k.e('s_add_u32 s100, s100, s76')
    k.e('s_add_u32 s100, s100, %d' % WS_FU)
    k.e('s_lshl_b32 s75, s75, 6')
    k.e('s_lshl_b32 s74, s74, 6')
    k.e('s_lshr_b32 s76, s3, 1')
    k.e('s_and_b32 s77, s3, 1')
    k.e('v_lshrrev_b32 v2, 5, v1')
    k.e('v_lshlrev_b32 v2, 3, v2')
    k.e('s_lshl_b32 s78, s76, 5')
    k.e('s_add_u32 s78, s78, s74')
    k.e('s_lshl_b32 s79, s78, 1')
    k.e('v_add_u32 v2, s79, v2')
    I3, I4, I7 = 4, 5, 6
    k.e('v_lshrrev_b32 v4, 3, v1'); k.e('v_lshrrev_b32 v5, 4, v1'); k.e('v_and_b32 v6, 7, v1')
    VA, VB = 8, 10
    k.e('s_lshl_b32 s80, s3, 4')
    k.e('s_mov_b32 s81, 2752')
    k.e('s_lshl_b32 s82, s74, 1')
    dma_voff(k, VA, 80, 81, 82, True, I3, I4, I7, 7)
    k.e('s_mov_b32 s81, 1024')
    k.e('s_lshl_b32 s82, s75, 1')
    k.e('s_add_u32 s82, s82, %d' % WS_H)
    dma_voff(k, VB, 80, 81, 82, True, I3, I4, I7, 7)
    k.e('s_lshl_b32 s83, s3, 11')
    srd(k, 4, B_W1, 2048 * 2752)
    k.e('s_cmp_lt_u32 s73, 22')
    k.e('s_cselect_b32 s6, s6, 0')

def fc1_setup2(k):
    PA, PB = 12, 14
    k.e('s_lshl_b32 s86, s76, 2')
    k.e('s_lshl_b32 s87, s77, 2')
    pat_tr(k, PA, 86, 0, 1, 16, 17, 18)
    pat_tr(k, PB, 87, 8192, 1, 16, 17, 18)
    if KS:
        for i in range(4):
            k.e('v_add_u32 v%d, s83, v%d' % (12 + i, 12 + i))
            k.e('v_xor_b32 v%d, 64, v%d' % (32 + i, 12 + i))
    k.e('v_and_b32 v4, 31, v1')
    k.e('s_lshl_b32 s89, s77, 5')
    k.e('s_add_u32 s89, s89, s75')
    k.e('v_add_u32 v4, s89, v4')
    k.e('s_mov_b32 s90, %d' % UP)
    k.e('v_mul_lo_u32 v4, v4, s90')
    k.e('v_add_u32 v199, v4, v2')
    if UT:
        k.e('v_lshrrev_b32 v4, 2, v1')
        k.e('v_add_u32 v4, s89, v4')
        k.e('v_mul_lo_u32 v4, v4, s90')
        k.e('v_and_b32 v5, 3, v1')
        k.e('v_lshl_add_u32 v4, v5, 4, v4')
        k.e('v_add_u32 v199, s79, v4')
    srd(k, 8, B_B1, 2752)
    k.e('s_mov_b32 s93, s78')

def fc1_setup_pf(k):
    k.e('s_mov_b32 s93, 2752')
    k.e('s_cmp_lt_u32 s3, 2')
    k.e('s_cselect_b32 s93, 1024, s93')
    k.e('s_lshl_b32 s92, s93, 9')
    k.e('s_mul_i32 s91, s72, 22')
    k.e('s_lshr_b32 s91, s91, 3')
    k.e('s_lshl_b32 s91, s91, 7')
    k.e('s_cmp_lt_u32 s3, 2')
    k.e('s_cselect_b32 s91, %d, s91' % WS_H)
    k.e('s_cmp_lt_u32 s3, 2')
    k.e('s_cselect_b32 s90, 8, 5')
    k.e('s_and_b32 s89, s3, 1')
    k.e('s_lshl_b32 s89, s89, 3')
    k.e('s_lshl_b32 s88, s73, 4')
    k.e('s_add_u32 s89, s89, s88')
    k.e('v_lshrrev_b32 v4, 3, v1')
    k.e('v_add_u32 v4, s89, v4')
    k.e('v_mul_lo_u32 v4, v4, s93')
    k.e('v_and_b32 v5, 7, v1')
    k.e('v_lshl_add_u32 v230, v5, 7, v4')
    k.e('v_mov_b32 v4, 0x7f000000')
    k.e('v_cmp_gt_u32 vcc, s90, v5')
    k.e('v_cndmask_b32 v230, v4, v230, vcc')
    k.e('s_cmp_lt_u32 s3, 2')
    k.e('s_cselect_b32 s12, s%d, s%d' % (P(WS), P(B_W1)))
    k.e('s_cselect_b32 s13, s%d, s%d' % (P(WS) + 1, P(B_W1) + 1))
    k.e('s_and_b32 s13, s13, 0xffff')
    k.e('s_mov_b32 s14, 0x%x' % (2048 * 2752))
    k.e('s_mov_b32 s15, 0x00020000')
    k.e('s_mov_b32 s93, s78')

def pf_slot():
    if not PF: return []
    return [('v', 'buffer_load_dword v231, v230, s[12:15], s91 offen', 'pf'), ('e', 's_add_u32 s91, s91, s92')]

HBL = 'buffer_load_dword v227, v226, s[16:19], s97 offen sc1'
FUL = 'buffer_load_dword v229, v228, s[16:19], s98 offen sc1'
P3_VC, P3_VH, P3_VU, P3_VW = 200, 202, 204, 206
P3_PA, P3_PB, P3_PT = 180, 188, 196
P3_OUTA = 198

def p3_setup(k, part):
    I3, I4, I7 = 4, 5, 6
    if part == 0:
        k.e('s_and_b32 s72, s2, 7')
        k.e('s_lshr_b32 s73, s2, 3')
        if PM:
            k.e('s_lshr_b32 s74, s73, 2')
            k.e('s_and_b32 s73, s73, 3')
            k.e('s_and_b32 s86, s72, 1')
            k.e('s_lshl_b32 s86, s86, 2')
            k.e('s_add_u32 s73, s73, s86')
            k.e('s_lshr_b32 s72, s72, 1')
            k.e('s_lshl_b32 s72, s72, 3')
            k.e('s_add_u32 s72, s72, s74')
        else:
            k.e('s_lshr_b32 s74, s73, 3')
            k.e('s_lshl_b32 s72, s72, 2')
            k.e('s_add_u32 s72, s72, s74')
            k.e('s_and_b32 s73, s73, 7')
        k.e('s_lshr_b32 s86, s72, 1')
        k.e('s_lshl_b32 s86, s86, 7')
        k.e('s_add_u32 s97, s86, %d' % WS_FB)
        k.e('v_and_b32 v4, 15, v1')
        k.e('v_lshlrev_b32 v226, 2, v4')
        k.e('v_min_u32 v4, 21, v1')
        k.e('v_lshlrev_b32 v228, 2, v4')
        k.e('s_and_b32 s98, s72, 7')
        k.e('s_lshl_b32 s98, s98, 3')
        k.e('s_add_u32 s98, s98, s73')
        k.e('s_lshl_b32 s98, s98, 7')
        k.e('s_add_u32 s98, s98, %d' % WS_FU)
        k.e('s_lshl_b32 s74, s72, 6')
        k.e('s_lshl_b32 s75, s73, 6')
        k.e('s_lshr_b32 s76, s3, 1')
        k.e('s_and_b32 s77, s3, 1')
        k.e('v_and_b32 v3, 31, v1')
        k.e('s_lshl_b32 s78, s77, 5')
        k.e('s_add_u32 s78, s78, s74')
        k.e('v_add_u32 v3, s78, v3')
        k.e('v_lshrrev_b32 v176, 3, v3')
        k.e('v_lshlrev_b32 v176, 7, v176')
        k.e('v_and_b32 v4, 7, v3')
        k.e('v_lshl_add_u32 v176, v4, 2, v176')
        k.e('v_lshlrev_b32 v177, 1, v3')
        k.e('s_lshl_b32 s79, s76, 5')
        k.e('s_add_u32 s79, s79, s75')
        k.e('v_lshrrev_b32 v4, 5, v1')
        k.e('v_lshlrev_b32 v4, 2, v4')
        k.e('v_add_u32 v4, s79, v4')
        k.e('v_lshlrev_b32 v178, 1, v4')
        k.e('v_lshl_add_u32 v179, v3, 10, v178')
        k.e('v_lshlrev_b32 v%d, 1, v179' % P3_OUTA)
        if XT:
            k.e('v_lshrrev_b32 v4, 2, v1')
            k.e('v_add_u32 v4, s78, v4')
            k.e('v_lshlrev_b32 v4, 10, v4')
            k.e('v_and_b32 v5, 3, v1')
            k.e('v_lshl_add_u32 v4, v5, 4, v4')
            k.e('s_lshl_b32 s80, s79, 1')
            k.e('v_add_u32 v179, s80, v4')
        k.e('v_lshrrev_b32 v4, 3, v1'); k.e('v_lshrrev_b32 v5, 4, v1'); k.e('v_and_b32 v6, 7, v1')
        if OT:
            k.e('v_add_u32 v7, s78, v4')
            k.e('v_lshlrev_b32 v7, 11, v7')
            k.e('v_lshl_add_u32 v7, v6, 4, v7')
            k.e('s_lshl_b32 s80, s79, 2')
            k.e('v_add_u32 v%d, s80, v7' % P3_OUTA)
        k.e('s_lshl_b32 s80, s3, 4')
        k.e('s_add_u32 s81, s80, s75')
        k.e('s_add_u32 s82, s80, s74')
    elif part == 1:
        k.e('s_mov_b32 s86, 1024'); k.e('s_mov_b32 s87, 0')
        dma_voff(k, P3_VC, 81, 86, 87, False, I3, I4, I7, 7)
        k.e('s_mov_b32 s86, 2048'); k.e('s_mov_b32 s87, %d' % WS_HB)
        dma_voff(k, P3_VH, 82, 86, 87, False, I3, I4, I7, 7, hb=True)
        if HPF:
            k.e('s_and_b32 s86, s73, 3')
            k.e('s_lshl_b32 s86, s86, 4')
            k.e('s_add_u32 s86, s86, s74')
            k.e('s_lshl_b32 s86, s86, 11')
            k.e('s_add_u32 s86, s86, s87')
            k.e('v_lshlrev_b32 v230, 7, v0')
            k.e('v_add_u32 v230, s86, v230')
    elif part == 2:
        k.e('s_mov_b32 s86, %d' % UP); k.e('s_mov_b32 s87, %d' % WS_U)
        dma_voff(k, P3_VU, 81, 86, 87, False, I3, I4, I7, 7)
        if UPF:
            k.e('s_lshr_b32 s87, s2, 6')
            k.e('s_lshl_b32 s87, s87, 4')
            k.e('s_add_u32 s87, s87, s75')
            k.e('v_lshrrev_b32 v136, 4, v0')
            k.e('v_add_u32 v136, s87, v136')
            k.e('v_mul_lo_u32 v136, v136, s86')
            k.e('v_and_b32 v7, 15, v0')
            k.e('v_lshl_add_u32 v136, v7, 7, v136')
            k.e('v_add_u32 v136, %d, v136' % (WS_U + 768))
        k.e('s_mov_b32 s86, 4096'); k.e('s_lshl_b32 s87, s74, 1')
        dma_voff(k, P3_VW, 80, 86, 87, True, I3, I4, I7, 7)
    elif part == 3:
        k.e('s_lshl_b32 s86, s76, 12')
        k.e('s_lshl_b32 s87, s77, 12')
        k.e('s_lshl_b32 s88, s77, 2')
        pat_direct(k, P3_PA, 86, 0, 1, 113, 114)
        pat_direct(k, P3_PB, 87, 8192, 1, 113, 114)
        pat_tr(k, P3_PT, 88, 8192, 1, 113, 114, 115)
        if K2:
            for i in range(2): k.e('v_add_u32 v%d, s86, v%d' % (P3_PT + i, P3_PT + i))
    elif part == 4:
        srd(k, 20, A_CRE, 1 << 19); srd(k, 24, A_CIM, 1 << 19); srd(k, 28, B_W2, 1376 * 4096); srd(k, 32, OUT, 4 << 20)

def hb_check(k, sfx):
    k.label('HBCHK' + sfx)
    k.e('v_cmp_ne_u32 vcc, v250, v227')
    k.e('s_cbranch_vccz HBOK' + sfx)
    poll_tail(k, 'HBCHK' + sfx, 'HBOK' + sfx, [HBL])
    k.tl(7)

def g_stages(k):
    NS = 8
    VA, VB, PA, PB = 8, 10, 12, 14
    B1R = 128
    ACC = 16
    def b1_loads():
        return [('v', 'buffer_load_dwordx2 %s, v2, s[8:11], 0 offen offset:%d' % (v(B1R + 2 * q, 2), 16 * q), 'b1') for q in range(4)]
    def parts(g):
        slot = ((g + SLOT0) % NS) * 16384
        tg = 'st%d' % g
        if g < 32:
            srdA, srdB, va, vb = 4, 16, VA, VB
            oa, ob = g * 64 * 2752, g * 65536
        else:
            st = g - 32
            if st < 16:
                srdA = 20 if st % 2 == 0 else 24
                oa, ob = (st // 2) * 128, (st // 2) * 256 + (st % 2) * 64
                va, vb, srdB = P3_VC, P3_VH, 16
            else:
                srdA = 16
                oa, ob = (st - 16) * 128, (st - 16) * 262144
                va, vb, srdB = P3_VU, P3_VW, 28
        A = [[('e', 's_mov_b32 s84, %d' % oa), ('e', 's_add_u32 m0, s83, %d' % slot), ('e', 's_nop 0'),
              ('v', 'buffer_load_dwordx4 %s, s[%d:%d], s84 offen lds' % (v(va), srdA, srdA + 3), tg)],
             [('v', 'buffer_load_dwordx4 %s, s[%d:%d], s84 offen offset:1024 lds' % (v(va + 1), srdA, srdA + 3), tg)]]
        B = [[('e', 's_mov_b32 s85, %d' % ob), ('e', 's_add_u32 m0, s83, %d' % (slot + 8192)), ('e', 's_nop 0'),
              ('v', 'buffer_load_dwordx4 %s, s[%d:%d], s85 offen lds' % (v(vb), srdB, srdB + 3), tg)],
             [('v', 'buffer_load_dwordx4 %s, s[%d:%d], s85 offen offset:1024 lds' % (v(vb + 1), srdB, srdB + 3), tg)]]
        return A, B
    GU = 32 + UC
    def issue(g):
        A, B = parts(g)
        if g >= 48 and g - DIST < GU:
            return [[], [], B[0], B[1]]
        if 32 <= g < 48 and g - DIST < HBC:
            return [A[0], A[1], [], []]
        return A + B
    ACA, ACB = 160, 208
    GR, B2R, XR, DR = (224, 225, 112, 120) if EPS else (224, 225, 232, 240)
    stages = []
    for g in range(70):
        if g < 32:
            stages.append(dict(issue=issue, modeA='t', patA=PA, modeB='t', patB=PB, acc=ACC, first=(g == 0), ks=KS))
        elif g < 48:
            stages.append(dict(issue=issue, modeA='d', patA=P3_PA, modeB='d', patB=P3_PB, acc=ACA, first=(g == 32)))
        else:
            stages.append(dict(issue=issue, modeA='d', patA=P3_PA, modeB='t', patB=P3_PT, acc=ACB, first=(g == 48), k2=K2))
    for S in stages: S['pre'] = []; S['extra'] = []; S['ilv'] = []
    def F(fn): return lambda: [('f', fn)]
    assert DIST == 6
    stages[0]['ilv'].append(F(lambda: t_scale(k, 0, 6)))
    stages[1]['ilv'].append(F(lambda: t_scale(k, 6, 11)))
    stages[2]['ilv'].append(F(lambda: t_scale(k, 11, 16)))
    stages[EC]['pre'].append(F(lambda: t_echeck(k, 'F')))
    stages[EC]['lgk0'] = 1
    EU = EC + UB
    stages[EU]['bar'] = 1
    stages[EU]['pre'].append(F(lambda: t_uread(k)))
    stages[EU]['ilv'].append(F(lambda: t_carry(k, 0)))
    stages[EU + 1]['ilv'].append(F(lambda: t_carry(k, 1)))
    for q in range(4):
        stages[EU + 2 + q // HBP]['ilv'].append(F(lambda q=q: t_hb(k, q)))
    GT = EU + 2 + 4 // HBP
    stages[GT]['pre'].append(F(lambda: t_tread(k)))
    stages[GT]['ilv'].append(F(lambda: t_tstore(k)))
    stages[GT + 1]['ilv'].append(b1_loads)
    HBF_ = HBF or GT + 7
    stages[HBF_ - 1]['extra'].append(lambda: [('w', 'hb')])
    stages[HBF_]['pre'].append(lambda: flag_store(k, 'F_HBFL', 's99', 1))
    stages[HBF_]['bar'] = 1
    for i in range(5):
        stages[GT + 2 + i]['ilv'].append(F(lambda i=i: p3_setup(k, i)))
    stages[HBLG]['extra'].append(lambda: [('v', HBL, 'fhb')])
    def hbc():
        hb_check(k, 'F')
        for g in range(32, HBC + DIST):
            A, B = parts(g)
            emit_items(k, B[0] + B[1])
    if TLX: stages[HBC]['pre'].append(F(lambda: k.tl(1)))
    stages[HBC]['pre'].append(lambda: [('w', 'fhb'), ('f', hbc)])
    stages[32]['label'] = 'G32'
    B1F, T, UO = 64, 80, 96
    def f2u(x): return struct.unpack('<I', struct.pack('<f', x))[0]
    C2f = -2.0 * 1.4426950408889634 * 0.7978845608028654
    def b1_unpack():
        for j in range(8):
            k.e('v_lshlrev_b32 %s, 16, %s' % (v(B1F + 2 * j), v(B1R + j)))
            k.e('v_and_b32 %s, 0xffff0000, %s' % (v(B1F + 2 * j + 1), v(B1R + j)))
        k.e('v_mov_b32 v104, 0x%x' % f2u(0.044715 * C2f))
        k.e('v_mov_b32 v105, 0x%x' % f2u(C2f))
        k.e('v_mov_b32 v106, 1.0')
    stages[29]['ilv'].append(F(b1_unpack))
    def ep():
        lab = 'F_EP'
        if not E31:
            k.e('s_cmp_ge_u32 s101, 22')
            k.e('s_cbranch_scc1 %s' % lab)
        k.tl(5)
        if KS:
            if E31:
                k.stamp(142)
                red_write()
                k.stamp(143)
                k.e('s_barrier')
                k.stamp(144)
                red_read()
            else: k.e('s_waitcnt lgkmcnt(8)')
            for i_, P_ in enumerate(RP):
                if E31: k.e('s_waitcnt lgkmcnt(%d)' % (8 - 4 * i_))
                for r in range(0, 16, 2):
                    k.e('v_pk_add_f32 %s, %s, %s' % (v(ACC + r, 2), v(ACC + r, 2), v(P_ + r, 2)))
        else: k.nop(16)
        for r in range(0, 16, 2):
            rbf2(k, ACC + r, ACC + r + 1, T + r)
        for r in range(0, 16, 2):
            k.e('v_pk_add_f32 %s, %s, %s' % (v(ACC + r, 2), v(ACC + r, 2), v(B1F + r, 2)))
        for r in range(0, 16, 2):
            rbf2(k, ACC + r, ACC + r + 1, T + r)
        for r in range(0, 16, 2):
            k.e('v_pk_mul_f32 %s, %s, %s' % (v(T + r, 2), v(ACC + r, 2), v(ACC + r, 2)))
        for r in range(0, 16, 2):
            k.e('v_pk_fma_f32 %s, %s, v[104:105], v[104:105] op_sel:[0,0,1] op_sel_hi:[1,0,1]' % (v(T + r, 2), v(T + r, 2)))
        for r in range(0, 16, 2):
            k.e('v_pk_mul_f32 %s, %s, %s' % (v(T + r, 2), v(T + r, 2), v(ACC + r, 2)))
            k.e('v_exp_f32 %s, %s' % (v(T + r), v(T + r)))
            k.e('v_exp_f32 %s, %s' % (v(T + r + 1), v(T + r + 1)))
        for r in range(0, 16, 2):
            k.e('v_pk_add_f32 %s, %s, v[106:107] op_sel_hi:[1,0]' % (v(T + r, 2), v(T + r, 2)))
            k.e('v_rcp_f32 %s, %s' % (v(T + r), v(T + r)))
            k.e('v_rcp_f32 %s, %s' % (v(T + r + 1), v(T + r + 1)))
        k.e('s_mov_b32 s90, %d' % WS_U)
        for r in range(0, 16, 2):
            k.e('v_pk_mul_f32 %s, %s, %s' % (v(ACC + r, 2), v(ACC + r, 2), v(T + r, 2)))
        for r in range(0, 16, 2):
            k.e('v_cvt_pk_bf16_f32 %s, %s, %s' % (v(UO + r // 2), v(ACC + r), v(ACC + r + 1)))
        k.e('s_cmp_lt_u32 s93, 1376')
        k.e('s_cbranch_scc1 F_ST')
        for j in range(8):
            k.e('v_mov_b32 %s, 0' % v(UO + j))
        k.label('F_ST')
        if UT:
            for q in range(4): k.e('ds_write_b64 v157, %s offset:%d' % (v(UO + 2 * q, 2), 16 * q))
            k.e('s_mov_b32 s91, %d' % (WS_U + 16 * UP))
            k.e('s_waitcnt lgkmcnt(0)')
            k.e('ds_read_b128 %s, v158' % v(T, 4))
            k.e('ds_read_b128 %s, v158 offset:1280' % v(T + 4, 4))
            k.e('s_waitcnt lgkmcnt(1)')
            st_ = (lambda l: k.vm(l, 'ust')) if E31 else k.e
            st_('buffer_store_dwordx4 %s, v199, s[16:19], s90 offen sc1' % v(T, 4))
            k.e('s_waitcnt lgkmcnt(0)')
            st_('buffer_store_dwordx4 %s, v199, s[16:19], s91 offen sc1' % v(T + 4, 4))
        for q in range(0 if UT else 4):
            l = 'buffer_store_dwordx2 %s, v199, s[16:19], s90 offen offset:%d sc1' % (v(UO + 2 * q, 2), 16 * q)
            if E31: k.vm(l, 'ust')
            else: k.e(l)
        k.tl(6)
        k.stamp(145)
        k.label(lab)
        k.mark('ust')
    RP = (136, 112, 80)
    S30, S31 = ((30 + SLOT0) % NS) * 16384, ((31 + SLOT0) % NS) * 16384
    QO = (0, 1024, 8192, 9216)
    def red_addr():
        k.e('v_lshlrev_b32 v152, 4, v1')
        k.e('s_lshl_b32 s86, s3, 12')
        k.e('s_add_u32 s86, s86, 131072')
        k.e('v_add_u32 v153, s86, v152')
        k.e('v_add_u32 v152, s83, v152')
        k.e('v_xor_b32 v154, 2048, v152')
        k.e('v_xor_b32 v155, 4096, v152')
        k.e('v_xor_b32 v156, 12288, v153')
        if UT:
            k.e('s_xor_b32 s86, s86, 12288')
            k.e('v_and_b32 v157, 31, v1')
            k.e('v_mul_u32_u24 v157, 80, v157')
            k.e('v_lshrrev_b32 v158, 5, v1')
            k.e('v_lshl_add_u32 v157, v158, 3, v157')
            k.e('v_add_u32 v157, s86, v157')
            k.e('v_lshrrev_b32 v158, 2, v1')
            k.e('v_mul_u32_u24 v158, 80, v158')
            k.e('v_and_b32 v159, 3, v1')
            k.e('v_lshl_add_u32 v158, v159, 4, v158')
            k.e('v_add_u32 v158, s86, v158')
        if WPF:
            k.e('s_lshl_b32 s86, s101, 8')
            k.e('v_add_u32 v231, s86, v0')
            k.e('v_lshrrev_b32 v159, 2, v231')
            k.e('v_lshlrev_b32 v159, 12, v159')
            k.e('v_and_b32 v231, 3, v231')
            k.e('v_lshl_add_u32 v159, v231, 7, v159')
            k.e('s_and_b32 s86, s2, 7')
            k.e('s_lshl_b32 s86, s86, 9')
            k.e('v_add_u32 v159, s86, v159')
    HPL = 'buffer_load_dword v231, v230, s[16:19], 0 offen'
    def early_ilv(kk):
        if kk == 0 and HPF: k.vm(HPL, 'hpf')
        if kk == 0 and WPF: k.vm('buffer_load_dword v231, v159, s[28:31], 0 offen', 'hpf')
        if kk == 2 and WI:
            k.nop(4)
            for q in range(4): k.e('ds_write_b128 v152, %s offset:%d' % (a(64 + 4 * q, 4), S30 + QO[q]))
    if KS and E31: stages[32]['early_ilv'] = early_ilv
    def red_write():
        if not WI:
            k.nop(16)
            for q in range(4): k.e('ds_write_b128 v152, %s offset:%d' % (a(64 + 4 * q, 4), S30 + QO[q]))
        for q in range(4): k.e('ds_write_b128 v152, %s offset:%d' % (a(80 + 4 * q, 4), S31 + QO[q]))
        for q in range(4): k.e('ds_write_b128 v153, %s offset:%d' % (a(96 + 4 * q, 4), 1024 * q))
        k.e('s_waitcnt lgkmcnt(0)')
    def red_read():
        if not E31:
            k.e('s_cmp_ge_u32 s101, 22')
            k.e('s_cbranch_scc1 F_RR')
        for q in range(4): k.e('ds_read_b128 %s, v154 offset:%d' % (v(RP[0] + 4 * q, 4), S30 + QO[q]))
        for q in range(4): k.e('ds_read_b128 %s, v155 offset:%d' % (v(RP[1] + 4 * q, 4), S31 + QO[q]))
        for q in range(4): k.e('ds_read_b128 %s, v156 offset:%d' % (v(RP[2] + 4 * q, 4), 1024 * q))
        k.label('F_RR')
    if KS:
        assert not UPF
    else:
        assert not UT
    if KS:
        stages[30]['ilv'].append(F(red_addr))
        if not E31:
            stages[32]['early'] = red_write
            stages[32]['pre'].append(F(red_read))
            stages[32]['noissue'] = 1
    if E31: stages[32]['early'] = ep
    else: stages[32]['extra'].append(F(ep))
    def ust_wait():
        k.e('s_cmp_ge_u32 s101, 22')
        k.e('s_cbranch_scc1 F_UW')
        q = list(k.vmq)
        k.wait_vm('ust')
        k.vmq = q
        k.label('F_UW')
    if RW: stages[32 + UW - 1]['extra'].append(F(ust_wait))
    else: stages[32 + UW - 1]['extra'].append(lambda: [('w', 'ust')])
    stages[32 + UW]['pre'].append(lambda: flag_store(k, 'P3_UFL', 's100', 8, cond=[('e', 's_cmp_ge_u32 s101, 22')]))
    def late_srds():
        srd(k, 4, A_X, 2 << 20); srd(k, 8, A_DSK, 1024); srd(k, 12, B_B2, 4096)
    stages[GU - 2]['extra'].append(lambda: [('e', 's_cmp_lg_u32 s3, 0'), ('e', 's_cbranch_scc1 P3_NOFU'), ('e', FUL), ('e', 'P3_NOFU:'), ('m', 'fu')] + ([] if EPS else [('f', late_srds)]))
    def uchk():
        k.e('s_cmp_lg_u32 s3, 0')
        k.e('s_cbranch_scc1 P3_UOK')
        q = list(k.vmq)
        k.wait_vm('fu')
        k.vmq = q
        if not PPL:
            k.label('P3_UCHK')
            k.e('v_cmp_ne_u32 vcc, v250, v229')
            k.e('s_cbranch_vccz P3_UOK')
            poll_tail(k, 'P3_UCHK', 'P3_UOK', [FUL])
        else:
            PR = [229, 230, 231, 138][:PPL]
            k.e('v_cmp_ne_u32 vcc, v250, v229')
            k.e('s_cbranch_vccz P3_UOK')
            for i, r in enumerate(PR):
                if i: k.e('s_sleep %d' % PSL)
                k.e(FUL.replace('v229', 'v%d' % r))
            k.label('P3_UCHK')
            for r in PR:
                k.e('s_waitcnt vmcnt(%d)' % (PPL - 1))
                k.e('v_cmp_ne_u32 vcc, v250, v%d' % r)
                k.e('s_cbranch_vccz P3_UOK')
                k.e(FUL.replace('v229', 'v%d' % r))
            k.e('s_sub_u32 s96, s96, 1')
            k.e('s_cmp_gt_i32 s96, 0')
            k.e('s_cbranch_scc1 P3_UCHK')
            k.label('P3_UOK')
        k.e('s_barrier')
        k.tl(8)
        for g in range(48, GU + DIST):
            A, B = parts(g)
            emit_items(k, A[0] + A[1])
        if UPF: k.vm('buffer_load_dword v137, v136, s[16:19], 0 offen', 'upf')
    stages[GU]['pre'].append(F(uchk))
    def ep_loads():
        L = [('e', 's_mov_b32 s79, %d' % WS_G), ('v', 'buffer_load_dword %s, v176, s[16:19], s79 offen' % v(GR), 'ep'),
             ('v', 'buffer_load_ushort %s, v177, s[12:15], 0 offen' % v(B2R), 'ep')]
        for q in range(4):
            L.append(('v', 'buffer_load_dwordx2 %s, v178, s[8:11], 0 offen offset:%d' % (v(DR + 2 * q, 2), 16 * q), 'ep'))
        if XT:
            L += [('e', 's_lshl_b32 s86, s3, 12'), ('e', 's_add_u32 m0, s86, 131072'), ('e', 's_mov_b32 s86, 15360'),
                  ('v', 'buffer_load_dwordx4 v179, s[4:7], 0 offen lds', 'ep'),
                  ('v', 'buffer_load_dwordx4 v179, s[4:7], s86 offen offset:1024 lds', 'ep')]
        for q in range(0 if XT else 4):
            L.append(('v', 'buffer_load_dwordx2 %s, v179, s[4:7], 0 offen offset:%d' % (v(XR + 2 * q, 2), 16 * q), 'ep'))
        return L
    if not EPS:
        stages[GU - 1]['ilv'].append(ep_loads)
    else:
        stages[EPL]['extra'].append(lambda: [('f', late_srds)] + ep_loads())
        XF, DF, T2 = 64, 80, 100
        def xd():
            if XT:
                k.e('s_lshl_b32 s86, s3, 12')
                k.e('s_add_u32 s86, s86, 131072')
                k.e('v_and_b32 v100, 31, v1')
                k.e('v_lshrrev_b32 v101, 5, v1')
                k.e('v_lshlrev_b32 v101, 3, v101')
                k.e('v_lshl_add_u32 v100, v100, 6, v101')
                k.e('v_add_u32 v100, s86, v100')
            k.wait_vm('ep')
            if XT:
                for q in range(4): k.e('ds_read_b64 %s, v100 offset:%d' % (v(XR + 2 * q, 2), 16 * q))
            for i in range(8):
                k.e('v_lshlrev_b32 %s, 16, %s' % (v(DF + 2 * i), v(DR + i)))
                k.e('v_and_b32 %s, 0xffff0000, %s' % (v(DF + 2 * i + 1), v(DR + i)))
            if XT: k.e('s_waitcnt lgkmcnt(0)')
            for i in range(8):
                k.e('v_lshlrev_b32 %s, 16, %s' % (v(XF + 2 * i), v(XR + i)))
                k.e('v_and_b32 %s, 0xffff0000, %s' % (v(XF + 2 * i + 1), v(XR + i)))
            k.e('v_lshlrev_b32 v102, 16, %s' % v(B2R))
            k.e('v_sub_f32 v104, 1.0, %s' % v(GR))
            rbf(k, 104, T2)
            for r in range(0, 16, 2):
                k.e('v_pk_mul_f32 %s, %s, %s' % (v(XF + r, 2), v(XF + r, 2), v(DF + r, 2)))
            for r in range(0, 16, 2):
                rbf2(k, XF + r, XF + r + 1, T2)
        stages[GU - 1]['extra'].append(F(xd))
        def apart():
            for r in range(0, 16, 2):
                k.e('v_pk_add_f32 %s, %s, %s' % (v(ACA + r, 2), v(ACA + r, 2), v(XF + r, 2)))
            for r in range(0, 16, 2):
                k.e('v_pk_mul_f32 %s, %s, %s op_sel_hi:[1,0]' % (v(ACA + r, 2), v(ACA + r, 2), v(GR, 2)))
        stages[50]['extra'].append(F(apart))
        def oaddr():
            k.e('s_lshl_b32 s86, s3, 12')
            k.e('s_add_u32 s86, s86, 131072')
            k.e('v_lshrrev_b32 v140, 5, v1')
            k.e('v_and_b32 v141, 7, v1')
            k.e('v_xor_b32 v140, v140, v141')
            k.e('v_lshlrev_b32 v140, 4, v140')
            k.e('v_and_b32 v136, 31, v1')
            k.e('v_lshl_add_u32 v136, v136, 7, v140')
            k.e('v_add_u32 v136, s86, v136')
            for q in range(1, 4): k.e('v_xor_b32 v%d, %d, v136' % (136 + q, q << 5))
            k.e('v_lshrrev_b32 v140, 3, v1')
            k.e('v_xor_b32 v141, v140, v141')
            k.e('v_lshlrev_b32 v141, 4, v141')
            k.e('v_lshl_add_u32 v140, v140, 7, v141')
            k.e('v_add_u32 v140, s86, v140')
            for j in range(1, 4): k.e('s_mov_b32 s%d, %d' % (86 + j, 16384 * j))
        if OT: stages[51]['extra'].append(F(oaddr))
        S66 = ((66 + SLOT0) % NS) * 16384
        def k2addr():
            k.e('s_lshr_b32 s86, s3, 1')
            k.e('s_lshl_b32 s86, s86, 6')
            for st_ in range(2):
                for j in range(2):
                    k.e('v_xor_b32 v%d, s86, v%d' % (144 + 2 * st_ + j, P3_PA + 4 * st_ + j))
                    k.e('v_xor_b32 v%d, 4096, v%d' % (148 + 2 * st_ + j, 144 + 2 * st_ + j))
            k.e('s_lshl_b32 s86, s3, 12')
            k.e('s_add_u32 s86, s86, %d' % S66)
            k.e('v_lshlrev_b32 v142, 4, v1')
            k.e('v_add_u32 v142, s86, v142')
            k.e('v_xor_b32 v143, 8192, v142')
        def last_ilv(kk):
            if kk == 3:
                k.nop(4)
                for q in range(4): k.e('ds_write_b128 v142, %s offset:%d' % (a(64 + 4 * q, 4), 1024 * q))
                k.e('s_waitcnt lgkmcnt(0)')
                k.e('s_barrier')
                for q in range(4): k.e('ds_read_b128 %s, v143 offset:%d' % (v(80 + 4 * q, 4), 1024 * q))
        if K2:
            stages[46]['extra'].append(F(k2addr))
            stages[69]['last_ilv'] = last_ilv
    return stages, issue, parts

def g_run(k, stages):
    FBUF = [(0, 16), (32, 48)]
    ACA, ACB = 160, 208
    GR, B2R, XR, DR = (224, 225, 112, 120) if EPS else (224, 225, 232, 240)
    gemm_loop(k, stages, 8, FBUF, sb=64)
    k.tl(9)
    if not K2: k.nop(13)
    XF, DF, T = 64, 80, 100
    if EPS:
        for q in range(4):
            R2 = (ACB + 4 * q, ACB + 4 * q + 2)
            if K2:
                k.e('s_waitcnt lgkmcnt(3)' if OT else 's_waitcnt lgkmcnt(%d)' % (3 - q))
                for r in R2: k.e('v_pk_add_f32 %s, %s, %s' % (v(r, 2), v(r, 2), v(r - ACB + 80, 2)))
            for r in R2: rbf2(k, r, r + 1, T)
            for r in R2: k.e('v_pk_add_f32 %s, %s, v[102:103] op_sel_hi:[1,0]' % (v(r, 2), v(r, 2)))
            for r in R2: rbf2(k, r, r + 1, T)
            for r in R2: k.e('v_pk_mul_f32 %s, %s, v[104:105] op_sel_hi:[1,0]' % (v(r, 2), v(r, 2)))
            for r in R2: rbf2(k, r, r + 1, T)
            for r in R2: k.e('v_pk_add_f32 %s, %s, %s' % (v(r, 2), v(r, 2), v(r - ACB + ACA, 2)))
            if OT: k.e('ds_write_b128 v%d, %s' % (136 + q, v(ACB + 4 * q, 4)))
            else: k.e('buffer_store_dwordx4 %s, v%d, s[32:35], 0 offen offset:%d' % (v(ACB + 4 * q, 4), P3_OUTA, 32 * q))
        if OT:
            k.e('s_waitcnt lgkmcnt(0)')
            for j in range(4): k.e('ds_read_b128 %s, v140 offset:%d' % (v(ACB + 4 * j, 4), 1024 * j))
            for j in range(4):
                k.e('s_waitcnt lgkmcnt(%d)' % (3 - j))
                k.e('buffer_store_dwordx4 %s, v%d, s[32:35], %s offen%s' % (v(ACB + 4 * j, 4), P3_OUTA, 's%d' % (86 + j) if j else '0', OPOL))
    else: old_ep(k)
    k.stamp(140)
    if DEBUG or TL:
        k.e('s_waitcnt vmcnt(0)')
    k.stamp(141)
    k.tl(10)
    k.tlc(12)
    k.flush_dbg()

def old_ep(k):
    ACA, ACB = 160, 208
    GR, B2R, XR, DR = 224, 225, 232, 240
    XF, DF, T = 64, 80, 100
    for i in range(8):
        k.e('v_lshlrev_b32 %s, 16, %s' % (v(XF + 2 * i), v(XR + i)))
        k.e('v_and_b32 %s, 0xffff0000, %s' % (v(XF + 2 * i + 1), v(XR + i)))
        k.e('v_lshlrev_b32 %s, 16, %s' % (v(DF + 2 * i), v(DR + i)))
        k.e('v_and_b32 %s, 0xffff0000, %s' % (v(DF + 2 * i + 1), v(DR + i)))
    k.e('v_lshlrev_b32 %s, 16, %s' % (v(B2R), v(B2R)))
    OMG = 101
    k.e('v_sub_f32 %s, 1.0, %s' % (v(OMG), v(GR)))
    rbf(k, OMG, T)
    for r in range(16):
        k.e('v_mul_f32 %s, %s, %s' % (v(XF + r), v(XF + r), v(DF + r)))
    for r in range(0, 16, 2):
        rbf2(k, XF + r, XF + r + 1, T)
        rbf2(k, ACB + r, ACB + r + 1, T)
    for r in range(16):
        k.e('v_add_f32 %s, %s, %s' % (v(ACA + r), v(ACA + r), v(XF + r)))
        k.e('v_add_f32 %s, %s, %s' % (v(ACB + r), v(ACB + r), v(B2R)))
    for r in range(0, 16, 2):
        rbf2(k, ACB + r, ACB + r + 1, T)
    for r in range(16):
        k.e('v_mul_f32 %s, %s, %s' % (v(ACB + r), v(ACB + r), v(OMG)))
        k.e('v_mul_f32 %s, %s, %s' % (v(ACA + r), v(ACA + r), v(GR)))
    for r in range(0, 16, 2):
        rbf2(k, ACB + r, ACB + r + 1, T)
    for r in range(16):
        k.e('v_add_f32 %s, %s, %s' % (v(ACA + r), v(ACA + r), v(ACB + r)))
    for q in range(4):
        k.e('buffer_store_dwordx4 %s, v%d, s[32:35], 0 offen offset:%d' % (v(ACA + 4 * q, 4), P3_OUTA, 32 * q))

def r_role(k, issue, parts):
    if RPF:
        srd(k, 12, WS, 2 << 20)
        k.e('s_sub_u32 s74, s73, 22')
        if not RC:
            k.e('s_lshl_b32 s74, s74, 8')
            k.e('v_add_u32 v4, s74, v0')
            k.e('v_lshlrev_b32 v5, 7, v4')
            for i in range(7):
                k.e('s_mov_b32 s84, %d' % (i * 327680))
                k.e('buffer_load_dword v231, v5, s[12:15], s84 offen')
        else:
            k.e('s_cmp_eq_u32 s3, 0')
            k.e('s_cbranch_scc1 R_NOPF')
            k.e('s_mul_i32 s74, s74, 192')
            k.e('s_sub_u32 s74, s74, 64')
            k.e('v_add_u32 v4, s74, v0')
            if FM:
                k.e('v_lshrrev_b32 v5, 2, v4')
                k.e('v_lshlrev_b32 v5, 10, v5')
                k.e('v_and_b32 v4, 3, v4')
                k.e('v_lshl_add_u32 v5, v4, 7, v5')
                k.e('s_and_b32 s84, s2, 1')
                k.e('s_lshl_b32 s84, s84, 9')
                k.e('v_add_u32 v5, s84, v5')
            else: k.e('v_lshlrev_b32 v5, 7, v4')
            for i in range(5 if FM else 9):
                k.e('s_mov_b32 s84, %d' % (i * 480 * 1024 if FM else i * 1920 * 128))
                k.e('buffer_load_dword v231, v5, s[12:15], s84 offen')
            k.label('R_NOPF')
    t_eload(k, 'R')
    t_scale(k, 0, 16)
    t_echeck(k, 'R')
    k.e('s_waitcnt lgkmcnt(0)')
    k.e('s_barrier')
    t_uread(k)
    k.e('s_waitcnt lgkmcnt(0)')
    t_carry(k, 0); t_carry(k, 1)
    for q in range(4): t_hb(k, q)
    k.e('s_waitcnt lgkmcnt(0)')
    t_tread(k)
    k.e('s_waitcnt lgkmcnt(0)')
    t_tstore(k)
    if not RB:
        k.e('s_waitcnt vmcnt(0)')
        k.e('s_barrier')
        emit_items(k, flag_store(k, 'R_HBFL', 's99', 1))
    if PFX:
        srd(k, 20, A_CRE, 1 << 19); srd(k, 24, A_CIM, 1 << 19); srd(k, 28, B_W2, 1376 * 4096)
        k.e('s_sub_u32 s74, s73, 22')
        k.e('s_lshl_b32 s74, s74, 8')
        k.e('v_add_u32 v4, s74, v0')
        k.e('v_lshlrev_b32 v5, 7, v4')
        if PM:
            k.e('v_min_u32 v5, 0x3ff80, v5')
            k.e('s_and_b32 s75, s72, 1')
            k.e('s_lshl_b32 s75, s75, 18')
            k.e('v_add_u32 v5, s75, v5')
        k.e('buffer_load_dword v231, v5, s[20:23], 0 offen')
        k.e('buffer_load_dword v231, v5, s[24:27], 0 offen')
        if not PM:
            k.e('v_add_u32 v6, 327680, v5')
            k.e('buffer_load_dword v231, v6, s[20:23], 0 offen')
            k.e('buffer_load_dword v231, v6, s[24:27], 0 offen')
    if PFX and PM:
        k.e('v_lshrrev_b32 v5, 3, v4')
        k.e('v_lshlrev_b32 v5, 12, v5')
        k.e('v_and_b32 v6, 7, v4')
        k.e('v_lshl_add_u32 v5, v6, 7, v5')
        k.e('s_lshr_b32 s75, s72, 1')
        k.e('s_lshl_b32 s75, s75, 10')
        k.e('v_add_u32 v5, s75, v5')
        for i in range(5):
            if i: k.e('v_add_u32 v%d, %d, v5' % (6 + (i & 1), i * 1310720))
            k.e('buffer_load_dword v231, v%d, s[28:31], 0 offen' % (6 + (i & 1) if i else 5))
    if PFX and not WPF and not PM:
        k.e('v_lshrrev_b32 v5, 2, v4')
        k.e('v_lshlrev_b32 v5, 12, v5')
        k.e('v_and_b32 v6, 3, v4')
        k.e('v_lshl_add_u32 v5, v6, 7, v5')
        k.e('s_lshl_b32 s75, s72, 9')
        k.e('v_add_u32 v5, s75, v5')
        k.e('v_add_u32 v6, 2621440, v5')
        k.e('v_add_u32 v7, 5242880, v5')
        if RW:
            for i in range(3): k.e('v_mov_b32 v%d, v%d' % (152 + i, 5 + i))
        else:
            k.e('buffer_load_dword v231, v5, s[28:31], 0 offen')
            k.e('buffer_load_dword v231, v6, s[28:31], 0 offen')
            k.e('buffer_load_dword v231, v7, s[28:31], 0 offen')
    if RB:
        k.e('s_waitcnt vmcnt(%d)' % (7 if PFX else 0))
        k.e('s_barrier')
        emit_items(k, flag_store(k, 'R_HBFL', 's99', 1))
    k.tl(5)
    for i in range(5): p3_setup(k, i)
    k.e(HBL)
    k.e('s_waitcnt vmcnt(0)')
    k.tl(6)
    hb_check(k, 'R')
    for g in range(32, 32 + DIST):
        if g == HBC + DIST:
            for g2 in range(32, g):
                A, B = parts(g2)
                emit_items(k, B[0] + B[1])
        for grp in issue(g): emit_items(k, grp)
    if RW:
        assert E31 and UT and HPF and not WPF and PFX
        if RW == 2: k.e('buffer_load_dword v231, v230, s[16:19], 0 offen')
        for i in range(3): k.e('buffer_load_dword v231, v%d, s[28:31], 0 offen' % (152 + i))
    elif E31:
        if HPF: k.e('buffer_load_dword v231, v230, s[16:19], 0 offen')
        for q in range((2 if UT else 4) + WPF): k.e('buffer_load_dword v231, v226, s[16:19], s97 offen')
    k.e('s_branch G32')
def gen_fused():
    k = Kern('gated_mix__ssm_conv_s5__mixer_token_mlp__prompt_kernel')
    stages, issue, parts = g_stages(k)
    def setup2():
        fc1_setup2(k)
        if PF: fc1_setup_pf(k)
    hooks = dict(setup=lambda: fc1_setup(k), setup2=setup2, Apart=lambda g: parts(g)[0],
                 A={3: [0, 1], 4: [2], 5: [3, 4], 7: [5, 6], 8: [7]})
    gen_p1(k, hooks)
    k.e('s_cmp_lt_u32 s73, 22')
    k.e('s_cbranch_scc1 F_ROLE')
    q = list(k.vmq)
    r_role(k, issue, parts)
    k.vmq = q
    k.label('F_ROLE')
    for g in range(8):
        B = parts(g)[1]
        emit_items(k, B[0] + B[1])
        if g == EC - 1: t_eload(k, 'F')
        if g in PRO: emit_items(k, pf_slot())
        if (PFY == 3 and g == 7) or PFY - 4 == g: k.vm('buffer_load_dword v231, v198, s[4:7], 0 offen', 'pf')
    k.stamp(15)
    g_run(k, stages)
    k.label('K_END')
    k.e('s_endpgm')
    return finish(k, 368 if KS else 320, 102)

def main():
    hdr = open('gated_mix__ssm_conv_s5__mixer_token_mlp__prompt.s.ref').read().split('\n')
    top = []
    for l in hdr:
        if l.startswith(';') and '@launch' not in l:
            top.append(l)
        elif not l.startswith(';'):
            break
    top.append('; @launch grid=(256,1,1) block=(256,1,1) lds=148736')
    top.append('.amdgcn_target "amdgcn-amd-amdhsa--gfx950"')
    top.append('.text')
    ks = [gen_fused()]
    body = []
    for b, d in ks:
        body += b
    body.append('.section .rodata,"a"')
    for b, d in ks:
        body += d
    out = '\n'.join(top + body) + '\n'
    path = sys.argv[1]
    open(path, 'w').write(out)
    print('wrote', path, len(out), 'bytes')

if __name__ == '__main__':
    main()
```
